```python
import torch

def _softmax(x, axis=-1):
    return torch.softmax(x, dim=axis)
def _gelu(x):
    return torch.nn.functional.gelu(x, approximate="tanh")
def _silu(x):
    return torch.nn.functional.silu(x)
def _sigmoid(x):
    return torch.sigmoid(x)
def _layernorm(x, axis=-1, eps=1e-5):
    m = x.mean(dim=axis, keepdim=True)
    v = x.var(dim=axis, keepdim=True, unbiased=False)
    return (x - m) / torch.sqrt(v + eps)
def _scatter_add(tgt, idx, src, axis=0):
    return tgt.clone().index_add_(axis, idx, src)
def _segment_sum(src, seg, n):
    out = torch.zeros((n,) + src.shape[1:], dtype=src.dtype)
    return out.index_add_(0, seg, src)
def _pad(x, pw):
    flat = tuple(v for pair in reversed(pw) for v in pair)
    return torch.nn.functional.pad(x, flat)

kernel_name = 'concat_heads__linear_kernel_hedgehog__mha_block__prompt'

def setup_inputs():

    _w = (lambda a: (lambda t: t.to(torch.bfloat16) if t.is_floating_point() else t)(torch.as_tensor(a)))
    def _A_setup():
        B, S, D, H = 1, 2048, 640, 32
        Dh = D // H
        return {
            "x": _w((lambda *s: torch.randn(*s, dtype=torch.bfloat16) * 0.4)(B, S, D)),
            "wqkv": _w((lambda *s: torch.randn(*s, dtype=torch.bfloat16) * 0.4)(D, 3 * D)),
            "w_phi": _w((lambda *s: torch.randn(*s, dtype=torch.bfloat16) * 0.4)(H, Dh, Dh) * (Dh ** -0.5)),
            "wo": _w((lambda *s: torch.randn(*s, dtype=torch.bfloat16) * 0.05)(D, D)),
        }
    _A_in = _A_setup()

    def _B_setup():
        B, S, D, H = 1, 2048, 640, 32
        return {
            "x": _w((lambda *s: torch.randn(*s, dtype=torch.bfloat16) * 0.2)(B, S, D)),
            "wqkv": _w((lambda *s: torch.randn(*s, dtype=torch.bfloat16) * 0.2)(D, 3 * D)),
            "wo": _w((lambda *s: torch.randn(*s, dtype=torch.bfloat16) * 0.05)(D, D)),
        }
    _B_in = _B_setup()

    return {
        "A_x": _A_in["x"],
        "A_wqkv": _A_in["wqkv"],
        "A_w_phi": _A_in["w_phi"],
        "A_wo": _A_in["wo"],
        "B_x": _B_in["x"],
        "B_wqkv": _B_in["wqkv"],
        "B_wo": _B_in["wo"],
    }

def reference(A_x, A_wqkv, A_w_phi, A_wo, B_x, B_wqkv, B_wo):
    def _A_ref(x, wqkv, w_phi, wo):
        B, S, D = x.shape
        H = 32; Dh = D // H
        qkv = (lambda x, *d: x.permute(*d))((x @ wqkv).reshape(B, S, 3, H, Dh), 2, 0, 3, 1, 4)
        q, k, v = qkv[0], qkv[1], qkv[2]
        pq = torch.einsum("bhsd,hdf->bhsf", q, w_phi)
        pk = torch.einsum("bhsd,hdf->bhsf", k, w_phi)
        phi_q = torch.concatenate([_softmax(pq, axis=-1), _softmax(-pq, axis=-1)], axis=-1)
        phi_k = torch.concatenate([_softmax(pk, axis=-1), _softmax(-pk, axis=-1)], axis=-1)
        kv = torch.einsum("bhsf,bhsd->bhfd", phi_k, v)
        z  = torch.einsum("bhsf->bhf", phi_k)
        num = torch.einsum("bhqf,bhfd->bhqd", phi_q, kv)
        den = torch.einsum("bhqf,bhf->bhq", phi_q, z)[..., None] + 1e-6
        o = num / den
        return (lambda x, *d: x.permute(*d))(o, 0, 2, 1, 3).reshape(B, S, D) @ wo

    def _B_ref(x, wqkv, wo):
        B, S, D = x.shape
        H = 32
        Dh = D // H
        qkv = (lambda x, *d: x.permute(*d))((x @ wqkv).reshape(B, S, 3, H, Dh), 2, 0, 3, 1, 4)
        q, k, v = qkv[0], qkv[1], qkv[2]
        scores = torch.einsum("bhqd,bhkd->bhqk", q, k) * (Dh ** -0.5)
        p = _softmax(scores, axis=-1)
        o = torch.einsum("bhqk,bhkd->bhqd", p, v)
        return (lambda x, *d: x.permute(*d))(o, 0, 2, 1, 3).reshape(B, S, D) @ wo

    a = _A_ref(A_x, A_wqkv, A_w_phi, A_wo)
    b = _B_ref(B_x, B_wqkv, B_wo)
    return torch.concatenate([a, b], axis=-1)
```

```python
from asmlib import *
from layout import *
from gemm import *
from roles import f32hex, srd, srd_fin, wave_lane, split_roles

AG = G(NC=128, wstride=3840, acc0=64, vbase=1)
A_NVGPR = 128
LOG2E = 1.4426950408889634
S_PH = 44
S_DB = 48
S_L = 52
S_NL = 53
WPE1, WPO1, WPE2, WPO2 = 52, 56, 60, 62

def halves_reduce(a, x, t, op):
    a(f"v_mov_b32 {v(t)}, {v(x)}")
    a("s_nop 1")
    a(f"v_permlane32_swap_b32 {v(x)}, {v(t)}")
    a("s_nop 1")
    a(f"{op} {v(x)}, {v(x)}, {v(t)}")

def feature_task(a, B1, B2, WP1, WP2, D, E, T, POS, NEG):
    a(f"v_mfma_f32_32x32x16_bf16 {v(D,16)}, {v(WP1,4)}, {v(B1,4)}, 0")
    a(f"v_mfma_f32_32x32x8_bf16 {v(D,16)}, {v(WP2,2)}, {v(B2,2)}, {v(D,16)}")
    a("s_nop 7")
    a("s_nop 4")
    MX, MN, TT, SP, SN = T, T+1, T+2, T+3, T+4
    x = [D+i for i in range(10)]
    a(f"v_max3_f32 {v(MX)}, {v(x[0])}, {v(x[1])}, {v(x[2])}")
    a(f"v_min3_f32 {v(MN)}, {v(x[0])}, {v(x[1])}, {v(x[2])}")
    for i in (3, 5, 7):
        a(f"v_max3_f32 {v(MX)}, {v(MX)}, {v(x[i])}, {v(x[i+1])}")
        a(f"v_min3_f32 {v(MN)}, {v(MN)}, {v(x[i])}, {v(x[i+1])}")
    a(f"v_max_f32 {v(MX)}, {v(MX)}, {v(x[9])}")
    a(f"v_min_f32 {v(MN)}, {v(MN)}, {v(x[9])}")
    a(f"v_mov_b32 {v(TT)}, {v(MX)}")
    a(f"v_mov_b32 {v(TT+3)}, {v(MN)}")
    a("s_nop 1")
    a(f"v_permlane32_swap_b32 {v(MX)}, {v(TT)}")
    a(f"v_permlane32_swap_b32 {v(MN)}, {v(TT+3)}")
    a("s_nop 1")
    a(f"v_max_f32 {v(MX)}, {v(MX)}, {v(TT)}")
    a(f"v_min_f32 {v(MN)}, {v(MN)}, {v(TT+3)}")
    a(f"v_mul_f32 {v(MX)}, s{S_NL}, {v(MX)}")
    a(f"v_mul_f32 {v(MN)}, s{S_L}, {v(MN)}")
    e = [E+i for i in range(10)]
    for i in range(10):
        a(f"v_fma_f32 {v(e[i])}, {v(x[i])}, s{S_NL}, {v(MN)}")
        a(f"v_fma_f32 {v(x[i])}, {v(x[i])}, s{S_L}, {v(MX)}")
    for i in range(10):
        a(f"v_exp_f32 {v(x[i])}, {v(x[i])}")
        a(f"v_exp_f32 {v(e[i])}, {v(e[i])}")
    a("s_nop 0")
    a(f"v_add_f32 {v(SP)}, {v(x[0])}, {v(x[1])}")
    a(f"v_add_f32 {v(SN)}, {v(e[0])}, {v(e[1])}")
    for i in range(2, 10):
        a(f"v_add_f32 {v(SP)}, {v(SP)}, {v(x[i])}")
        a(f"v_add_f32 {v(SN)}, {v(SN)}, {v(e[i])}")
    a(f"v_mov_b32 {v(TT)}, {v(SP)}")
    a(f"v_mov_b32 {v(TT+3)}, {v(SN)}")
    a("s_nop 1")
    a(f"v_permlane32_swap_b32 {v(SP)}, {v(TT)}")
    a(f"v_permlane32_swap_b32 {v(SN)}, {v(TT+3)}")
    a("s_nop 1")
    a(f"v_add_f32 {v(SP)}, {v(SP)}, {v(TT)}")
    a(f"v_add_f32 {v(SN)}, {v(SN)}, {v(TT+3)}")
    a(f"v_rcp_f32 {v(SP)}, {v(SP)}")
    a(f"v_rcp_f32 {v(SN)}, {v(SN)}")
    a("s_nop 0")
    for i in range(10):
        a(f"v_mul_f32 {v(x[i])}, {v(x[i])}, {v(SP)}")
        a(f"v_mul_f32 {v(e[i])}, {v(e[i])}, {v(SN)}")
    for i in range(5):
        a(f"v_cvt_pk_bf16_f32 {v(POS+i)}, {v(x[2*i])}, {v(x[2*i+1])}")
        a(f"v_cvt_pk_bf16_f32 {v(NEG+i)}, {v(e[2*i])}, {v(e[2*i+1])}")

def role_a(a, dbg=False):
    g = AG
    VT = 44
    if dbg: stamp(a, 0)
    srd(a, S_X, KA_AX, 0); srd(a, S_W, KA_AWQKV, 0); srd(a, S_O, KA_WS, 0); srd(a, S_PH, KA_AWPHI, 0); srd(a, S_DB, KA_DBG, 0)
    wave_lane(a, 3)
    a(f"s_and_b32 s{S_T}, s2, 7")
    a(f"s_lshr_b32 s{S_T+1}, s2, 3")
    a(f"s_lshr_b32 s{S_T+2}, s{S_T}, 1")
    a(f"s_lshl_b32 s{S_RB}, s{S_T+2}, 2")
    a(f"s_lshr_b32 s{S_T+2}, s{S_T+1}, 3")
    a(f"s_add_u32 s{S_RB}, s{S_RB}, s{S_T+2}")
    a(f"s_and_b32 s{S_CB}, s{S_T}, 1")
    a(f"s_lshl_b32 s{S_CB}, s{S_CB}, 3")
    a(f"s_and_b32 s{S_T+2}, s{S_T+1}, 7")
    a(f"s_add_u32 s{S_CB}, s{S_CB}, s{S_T+2}")
    a(f"s_mul_i32 s{S_XOFF}, s{S_RB}, {128*1280}")
    a(f"s_mul_i32 s{S_WOFF}, s{S_CB}, 80")
    a(f"s_mov_b32 s{S_L}, {f32hex(LOG2E)}")
    a(f"s_mov_b32 s{S_NL}, {f32hex(-LOG2E)}")
    a("s_waitcnt lgkmcnt(0)")
    srd_fin(a, S_X, 2048*1280); srd_fin(a, S_W, 640*3840); srd_fin(a, S_O, WS_SIZE_SRD)
    srd_fin(a, S_PH, 25600); srd_fin(a, S_DB, 256)
    split_roles(a, g, 'qkv')
    t0, t1, t2, t3 = 12, 13, 14, 15
    sph = f"s[{S_PH}:{S_PH+3}]"
    a(f"v_and_b32 {v(t0)}, 31, v0")
    a(f"v_lshrrev_b32 {v(t1)}, 5, v0")
    a(f"v_subrev_u32 {v(t2)}, 2, {v(t0)}")
    a(f"v_cmp_le_u32 vcc, 20, {v(t0)}")
    a("s_nop 1")
    a(f"v_cndmask_b32 {v(t2)}, {v(t0)}, {v(t2)}, vcc")
    a(f"v_lshlrev_b32 {v(t2)}, 1, {v(t2)}")
    a(f"v_and_b32 {v(t3)}, 30, {v(t0)}")
    a(f"v_cmp_eq_u32 vcc, 18, {v(t3)}")
    a(f"v_cmp_le_u32 s[{S_T+2-1}:{S_T+2}], 22, {v(t0)}") if (S_T+1) % 2 == 0 else a(f"v_cmp_le_u32 s[{S_T+3}:{S_T+4}], 22, {v(t0)}")
    PAIR = (S_T+1) if (S_T+1) % 2 == 0 else (S_T+3)
    a("s_nop 1")
    a(f"s_or_b64 vcc, vcc, s[{PAIR}:{PAIR+1}]")
    a(f"v_mov_b32 {v(t3)}, 0x20000")
    a("s_nop 1")
    a(f"v_cndmask_b32 {v(t2)}, {v(t2)}, {v(t3)}, vcc")
    a(f"v_mul_u32_u24 {v(t3)}, 160, {v(t1)}")
    a(f"v_add_u32 {v(t0)}, {v(t2)}, {v(t3)}")
    a(f"s_mul_i32 s{S_T}, s{S_CB}, 1600")
    TMP = 64
    n_ = 0
    packs = []
    for (reg, hoff, dadd) in ((WPE1, 0, 0), (WPO1, 800, 4)):
        for j in range(8):
            d = dadd + (j if j < 4 else j + 4)
            a(f"buffer_load_ushort {v(TMP+n_)}, {v(t0)}, {sph}, s{S_T} offen offset:{hoff + d*40}")
            if j & 1: packs.append((reg + j//2, TMP+n_-1, TMP+n_))
            n_ += 1
    a(f"v_cmp_eq_u32 vcc, 0, {v(t1)}")
    a(f"v_mov_b32 {v(t3)}, 0x20000")
    a("s_nop 0")
    a(f"v_cndmask_b32 {v(t0)}, {v(t3)}, {v(t2)}, vcc")
    a(f"v_cndmask_b32 {v(t1)}, {v(t2)}, {v(t3)}, vcc")
    for (reg, va, base) in ((WPE2, t0, 16*40), (WPO2, t1, 800)):
        for j in range(4):
            a(f"buffer_load_ushort {v(TMP+n_)}, {v(va)}, {sph}, s{S_T} offen offset:{base + j*40}")
            if j & 1: packs.append((reg + j//2, TMP+n_-1, TMP+n_))
            n_ += 1
    a("s_waitcnt vmcnt(0)")
    for (dst, lo, hi) in packs:
        a(f"v_lshl_or_b32 {v(dst)}, {v(hi)}, 16, {v(lo)}")
    compute_addrs(a, g, 12)
    compute_loop(a, g, ['FT']*4)
    if dbg: a('s_memtime s[72:73]')
    PG = 4
    a("s_nop 7")
    a("s_nop 3")
    for Gc in range(15):
        R = g.acc + 16*(Gc//4) + 4*(Gc % 4)
        a(f"v_cvt_pk_bf16_f32 {v(PG+2*Gc)}, {v(R)}, {v(R+1)}")
        a(f"v_cvt_pk_bf16_f32 {v(PG+2*Gc+1)}, {v(R+2)}, {v(R+3)}")
    a("s_barrier")
    D, E, T = 64, 80, 92
    POS, NEG = 100, 106
    VA_, VS_, VH_ = 34, 35, 36
    a(f"v_and_b32 {v(VA_)}, 31, v0")
    a(f"s_lshl_b32 s{S_T}, s{S_WAVE}, 5")
    a(f"v_add_u32 {v(VA_)}, s{S_T}, {v(VA_)}")
    a(f"v_bfe_u32 {v(VS_)}, {v(VA_)}, 1, 3")
    a(f"v_lshlrev_b32 {v(VA_)}, 6, {v(VA_)}")
    a(f"v_lshrrev_b32 {v(VH_)}, 5, v0")
    def piece_addr(dst, pc_lo, pc_hi, extra_lo=0, extra_hi=0):
        if pc_hi - pc_lo == 1 and extra_hi == extra_lo:
            a(f"v_add_u32 {v(dst)}, {pc_lo}, {v(VH_)}")
            a(f"v_xor_b32 {v(dst)}, {v(dst)}, {v(VS_)}")
            a(f"v_lshl_add_u32 {v(dst)}, {v(dst)}, 3, {v(VA_)}")
            if extra_lo: a(f"v_add_u32 {v(dst)}, {extra_lo}, {v(dst)}")
        else:
            a(f"v_mul_i32_i24 {v(dst)}, {pc_hi-pc_lo}, {v(VH_)}")
            a(f"v_add_u32 {v(dst)}, {pc_lo}, {v(dst)}")
            a(f"v_xor_b32 {v(dst)}, {v(dst)}, {v(VS_)}")
            a(f"v_lshl_add_u32 {v(dst)}, {v(dst)}, 3, {v(VA_)}")
            a(f"v_mul_i32_i24 {v(37)}, {extra_hi-extra_lo}, {v(VH_)}")
            a(f"v_add_u32 {v(dst)}, {v(dst)}, {v(37)}")
            if extra_lo: a(f"v_add_u32 {v(dst)}, {extra_lo}, {v(dst)}")
    PHI_OFF = 0
    VP_OFF = 32768
    A01, A23, A4 = 38, 39, 40
    piece_addr(A01, 0, 1)
    piece_addr(A23, 2, 3)
    piece_addr(A4, 4, 4, 0, 4)
    for hd, (B1, B2, W1, W2) in enumerate(((PG+10, PG+14, WPE1, WPE2), (PG+16, PG+14, WPO1, WPO2))):
        feature_task(a, B1, B2, W1, W2, D, E, T, POS, NEG)
        for pn, P_ in enumerate((POS, NEG)):
            off = PHI_OFF + (hd*2 + pn)*8192
            a(f"ds_write_b64 {v(A01)}, {v(P_,2)} offset:{off}")
            a(f"ds_write_b64 {v(A23)}, {v(P_+2,2)} offset:{off}")
            a(f"ds_write_b32 {v(A4)}, {v(P_+4)} offset:{off}")
    AV = 41
    vmap = [((0, 0), (0, 1)), ((0, 2), (0, 3)), ((0, 4), (1, 0)), ((1, 1), (1, 2)), ((1, 3), (1, 4))]
    for Gv in range(5):
        (h0, p0), (h1, p1) = vmap[Gv]
        piece_addr(AV, p0, p1, h0*8192, h1*8192)
        a(f"ds_write_b64 {v(AV)}, {v(PG+2*(10+Gv),2)} offset:{VP_OFF}")
    piece_addr(AV, 5, 5, 0, 8192)
    a(f"v_mov_b32 {v(T)}, 0x3f80")
    a(f"v_mov_b32 {v(T+1)}, 0")
    a(f"ds_write_b64 {v(AV)}, {v(T,2)} offset:{VP_OFF}")
    a("s_waitcnt lgkmcnt(0)")
    a("s_barrier")
    R0, R1 = 38, 39
    a(f"v_bfe_u32 {v(T)}, v0, 2, 2")
    a(f"v_lshrrev_b32 {v(T+1)}, 5, v0")
    a(f"v_lshlrev_b32 {v(T+2)}, 3, {v(T+1)}")
    a(f"v_add_u32 {v(T+2)}, {v(T+2)}, {v(T)}")
    a(f"v_lshlrev_b32 {v(T+2)}, 6, {v(T+2)}")
    a(f"v_bfe_u32 {v(T+3)}, v0, 4, 1")
    a(f"v_lshlrev_b32 {v(T+3)}, 2, {v(T+3)}")
    a(f"v_and_b32 {v(T+4)}, 3, v0")
    a(f"v_add_u32 {v(T+3)}, {v(T+3)}, {v(T+4)}")
    a(f"v_lshlrev_b32 {v(T+4)}, 2, {v(T+1)}")
    a(f"v_lshrrev_b32 {v(T+5)}, 1, {v(T)}")
    a(f"v_add_u32 {v(T+4)}, {v(T+4)}, {v(T+5)}")
    a(f"v_xor_b32 {v(T+5)}, {v(T+3)}, {v(T+4)}")
    a(f"v_lshl_add_u32 {v(R0)}, {v(T+5)}, 3, {v(T+2)}")
    a(f"v_add_u32 {v(T+4)}, 2, {v(T+4)}")
    a(f"v_xor_b32 {v(T+5)}, {v(T+3)}, {v(T+4)}")
    a(f"v_lshl_add_u32 {v(R1)}, {v(T+5)}, 3, {v(T+2)}")
    a(f"v_add_u32 {v(R1)}, 256, {v(R1)}")
    a(f"s_and_b32 s{S_T}, s{S_WAVE}, 1")
    a(f"s_lshr_b32 s{S_T+1}, s{S_WAVE}, 1")
    a(f"s_lshl_b32 s{S_T+2}, s{S_T}, 1")
    a(f"s_add_u32 s{S_T+2}, s{S_T+2}, s{S_T+1}")
    a(f"s_lshl_b32 s{S_T+2}, s{S_T+2}, 13")
    a(f"s_lshl_b32 s{S_T+3}, s{S_T}, 13")
    a(f"s_add_u32 s{S_T+3}, s{S_T+3}, {VP_OFF}")
    PA0, PA1, VB0, VB1 = 40, 41, 42, 43
    a(f"v_add_u32 {v(PA0)}, s{S_T+2}, {v(R0)}")
    a(f"v_add_u32 {v(PA1)}, s{S_T+2}, {v(R1)}")
    a(f"v_add_u32 {v(VB0)}, s{S_T+3}, {v(R0)}")
    a(f"v_add_u32 {v(VB1)}, s{S_T+3}, {v(R1)}")
    FA, FB = 80, 112
    for half in range(2):
        for ks in range(4):
            k_ = half*4 + ks
            a(f"ds_read_b64_tr_b16 {v(80+8*ks,2)}, {v(VB0)} offset:{k_*1024}")
            a(f"ds_read_b64_tr_b16 {v(80+8*ks+2,2)}, {v(VB1)} offset:{k_*1024}")
            a(f"ds_read_b64_tr_b16 {v(80+8*ks+4,2)}, {v(PA0)} offset:{k_*1024}")
            a(f"ds_read_b64_tr_b16 {v(80+8*ks+6,2)}, {v(PA1)} offset:{k_*1024}")
        for ks in range(4):
            a(f"s_waitcnt lgkmcnt({4*(3-ks)})")
            c = "0" if (half == 0 and ks == 0) else v(D,16)
            a(f"v_mfma_f32_32x32x16_bf16 {v(D,16)}, {v(80+8*ks+4,4)}, {v(80+8*ks,4)}, {c}")
    so = f"s[{S_O}:{S_O+3}]"
    a(f"v_and_b32 {v(T)}, 31, v0")
    a(f"v_lshrrev_b32 {v(T+1)}, 5, v0")
    a(f"v_mul_u32_u24 {v(T+2)}, 80, {v(T)}")
    a(f"v_lshl_add_u32 {v(T+2)}, {v(T+1)}, 4, {v(T+2)}")
    a(f"s_lshl_b32 s{S_T+2}, s{S_CB}, 1")
    a(f"s_add_u32 s{S_T+2}, s{S_T+2}, s{S_T}")
    a(f"s_lshl_b32 s{S_T+2}, s{S_T+2}, 1")
    a(f"s_add_u32 s{S_T+2}, s{S_T+2}, s{S_T+1}")
    a(f"s_lshl_b32 s{S_T+3}, s{S_RB}, 6")
    a(f"s_add_u32 s{S_T+2}, s{S_T+2}, s{S_T+3}")
    a(f"s_mul_i32 s{S_T+2}, s{S_T+2}, {KVS_REC}")
    a(f"s_add_u32 s{S_T+2}, s{S_T+2}, {WS_KVP}")
    a(f"v_cmp_ge_u32 vcc, 20, {v(T)}")
    a("s_nop 4")
    a("s_and_b64 exec, exec, vcc")
    a(f"buffer_store_dwordx4 {v(D,4)}, {v(T+2)}, {so}, s{S_T+2} offen sc1")
    a(f"buffer_store_dwordx4 {v(D+4,4)}, {v(T+2)}, {so}, s{S_T+2} offen offset:32 sc1")
    a("s_mov_b32 exec_hi, 0")
    a(f"buffer_store_dwordx4 {v(D+8,4)}, {v(T+2)}, {so}, s{S_T+2} offen offset:64 sc1")
    a("s_mov_b64 exec, -1")
    D2 = 112
    QP = [[100, 106], [14, 20]]
    for hd, (B1, B2, W1, W2) in enumerate(((PG+0, PG+4, WPE1, WPE2), (PG+6, PG+4, WPO1, WPO2))):
        feature_task(a, B1, B2, W1, W2, D2, E, T, QP[hd][0], QP[hd][1])
        a(f"v_mov_b32 {v(QP[hd][0]+5)}, 0")
        a(f"v_mov_b32 {v(QP[hd][1]+5)}, 0")
    if dbg: a('s_memtime s[74:75]')
    sdb = f"s[{S_DB}:{S_DB+3}]"
    a("s_waitcnt vmcnt(0)")
    a("s_barrier")
    lw = a.newlabel("a_wait_done")
    a(f"s_cmp_lg_u32 s{S_WAVE}, 0")
    a(f"s_cbranch_scc1 {lw}")
    a(f"s_lshl_b32 s{S_T}, s{S_CB}, 7")
    a(f"s_add_u32 s{S_T}, s{S_T}, {WS_FLAG}")
    a(f"s_lshl_b32 s{S_T+3}, s{S_RB}, 2")
    a(f"v_mov_b32 {v(T)}, s{S_T+3}")
    a(f"v_mov_b32 {v(T+1)}, 1")
    a("s_mov_b64 exec, 1")
    a(f"buffer_store_dword {v(T+1)}, {v(T)}, {so}, s{S_T} offen sc1")
    a("s_mov_b64 exec, 0xffff")
    a(f"v_lshlrev_b32 {v(T)}, 2, v0")
    a(f"s_mov_b32 s{S_T+1}, 0")
    lp = a.newlabel("a_poll")
    a.label(lp)
    a(f"buffer_load_dword {v(T+2)}, {v(T)}, {so}, s{S_T} offen sc1")
    a("s_waitcnt vmcnt(0)")
    a(f"v_cmp_eq_u32 vcc, 1, {v(T+2)}")
    a(f"s_add_u32 s{S_T+1}, s{S_T+1}, 1")
    a("s_nop 1")
    a(f"s_cmp_eq_u32 vcc_lo, 0xffff")
    lpd = a.newlabel("a_poll_done")
    a(f"s_cbranch_scc1 {lpd}")
    a("s_sleep 8")
    a(f"s_cmp_lt_u32 s{S_T+1}, 0x40000")
    a(f"s_cbranch_scc1 {lp}")
    a.label(lpd)
    a("s_mov_b64 exec, -1")
    a.label(lw)
    a("s_barrier")
    if dbg: a('s_memtime s[76:77]')
    a(f"s_and_b32 s{S_T}, s{S_WAVE}, 1")
    a(f"s_lshr_b32 s{S_T+1}, s{S_WAVE}, 1")
    a(f"s_lshl_b32 s{S_T}, s{S_T}, 1")
    a(f"s_add_u32 s{S_T}, s{S_T}, s{S_T+1}")
    a(f"s_lshl_b32 s{S_T+1}, s{S_CB}, 2")
    a(f"s_add_u32 s{S_T+1}, s{S_T+1}, s{S_T}")
    a(f"s_mul_i32 s{S_T+1}, s{S_T+1}, {KVS_REC}")
    a(f"s_add_u32 s{S_T+1}, s{S_T+1}, {WS_KVP}")
    a(f"v_lshlrev_b32 {v(44)}, 4, v0")
    a(f"v_add_u32 {v(45)}, 1024, {v(44)}")
    a(f"v_mov_b32 {v(46)}, 0x7000000")
    a(f"v_cmp_gt_u32 vcc, 41, v0")
    a("s_nop 1")
    a(f"v_cndmask_b32 {v(45)}, {v(46)}, {v(45)}, vcc")
    ACC = 26
    RB0 = 64
    for i in range(8):
        a(f"v_mov_b32 {v(ACC+i)}, 0")
    def issue(b, base):
        for r_ in range(4):
            rb_ = 4*b + r_
            a(f"s_add_u32 s{S_T+2}, s{S_T+1}, {rb_*64*KVS_REC}")
            a(f"buffer_load_dwordx4 {v(base+8*r_,4)}, {v(44)}, {so}, s{S_T+2} offen sc1")
            a(f"buffer_load_dwordx4 {v(base+8*r_+4,4)}, {v(45)}, {so}, s{S_T+2} offen sc1")
    def accum(base, nvm):
        a(f"s_waitcnt vmcnt({nvm})")
        for r_ in range(4):
            for i in range(8):
                a(f"v_add_f32 {v(ACC+i)}, {v(ACC+i)}, {v(base+8*r_+i)}")
    BA, BB = 64, 112 - 0
    issue(0, 64)
    def issue2(rb0, base):
        for r_ in range(2):
            rb_ = rb0 + r_
            a(f"s_add_u32 s{S_T+2}, s{S_T+1}, {rb_*64*KVS_REC}")
            a(f"buffer_load_dwordx4 {v(base+8*r_,4)}, {v(44)}, {so}, s{S_T+2} offen sc1")
            a(f"buffer_load_dwordx4 {v(base+8*r_+4,4)}, {v(45)}, {so}, s{S_T+2} offen sc1")
    def accum2(base, nvm):
        a(f"s_waitcnt vmcnt({nvm})")
        for r_ in range(2):
            for i in range(8):
                a(f"v_add_f32 {v(ACC+i)}, {v(ACC+i)}, {v(base+8*r_+i)}")
    issue2(4, 112)
    accum(64, 4)
    issue(0, 64) if False else None
    for r_ in range(4):
        rb_ = 6 + r_
        a(f"s_add_u32 s{S_T+2}, s{S_T+1}, {rb_*64*KVS_REC}")
        a(f"buffer_load_dwordx4 {v(64+8*r_,4)}, {v(44)}, {so}, s{S_T+2} offen sc1")
        a(f"buffer_load_dwordx4 {v(64+8*r_+4,4)}, {v(45)}, {so}, s{S_T+2} offen sc1")
    accum2(112, 8)
    issue2(10, 112)
    accum(64, 4)
    for r_ in range(4):
        rb_ = 12 + r_
        a(f"s_add_u32 s{S_T+2}, s{S_T+1}, {rb_*64*KVS_REC}")
        a(f"buffer_load_dwordx4 {v(64+8*r_,4)}, {v(44)}, {so}, s{S_T+2} offen sc1")
        a(f"buffer_load_dwordx4 {v(64+8*r_+4,4)}, {v(45)}, {so}, s{S_T+2} offen sc1")
    accum2(112, 8)
    accum(64, 0)
    a(f"s_lshl_b32 s{S_T}, s{S_T}, 11")
    a(f"v_add_u32 {v(46)}, s{S_T}, {v(44)}")
    a(f"ds_write_b128 {v(46)}, {v(ACC,4)}")
    a(f"s_mov_b64 s[{S_T+1}:{S_T+2}], exec")
    a(f"v_cmp_gt_u32 vcc, 41, v0")
    a("s_nop 1")
    a("s_and_b64 exec, exec, vcc")
    a(f"ds_write_b128 {v(46)}, {v(ACC+4,4)} offset:1024")
    a("s_mov_b64 exec, -1")
    a("s_waitcnt lgkmcnt(0)")
    a("s_barrier")
    a(f"v_and_b32 {v(T)}, 31, v0")
    a(f"v_lshrrev_b32 {v(T+1)}, 5, v0")
    a(f"v_mov_b32 {v(T+2)}, 20")
    a(f"v_cmp_eq_u32 vcc, 24, {v(T)}")
    a("s_nop 1")
    a(f"v_cndmask_b32 {v(T)}, {v(T)}, {v(T+2)}, vcc")
    a(f"v_min_u32 {v(T+3)}, 20, {v(T)}")
    a(f"v_mul_u32_u24 {v(T+2)}, 80, {v(T+3)}")
    a(f"v_lshl_add_u32 {v(44)}, {v(T+1)}, 4, {v(T+2)}")
    a(f"v_lshl_add_u32 {v(45)}, {v(T+1)}, 3, {v(T+2)}")
    a(f"v_cmp_lt_u32 vcc, 20, {v(T)}")
    RAW = [64, 74, 84, 116]
    for c in range(4):
        a(f"ds_read_b128 {v(RAW[c],4)}, {v(44)} offset:{c*2048}")
        a(f"ds_read_b128 {v(RAW[c]+4,4)}, {v(44)} offset:{c*2048+32}")
        a(f"ds_read_b64 {v(RAW[c]+8,2)}, {v(45)} offset:{c*2048+64}")
    KF = [26, 32, 38, 94]
    for c in range(4):
        a(f"s_waitcnt lgkmcnt({3*(3-c)})")
        for i in range(5):
            a(f"v_cvt_pk_bf16_f32 {v(KF[c]+i)}, {v(RAW[c]+2*i)}, {v(RAW[c]+2*i+1)}")
            a(f"v_cndmask_b32 {v(KF[c]+i)}, {v(KF[c]+i)}, 0, vcc") if False else None
        a(f"v_mov_b32 {v(KF[c]+5)}, 0")
    a("s_nop 1")
    DO = [64, 112]
    for hd in range(2):
        P_, N_ = QP[hd]
        a(f"v_mfma_f32_32x32x16_bf16 {v(DO[hd],16)}, {v(KF[2*hd],4)}, {v(P_,4)}, 0")
        a(f"v_mfma_f32_32x32x8_bf16 {v(DO[hd],16)}, {v(KF[2*hd]+4,2)}, {v(P_+4,2)}, {v(DO[hd],16)}")
        a(f"v_mfma_f32_32x32x16_bf16 {v(DO[hd],16)}, {v(KF[2*hd+1],4)}, {v(N_,4)}, {v(DO[hd],16)}")
        a(f"v_mfma_f32_32x32x8_bf16 {v(DO[hd],16)}, {v(KF[2*hd+1]+4,2)}, {v(N_+4,2)}, {v(DO[hd],16)}")
    TT = 100
    a(f"v_and_b32 {v(TT)}, 31, v0")
    a(f"v_lshrrev_b32 {v(TT+1)}, 5, v0")
    a(f"s_lshl_b32 s{S_T}, s{S_RB}, 7")
    a(f"s_lshl_b32 s{S_T+1}, s{S_WAVE}, 5")
    a(f"s_add_u32 s{S_T}, s{S_T}, s{S_T+1}")
    a(f"v_add_u32 {v(TT)}, s{S_T}, {v(TT)}")
    a(f"v_mul_u32_u24 {v(TT)}, 1280, {v(TT)}")
    a(f"v_lshlrev_b32 {v(TT+2)}, 3, {v(TT+1)}")
    a(f"v_add_u32 {v(TT)}, {v(TT)}, {v(TT+2)}")
    a(f"s_mul_i32 s{S_T+2}, s{S_CB}, 80")
    a(f"s_add_u32 s{S_T+2}, s{S_T+2}, {WS_OA}")
    a(f"v_cmp_eq_u32 vcc, 0, {v(TT+1)}")
    a(f"s_mov_b32 s{S_T+3}, {f32hex(1e-6)}")
    a("s_nop 7")
    a("s_nop 7")
    for hd in range(2):
        O = DO[hd]
        a(f"v_cndmask_b32 {v(TT+3)}, {v(O+8)}, {v(O+12)}, vcc")
        a(f"v_add_f32 {v(TT+3)}, s{S_T+3}, {v(TT+3)}")
        a(f"v_rcp_f32 {v(TT+3)}, {v(TT+3)}")
        a("s_nop 0")
        for i in range(12):
            a(f"v_mul_f32 {v(O+i)}, {v(O+i)}, {v(TT+3)}")
        for i in range(6):
            a(f"v_cvt_pk_bf16_f32 {v(TT+4+i)}, {v(O+2*i)}, {v(O+2*i+1)}")
        a(f"buffer_store_dwordx2 {v(TT+4,2)}, {v(TT)}, {so}, s{S_T+2} offen offset:{40*hd}")
        a(f"buffer_store_dwordx2 {v(TT+6,2)}, {v(TT)}, {so}, s{S_T+2} offen offset:{40*hd+16}")
        a("s_mov_b32 exec_hi, 0")
        a(f"buffer_store_dwordx2 {v(TT+8,2)}, {v(TT)}, {so}, s{S_T+2} offen offset:{40*hd+32}")
        a("s_mov_b64 exec, -1")
    if dbg:
        a("s_waitcnt vmcnt(0)")
        stamp_end(a, WS_DBG, KA_WS, S_WAVE, idsgpr="s54")
    a("s_endpgm")
```

```python
class Asm:
    def __init__(self):
        self.lines = []
        self.uid = 0
    def __call__(self, s):
        for l in s.split("\n"):
            l = l.strip()
            if l:
                self.lines.append("    " + l)
    def label(self, l):
        self.lines.append(l + ":")
    def raw(self, s):
        self.lines.append(s)
    def newlabel(self, base):
        self.uid += 1
        return f"L_{base}_{self.uid}"
    def text(self):
        return "\n".join(self.lines) + "\n"

def v(i, n=1):
    return f"v{i}" if n == 1 else f"v[{i}:{i+n-1}]"
def s(i, n=1):
    return f"s{i}" if n == 1 else f"s[{i}:{i+n-1}]"

def kernel_header(a, name):
    a.raw(f".globl {name}")
    a.raw(".p2align 8")
    a.raw(f".type {name},@function")
    a.label(name)

def kernel_desc(name, nvgpr, nsgpr=102):
    acc = (nvgpr + 3)//4*4
    return f""".p2align 6
.amdhsa_kernel {name}
  .amdhsa_next_free_vgpr {nvgpr}
  .amdhsa_next_free_sgpr {nsgpr}
  .amdhsa_accum_offset {acc}
  .amdhsa_group_segment_fixed_size 0
  .amdhsa_kernarg_size 80
  .amdhsa_user_sgpr_count 2
  .amdhsa_user_sgpr_kernarg_segment_ptr 1
  .amdhsa_system_sgpr_workgroup_id_x 1
.end_amdhsa_kernel
"""

def stamp(a, k):
    a(f"s_memtime s[{70+2*k}:{71+2*k}]")
    if k == 0:
        a("s_memrealtime s[82:83]")
    if k == 1:
        a("s_memrealtime s[76:77]")
    if k == 2:
        a("s_memrealtime s[78:79]")
DBGK = [0]
def stamp_end(a, ws_dbg, ka_ws, wave_sgpr, idsgpr="s2"):
    ws_dbg = ws_dbg + DBGK[0]*512*512
    a("s_memtime s[80:81]")
    a("s_memrealtime s[84:85]")
    a(f"s_load_dwordx2 s[88:89], s[0:1], {ka_ws}")
    a("s_waitcnt lgkmcnt(0)")
    a("s_mov_b32 s90, 0x2000000")
    a("s_mov_b32 s91, 0x00020000")
    a("s_mov_b64 exec, 1")
    for i in range(16):
        a(f"v_mov_b32 v{2+i}, s{70+i}")
    a(f"s_lshl_b32 s92, {idsgpr}, 9")
    a(f"s_lshl_b32 s93, s{wave_sgpr}, 6")
    a("s_add_u32 s92, s92, s93")
    a(f"s_add_u32 s92, s92, {ws_dbg}")
    a("v_mov_b32 v20, 0")
    for i in range(4):
        a(f"buffer_store_dwordx4 v[{2+4*i}:{5+4*i}], v20, s[88:91], s92 offen offset:{16*i}")
```

```python
from asmlib import *
from layout import *

CH = 8
CH_BYTES = CH * TILE_REC
NCH = 64 // CH
OPT = dict(nodma=False, nobar=False, nolds=False, prio=False)

V_A16 = 1
V_A8  = 2
V_G16 = 3
SA, SB = 4, 20
OA, OB = 36, 52
PA, PB = 68, 76
Q1A, Q1B = 84, 88
Q2A, Q2B = 92, 94
K1 = [96, 100]
VV0 = [104, 112]
VV1 = [108, 116]
K2 = [120, 122]
ATTN_NVGPR = 124
V_T0 = SA

S_WS = 8
S_HEAD = 12
S_QB = 13
S_WAVE = 14
S_DMAOFF = 15
S_LDSW = 16
S_BUFD = 17
S_CNT = 18
S_DMABUF = 19
S_T = 20

def mfma32(a, d, A, B, C, k16=True):
    op = "v_mfma_f32_32x32x16_bf16" if k16 else "v_mfma_f32_32x32x8_bf16"
    n = 4 if k16 else 2
    c = "0" if C is None else v(C, 16)
    a(f"{op} {v(d,16)}, {v(A,n)}, {v(B,n)}, {c}")

PENDING = []
def cvts(a, Sr, P, q):
    a(f"v_cvt_pk_bf16_f32 {v(P+2*q)}, {v(Sr+4*q)}, {v(Sr+4*q+1)}")
    a(f"v_cvt_pk_bf16_f32 {v(P+2*q+1)}, {v(Sr+4*q+2)}, {v(Sr+4*q+3)}")
def flush_cvts(a):
    while PENDING:
        cvts(a, *PENDING.pop(0))
def exps(a, Sr, P, q):
    for i in range(4):
        a(f"v_exp_f32 {v(Sr+4*q+i)}, {v(Sr+4*q+i)}")
    flush_cvts(a)
    PENDING.append((Sr, P, q))

def dma_chunk(a):
    srd = f"s[{S_WS}:{S_WS+3}]"
    a(f"s_add_u32 m0, s{S_DMABUF}, s{S_LDSW}")
    a("s_nop 0")
    for i in range(4):
        a(f"buffer_load_dwordx4 {v(V_G16)}, {srd}, s{S_DMAOFF} offen offset:{i*1024} lds")
    a(f"s_add_u32 m0, m0, 4096")
    a(f"s_add_u32 s{S_DMAOFF}, s{S_DMAOFF}, 4096")
    for i in range(3):
        a(f"buffer_load_dwordx4 {v(V_G16)}, {srd}, s{S_DMAOFF} offen offset:{i*1024} lds")
    a(f"s_add_u32 s{S_DMAOFF}, s{S_DMAOFF}, {CH_BYTES-4096}")

def gen_attn(a, dbg_time=False):
    srd = f"s[{S_WS}:{S_WS+3}]"
    if dbg_time: stamp(a, 0)
    a(f"s_load_dwordx2 s[{S_WS}:{S_WS+1}], s[0:1], {KA_WS}")
    a(f"s_and_b32 s{S_T}, s2, 7")
    a(f"s_lshr_b32 s{S_T+1}, s2, 3")
    a(f"s_and_b32 s{S_T+2}, s{S_T+1}, 3")
    a(f"s_lshl_b32 s{S_HEAD}, s{S_T}, 2")
    a(f"s_add_u32 s{S_HEAD}, s{S_HEAD}, s{S_T+2}")
    a(f"s_lshr_b32 s{S_QB}, s{S_T+1}, 2")
    a(f"v_lshrrev_b32 {v(SA)}, 6, v0")
    a(f"v_and_b32 v0, 63, v0")
    a(f"v_readfirstlane_b32 s{S_WAVE}, {v(SA)}")
    a(f"v_lshlrev_b32 {v(V_G16)}, 4, v0")
    a(f"s_mul_i32 s{S_T+6}, s{S_HEAD}, {KV_HEAD}")
    a("s_waitcnt lgkmcnt(0)")
    a(f"s_mov_b32 s{S_WS+2}, {WS_SIZE_SRD}")
    a(f"s_mov_b32 s{S_WS+3}, 0x00020000")
    lcomp = a.newlabel("attn_compute")
    a(f"s_cmp_lt_u32 s{S_WAVE}, 4")
    a(f"s_cbranch_scc1 {lcomp}")
    a(f"s_sub_u32 s{S_T}, s{S_WAVE}, 4")
    a(f"s_mul_i32 s{S_LDSW}, s{S_T}, 7168")
    a(f"s_add_u32 s{S_DMAOFF}, s{S_T+6}, s{S_LDSW}")
    a(f"s_mov_b32 s{S_DMABUF}, 0")
    dma_chunk(a)
    a(f"s_mov_b32 s{S_DMABUF}, {CH_BYTES}")
    a(f"s_mov_b32 s{S_CNT}, 0")
    a("s_waitcnt vmcnt(0)")
    a("s_barrier")
    lloop = a.newlabel("ld_loop"); lskip = a.newlabel("ld_skip")
    a.label(lloop)
    a(f"s_cmp_ge_u32 s{S_CNT}, {NCH-1}")
    a(f"s_cbranch_scc1 {lskip}")
    if not OPT['nodma']:
        dma_chunk(a)
    a(f"s_sub_u32 s{S_DMABUF}, {CH_BYTES}, s{S_DMABUF}")
    a("s_waitcnt vmcnt(0)")
    a.label(lskip)
    if not OPT['nobar']:
        a("s_barrier")
    a(f"s_add_u32 s{S_CNT}, s{S_CNT}, 1")
    a(f"s_cmp_lt_u32 s{S_CNT}, {NCH}")
    a(f"s_cbranch_scc1 {lloop}")
    if dbg_time:
        stamp(a, 1); stamp(a, 2)
        stamp_end(a, WS_DBG, KA_WS, S_WAVE)
    a("s_endpgm")
    a.label(lcomp)
    if OPT['prio']: a("s_setprio 1")
    a(f"v_mov_b32 {v(V_A16)}, {v(V_G16)}")
    a(f"v_lshlrev_b32 {v(V_A8)}, 3, v0")
    a(f"s_lshl_b32 s{S_T}, s{S_QB}, 3")
    a(f"s_lshl_b32 s{S_T+1}, s{S_WAVE}, 1")
    a(f"s_add_u32 s{S_T}, s{S_T}, s{S_T+1}")
    a(f"s_lshl_b32 s{S_T+1}, s{S_HEAD}, 6")
    a(f"s_add_u32 s{S_T+1}, s{S_T+1}, s{S_T}")
    a(f"s_lshl_b32 s{S_T+1}, s{S_T+1}, 10")
    a(f"s_add_u32 s{S_T+1}, s{S_T+1}, {WS_Q1}")
    a(f"buffer_load_dwordx4 {v(Q1A,4)}, {v(V_G16)}, {srd}, s{S_T+1} offen")
    a(f"buffer_load_dwordx4 {v(Q1B,4)}, {v(V_G16)}, {srd}, s{S_T+1} offen offset:1024")
    a(f"s_lshr_b32 s{S_T+2}, s{S_HEAD}, 1")
    a(f"s_lshl_b32 s{S_T+2}, s{S_T+2}, 6")
    a(f"s_add_u32 s{S_T+2}, s{S_T+2}, s{S_T}")
    a(f"s_lshl_b32 s{S_T+2}, s{S_T+2}, 9")
    a(f"s_add_u32 s{S_T+2}, s{S_T+2}, {WS_Q2}")
    a(f"buffer_load_dwordx2 {v(Q2A,2)}, {v(V_A8)}, {srd}, s{S_T+2} offen")
    a(f"buffer_load_dwordx2 {v(Q2B,2)}, {v(V_A8)}, {srd}, s{S_T+2} offen offset:512")
    a(f"s_add_u32 s{S_T+3}, s{S_T+6}, {63*TILE_REC}")
    a(f"buffer_load_dwordx4 {v(K1[1],4)}, {v(V_G16)}, {srd}, s{S_T+3} offen")
    a(f"buffer_load_dwordx2 {v(K2[1],2)}, {v(V_A8)}, {srd}, s{S_T+3} offen offset:3072")
    for r in list(range(OA, OA+32)) + list(range(PB, PB+8)) + list(range(SB+12, SB+16)) + list(range(VV0[1], VV0[1]+4)) + list(range(VV1[1], VV1[1]+4)):
        a(f"v_mov_b32 {v(r)}, 0")
    a(f"s_and_b32 s{S_T+3}, s{S_HEAD}, 1")
    a(f"s_cmp_eq_u32 s{S_T+3}, 0")
    a(f"s_cselect_b32 s{S_T+4}, 0, -1")
    a(f"s_cselect_b32 s{S_T+5}, -1, 0")
    a(f"s_mov_b32 s{S_BUFD}, {CH_BYTES}")
    a("s_waitcnt vmcnt(0)")
    a(f"s_mov_b64 exec, s[{S_T+4}:{S_T+5}]")
    for r in (Q2A, Q2A+1, Q2B, Q2B+1):
        a(f"v_mov_b32 {v(r)}, 0")
    a("s_mov_b64 exec, -1")
    a("s_nop 1")
    mfma32(a, SA, K1[1], Q1A, None)
    mfma32(a, SA, K2[1], Q2A, SA, k16=False)
    a(f"s_mov_b32 s{S_CNT}, 0")
    a("s_barrier")
    def rd(txt):
        if not OPT['nolds']: a(txt)
    def reads(st, off):
        rd(f"ds_read_b128 {v(K1[st],4)}, {v(V_A16)} offset:{off}")
        rd(f"ds_read_b128 {v(VV0[st],4)}, {v(V_A16)} offset:{off+1024}")
        rd(f"ds_read_b64 {v(K2[st],2)}, {v(V_A8)} offset:{off+3072}")
        rd(f"ds_read_b128 {v(VV1[st],4)}, {v(V_A16)} offset:{off+2048}")
    reads(0, 0)
    a("s_nop 7")
    if dbg_time:
        stamp(a, 1)
        a("s_waitcnt lgkmcnt(0)")
    loop = a.newlabel("attn_loop")
    a.raw(".p2align 6")
    a.label(loop)
    PENDING.clear(); PENDING.append((SB, PB, 3))
    for j in range(CH):
        p = j & 1; pn = p ^ 1
        mfma32(a, OB, VV0[pn], PB, OB)
        exps(a, SA, PA, 0)
        mfma32(a, SB, K1[pn], Q1B, None)
        exps(a, SA, PA, 1)
        mfma32(a, SB, K2[pn], Q2B, SB, k16=False)
        exps(a, SA, PA, 2)
        mfma32(a, OB, VV1[pn], PB+4, OB)
        exps(a, SA, PA, 3)
        if not OPT['nolds']: a("s_waitcnt lgkmcnt(0)")
        if j == CH-1:
            if not OPT['nobar']:
                a("s_barrier")
            a(f"v_add_u32 {v(V_A16)}, s{S_BUFD}, {v(V_A16)}")
            a(f"v_add_u32 {v(V_A8)}, s{S_BUFD}, {v(V_A8)}")
            a(f"s_sub_u32 s{S_BUFD}, 0, s{S_BUFD}")
            off = 0
        else:
            off = (j+1)*TILE_REC
        mfma32(a, OA, VV0[p], PA, OA)
        rd(f"ds_read_b128 {v(K1[pn],4)}, {v(V_A16)} offset:{off}")
        rd(f"ds_read_b128 {v(VV0[pn],4)}, {v(V_A16)} offset:{off+1024}")
        exps(a, SB, PB, 0)
        mfma32(a, SA, K1[p], Q1A, None)
        rd(f"ds_read_b64 {v(K2[pn],2)}, {v(V_A8)} offset:{off+3072}")
        rd(f"ds_read_b128 {v(VV1[pn],4)}, {v(V_A16)} offset:{off+2048}")
        exps(a, SB, PB, 1)
        mfma32(a, SA, K2[p], Q2A, SA, k16=False)
        exps(a, SB, PB, 2)
        mfma32(a, OA, VV1[p], PA+4, OA)
        exps(a, SB, PB, 3)
    a(f"s_add_u32 s{S_CNT}, s{S_CNT}, 1")
    a(f"s_cmp_lt_u32 s{S_CNT}, {NCH}")
    a(f"s_cbranch_scc1 {loop}")
    if dbg_time: stamp(a, 2)
    flush_cvts(a)
    a("s_nop 1")
    mfma32(a, OB, VV0[1], PB, OB)
    mfma32(a, OB, VV1[1], PB+4, OB)
    T = 84
    a(f"v_and_b32 {v(T)}, 31, v0")
    a(f"v_lshrrev_b32 {v(T+1)}, 5, v0")
    a(f"s_lshl_b32 s{S_T}, s{S_QB}, 8")
    a(f"s_lshl_b32 s{S_T+1}, s{S_WAVE}, 6")
    a(f"s_add_u32 s{S_T}, s{S_T}, s{S_T+1}")
    a(f"v_add_u32 {v(T)}, s{S_T}, {v(T)}")
    a(f"v_mul_u32_u24 {v(T)}, 1280, {v(T)}")
    a(f"v_lshlrev_b32 {v(T+2)}, 3, {v(T+1)}")
    a(f"v_add_u32 {v(T)}, {v(T)}, {v(T+2)}")
    a(f"s_mul_i32 s{S_T+2}, s{S_HEAD}, 40")
    a(f"s_add_u32 s{S_T+2}, s{S_T+2}, {WS_OB}")
    a(f"v_cmp_eq_u32 vcc, 0, {v(T+1)}")
    a("s_nop 1")
    for n_, (O, extra) in enumerate(((OA, 0), (OB, 32*1280))):
        if n_ == 1:
            a("s_nop 7")
        a(f"v_cndmask_b32 {v(T+3)}, {v(O+8)}, {v(O+12)}, vcc")
        a(f"v_rcp_f32 {v(T+3)}, {v(T+3)}")
        a("s_nop 0")
        for i in range(12):
            a(f"v_mul_f32 {v(O+i)}, {v(O+i)}, {v(T+3)}")
        for i in range(6):
            a(f"v_cvt_pk_bf16_f32 {v(T+4+i)}, {v(O+2*i)}, {v(O+2*i+1)}")
        if extra:
            a(f"s_add_u32 s{S_T+2}, s{S_T+2}, {extra}")
        a(f"buffer_store_dwordx2 {v(T+4,2)}, {v(T)}, {srd}, s{S_T+2} offen")
        a(f"buffer_store_dwordx2 {v(T+6,2)}, {v(T)}, {srd}, s{S_T+2} offen offset:16")
        a("s_mov_b32 exec_hi, 0")
        a(f"buffer_store_dwordx2 {v(T+8,2)}, {v(T)}, {srd}, s{S_T+2} offen offset:32")
        a(f"s_mov_b64 exec, -1")
    if dbg_time:
        a("s_waitcnt vmcnt(0)")
        stamp_end(a, WS_DBG, KA_WS, S_WAVE)
    a("s_endpgm")
```

```python
from asmlib import *
from layout import *

S_X = 8
S_W = 12
S_O = 16
S_WAVE = 20
S_XOFF = 21
S_WOFF = 22
S_LB = 23
S_ST = 24
S_T = 25
S_RB = 40
S_CB = 41
BK = 32
NST = 640 // BK
NB = 4
XBYTES = 128 * 64

GOPT = dict(noload=False, nocomp=False, nomfma=False)
class G:
    def __init__(self, NC, wstride, acc0, vbase):
        self.NC = NC; self.wstride = wstride
        self.NT = NC // 32
        self.rowb = NC * 2
        self.wbytes = BK * self.rowb
        self.stage = XBYTES + self.wbytes
        self.lds = NB * self.stage
        self.acc = acc0
        r = vbase
        self.vxr = r; r += 2
        self.nwr = {128: 4, 96: 1, 64: 2}[NC]
        self.vwr = r; r += self.nwr
        r = (r + 3) // 4 * 4
        self.xf = [r, r + 4]; r += 8
        self.wf = [[r + 4 * i + 4 * self.NT * b for i in range(self.NT)] for b in range(2)]; r += 8 * self.NT
        self.vend = r

def loader_addrs(a, g, colmode):
    t0, t1, t2, t3 = 3, 4, 5, 6
    a(f"v_lshrrev_b32 {v(t0)}, 2, v0")
    a(f"v_lshrrev_b32 {v(t1)}, 4, v0")
    a(f"v_and_b32 {v(t2)}, 3, v0")
    a(f"v_xor_b32 {v(t2)}, {v(t2)}, {v(t1)}")
    a(f"v_lshlrev_b32 {v(t2)}, 4, {v(t2)}")
    a(f"s_lshl_b32 s{S_T}, s{S_WAVE}, 4")
    a(f"v_add_u32 {v(t0)}, s{S_T}, {v(t0)}")
    a(f"v_mul_u32_u24 v1, 1280, {v(t0)}")
    a(f"v_add_u32 v1, v1, {v(t2)}")
    if g.NC == 128:
        a(f"v_lshrrev_b32 {v(t0)}, 4, v0")
        a(f"v_and_b32 {v(t1)}, 15, v0")
        a(f"v_lshlrev_b32 {v(t2)}, 2, {v(t0)}")
        a(f"v_xor_b32 {v(t1)}, {v(t1)}, {v(t2)}")
        if colmode == 'qkv':
            a(f"v_mov_b32 {v(t2)}, 0")
            for lim, add in ((5, 1200), (10, 2400), (15, -240)):
                a(f"v_cmp_le_u32 vcc, {lim}, {v(t1)}")
                a(f"v_mov_b32 {v(t3)}, {add}")
                a("s_nop 0")
                a(f"v_cndmask_b32 {v(t2)}, {v(t2)}, {v(t3)}, vcc")
            a(f"v_lshlrev_b32 {v(t1)}, 4, {v(t1)}")
            a(f"v_add_u32 {v(t1)}, {v(t1)}, {v(t2)}")
        else:
            a(f"v_lshlrev_b32 {v(t1)}, 4, {v(t1)}")
        a(f"s_lshl_b32 s{S_T}, s{S_WAVE}, 3")
        a(f"v_add_u32 {v(t0)}, s{S_T}, {v(t0)}")
        a(f"v_mul_u32_u24 v2, {g.wstride}, {v(t0)}")
        a(f"v_add_u32 v2, v2, {v(t1)}")
    elif g.NC == 64:
        a(f"v_lshrrev_b32 {v(t0)}, 3, v0")
        a(f"v_and_b32 {v(t1)}, 7, v0")
        a(f"v_bfe_u32 {v(t2)}, {v(t0)}, 1, 1")
        a(f"v_lshlrev_b32 {v(t2)}, 2, {v(t2)}")
        a(f"v_xor_b32 {v(t1)}, {v(t1)}, {v(t2)}")
        a(f"v_lshlrev_b32 {v(t1)}, 4, {v(t1)}")
        a(f"s_lshl_b32 s{S_T}, s{S_WAVE}, 3")
        a(f"v_add_u32 {v(t0)}, s{S_T}, {v(t0)}")
        a(f"v_mul_u32_u24 v2, {g.wstride}, {v(t0)}")
        a(f"v_add_u32 v2, v2, {v(t1)}")
    else:
        a(f"s_lshl_b32 s{S_T}, s{S_WAVE}, 6")
        a(f"v_add_u32 {v(t0)}, s{S_T}, v0")
        a(f"v_mul_u32_u24 {v(t1)}, 43691, {v(t0)}")
        a(f"v_lshrrev_b32 {v(t1)}, 19, {v(t1)}")
        a(f"v_mul_u32_u24 {v(t2)}, 12, {v(t1)}")
        a(f"v_sub_u32 {v(t2)}, {v(t0)}, {v(t2)}")
        a(f"v_lshlrev_b32 {v(t3)}, 4, {v(t2)}")
        if colmode == 'kv':
            a(f"v_cmp_le_u32 vcc, 5, {v(t2)}")
            a(f"v_mov_b32 {v(t0)}, 1200")
            a("s_nop 0")
            a(f"v_cndmask_b32 {v(t0)}, 0, {v(t0)}, vcc")
            a(f"v_cmp_le_u32 vcc, 10, {v(t2)}")
            a(f"v_mov_b32 {v(t2)}, -160")
            a("s_nop 0")
            a(f"v_cndmask_b32 {v(t0)}, {v(t0)}, {v(t2)}, vcc")
            a(f"v_add_u32 {v(t3)}, {v(t3)}, {v(t0)}")
        a(f"v_mul_u32_u24 v2, {g.wstride}, {v(t1)}")
        a(f"v_add_u32 v2, v2, {v(t3)}")

def loader_issue(a, g, with_w=True):
    sx = f"s[{S_X}:{S_X+3}]"; sw = f"s[{S_W}:{S_W+3}]"
    a(f"s_add_u32 m0, s{S_LB}, s{S_T+2}")
    a(f"s_add_u32 s{S_T+1}, s{S_XOFF}, {64*1280}")
    a(f"buffer_load_dwordx4 v1, {sx}, s{S_XOFF} offen lds")
    a(f"s_add_u32 m0, m0, 4096")
    a(f"s_add_u32 s{S_XOFF}, s{S_XOFF}, {BK*2}")
    a(f"buffer_load_dwordx4 v1, {sx}, s{S_T+1} offen lds")
    n = 2
    if with_w:
        if g.NC == 128:
            a(f"s_add_u32 m0, s{S_LB}, s{S_T+3}")
            a(f"s_add_u32 s{S_T+1}, s{S_WOFF}, {4*g.wstride-1024}")
            a(f"buffer_load_dwordx4 v2, {sw}, s{S_WOFF} offen lds")
            a(f"buffer_load_dwordx4 v2, {sw}, s{S_T+1} offen offset:1024 lds")
            n += 2
        elif g.NC == 64:
            a(f"s_add_u32 m0, s{S_LB}, s{S_T+3}")
            a("s_nop 0")
            a(f"buffer_load_dwordx4 v2, {sw}, s{S_WOFF} offen lds")
            n += 1
        else:
            a(f"s_add_u32 m0, s{S_LB}, s{S_T+3}")
            a(f"s_add_u32 s{S_T+1}, s{S_WOFF}, {16*g.wstride-3072}")
            a(f"buffer_load_dwordx4 v2, {sw}, s{S_WOFF} offen lds")
            a(f"buffer_load_dwordx4 v2, {sw}, s{S_T+1} offen offset:3072 lds")
            n += 2
    a(f"s_add_u32 s{S_WOFF}, s{S_WOFF}, {BK*g.wstride}")
    a(f"s_add_u32 s{S_LB}, s{S_LB}, {g.stage}")
    a(f"s_cmp_ge_u32 s{S_LB}, {NB*g.stage}")
    a(f"s_cselect_b32 s{S_LB}, 0, s{S_LB}")
    return n

def loader_body(a, g, with_w):
    a(f"s_mov_b32 s{S_LB}, 0")
    for s_ in range(NB-1):
        n = loader_issue(a, g, with_w)
    a(f"s_mov_b32 s{S_ST}, 0")
    loop = a.newlabel("gl_loop")
    a.label(loop)
    a(f"s_waitcnt vmcnt({(NB-2)*n})")
    a("s_barrier")
    if not GOPT['noload']: loader_issue(a, g, with_w)
    a(f"s_add_u32 s{S_ST}, s{S_ST}, 1")
    a(f"s_cmp_lt_u32 s{S_ST}, {NST-NB+1}")
    a(f"s_cbranch_scc1 {loop}")
    for k in range(NB-2, -1, -1):
        a(f"s_waitcnt vmcnt({k*n})")
        a("s_barrier")
    a("s_endpgm")

def loader(a, g, colmode):
    loader_addrs(a, g, colmode)
    a(f"s_lshl_b32 s{S_T+2}, s{S_WAVE}, 10")
    if g.NC == 128:
        a(f"s_lshl_b32 s{S_T+3}, s{S_WAVE}, 11")
    else:
        a(f"s_lshl_b32 s{S_T+3}, s{S_WAVE}, 10")
    a(f"s_add_u32 s{S_T+3}, s{S_T+3}, {XBYTES}")
    if g.NC == 96:
        l3 = a.newlabel("gl_w3")
        a(f"s_cmp_eq_u32 s{S_WAVE}, 3")
        a(f"s_cbranch_scc1 {l3}")
        loader_body(a, g, True)
        a.label(l3)
        loader_body(a, g, False)
    else:
        loader_body(a, g, True)

def compute_addrs(a, g, vt):
    t0, t1, t2 = vt, vt + 1, vt + 2
    a(f"v_and_b32 {v(t0)}, 31, v0")
    a(f"s_lshl_b32 s{S_T}, s{S_WAVE}, 5")
    a(f"v_add_u32 {v(t0)}, s{S_T}, {v(t0)}")
    a(f"v_bfe_u32 {v(t1)}, {v(t0)}, 2, 2")
    a(f"v_lshrrev_b32 {v(t2)}, 5, v0")
    a(f"v_xor_b32 {v(t1)}, {v(t1)}, {v(t2)}")
    a(f"v_lshlrev_b32 {v(t1)}, 4, {v(t1)}")
    a(f"v_lshlrev_b32 {v(t0)}, 6, {v(t0)}")
    a(f"v_add_u32 {v(g.vxr)}, {v(t0)}, {v(t1)}")
    a(f"v_xor_b32 {v(g.vxr+1)}, 32, {v(g.vxr)}")
    a(f"v_bfe_u32 {v(t0)}, v0, 2, 2")
    a(f"v_lshrrev_b32 {v(t1)}, 5, v0")
    a(f"v_lshlrev_b32 {v(t1)}, 3, {v(t1)}")
    a(f"v_add_u32 {v(t1)}, {v(t1)}, {v(t0)}")
    a(f"v_mul_u32_u24 {v(t1)}, {g.rowb}, {v(t1)}")
    a(f"v_bfe_u32 {v(t2)}, v0, 4, 1")
    a(f"v_lshlrev_b32 {v(t2)}, 5, {v(t2)}")
    a(f"v_add_u32 {v(t1)}, {v(t1)}, {v(t2)}")
    a(f"v_and_b32 {v(t2)}, 3, v0")
    a(f"v_lshlrev_b32 {v(t2)}, 3, {v(t2)}")
    a(f"v_add_u32 {v(t1)}, {v(t1)}, {v(t2)}")
    a(f"v_add_u32 {v(t1)}, {XBYTES}, {v(t1)}")
    if g.NC == 128:
        for ct in range(4):
            a(f"v_xor_b32 {v(t2)}, {ct}, {v(t0)}")
            a(f"v_lshlrev_b32 {v(t2)}, 6, {v(t2)}")
            a(f"v_add_u32 {v(g.vwr+ct)}, {v(t1)}, {v(t2)}")
    elif g.NC == 96:
        a(f"v_mov_b32 {v(g.vwr)}, {v(t1)}")
    else:
        a(f"v_lshrrev_b32 {v(t0)}, 1, {v(t0)}")
        for ct in range(2):
            a(f"v_xor_b32 {v(t2)}, {ct}, {v(t0)}")
            a(f"v_lshlrev_b32 {v(t2)}, 6, {v(t2)}")
            a(f"v_add_u32 {v(g.vwr+ct)}, {v(t1)}, {v(t2)}")

def rd_frags(a, g, buf, ks, b):
    if GOPT['nocomp']: return
    base = buf * g.stage
    a(f"ds_read_b128 {v(g.xf[b],4)}, {v(g.vxr+ks)} offset:{base}")
    for i in range(g.NT):
        if g.NC == 96:
            addr = g.vwr; off = base + i*64 + ks*16*g.rowb
        else:
            addr = g.vwr + i; off = base + ks*16*g.rowb
        a(f"ds_read_b64_tr_b16 {v(g.wf[b][i],2)}, {v(addr)} offset:{off}")
        a(f"ds_read_b64_tr_b16 {v(g.wf[b][i]+2,2)}, {v(addr)} offset:{off+4*g.rowb}")

def mfmas(a, g, b, orient, nt_use=None):
    if GOPT['nocomp'] or GOPT['nomfma']: return
    for i in range(g.NT if nt_use is None else nt_use):
        d = g.acc + 16*i
        if orient[i] == 'FT':
            a(f"v_mfma_f32_32x32x16_bf16 {v(d,16)}, {v(g.wf[b][i],4)}, {v(g.xf[b],4)}, {v(d,16)}")
        else:
            a(f"v_mfma_f32_32x32x16_bf16 {v(d,16)}, {v(g.xf[b],4)}, {v(g.wf[b][i],4)}, {v(d,16)}")

def compute_loop(a, g, orient, dbg=False):
    for r in range(g.acc, g.acc + 16*g.NT):
        a(f"v_mov_b32 {v(r)}, 0")
    for r in list(range(g.xf[1], g.xf[1]+4)) + [g.wf[1][i]+k for i in range(g.NT) for k in range(4)]:
        a(f"v_mov_b32 {v(r)}, 0")
    a(f"s_mov_b32 s{S_ST}, 0")
    if dbg:
        a("s_memtime s[78:79]")
        a("s_waitcnt lgkmcnt(0)")
    nrd = 1 + 2*g.NT
    loop = a.newlabel("gc_loop")
    a.label(loop)
    for b in range(NB):
        a("s_waitcnt lgkmcnt(0)")
        a("s_barrier")
        if dbg and b == 0:
            sk = a.newlabel("st")
            a(f"s_cmp_lg_u32 s{S_ST}, 0")
            a(f"s_cbranch_scc1 {sk}")
            a("s_memtime s[76:77]")
            a("s_waitcnt lgkmcnt(0)")
            a.label(sk)
        rd_frags(a, g, b, 0, 0)
        mfmas(a, g, 1, orient)
        rd_frags(a, g, b, 1, 1)
        a(f"s_waitcnt lgkmcnt({nrd})")
        mfmas(a, g, 0, orient)
    a(f"s_add_u32 s{S_ST}, s{S_ST}, {NB}")
    a(f"s_cmp_lt_u32 s{S_ST}, {NST}")
    a(f"s_cbranch_scc1 {loop}")
    a("s_waitcnt lgkmcnt(0)")
    mfmas(a, g, 1, orient)
```

```python
S = 2048; D = 640; H = 32; DH = 20
TILE_REC = 3584
KV_HEAD = 64 * TILE_REC
WS_KV  = 0
WS_Q1  = 0x700000
WS_Q2  = 0x900000
WS_OB  = 0x980000
WS_OA  = 0xC00000
WS_KVS = 0xE80000
KVS_REC = 21*20*4
KVS_BYTES = 64*KVS_REC
WS_SIZE_SRD = 0x2000000
KA_AX, KA_AWQKV, KA_AWPHI, KA_AWO, KA_BX, KA_BWQKV, KA_BWO, KA_OUT, KA_DBG, KA_WS = [8*i for i in range(10)]
QSCALE = (20 ** -0.5) * 1.4426950408889634
WS_DBG = 0x1800000
WS_KVP = 0xF00000
WS_FLAG = 0xE80000
WS_PHQ = 0x1100000
WS_FLAGB = WS_FLAG + 2048
WS_FLAGA = WS_FLAG + 4096
```

```python
from asmlib import *
from layout import *
from gemm import *
import struct

def f32hex(x):
    return "0x%08x" % struct.unpack("<I", struct.pack("<f", x))[0]

def srd(a, s0, kaoff, nbytes):
    a(f"s_load_dwordx2 s[{s0}:{s0+1}], s[0:1], {kaoff}")
def srd_fin(a, s0, nbytes):
    a(f"s_mov_b32 s{s0+2}, {nbytes}")
    a(f"s_mov_b32 s{s0+3}, 0x00020000")

def wave_lane(a, vt):
    a(f"v_lshrrev_b32 {v(vt)}, 6, v0")
    a(f"v_and_b32 v0, 63, v0")
    a(f"v_readfirstlane_b32 s{S_WAVE}, {v(vt)}")
    a("s_nop 3")
    a(f"s_lshr_b32 s{S_T+14}, s{S_WAVE}, 2")
    a(f"s_and_b32 s{S_WAVE}, s{S_WAVE}, 3")

def split_roles(a, g, colmode):
    lc = a.newlabel("compute")
    a(f"s_cmp_eq_u32 s{S_T+14}, 0")
    a(f"s_cbranch_scc1 {lc}")
    loader(a, g, colmode)
    a.label(lc)

PREFETCH = True
BQ = G(NC=128, wstride=3840, acc0=64, vbase=1)
BQ_NVGPR = 128
def role_bqkv(a, dbg=False):
    g = BQ
    VT = 52
    assert g.vend <= VT, g.vend
    if dbg: stamp(a, 0)
    srd(a, S_X, KA_BX, 0); srd(a, S_W, KA_BWQKV, 0); srd(a, S_O, KA_WS, 0)
    wave_lane(a, VT)
    a(f"s_and_b32 s{S_T}, s2, 7")
    a(f"s_lshr_b32 s{S_T+1}, s2, 3")
    a(f"s_lshr_b32 s{S_T+2}, s{S_T}, 1")
    a(f"s_lshl_b32 s{S_T+2}, s{S_T+2}, 2")
    a(f"s_and_b32 s{S_T+3}, s{S_T}, 1")
    a(f"s_lshr_b32 s{S_T+4}, s{S_T+1}, 3")
    a(f"s_and_b32 s{S_T+5}, s{S_T+1}, 7")
    a(f"s_mul_i32 s{S_T+6}, s{S_T+1}, 37")
    a(f"s_lshr_b32 s{S_T+6}, s{S_T+6}, 8")
    a(f"s_mul_i32 s{S_T+7}, s{S_T+6}, 7")
    a(f"s_sub_u32 s{S_T+7}, s{S_T+1}, s{S_T+7}")
    a(f"s_add_u32 s{S_T+7}, s{S_T+7}, 8")
    a(f"s_cmp_eq_u32 s{S_T+3}, 0")
    a(f"s_cselect_b32 s{S_RB}, s{S_T+4}, s{S_T+6}")
    a(f"s_cselect_b32 s{S_CB}, s{S_T+5}, s{S_T+7}")
    a(f"s_add_u32 s{S_RB}, s{S_RB}, s{S_T+2}")
    a(f"s_mul_i32 s{S_XOFF}, s{S_RB}, {128*1280}")
    a(f"s_lshl_b32 s{S_WOFF}, s{S_CB}, 8")
    a("s_waitcnt lgkmcnt(0)")
    srd_fin(a, S_X, 2048*1280); srd_fin(a, S_W, 640*3840); srd_fin(a, S_O, WS_SIZE_SRD)
    lnopf = a.newlabel("bq_nopf")
    if PREFETCH:
        a(f"s_cmp_lg_u32 s{S_T+14}, 0")
        a(f"s_cbranch_scc1 {lnopf}")
        sw = f"s[{S_W}:{S_W+3}]"; sx = f"s[{S_X}:{S_X+3}]"
        a(f"s_mul_i32 s{S_T+8}, s{S_T+1}, 320")
        a(f"s_lshl_b32 s{S_T+9}, s{S_WAVE}, 6")
        a(f"s_add_u32 s{S_T+8}, s{S_T+8}, s{S_T+9}")
        a(f"v_add_u32 {v(VT)}, s{S_T+8}, v0")
        a(f"v_lshrrev_b32 {v(VT+1)}, 4, {v(VT)}")
        a(f"v_and_b32 {v(VT+2)}, 15, {v(VT)}")
        a(f"v_mul_u32_u24 {v(VT+1)}, 3840, {v(VT+1)}")
        a(f"v_lshlrev_b32 {v(VT+2)}, 7, {v(VT+2)}")
        a(f"v_add_u32 {v(VT+1)}, {v(VT+1)}, {v(VT+2)}")
        a(f"s_lshl_b32 s{S_T+9}, s{S_T+3}, 11")
        a(f"buffer_load_dword {v(VT+3)}, {v(VT+1)}, {sw}, s{S_T+9} offen")
        l1 = a.newlabel("bq_pf1"); l2 = a.newlabel("bq_pf2")
        a(f"s_cmp_eq_u32 s{S_WAVE}, 0")
        a(f"s_cbranch_scc0 {l1}")
        a(f"s_add_u32 s{S_T+9}, s{S_T+9}, {16*3840}")
        a(f"buffer_load_dword {v(VT+4)}, {v(VT+1)}, {sw}, s{S_T+9} offen")
        a(f"s_branch {l2}")
        a.label(l1)
        a(f"s_mul_i32 s{S_T+8}, s{S_T+1}, 160")
        a(f"s_lshl_b32 s{S_T+9}, s{S_WAVE}, 6")
        a(f"s_add_u32 s{S_T+8}, s{S_T+8}, s{S_T+9}")
        a(f"s_sub_u32 s{S_T+8}, s{S_T+8}, 64")
        a(f"v_add_u32 {v(VT)}, s{S_T+8}, v0")
        a(f"v_lshlrev_b32 {v(VT)}, 7, {v(VT)}")
        a(f"s_mul_i32 s{S_T+9}, s{S_T+2}, {128*1280}")
        a(f"buffer_load_dword {v(VT+4)}, {v(VT)}, {sx}, s{S_T+9} offen")
        a.label(l2)
    a.label(lnopf)
    lgo = a.newlabel("bq_go")
    a(f"s_cmp_eq_u32 s{S_T+3}, 0")
    a(f"s_cbranch_scc1 {lgo}")
    a(f"s_cmp_lt_u32 s{S_T+1}, 28")
    a(f"s_cbranch_scc1 {lgo}")
    a(f"s_cmp_lg_u32 s2, {28*8+1}")
    lz0 = a.newlabel("bq_z0")
    a(f"s_cbranch_scc1 {lz0}")
    a(f"s_mov_b32 s{S_T}, {WS_FLAG}")
    a(f"s_lshl_b32 s{S_T+2}, s{S_T+14}, 2")
    a(f"s_add_u32 s{S_T+2}, s{S_T+2}, s{S_WAVE}")
    a(f"s_lshl_b32 s{S_T+2}, s{S_T+2}, 6")
    a(f"v_add_u32 {v(VT)}, s{S_T+2}, v0")
    a(f"v_lshlrev_b32 {v(VT+1)}, 4, {v(VT)}")
    for i in range(4):
        a(f"v_mov_b32 {v(VT+4+i)}, 0")
    a(f"v_cmp_gt_u32 vcc, 128, {v(VT)}")
    a("s_nop 1")
    a("s_and_b64 exec, exec, vcc")
    lz = a.newlabel("bq_zskip")
    a(f"s_cbranch_execz {lz}")
    a(f"buffer_store_dwordx4 {v(VT+4,4)}, {v(VT+1)}, s[{S_O}:{S_O+3}], s{S_T} offen sc1")
    a.label(lz)
    a.label(lz0)
    a("s_endpgm")
    a.label(lgo)
    split_roles(a, g, 'lin')
    compute_addrs(a, g, VT)
    lv = a.newlabel("bq_v")
    a(f"s_cmp_ge_u32 s{S_CB}, 10")
    a(f"s_cbranch_scc1 {lv}")
    compute_loop(a, g, ['FT']*4, dbg)
    if dbg: a('s_memtime s[72:73]')
    so = f"s[{S_O}:{S_O+3}]"
    VL16, VL8 = VT, VT+1
    a(f"v_lshlrev_b32 {v(VL16)}, 4, v0")
    a(f"v_lshlrev_b32 {v(VL8)}, 3, v0")
    a(f"s_lshl_b32 s{S_T}, s{S_RB}, 2")
    a(f"s_add_u32 s{S_T}, s{S_T}, s{S_WAVE}")
    lk = a.newlabel("bq_k")
    lend = a.newlabel("bq_end")
    a(f"s_cmp_ge_u32 s{S_CB}, 5")
    a(f"s_cbranch_scc1 {lk}")
    for typ in ('Q', 'K'):
        if typ == 'K':
            a.label(lk)
            a(f"s_sub_u32 s{S_CB}, s{S_CB}, 5")
            a(f"s_add_u32 s{S_T}, s{S_T}, 63")
            a(f"s_and_b32 s{S_T}, s{S_T}, 63")
            a(f"s_mul_i32 s{S_T+1}, s{S_T}, {TILE_REC}")
            a(f"s_add_u32 s{S_T+2}, s{S_T+1}, 3072")
            h1, h2 = KV_HEAD, None
        else:
            a(f"s_lshl_b32 s{S_T+1}, s{S_T}, 10")
            a(f"s_add_u32 s{S_T+1}, s{S_T+1}, {WS_Q1}")
            a(f"s_lshl_b32 s{S_T+2}, s{S_T}, 9")
            a(f"s_add_u32 s{S_T+2}, s{S_T+2}, {WS_Q2}")
            h1 = 65536
            a(f"s_mov_b32 s{S_T+4}, {f32hex(QSCALE)}")
        labs = [a.newlabel(f"bq_{typ}{s_}") for s_ in range(5)]
        for s_ in range(1, 5):
            a(f"s_cmp_eq_u32 s{S_CB}, {s_}")
            a(f"s_cbranch_scc1 {labs[s_]}")
        a("s_nop 7")
        for s_ in range(5):
            a.label(labs[s_])
            a("s_nop 7")
            a("s_nop 3")
            for ct in range(4):
                for gq in range(4):
                    Gi = 16*s_ + 4*ct + gq
                    p, r = divmod(Gi, 5)
                    R = g.acc + 16*ct + 4*gq
                    tp = VT + 2 + 2*((ct*4+gq) % 4)
                    if typ == 'Q':
                        for i in range(4):
                            a(f"v_mul_f32 {v(R+i)}, s{S_T+4}, {v(R+i)}")
                    a(f"v_cvt_pk_bf16_f32 {v(tp)}, {v(R)}, {v(R+1)}")
                    a(f"v_cvt_pk_bf16_f32 {v(tp+1)}, {v(R+2)}, {v(R+3)}")
                    if r != 2:
                        head = 2*p + (1 if r >= 3 else 0)
                        off8 = 8*(r if r < 2 else r-3)
                        a(f"s_add_u32 s{S_T+3}, s{S_T+1}, {head*h1}")
                        a(f"buffer_store_dwordx2 {v(tp,2)}, {v(VL16)}, {so}, s{S_T+3} offen offset:{off8}")
                    elif typ == 'Q':
                        a(f"s_add_u32 s{S_T+3}, s{S_T+2}, {p*32768}")
                        a(f"buffer_store_dwordx2 {v(tp,2)}, {v(VL8)}, {so}, s{S_T+3} offen")
                    else:
                        a(f"s_add_u32 s{S_T+3}, s{S_T+2}, {2*p*KV_HEAD}")
                        a(f"buffer_store_dwordx2 {v(tp,2)}, {v(VL8)}, {so}, s{S_T+3} offen")
                        a(f"s_add_u32 s{S_T+3}, s{S_T+3}, {KV_HEAD}")
                        a(f"buffer_store_dwordx2 {v(tp,2)}, {v(VL8)}, {so}, s{S_T+3} offen")
            a(f"s_branch {lend}")
    a.label(lv)
    compute_loop(a, g, ['TF']*4, dbg)
    if dbg: a('s_memtime s[72:73]')
    a(f"s_sub_u32 s{S_CB}, s{S_CB}, 10")
    a(f"s_lshl_b32 s{S_T}, s{S_RB}, 2")
    a(f"s_add_u32 s{S_T}, s{S_T}, s{S_WAVE}")
    a(f"s_mul_i32 s{S_T+1}, s{S_T}, {TILE_REC}")
    a(f"s_add_u32 s{S_T+1}, s{S_T+1}, 1024")
    a(f"s_lshl_b32 s{S_T+2}, s{S_CB}, 7")
    ONE = VT + 8
    for i in range(4):
        a(f"v_mov_b32 {v(ONE+i)}, 0x3f803f80")
    VA, VD, VH, VB = VT, VT+1, VT+2, VT+3
    PK = g.xf[0]
    a(f"v_lshrrev_b32 {v(VH)}, 5, v0")
    a(f"v_lshlrev_b32 {v(VH)}, 9, {v(VH)}")
    a(f"s_mov_b32 s{S_T+3}, {KV_HEAD}")
    a("s_nop 7")
    for ct in range(4):
        a(f"v_and_b32 {v(VD)}, 31, v0")
        a(f"v_add_u32 {v(VD)}, s{S_T+2}, {v(VD)}")
        if ct: a(f"v_add_u32 {v(VD)}, {32*ct}, {v(VD)}")
        a(f"v_mul_u32_u24 {v(VA)}, 52429, {v(VD)}")
        a(f"v_lshrrev_b32 {v(VA)}, 20, {v(VA)}")
        a(f"v_mul_u32_u24 {v(VB)}, 20, {v(VA)}")
        a(f"v_sub_u32 {v(VD)}, {v(VD)}, {v(VB)}")
        a(f"v_mul_lo_u32 {v(VA)}, {v(VA)}, s{S_T+3}")
        a(f"v_lshlrev_b32 {v(VB)}, 4, {v(VD)}")
        a(f"v_add3_u32 {v(VA)}, {v(VA)}, {v(VB)}, {v(VH)}")
        for mf in range(2):
            R = g.acc + 16*ct + 8*mf
            P_ = PK + 4*mf
            for i in range(4):
                a(f"v_cvt_pk_bf16_f32 {v(P_+i)}, {v(R+2*i)}, {v(R+2*i+1)}")
            a(f"buffer_store_dwordx4 {v(P_,4)}, {v(VA)}, {so}, s{S_T+1} offen offset:{1024*mf}")
        a(f"v_cmp_eq_u32 vcc, 19, {v(VD)}")
        a(f"v_mov_b32 {v(VB)}, 80")
        a("s_nop 0")
        a(f"v_cndmask_b32 {v(VB)}, 32, {v(VB)}, vcc")
        a(f"v_add_u32 {v(VA)}, {v(VA)}, {v(VB)}")
        a(f"v_cmp_le_u32 vcc, 18, {v(VD)}")
        a(f"s_and_saveexec_b64 s[{S_T+5}:{S_T+6}], vcc") if (S_T+5) % 2 == 0 else a(f"s_and_saveexec_b64 s[{S_T+6}:{S_T+7}], vcc")
        lsk = a.newlabel("bq_noones")
        a(f"s_cbranch_execz {lsk}")
        for mf in range(2):
            a(f"buffer_store_dwordx4 {v(ONE,4)}, {v(VA)}, {so}, s{S_T+1} offen offset:{1024*mf}")
        a.label(lsk)
        a("s_mov_b64 exec, -1")
        a("s_nop 1")
    a.label(lend)
    if dbg:
        a('s_memtime s[74:75]')
        a("s_waitcnt vmcnt(0)")
        stamp_end(a, WS_DBG, KA_WS, S_WAVE)
    a("s_endpgm")

OP = G(NC=96, wstride=1280, acc0=64, vbase=1)
OP_NVGPR = 112
def role_out(a, dbg=False):
    g = OP
    VT = 52
    assert g.vend <= VT, g.vend
    if dbg: stamp(a, 0)
    srd(a, S_X, KA_WS, 0); srd(a, S_O, KA_OUT, 0)
    a(f"s_load_dwordx2 s[{S_W}:{S_W+1}], s[0:1], {KA_AWO}")
    a(f"s_load_dwordx2 s[{S_T+8}:{S_T+9}], s[0:1], {KA_BWO}") if (S_T+8) % 2 == 0 else a(f"s_load_dwordx2 s[{S_T+9}:{S_T+10}], s[0:1], {KA_BWO}")
    BW = S_T+8 if (S_T+8) % 2 == 0 else S_T+9
    wave_lane(a, VT)
    a(f"s_and_b32 s{S_T}, s2, 7")
    a(f"s_lshr_b32 s{S_T+1}, s2, 3")
    a(f"s_lshr_b32 s{S_T+2}, s{S_T}, 2")
    a(f"s_and_b32 s{S_T}, s{S_T}, 3")
    a(f"s_lshl_b32 s{S_RB}, s{S_T}, 2")
    a(f"s_lshr_b32 s{S_T+3}, s{S_T+1}, 3")
    a(f"s_add_u32 s{S_RB}, s{S_RB}, s{S_T+3}")
    a(f"s_and_b32 s{S_CB}, s{S_T+1}, 7")
    a(f"s_mov_b32 s{S_T+6}, s{S_T+2}")
    a(f"s_mul_i32 s{S_XOFF}, s{S_RB}, {128*1280}")
    a(f"s_mul_i32 s{S_T+4}, s{S_T+6}, {WS_OB-WS_OA}")
    a(f"s_add_u32 s{S_T+4}, s{S_T+4}, {WS_OA}")
    a(f"s_add_u32 s{S_XOFF}, s{S_XOFF}, s{S_T+4}")
    a(f"s_mul_i32 s{S_WOFF}, s{S_CB}, 160")
    a("s_waitcnt lgkmcnt(0)")
    a(f"s_cmp_eq_u32 s{S_T+6}, 0")
    a(f"s_cselect_b32 s{S_W}, s{S_W}, s{BW}")
    a(f"s_cselect_b32 s{S_W+1}, s{S_W+1}, s{BW+1}")
    srd_fin(a, S_X, WS_SIZE_SRD); srd_fin(a, S_W, 640*1280); srd_fin(a, S_O, 2048*2560)
    a(f"s_mov_b32 s42, s{S_T+6}")
    if PREFETCH:
        lnopf = a.newlabel("op_nopf")
        a(f"s_cmp_lg_u32 s{S_T+14}, 0")
        a(f"s_cbranch_scc1 {lnopf}")
        a(f"s_mul_i32 s{S_T+8}, s{S_T+1}, 200")
        a(f"s_lshl_b32 s{S_T+9}, s{S_WAVE}, 6")
        a(f"s_add_u32 s{S_T+8}, s{S_T+8}, s{S_T+9}")
        a(f"v_add_u32 {v(VT)}, s{S_T+8}, v0")
        a(f"v_lshlrev_b32 {v(VT)}, 7, {v(VT)}")
        a(f"buffer_load_dword {v(VT+3)}, {v(VT)}, s[{S_W}:{S_W+3}], 0 offen")
        a(f"s_mul_i32 s{S_T+8}, s{S_T+1}, 160")
        a(f"s_add_u32 s{S_T+8}, s{S_T+8}, s{S_T+9}")
        a(f"v_add_u32 {v(VT)}, s{S_T+8}, v0")
        a(f"v_lshlrev_b32 {v(VT)}, 7, {v(VT)}")
        a(f"s_and_b32 s{S_T+9}, s{S_RB}, 12")
        a(f"s_mul_i32 s{S_T+9}, s{S_T+9}, {128*1280}")
        a(f"s_add_u32 s{S_T+9}, s{S_T+9}, s{S_T+4}")
        a(f"s_cmp_eq_u32 s{S_WAVE}, 3")
        a(f"s_cbranch_scc1 {lnopf}")
        a(f"buffer_load_dword {v(VT+4)}, {v(VT)}, s[{S_X}:{S_X+3}], s{S_T+9} offen")
        a.label(lnopf)
    split_roles(a, g, 'lin')
    compute_addrs(a, g, VT)
    compute_loop(a, g, ['FT']*3, dbg)
    if dbg: a('s_memtime s[72:73]')
    so = f"s[{S_O}:{S_O+3}]"
    VA = VT
    a(f"v_and_b32 {v(VA)}, 31, v0")
    a(f"s_lshl_b32 s{S_T}, s{S_RB}, 7")
    a(f"s_lshl_b32 s{S_T+1}, s{S_WAVE}, 5")
    a(f"s_add_u32 s{S_T}, s{S_T}, s{S_T+1}")
    a(f"v_add_u32 {v(VA)}, s{S_T}, {v(VA)}")
    a(f"v_mul_u32_u24 {v(VA)}, 2560, {v(VA)}")
    a(f"v_lshrrev_b32 {v(VA+1)}, 5, v0")
    a(f"v_lshlrev_b32 {v(VA+1)}, 4, {v(VA+1)}")
    a(f"v_add_u32 {v(VA)}, {v(VA)}, {v(VA+1)}")
    a(f"s_mul_i32 s{S_T+2}, s42, 1280")
    a(f"s_mul_i32 s{S_T+3}, s{S_CB}, 160")
    a(f"s_add_u32 s{S_T+2}, s{S_T+2}, s{S_T+3}")
    a("s_nop 7")
    a("s_nop 3")
    for pr in range(5):
        G0 = 2*pr
        R0 = g.acc + 16*(G0//4) + 4*(G0 % 4)
        R1 = R0 + 4
        P_ = VT + 4 + 4*(pr % 2)
        a(f"v_cvt_pk_bf16_f32 {v(P_)}, {v(R0)}, {v(R0+1)}")
        a(f"v_cvt_pk_bf16_f32 {v(P_+1)}, {v(R0+2)}, {v(R0+3)}")
        a(f"v_cvt_pk_bf16_f32 {v(P_+2)}, {v(R1)}, {v(R1+1)}")
        a(f"v_cvt_pk_bf16_f32 {v(P_+3)}, {v(R1+2)}, {v(R1+3)}")
        a("s_nop 1")
        a(f"v_permlane32_swap_b32 {v(P_)}, {v(P_+2)}")
        a(f"v_permlane32_swap_b32 {v(P_+1)}, {v(P_+3)}")
        a("s_nop 1")
        a(f"buffer_store_dwordx4 {v(P_,4)}, {v(VA)}, {so}, s{S_T+2} offen offset:{32*pr}")
    if dbg:
        a('s_memtime s[74:75]')
        a("s_waitcnt vmcnt(0)")
        stamp_end(a, WS_DBG, KA_WS, S_WAVE)
    a("s_endpgm")
```

```python
import sys
from asmlib import *
from layout import *
import attn
import roles
import arole

HEADER = open('concat_heads__linear_kernel_hedgehog__mha_block__prompt.s.ref').read().split('; Override launch geometry')[0] if False else None

HDR = """; Kernarg layout for this problem (80 bytes, ptrs only, base s[0:1]):
;   offset  56: d_out     shape=(1, 2048, 1280) dtype=bfloat16 (2 bytes/elem)
"""

def build(launches, kernels):
    out = HDR
    for (n, g, b, lds) in launches:
        out += f"; @launch kernel={n} grid=({g},1,1) block=({b},1,1) lds={lds}\n"
    out += '.amdgcn_target "amdgcn-amd-amdhsa--gfx950"\n.text\n'
    for (n, fn, nv) in kernels:
        a = Asm()
        a.uid = 1000 * (1 + [k[0] for k in kernels].index(n))
        kernel_header(a, n)
        fn(a)
        out += a.text()
    out += '.section .rodata,"a"\n'
    for (n, fn, nv) in kernels:
        out += kernel_desc(n, nv)
    return out

def k2(a):
    done = a.newlabel("done")
    la = a.newlabel("arole")
    if WITH_A:
        a("s_cmp_ge_u32 s2, 512")
        a(f"s_cbranch_scc1 {done}")
        a("s_cmp_ge_u32 s2, 256")
        a(f"s_cbranch_scc1 {la}")
    else:
        a("s_cmp_ge_u32 s2, 256")
        a(f"s_cbranch_scc1 {done}")
    if WITH_B:
        attn.gen_attn(a, dbg_time=DBG)
    else:
        a("s_endpgm")
    if WITH_A:
        a.label(la)
        a("s_mov_b32 s54, s2")
        a("s_sub_u32 s2, s2, 256")
        arole.role_a(a, dbg=DBG)
    a.label(done)
    a("s_endpgm")
WITH_A = False
WITH_B = True

def k1(a):
    done = a.newlabel("done")
    a("s_cmp_ge_u32 s2, 256")
    a(f"s_cbranch_scc1 {done}")
    roles.role_bqkv(a, dbg=DBG)
    a.label(done)
    a("s_endpgm")
def k3(a):
    done = a.newlabel("done")
    a("s_cmp_ge_u32 s2, 256")
    a(f"s_cbranch_scc1 {done}")
    roles.role_out(a, dbg=DBG)
    a.label(done)
    a("s_endpgm")
DBG = False
if __name__ == "__main__":
    DBG = len(sys.argv) > 3 and sys.argv[3] == "dbg"
    for kv in sys.argv[4:]:
        k_, v_ = kv.split("=")
        import gemm
        if k_ in attn.OPT: attn.OPT[k_] = (v_ == "1")
        elif k_ in gemm.GOPT: gemm.GOPT[k_] = (v_ == "1")
        else: setattr(roles, k_, v_ == "1")
    mode = sys.argv[1]
    outp = sys.argv[2]
    if mode == "attn":
        txt = build([("attn_kernel", 256, 512, 2*attn.CH_BYTES)], [("attn_kernel", k2, attn.ATTN_NVGPR)])
    if mode == "bqkv":
        txt = build([("qkv_kernel", 256, 512, roles.BQ.lds)], [("qkv_kernel", k1, roles.BQ_NVGPR)])
    if mode == "out":
        txt = build([("proj_kernel", 256, 512, roles.OP.lds)], [("proj_kernel", k3, roles.OP_NVGPR)])
    if mode == "arole":
        WITH_A = True; WITH_B = False
        txt = build([("qkv_kernel", 256, 512, roles.BQ.lds), ("attn_kernel", 512, 512, 65536)],
                    [("qkv_kernel", k1, roles.BQ_NVGPR), ("attn_kernel", k2, 128)])
    if mode == "full":
        WITH_A = True; WITH_B = True
        txt = build([("qkv_kernel", 256, 512, roles.BQ.lds), ("attn_kernel", 512, 512, 65536), ("proj_kernel", 256, 512, roles.OP.lds)],
                    [("qkv_kernel", k1, roles.BQ_NVGPR), ("attn_kernel", k2, 128), ("proj_kernel", k3, roles.OP_NVGPR)])
    open(outp, "w").write(txt)
```

```python
from asmlib import *
from layout import *
from gemm import *
from roles import f32hex, srd, srd_fin, wave_lane, split_roles

APRIO = 2
AG = G(NC=128, wstride=3840, acc0=64, vbase=1)
A_NVGPR = 128
LOG2E = 1.4426950408889634
S_PH = 44
S_DB = 48
S_L = 52
S_NL = 53
WPE1, WPO1, WPE2, WPO2 = 52, 56, 60, 62

def halves_reduce(a, x, t, op):
    a(f"v_mov_b32 {v(t)}, {v(x)}")
    a("s_nop 1")
    a(f"v_permlane32_swap_b32 {v(x)}, {v(t)}")
    a("s_nop 1")
    a(f"{op} {v(x)}, {v(x)}, {v(t)}")

def feature_task(a, B1, B2, WP1, WP2, D, E, T, POS, NEG):
    a(f"v_mfma_f32_32x32x16_bf16 {v(D,16)}, {v(WP1,4)}, {v(B1,4)}, 0")
    a(f"v_mfma_f32_32x32x8_bf16 {v(D,16)}, {v(WP2,2)}, {v(B2,2)}, {v(D,16)}")
    a("s_nop 7")
    a("s_nop 4")
    MX, MN, TT, SP, SN = T, T+1, T+2, T+3, T+4
    x = [D+i for i in range(10)]
    a(f"v_max3_f32 {v(MX)}, {v(x[0])}, {v(x[1])}, {v(x[2])}")
    a(f"v_min3_f32 {v(MN)}, {v(x[0])}, {v(x[1])}, {v(x[2])}")
    for i in (3, 5, 7):
        a(f"v_max3_f32 {v(MX)}, {v(MX)}, {v(x[i])}, {v(x[i+1])}")
        a(f"v_min3_f32 {v(MN)}, {v(MN)}, {v(x[i])}, {v(x[i+1])}")
    a(f"v_max_f32 {v(MX)}, {v(MX)}, {v(x[9])}")
    a(f"v_min_f32 {v(MN)}, {v(MN)}, {v(x[9])}")
    a(f"v_mov_b32 {v(TT)}, {v(MX)}")
    a(f"v_mov_b32 {v(TT+3)}, {v(MN)}")
    a("s_nop 1")
    a(f"v_permlane32_swap_b32 {v(MX)}, {v(TT)}")
    a(f"v_permlane32_swap_b32 {v(MN)}, {v(TT+3)}")
    a("s_nop 1")
    a(f"v_max_f32 {v(MX)}, {v(MX)}, {v(TT)}")
    a(f"v_min_f32 {v(MN)}, {v(MN)}, {v(TT+3)}")
    a(f"v_mul_f32 {v(MX)}, s{S_NL}, {v(MX)}")
    a(f"v_mul_f32 {v(MN)}, s{S_L}, {v(MN)}")
    e = [E+i for i in range(10)]
    for i in range(10):
        a(f"v_fma_f32 {v(e[i])}, {v(x[i])}, s{S_NL}, {v(MN)}")
        a(f"v_fma_f32 {v(x[i])}, {v(x[i])}, s{S_L}, {v(MX)}")
    for i in range(10):
        a(f"v_exp_f32 {v(x[i])}, {v(x[i])}")
        a(f"v_exp_f32 {v(e[i])}, {v(e[i])}")
    a("s_nop 0")
    a(f"v_add_f32 {v(SP)}, {v(x[0])}, {v(x[1])}")
    a(f"v_add_f32 {v(SN)}, {v(e[0])}, {v(e[1])}")
    for i in range(2, 10):
        a(f"v_add_f32 {v(SP)}, {v(SP)}, {v(x[i])}")
        a(f"v_add_f32 {v(SN)}, {v(SN)}, {v(e[i])}")
    a(f"v_mov_b32 {v(TT)}, {v(SP)}")
    a(f"v_mov_b32 {v(TT+3)}, {v(SN)}")
    a("s_nop 1")
    a(f"v_permlane32_swap_b32 {v(SP)}, {v(TT)}")
    a(f"v_permlane32_swap_b32 {v(SN)}, {v(TT+3)}")
    a("s_nop 1")
    a(f"v_add_f32 {v(SP)}, {v(SP)}, {v(TT)}")
    a(f"v_add_f32 {v(SN)}, {v(SN)}, {v(TT+3)}")
    a(f"v_rcp_f32 {v(SP)}, {v(SP)}")
    a(f"v_rcp_f32 {v(SN)}, {v(SN)}")
    a("s_nop 0")
    for i in range(10):
        a(f"v_mul_f32 {v(x[i])}, {v(x[i])}, {v(SP)}")
        a(f"v_mul_f32 {v(e[i])}, {v(e[i])}, {v(SN)}")
    for i in range(5):
        a(f"v_cvt_pk_bf16_f32 {v(POS+i)}, {v(x[2*i])}, {v(x[2*i+1])}")
        a(f"v_cvt_pk_bf16_f32 {v(NEG+i)}, {v(e[2*i])}, {v(e[2*i+1])}")

def role_a(a, dbg=False, mode='k1'):
    g = AG
    SC = ' sc1' if mode == 'k2' else ''
    VT = 44
    if dbg: stamp(a, 0)
    srd(a, S_X, KA_AX, 0); srd(a, S_W, KA_AWQKV, 0); srd(a, S_O, KA_WS, 0); srd(a, S_PH, KA_AWPHI, 0);
    wave_lane(a, 3)
    a(f"s_and_b32 s{S_T}, s2, 7")
    a(f"s_lshr_b32 s{S_T+1}, s2, 3")
    a(f"s_lshr_b32 s{S_T+2}, s{S_T}, 1")
    a(f"s_lshl_b32 s{S_RB}, s{S_T+2}, 2")
    a(f"s_lshr_b32 s{S_T+2}, s{S_T+1}, 3")
    a(f"s_add_u32 s{S_RB}, s{S_RB}, s{S_T+2}")
    a(f"s_and_b32 s{S_CB}, s{S_T}, 1")
    a(f"s_lshl_b32 s{S_CB}, s{S_CB}, 3")
    a(f"s_and_b32 s{S_T+2}, s{S_T+1}, 7")
    a(f"s_add_u32 s{S_CB}, s{S_CB}, s{S_T+2}")
    a(f"s_mul_i32 s{S_XOFF}, s{S_RB}, {128*1280}")
    a(f"s_mul_i32 s{S_WOFF}, s{S_CB}, 80")
    a(f"s_mov_b32 s{S_L}, {f32hex(LOG2E)}")
    a(f"s_mov_b32 s{S_NL}, {f32hex(-LOG2E)}")
    a("s_waitcnt lgkmcnt(0)")
    srd_fin(a, S_X, 2048*1280); srd_fin(a, S_W, 640*3840); srd_fin(a, S_O, WS_SIZE_SRD)
    srd_fin(a, S_PH, 25600)
    a(f"s_and_b32 s{S_T+8}, s{S_RB}, 3")
    a(f"s_mul_i32 s{S_T+8}, s{S_T+8}, 10")
    a(f"s_and_b32 s{S_T+9}, s{S_CB}, 7")
    a(f"s_mul_i32 s{S_T+9}, s{S_T+9}, 5")
    a(f"s_add_u32 s{S_T+8}, s{S_T+8}, s{S_T+9}")
    a(f"s_lshr_b32 s{S_T+8}, s{S_T+8}, 1")
    a(f"s_cmp_ge_u32 s{S_T+8}, 20")
    a(f"s_cselect_b32 s{S_T+9}, 20, 0")
    a(f"s_sub_u32 s59, s{S_T+8}, s{S_T+9}")
    split_roles(a, g, 'qkv')
    if mode == 'k1' and APRIO: a(f"s_setprio {APRIO}")
    t0, t1, t2, t3 = 12, 13, 14, 15
    sph = f"s[{S_PH}:{S_PH+3}]"
    a(f"v_and_b32 {v(t0)}, 31, v0")
    a(f"v_lshrrev_b32 {v(t1)}, 5, v0")
    a(f"v_subrev_u32 {v(t2)}, 2, {v(t0)}")
    a(f"v_cmp_le_u32 vcc, 20, {v(t0)}")
    a("s_nop 1")
    a(f"v_cndmask_b32 {v(t2)}, {v(t0)}, {v(t2)}, vcc")
    a(f"v_lshlrev_b32 {v(t2)}, 1, {v(t2)}")
    a(f"v_and_b32 {v(t3)}, 30, {v(t0)}")
    a(f"v_cmp_eq_u32 vcc, 18, {v(t3)}")
    a(f"v_cmp_le_u32 s[{S_T+2-1}:{S_T+2}], 22, {v(t0)}") if (S_T+1) % 2 == 0 else a(f"v_cmp_le_u32 s[{S_T+3}:{S_T+4}], 22, {v(t0)}")
    PAIR = (S_T+1) if (S_T+1) % 2 == 0 else (S_T+3)
    a("s_nop 1")
    a(f"s_or_b64 vcc, vcc, s[{PAIR}:{PAIR+1}]")
    a(f"v_mov_b32 {v(t3)}, 0x20000")
    a("s_nop 1")
    a(f"v_cndmask_b32 {v(t2)}, {v(t2)}, {v(t3)}, vcc")
    a(f"v_mul_u32_u24 {v(t3)}, 160, {v(t1)}")
    a(f"v_add_u32 {v(t0)}, {v(t2)}, {v(t3)}")
    a(f"s_mul_i32 s{S_T}, s{S_CB}, 1600")
    TMP = 64
    n_ = 0
    packs = []
    for (reg, hoff, dadd) in ((WPE1, 0, 0), (WPO1, 800, 4)):
        for j in range(8):
            d = dadd + (j if j < 4 else j + 4)
            a(f"buffer_load_ushort {v(TMP+n_)}, {v(t0)}, {sph}, s{S_T} offen offset:{hoff + d*40}")
            if j & 1: packs.append((reg + j//2, TMP+n_-1, TMP+n_))
            n_ += 1
    a(f"v_cmp_eq_u32 vcc, 0, {v(t1)}")
    a(f"v_mov_b32 {v(t3)}, 0x20000")
    a("s_nop 0")
    a(f"v_cndmask_b32 {v(t0)}, {v(t3)}, {v(t2)}, vcc")
    a(f"v_cndmask_b32 {v(t1)}, {v(t2)}, {v(t3)}, vcc")
    for (reg, va, base) in ((WPE2, t0, 16*40), (WPO2, t1, 800)):
        for j in range(4):
            a(f"buffer_load_ushort {v(TMP+n_)}, {v(va)}, {sph}, s{S_T} offen offset:{base + j*40}")
            if j & 1: packs.append((reg + j//2, TMP+n_-1, TMP+n_))
            n_ += 1
    a("s_waitcnt vmcnt(0)")
    for (dst, lo, hi) in packs:
        a(f"v_lshl_or_b32 {v(dst)}, {v(hi)}, 16, {v(lo)}")
    compute_addrs(a, g, 12)
    compute_loop(a, g, ['FT']*4)
    if dbg: a('s_memtime s[72:73]')
    if mode == 'k2': a("s_setprio 3")
    PG = 4
    a("s_nop 7")
    a("s_nop 3")
    for Gc in range(15):
        R = g.acc + 16*(Gc//4) + 4*(Gc % 4)
        a(f"v_cvt_pk_bf16_f32 {v(PG+2*Gc)}, {v(R)}, {v(R+1)}")
        a(f"v_cvt_pk_bf16_f32 {v(PG+2*Gc+1)}, {v(R+2)}, {v(R+3)}")
    a("s_barrier")
    D, E, T = 64, 80, 92
    POS, NEG = 100, 106
    VA_, VS_, VH_ = 34, 35, 36
    a(f"v_and_b32 {v(VA_)}, 31, v0")
    a(f"s_lshl_b32 s{S_T}, s{S_WAVE}, 5")
    a(f"v_add_u32 {v(VA_)}, s{S_T}, {v(VA_)}")
    a(f"v_bfe_u32 {v(VS_)}, {v(VA_)}, 1, 3")
    a(f"v_lshlrev_b32 {v(VA_)}, 6, {v(VA_)}")
    a(f"v_lshrrev_b32 {v(VH_)}, 5, v0")
    def piece_addr(dst, pc_lo, pc_hi, extra_lo=0, extra_hi=0):
        if pc_hi - pc_lo == 1 and extra_hi == extra_lo:
            a(f"v_add_u32 {v(dst)}, {pc_lo}, {v(VH_)}")
            a(f"v_xor_b32 {v(dst)}, {v(dst)}, {v(VS_)}")
            a(f"v_lshl_add_u32 {v(dst)}, {v(dst)}, 3, {v(VA_)}")
            if extra_lo: a(f"v_add_u32 {v(dst)}, {extra_lo}, {v(dst)}")
        else:
            a(f"v_mul_i32_i24 {v(dst)}, {pc_hi-pc_lo}, {v(VH_)}")
            a(f"v_add_u32 {v(dst)}, {pc_lo}, {v(dst)}")
            a(f"v_xor_b32 {v(dst)}, {v(dst)}, {v(VS_)}")
            a(f"v_lshl_add_u32 {v(dst)}, {v(dst)}, 3, {v(VA_)}")
            a(f"v_mul_i32_i24 {v(37)}, {extra_hi-extra_lo}, {v(VH_)}")
            a(f"v_add_u32 {v(dst)}, {v(dst)}, {v(37)}")
            if extra_lo: a(f"v_add_u32 {v(dst)}, {extra_lo}, {v(dst)}")
    PHI_OFF = 0
    VP_OFF = 32768
    A01, A23, A4 = 38, 39, 40
    piece_addr(A01, 0, 1)
    piece_addr(A23, 2, 3)
    piece_addr(A4, 4, 4, 0, 4)
    for hd, (B1, B2, W1, W2) in enumerate(((PG+10, PG+14, WPE1, WPE2), (PG+16, PG+14, WPO1, WPO2))):
        feature_task(a, B1, B2, W1, W2, D, E, T, POS, NEG)
        for pn, P_ in enumerate((POS, NEG)):
            off = PHI_OFF + (hd*2 + pn)*8192
            a(f"ds_write_b64 {v(A01)}, {v(P_,2)} offset:{off}")
            a(f"ds_write_b64 {v(A23)}, {v(P_+2,2)} offset:{off}")
            a(f"ds_write_b32 {v(A4)}, {v(P_+4)} offset:{off}")
    AV = 41
    vmap = [((0, 0), (0, 1)), ((0, 2), (0, 3)), ((0, 4), (1, 0)), ((1, 1), (1, 2)), ((1, 3), (1, 4))]
    for Gv in range(5):
        (h0, p0), (h1, p1) = vmap[Gv]
        piece_addr(AV, p0, p1, h0*8192, h1*8192)
        a(f"ds_write_b64 {v(AV)}, {v(PG+2*(10+Gv),2)} offset:{VP_OFF}")
    piece_addr(AV, 5, 5, 0, 8192)
    a(f"v_mov_b32 {v(T)}, 0x3f80")
    a(f"v_mov_b32 {v(T+1)}, 0")
    a(f"ds_write_b64 {v(AV)}, {v(T,2)} offset:{VP_OFF}")
    a("s_waitcnt lgkmcnt(0)")
    a("s_barrier")
    R0, R1 = 38, 39
    a(f"v_bfe_u32 {v(T)}, v0, 2, 2")
    a(f"v_lshrrev_b32 {v(T+1)}, 5, v0")
    a(f"v_lshlrev_b32 {v(T+2)}, 3, {v(T+1)}")
    a(f"v_add_u32 {v(T+2)}, {v(T+2)}, {v(T)}")
    a(f"v_lshlrev_b32 {v(T+2)}, 6, {v(T+2)}")
    a(f"v_bfe_u32 {v(T+3)}, v0, 4, 1")
    a(f"v_lshlrev_b32 {v(T+3)}, 2, {v(T+3)}")
    a(f"v_and_b32 {v(T+4)}, 3, v0")
    a(f"v_add_u32 {v(T+3)}, {v(T+3)}, {v(T+4)}")
    a(f"v_lshlrev_b32 {v(T+4)}, 2, {v(T+1)}")
    a(f"v_lshrrev_b32 {v(T+5)}, 1, {v(T)}")
    a(f"v_add_u32 {v(T+4)}, {v(T+4)}, {v(T+5)}")
    a(f"v_xor_b32 {v(T+5)}, {v(T+3)}, {v(T+4)}")
    a(f"v_lshl_add_u32 {v(R0)}, {v(T+5)}, 3, {v(T+2)}")
    a(f"v_add_u32 {v(T+4)}, 2, {v(T+4)}")
    a(f"v_xor_b32 {v(T+5)}, {v(T+3)}, {v(T+4)}")
    a(f"v_lshl_add_u32 {v(R1)}, {v(T+5)}, 3, {v(T+2)}")
    a(f"v_add_u32 {v(R1)}, 256, {v(R1)}")
    a(f"s_and_b32 s{S_T}, s{S_WAVE}, 1")
    a(f"s_lshr_b32 s{S_T+1}, s{S_WAVE}, 1")
    a(f"s_lshl_b32 s{S_T+2}, s{S_T}, 1")
    a(f"s_add_u32 s{S_T+2}, s{S_T+2}, s{S_T+1}")
    a(f"s_lshl_b32 s{S_T+2}, s{S_T+2}, 13")
    a(f"s_lshl_b32 s{S_T+3}, s{S_T}, 13")
    a(f"s_add_u32 s{S_T+3}, s{S_T+3}, {VP_OFF}")
    PA0, PA1, VB0, VB1 = 40, 41, 42, 43
    a(f"v_add_u32 {v(PA0)}, s{S_T+2}, {v(R0)}")
    a(f"v_add_u32 {v(PA1)}, s{S_T+2}, {v(R1)}")
    a(f"v_add_u32 {v(VB0)}, s{S_T+3}, {v(R0)}")
    a(f"v_add_u32 {v(VB1)}, s{S_T+3}, {v(R1)}")
    FA, FB = 80, 112
    for half in range(2):
        for ks in range(4):
            k_ = half*4 + ks
            a(f"ds_read_b64_tr_b16 {v(80+8*ks,2)}, {v(VB0)} offset:{k_*1024}")
            a(f"ds_read_b64_tr_b16 {v(80+8*ks+2,2)}, {v(VB1)} offset:{k_*1024}")
            a(f"ds_read_b64_tr_b16 {v(80+8*ks+4,2)}, {v(PA0)} offset:{k_*1024}")
            a(f"ds_read_b64_tr_b16 {v(80+8*ks+6,2)}, {v(PA1)} offset:{k_*1024}")
        for ks in range(4):
            a(f"s_waitcnt lgkmcnt({4*(3-ks)})")
            c = "0" if (half == 0 and ks == 0) else v(D,16)
            a(f"v_mfma_f32_32x32x16_bf16 {v(D,16)}, {v(80+8*ks+4,4)}, {v(80+8*ks,4)}, {c}")
    so = f"s[{S_O}:{S_O+3}]"
    a(f"v_and_b32 {v(T)}, 31, v0")
    a(f"v_lshrrev_b32 {v(T+1)}, 5, v0")
    a(f"v_mul_u32_u24 {v(T+2)}, 80, {v(T)}")
    a(f"v_lshl_add_u32 {v(T+2)}, {v(T+1)}, 4, {v(T+2)}")
    a(f"s_lshl_b32 s{S_T+2}, s{S_CB}, 1")
    a(f"s_add_u32 s{S_T+2}, s{S_T+2}, s{S_T}")
    a(f"s_lshl_b32 s{S_T+2}, s{S_T+2}, 1")
    a(f"s_add_u32 s{S_T+2}, s{S_T+2}, s{S_T+1}")
    a(f"s_lshl_b32 s{S_T+3}, s{S_RB}, 6")
    a(f"s_add_u32 s{S_T+2}, s{S_T+2}, s{S_T+3}")
    a(f"s_mul_i32 s{S_T+2}, s{S_T+2}, {KVS_REC}")
    a(f"s_add_u32 s{S_T+2}, s{S_T+2}, {WS_KVP}")
    a(f"v_cmp_ge_u32 vcc, 20, {v(T)}")
    a("s_nop 4")
    a("s_and_b64 exec, exec, vcc")
    a(f"buffer_store_dwordx4 {v(D,4)}, {v(T+2)}, {so}, s{S_T+2} offen{SC}")
    a(f"buffer_store_dwordx4 {v(D+4,4)}, {v(T+2)}, {so}, s{S_T+2} offen offset:32{SC}")
    a("s_mov_b32 exec_hi, 0")
    a(f"buffer_store_dwordx4 {v(D+8,4)}, {v(T+2)}, {so}, s{S_T+2} offen offset:64{SC}")
    a("s_mov_b64 exec, -1")
    D2 = 112
    QP = [[100, 106], [14, 20]]
    for hd, (B1, B2, W1, W2) in enumerate(((PG+0, PG+4, WPE1, WPE2), (PG+6, PG+4, WPO1, WPO2))):
        feature_task(a, B1, B2, W1, W2, D2, E, T, QP[hd][0], QP[hd][1])
        P_, N_ = QP[hd]
        if mode == 'k2':
            a(f"v_mov_b32 {v(P_+5)}, 0")
            a(f"v_mov_b32 {v(N_+5)}, 0")
            continue
        if hd == 0:
            a(f"s_lshl_b32 s{S_T}, s{S_RB}, 2")
            a(f"s_add_u32 s{S_T}, s{S_T}, s{S_WAVE}")
            a(f"s_lshl_b32 s{S_T}, s{S_T}, 5")
            a(f"s_lshl_b32 s{S_T+1}, s{S_CB}, 1")
            a(f"s_add_u32 s{S_T}, s{S_T}, s{S_T+1}")
            a(f"s_mul_i32 s{S_T}, s{S_T}, 2560")
            a(f"s_add_u32 s{S_T}, s{S_T}, {WS_PHQ}")
            a(f"v_lshlrev_b32 {v(44)}, 4, v0")
            a(f"v_lshlrev_b32 {v(45)}, 3, v0")
        else:
            a(f"s_add_u32 s{S_T}, s{S_T}, 2560")
        a(f"v_mov_b32 {v(P_+5)}, {v(N_+4)}")
        a(f"buffer_store_dwordx4 {v(P_,4)}, {v(44)}, {so}, s{S_T} offen")
        a(f"buffer_store_dwordx4 {v(N_,4)}, {v(44)}, {so}, s{S_T} offen offset:1024")
        a(f"buffer_store_dwordx2 {v(P_+4,2)}, {v(45)}, {so}, s{S_T} offen offset:2048")
    if mode == 'k2':
        if dbg: a('s_memtime s[74:75]')
        a("s_waitcnt vmcnt(0)")
        a("s_barrier")
        lw = a.newlabel("a_wait_done")
        a(f"s_cmp_lg_u32 s{S_WAVE}, 0")
        a(f"s_cbranch_scc1 {lw}")
        a(f"s_lshl_b32 s{S_T}, s{S_CB}, 7")
        a(f"s_add_u32 s{S_T}, s{S_T}, {WS_FLAG}")
        a(f"s_lshl_b32 s{S_T+3}, s{S_RB}, 2")
        a(f"v_mov_b32 {v(T)}, s{S_T+3}")
        a(f"v_mov_b32 {v(T+1)}, 1")
        a("s_mov_b64 exec, 1")
        a(f"buffer_store_dword {v(T+1)}, {v(T)}, {so}, s{S_T} offen sc1")
        a("s_mov_b64 exec, 0xffff")
        a(f"v_lshlrev_b32 {v(T)}, 2, v0")
        a(f"s_mov_b32 s{S_T+1}, 0")
        lp = a.newlabel("a_poll")
        a.label(lp)
        a(f"buffer_load_dword {v(T+2)}, {v(T)}, {so}, s{S_T} offen sc1")
        a("s_waitcnt vmcnt(0)")
        a(f"v_cmp_eq_u32 vcc, 1, {v(T+2)}")
        a(f"s_add_u32 s{S_T+1}, s{S_T+1}, 1")
        a("s_nop 1")
        a(f"s_cmp_eq_u32 vcc_lo, 0xffff")
        lpd = a.newlabel("a_poll_done")
        a(f"s_cbranch_scc1 {lpd}")
        a("s_sleep 8")
        a(f"s_cmp_lt_u32 s{S_T+1}, 0x40000")
        a(f"s_cbranch_scc1 {lp}")
        a.label(lpd)
        a("s_mov_b64 exec, -1")
        a.label(lw)
        a("s_barrier")
        if dbg: a('s_memtime s[76:77]')
        back_part(a, dbg, sc=' sc1', fix_p4=False)
        return
    if dbg:
        a('s_memtime s[74:75]')
        a("s_waitcnt vmcnt(0)")
        a('s_memtime s[76:77]')
        stamp_end(a, WS_DBG + 256*512, KA_WS, S_WAVE, idsgpr="s2")
    a("s_endpgm")

def role_a2(a, dbg=False):
    T = 92
    QP = [[100, 106], [14, 20]]
    if dbg: stamp(a, 0)
    srd(a, S_O, KA_WS, 0)
    wave_lane(a, 3)
    a(f"s_cmp_lg_u32 s{S_T+14}, 0")
    lq = a.newlabel("a2_go")
    a(f"s_cbranch_scc0 {lq}")
    a("s_endpgm")
    a.label(lq)
    a(f"s_and_b32 s{S_T}, s2, 7")
    a(f"s_lshr_b32 s{S_T+1}, s2, 3")
    a(f"s_lshr_b32 s{S_T+2}, s{S_T}, 1")
    a(f"s_lshl_b32 s{S_RB}, s{S_T+2}, 2")
    a(f"s_lshr_b32 s{S_T+2}, s{S_T+1}, 3")
    a(f"s_add_u32 s{S_RB}, s{S_RB}, s{S_T+2}")
    a(f"s_and_b32 s{S_CB}, s{S_T}, 1")
    a(f"s_lshl_b32 s{S_CB}, s{S_CB}, 3")
    a(f"s_and_b32 s{S_T+2}, s{S_T+1}, 7")
    a(f"s_add_u32 s{S_CB}, s{S_CB}, s{S_T+2}")
    a("s_waitcnt lgkmcnt(0)")
    srd_fin(a, S_O, WS_SIZE_SRD)
    so = f"s[{S_O}:{S_O+3}]"
    a(f"s_lshl_b32 s{S_T}, s{S_RB}, 2")
    a(f"s_add_u32 s{S_T}, s{S_T}, s{S_WAVE}")
    a(f"s_lshl_b32 s{S_T}, s{S_T}, 5")
    a(f"s_lshl_b32 s{S_T+1}, s{S_CB}, 1")
    a(f"s_add_u32 s{S_T}, s{S_T}, s{S_T+1}")
    a(f"s_mul_i32 s{S_T}, s{S_T}, 2560")
    a(f"s_add_u32 s{S_T}, s{S_T}, {WS_PHQ}")
    a(f"v_lshlrev_b32 {v(44)}, 4, v0")
    a(f"v_lshlrev_b32 {v(45)}, 3, v0")
    for hd in range(2):
        P_, N_ = QP[hd]
        a(f"buffer_load_dwordx4 {v(P_,4)}, {v(44)}, {so}, s{S_T} offen offset:{0}")
        a(f"buffer_load_dwordx4 {v(N_,4)}, {v(44)}, {so}, s{S_T} offen offset:{1024}")
        a(f"buffer_load_dwordx2 {v(48+2*hd,2)}, {v(45)}, {so}, s{S_T} offen offset:{2048}")
        if hd == 0: a(f"s_add_u32 s{S_T}, s{S_T}, 2560")
    if dbg:
        a('s_memtime s[72:73]'); a('s_memtime s[74:75]'); a('s_memtime s[76:77]')
    back_part(a, dbg, sc='', fix_p4=True)

def back_part(a, dbg, sc, fix_p4):
    T = 92
    QP = [[100, 106], [14, 20]]
    so = f"s[{S_O}:{S_O+3}]"
    a(f"s_and_b32 s{S_T}, s{S_WAVE}, 1")
    a(f"s_lshr_b32 s{S_T+1}, s{S_WAVE}, 1")
    a(f"s_lshl_b32 s{S_T}, s{S_T}, 1")
    a(f"s_add_u32 s{S_T}, s{S_T}, s{S_T+1}")
    a(f"s_lshl_b32 s{S_T+1}, s{S_CB}, 2")
    a(f"s_add_u32 s{S_T+1}, s{S_T+1}, s{S_T}")
    a(f"s_mul_i32 s{S_T+1}, s{S_T+1}, {KVS_REC}")
    a(f"s_add_u32 s{S_T+1}, s{S_T+1}, {WS_KVP}")
    a(f"v_lshlrev_b32 {v(44)}, 4, v0")
    a(f"v_add_u32 {v(45)}, 1024, {v(44)}")
    a(f"v_mov_b32 {v(46)}, 0x7000000")
    a(f"v_cmp_gt_u32 vcc, 41, v0")
    a("s_nop 1")
    a(f"v_cndmask_b32 {v(45)}, {v(46)}, {v(45)}, vcc")
    ACC = 26
    RB0 = 64
    for i in range(8):
        a(f"v_mov_b32 {v(ACC+i)}, 0")
    def issue(b, base):
        for r_ in range(4):
            rb_ = 4*b + r_
            a(f"s_add_u32 s{S_T+2}, s{S_T+1}, {rb_*64*KVS_REC}")
            a(f"buffer_load_dwordx4 {v(base+8*r_,4)}, {v(44)}, {so}, s{S_T+2} offen{sc}")
            a(f"buffer_load_dwordx4 {v(base+8*r_+4,4)}, {v(45)}, {so}, s{S_T+2} offen{sc}")
    def accum(base, nvm):
        a(f"s_waitcnt vmcnt({nvm})")
        for r_ in range(4):
            for i in range(8):
                a(f"v_add_f32 {v(ACC+i)}, {v(ACC+i)}, {v(base+8*r_+i)}")
    BA, BB = 64, 112 - 0
    issue(0, 64)
    def issue2(rb0, base):
        for r_ in range(2):
            rb_ = rb0 + r_
            a(f"s_add_u32 s{S_T+2}, s{S_T+1}, {rb_*64*KVS_REC}")
            a(f"buffer_load_dwordx4 {v(base+8*r_,4)}, {v(44)}, {so}, s{S_T+2} offen{sc}")
            a(f"buffer_load_dwordx4 {v(base+8*r_+4,4)}, {v(45)}, {so}, s{S_T+2} offen{sc}")
    def accum2(base, nvm):
        a(f"s_waitcnt vmcnt({nvm})")
        for r_ in range(2):
            for i in range(8):
                a(f"v_add_f32 {v(ACC+i)}, {v(ACC+i)}, {v(base+8*r_+i)}")
    issue2(4, 112)
    accum(64, 4)
    issue(0, 64) if False else None
    for r_ in range(4):
        rb_ = 6 + r_
        a(f"s_add_u32 s{S_T+2}, s{S_T+1}, {rb_*64*KVS_REC}")
        a(f"buffer_load_dwordx4 {v(64+8*r_,4)}, {v(44)}, {so}, s{S_T+2} offen{sc}")
        a(f"buffer_load_dwordx4 {v(64+8*r_+4,4)}, {v(45)}, {so}, s{S_T+2} offen{sc}")
    accum2(112, 8)
    issue2(10, 112)
    accum(64, 4)
    for r_ in range(4):
        rb_ = 12 + r_
        a(f"s_add_u32 s{S_T+2}, s{S_T+1}, {rb_*64*KVS_REC}")
        a(f"buffer_load_dwordx4 {v(64+8*r_,4)}, {v(44)}, {so}, s{S_T+2} offen{sc}")
        a(f"buffer_load_dwordx4 {v(64+8*r_+4,4)}, {v(45)}, {so}, s{S_T+2} offen{sc}")
    accum2(112, 8)
    accum(64, 0)
    a(f"s_lshl_b32 s{S_T}, s{S_T}, 11")
    a(f"v_add_u32 {v(46)}, s{S_T}, {v(44)}")
    a(f"ds_write_b128 {v(46)}, {v(ACC,4)}")
    a(f"s_mov_b64 s[{S_T+1}:{S_T+2}], exec")
    a(f"v_cmp_gt_u32 vcc, 41, v0")
    a("s_nop 1")
    a("s_and_b64 exec, exec, vcc")
    a(f"ds_write_b128 {v(46)}, {v(ACC+4,4)} offset:1024")
    a("s_mov_b64 exec, -1")
    a("s_waitcnt lgkmcnt(0)")
    a("s_barrier")
    a(f"v_and_b32 {v(T)}, 31, v0")
    a(f"v_lshrrev_b32 {v(T+1)}, 5, v0")
    a(f"v_mov_b32 {v(T+2)}, 20")
    a(f"v_cmp_eq_u32 vcc, 24, {v(T)}")
    a("s_nop 1")
    a(f"v_cndmask_b32 {v(T)}, {v(T)}, {v(T+2)}, vcc")
    a(f"v_min_u32 {v(T+3)}, 20, {v(T)}")
    a(f"v_mul_u32_u24 {v(T+2)}, 80, {v(T+3)}")
    a(f"v_lshl_add_u32 {v(44)}, {v(T+1)}, 4, {v(T+2)}")
    a(f"v_lshl_add_u32 {v(45)}, {v(T+1)}, 3, {v(T+2)}")
    a(f"v_cmp_lt_u32 vcc, 20, {v(T)}")
    RAW = [64, 74, 84, 116]
    for c in range(4):
        a(f"ds_read_b128 {v(RAW[c],4)}, {v(44)} offset:{c*2048}")
        a(f"ds_read_b128 {v(RAW[c]+4,4)}, {v(44)} offset:{c*2048+32}")
        a(f"ds_read_b64 {v(RAW[c]+8,2)}, {v(45)} offset:{c*2048+64}")
    KF = [26, 32, 38, 94]
    for c in range(4):
        a(f"s_waitcnt lgkmcnt({3*(3-c)})")
        for i in range(5):
            a(f"v_cvt_pk_bf16_f32 {v(KF[c]+i)}, {v(RAW[c]+2*i)}, {v(RAW[c]+2*i+1)}")
            a(f"v_cndmask_b32 {v(KF[c]+i)}, {v(KF[c]+i)}, 0, vcc") if False else None
        a(f"v_mov_b32 {v(KF[c]+5)}, 0")
    a("s_nop 1")
    for hd in range(2 if fix_p4 else 0):
        P_, N_ = QP[hd]
        a(f"v_mov_b32 {v(P_+4)}, {v(48+2*hd)}")
        a(f"v_mov_b32 {v(N_+4)}, {v(48+2*hd+1)}")
        a(f"v_mov_b32 {v(P_+5)}, 0")
        a(f"v_mov_b32 {v(N_+5)}, 0")
    a("s_nop 1")
    DO = [64, 112]
    for hd in range(2):
        P_, N_ = QP[hd]
        a(f"v_mfma_f32_32x32x16_bf16 {v(DO[hd],16)}, {v(KF[2*hd],4)}, {v(P_,4)}, 0")
        a(f"v_mfma_f32_32x32x8_bf16 {v(DO[hd],16)}, {v(KF[2*hd]+4,2)}, {v(P_+4,2)}, {v(DO[hd],16)}")
        a(f"v_mfma_f32_32x32x16_bf16 {v(DO[hd],16)}, {v(KF[2*hd+1],4)}, {v(N_,4)}, {v(DO[hd],16)}")
        a(f"v_mfma_f32_32x32x8_bf16 {v(DO[hd],16)}, {v(KF[2*hd+1]+4,2)}, {v(N_+4,2)}, {v(DO[hd],16)}")
    TT = 100
    a(f"v_and_b32 {v(TT)}, 31, v0")
    a(f"v_lshrrev_b32 {v(TT+1)}, 5, v0")
    a(f"s_lshl_b32 s{S_T}, s{S_RB}, 7")
    a(f"s_lshl_b32 s{S_T+1}, s{S_WAVE}, 5")
    a(f"s_add_u32 s{S_T}, s{S_T}, s{S_T+1}")
    a(f"v_add_u32 {v(TT)}, s{S_T}, {v(TT)}")
    a(f"v_mul_u32_u24 {v(TT)}, 1280, {v(TT)}")
    a(f"v_lshlrev_b32 {v(TT+2)}, 3, {v(TT+1)}")
    a(f"v_add_u32 {v(TT)}, {v(TT)}, {v(TT+2)}")
    a(f"s_mul_i32 s{S_T+2}, s{S_CB}, 80")
    a(f"s_add_u32 s{S_T+2}, s{S_T+2}, {WS_OA}")
    a(f"v_cmp_eq_u32 vcc, 0, {v(TT+1)}")
    a(f"s_mov_b32 s{S_T+3}, {f32hex(1e-6)}")
    a("s_nop 7")
    a("s_nop 7")
    for hd in range(2):
        O = DO[hd]
        a(f"v_cndmask_b32 {v(TT+3)}, {v(O+8)}, {v(O+12)}, vcc")
        a(f"v_add_f32 {v(TT+3)}, s{S_T+3}, {v(TT+3)}")
        a(f"v_rcp_f32 {v(TT+3)}, {v(TT+3)}")
        a("s_nop 0")
        for i in range(12):
            a(f"v_mul_f32 {v(O+i)}, {v(O+i)}, {v(TT+3)}")
        for i in range(6):
            a(f"v_cvt_pk_bf16_f32 {v(TT+4+i)}, {v(O+2*i)}, {v(O+2*i+1)}")
        a(f"buffer_store_dwordx2 {v(TT+4,2)}, {v(TT)}, {so}, s{S_T+2} offen offset:{40*hd}")
        a(f"buffer_store_dwordx2 {v(TT+6,2)}, {v(TT)}, {so}, s{S_T+2} offen offset:{40*hd+16}")
        a("s_mov_b32 exec_hi, 0")
        a(f"buffer_store_dwordx2 {v(TT+8,2)}, {v(TT)}, {so}, s{S_T+2} offen offset:{40*hd+32}")
        a("s_mov_b64 exec, -1")
    if dbg:
        a("s_waitcnt vmcnt(0)")
        stamp_end(a, WS_DBG, KA_WS, S_WAVE, idsgpr="s54")
    a("s_endpgm")
```

```python
from asmlib import *
from layout import *

CH = 8
CH_BYTES = CH * TILE_REC
NCH = 64 // CH
OPT = dict(nodma=False, nobar=False, nolds=False, prio=False)

V_A16 = 1
V_A8  = 2
V_G16 = 3
SA, SB = 4, 20
OA, OB = 36, 52
PA, PB = 68, 76
Q1A, Q1B = 84, 88
Q2A, Q2B = 92, 94
K1 = [96, 100]
VV0 = [104, 112]
VV1 = [108, 116]
K2 = [120, 122]
ATTN_NVGPR = 124
V_T0 = SA

S_WS = 8
S_HEAD = 12
S_QB = 13
S_WAVE = 14
S_DMAOFF = 15
S_LDSW = 16
S_BUFD = 17
S_CNT = 18
S_DMABUF = 19
S_T = 20

def mfma32(a, d, A, B, C, k16=True):
    op = "v_mfma_f32_32x32x16_bf16" if k16 else "v_mfma_f32_32x32x8_bf16"
    n = 4 if k16 else 2
    c = "0" if C is None else v(C, 16)
    a(f"{op} {v(d,16)}, {v(A,n)}, {v(B,n)}, {c}")

PENDING = []
def cvts(a, Sr, P, q):
    a(f"v_cvt_pk_bf16_f32 {v(P+2*q)}, {v(Sr+4*q)}, {v(Sr+4*q+1)}")
    a(f"v_cvt_pk_bf16_f32 {v(P+2*q+1)}, {v(Sr+4*q+2)}, {v(Sr+4*q+3)}")
def flush_cvts(a):
    while PENDING:
        cvts(a, *PENDING.pop(0))
def exps(a, Sr, P, q):
    for i in range(4):
        a(f"v_exp_f32 {v(Sr+4*q+i)}, {v(Sr+4*q+i)}")
    flush_cvts(a)
    PENDING.append((Sr, P, q))

def dma_chunk(a):
    srd = f"s[{S_WS}:{S_WS+3}]"
    a(f"s_add_u32 m0, s{S_DMABUF}, s{S_LDSW}")
    a("s_nop 0")
    for i in range(4):
        a(f"buffer_load_dwordx4 {v(V_G16)}, {srd}, s{S_DMAOFF} offen offset:{i*1024} lds")
    a(f"s_add_u32 m0, m0, 4096")
    a(f"s_add_u32 s{S_DMAOFF}, s{S_DMAOFF}, 4096")
    for i in range(3):
        a(f"buffer_load_dwordx4 {v(V_G16)}, {srd}, s{S_DMAOFF} offen offset:{i*1024} lds")
    a(f"s_add_u32 s{S_DMAOFF}, s{S_DMAOFF}, {CH_BYTES-4096}")

def gen_attn(a, dbg_time=False):
    srd = f"s[{S_WS}:{S_WS+3}]"
    if dbg_time: stamp(a, 0)
    a(f"s_load_dwordx2 s[{S_WS}:{S_WS+1}], s[0:1], {KA_WS}")
    a(f"s_and_b32 s{S_T}, s2, 7")
    a(f"s_lshr_b32 s{S_T+1}, s2, 3")
    a(f"s_and_b32 s{S_T+2}, s{S_T+1}, 3")
    a(f"s_lshl_b32 s{S_HEAD}, s{S_T}, 2")
    a(f"s_add_u32 s{S_HEAD}, s{S_HEAD}, s{S_T+2}")
    a(f"s_lshr_b32 s{S_QB}, s{S_T+1}, 2")
    a(f"v_lshrrev_b32 {v(SA)}, 6, v0")
    a(f"v_and_b32 v0, 63, v0")
    a(f"v_readfirstlane_b32 s{S_WAVE}, {v(SA)}")
    a(f"v_lshlrev_b32 {v(V_G16)}, 4, v0")
    a(f"s_mul_i32 s{S_T+6}, s{S_HEAD}, {KV_HEAD}")
    a("s_waitcnt lgkmcnt(0)")
    a(f"s_mov_b32 s{S_WS+2}, {WS_SIZE_SRD}")
    a(f"s_mov_b32 s{S_WS+3}, 0x00020000")
    lcomp = a.newlabel("attn_compute")
    a(f"s_cmp_lt_u32 s{S_WAVE}, 4")
    a(f"s_cbranch_scc1 {lcomp}")
    a(f"s_sub_u32 s{S_T}, s{S_WAVE}, 4")
    a(f"s_mul_i32 s{S_LDSW}, s{S_T}, 7168")
    a(f"s_add_u32 s{S_DMAOFF}, s{S_T+6}, s{S_LDSW}")
    a(f"s_mov_b32 s{S_DMABUF}, 0")
    dma_chunk(a)
    a(f"s_mov_b32 s{S_DMABUF}, {CH_BYTES}")
    a(f"s_mov_b32 s{S_CNT}, 0")
    a("s_waitcnt vmcnt(0)")
    a("s_barrier")
    lloop = a.newlabel("ld_loop"); lskip = a.newlabel("ld_skip")
    a.label(lloop)
    a(f"s_cmp_ge_u32 s{S_CNT}, {NCH-1}")
    a(f"s_cbranch_scc1 {lskip}")
    if not OPT['nodma']:
        dma_chunk(a)
    a(f"s_sub_u32 s{S_DMABUF}, {CH_BYTES}, s{S_DMABUF}")
    a("s_waitcnt vmcnt(0)")
    a.label(lskip)
    if not OPT['nobar']:
        a("s_barrier")
    a(f"s_add_u32 s{S_CNT}, s{S_CNT}, 1")
    a(f"s_cmp_lt_u32 s{S_CNT}, {NCH}")
    a(f"s_cbranch_scc1 {lloop}")
    if dbg_time:
        stamp(a, 1); stamp(a, 2)
        stamp_end(a, WS_DBG, KA_WS, S_WAVE)
    a("s_endpgm")
    a.label(lcomp)
    if OPT['prio']: a("s_setprio 2")
    a(f"v_mov_b32 {v(V_A16)}, {v(V_G16)}")
    a(f"v_lshlrev_b32 {v(V_A8)}, 3, v0")
    a(f"s_lshl_b32 s{S_T}, s{S_QB}, 3")
    a(f"s_lshl_b32 s{S_T+1}, s{S_WAVE}, 1")
    a(f"s_add_u32 s{S_T}, s{S_T}, s{S_T+1}")
    a(f"s_lshl_b32 s{S_T+1}, s{S_HEAD}, 6")
    a(f"s_add_u32 s{S_T+1}, s{S_T+1}, s{S_T}")
    a(f"s_lshl_b32 s{S_T+1}, s{S_T+1}, 10")
    a(f"s_add_u32 s{S_T+1}, s{S_T+1}, {WS_Q1}")
    a(f"buffer_load_dwordx4 {v(Q1A,4)}, {v(V_G16)}, {srd}, s{S_T+1} offen")
    a(f"buffer_load_dwordx4 {v(Q1B,4)}, {v(V_G16)}, {srd}, s{S_T+1} offen offset:1024")
    a(f"s_lshr_b32 s{S_T+2}, s{S_HEAD}, 1")
    a(f"s_lshl_b32 s{S_T+2}, s{S_T+2}, 6")
    a(f"s_add_u32 s{S_T+2}, s{S_T+2}, s{S_T}")
    a(f"s_lshl_b32 s{S_T+2}, s{S_T+2}, 9")
    a(f"s_add_u32 s{S_T+2}, s{S_T+2}, {WS_Q2}")
    a(f"buffer_load_dwordx2 {v(Q2A,2)}, {v(V_A8)}, {srd}, s{S_T+2} offen")
    a(f"buffer_load_dwordx2 {v(Q2B,2)}, {v(V_A8)}, {srd}, s{S_T+2} offen offset:512")
    a(f"s_add_u32 s{S_T+3}, s{S_T+6}, {63*TILE_REC}")
    a(f"buffer_load_dwordx4 {v(K1[1],4)}, {v(V_G16)}, {srd}, s{S_T+3} offen")
    a(f"buffer_load_dwordx2 {v(K2[1],2)}, {v(V_A8)}, {srd}, s{S_T+3} offen offset:3072")
    for r in list(range(OA, OA+32)) + list(range(PB, PB+8)) + list(range(VV0[1], VV0[1]+4)) + list(range(VV1[1], VV1[1]+4)):
        a(f"v_mov_b32 {v(r)}, 0")
    a(f"s_and_b32 s{S_T+3}, s{S_HEAD}, 1")
    a(f"s_cmp_eq_u32 s{S_T+3}, 0")
    a(f"s_cselect_b32 s{S_T+4}, 0, -1")
    a(f"s_cselect_b32 s{S_T+5}, -1, 0")
    a(f"s_mov_b32 s{S_BUFD}, {CH_BYTES}")
    a("s_waitcnt vmcnt(0)")
    a(f"s_mov_b64 exec, s[{S_T+4}:{S_T+5}]")
    for r in (Q2A, Q2A+1, Q2B, Q2B+1):
        a(f"v_mov_b32 {v(r)}, 0")
    a("s_mov_b64 exec, -1")
    a("s_nop 1")
    mfma32(a, SA, K1[1], Q1A, None)
    mfma32(a, SA, K2[1], Q2A, SA, k16=False)
    a(f"s_mov_b32 s{S_CNT}, 0")
    a("s_barrier")
    def rd(txt):
        if not OPT['nolds']: a(txt)
    def reads(st, off):
        rd(f"ds_read_b128 {v(K1[st],4)}, {v(V_A16)} offset:{off}")
        rd(f"ds_read_b128 {v(VV0[st],4)}, {v(V_A16)} offset:{off+1024}")
        rd(f"ds_read_b64 {v(K2[st],2)}, {v(V_A8)} offset:{off+3072}")
        rd(f"ds_read_b128 {v(VV1[st],4)}, {v(V_A16)} offset:{off+2048}")
    reads(0, 0)
    a("s_nop 7")
    if dbg_time:
        stamp(a, 1)
        a("s_waitcnt lgkmcnt(0)")
    loop = a.newlabel("attn_loop")
    a.raw(".p2align 6")
    a.label(loop)
    def E(Sr, i): a(f"v_exp_f32 {v(Sr+i)}, {v(Sr+i)}")
    def C(Sr, P, k): a(f"v_cvt_pk_bf16_f32 {v(P+k)}, {v(Sr+2*k)}, {v(Sr+2*k+1)}")
    def phase(Sr, P, m, rds):
        m[0]()
        for r_ in rds[0:2]: rd(r_)
        for i in (0, 1, 2): E(Sr, i)
        m[1]()
        for r_ in rds[2:4]: rd(r_)
        for i in (3, 4, 5, 6, 7): E(Sr, i)
        for k in (0, 1, 2, 3): C(Sr, P, k)
        m[2]()
        for i in (8, 9, 10): E(Sr, i)
        m[3]()
        for i in (11, 12, 13, 14, 15): E(Sr, i)
        for k in (4, 5, 6, 7): C(Sr, P, k)
    for j in range(CH):
        p = j & 1; pn = p ^ 1
        phase(SA, PA, [lambda: mfma32(a, OB, VV0[pn], PB, OB), lambda: mfma32(a, SB, K1[pn], Q1B, None),
                       lambda: mfma32(a, SB, K2[pn], Q2B, SB, k16=False), lambda: mfma32(a, OB, VV1[pn], PB+4, OB)], [])
        if not OPT['nolds']: a("s_waitcnt lgkmcnt(0)")
        if j == CH-1:
            if not OPT['nobar']:
                a("s_barrier")
            a(f"v_add_u32 {v(V_A16)}, s{S_BUFD}, {v(V_A16)}")
            a(f"v_add_u32 {v(V_A8)}, s{S_BUFD}, {v(V_A8)}")
            a(f"s_sub_u32 s{S_BUFD}, 0, s{S_BUFD}")
            off = 0
        else:
            off = (j+1)*TILE_REC
        rds = [f"ds_read_b128 {v(K1[pn],4)}, {v(V_A16)} offset:{off}",
               f"ds_read_b128 {v(VV0[pn],4)}, {v(V_A16)} offset:{off+1024}",
               f"ds_read_b64 {v(K2[pn],2)}, {v(V_A8)} offset:{off+3072}",
               f"ds_read_b128 {v(VV1[pn],4)}, {v(V_A16)} offset:{off+2048}"]
        phase(SB, PB, [lambda: mfma32(a, OA, VV0[p], PA, OA), lambda: mfma32(a, SA, K1[p], Q1A, None),
                       lambda: mfma32(a, SA, K2[p], Q2A, SA, k16=False), lambda: mfma32(a, OA, VV1[p], PA+4, OA)], rds)
    a(f"s_add_u32 s{S_CNT}, s{S_CNT}, 1")
    a(f"s_cmp_lt_u32 s{S_CNT}, {NCH}")
    a(f"s_cbranch_scc1 {loop}")
    if dbg_time: stamp(a, 2)
    a("s_nop 1")
    mfma32(a, OB, VV0[1], PB, OB)
    mfma32(a, OB, VV1[1], PB+4, OB)
    T = 84
    a(f"v_and_b32 {v(T)}, 31, v0")
    a(f"v_lshrrev_b32 {v(T+1)}, 5, v0")
    a(f"s_lshl_b32 s{S_T}, s{S_QB}, 8")
    a(f"s_lshl_b32 s{S_T+1}, s{S_WAVE}, 6")
    a(f"s_add_u32 s{S_T}, s{S_T}, s{S_T+1}")
    a(f"v_add_u32 {v(T)}, s{S_T}, {v(T)}")
    a(f"v_mul_u32_u24 {v(T)}, 1280, {v(T)}")
    a(f"v_lshlrev_b32 {v(T+2)}, 3, {v(T+1)}")
    a(f"v_add_u32 {v(T)}, {v(T)}, {v(T+2)}")
    a(f"s_mul_i32 s{S_T+2}, s{S_HEAD}, 40")
    a(f"s_add_u32 s{S_T+2}, s{S_T+2}, {WS_OB}")
    a(f"v_cmp_eq_u32 vcc, 0, {v(T+1)}")
    a("s_nop 1")
    for n_, (O, extra) in enumerate(((OA, 0), (OB, 32*1280))):
        if n_ == 1:
            a("s_nop 7")
        a(f"v_cndmask_b32 {v(T+3)}, {v(O+8)}, {v(O+12)}, vcc")
        a(f"v_rcp_f32 {v(T+3)}, {v(T+3)}")
        a("s_nop 0")
        for i in range(12):
            a(f"v_mul_f32 {v(O+i)}, {v(O+i)}, {v(T+3)}")
        for i in range(6):
            a(f"v_cvt_pk_bf16_f32 {v(T+4+i)}, {v(O+2*i)}, {v(O+2*i+1)}")
        if extra:
            a(f"s_add_u32 s{S_T+2}, s{S_T+2}, {extra}")
        a(f"buffer_store_dwordx2 {v(T+4,2)}, {v(T)}, {srd}, s{S_T+2} offen")
        a(f"buffer_store_dwordx2 {v(T+6,2)}, {v(T)}, {srd}, s{S_T+2} offen offset:16")
        a("s_mov_b32 exec_hi, 0")
        a(f"buffer_store_dwordx2 {v(T+8,2)}, {v(T)}, {srd}, s{S_T+2} offen offset:32")
        a(f"s_mov_b64 exec, -1")
    if dbg_time:
        a("s_waitcnt vmcnt(0)")
        stamp_end(a, WS_DBG, KA_WS, S_WAVE)
    a("s_endpgm")
```

```python
from asmlib import *
from layout import *

S_X = 8
S_W = 12
S_O = 16
S_WAVE = 20
S_XOFF = 21
S_WOFF = 22
S_LB = 23
S_ST = 24
S_T = 25
S_LBW = 43
S_RB = 40
S_CB = 41
BK = 32
NST = 640 // BK
SPS = 5
XBYTES = 128 * 64

PFOPT = dict(allpre=1, delay0=0, delay1=0, ldelay=0)
GOPT = dict(noload=False, nocomp=False, nomfma=False, ntx=False, ntw=False, ntpf=False)
class G:
    def __init__(self, NC, wstride, acc0, vbase, NB=5, INIT=None):
        self.NC = NC; self.wstride = wstride
        self.INIT = INIT if INIT is not None else NB - 2
        self.NB = NB; self.DEPTH = NB - 2; self.NSET = NB // SPS
        assert NB % SPS == 0 and NST % NB == 0
        self.NT = NC // 32
        self.rowb = NC * 2
        self.wbytes = BK * self.rowb
        self.wbase = NB * XBYTES
        self.lds = NB * (XBYTES + self.wbytes)
        self.acc = acc0
        r = vbase
        self.nwr = {128: 4, 96: 1, 64: 2}[NC]
        self.vxr = r; r += 2 * self.NSET
        self.vwr = r; r += self.nwr * self.NSET
        r = (r + 3) // 4 * 4
        self.xf = [r, r + 4]; r += 8
        self.wf = [[r + 4 * i + 4 * self.NT * b for i in range(self.NT)] for b in range(2)]; r += 8 * self.NT
        self.vend = r

def loader_addrs(a, g, colmode):
    t0, t1, t2, t3 = 3, 4, 5, 6
    a(f"v_lshrrev_b32 {v(t0)}, 2, v0")
    a(f"v_lshrrev_b32 {v(t1)}, 4, v0")
    a(f"v_and_b32 {v(t2)}, 3, v0")
    a(f"v_xor_b32 {v(t2)}, {v(t2)}, {v(t1)}")
    a(f"v_lshlrev_b32 {v(t2)}, 4, {v(t2)}")
    a(f"s_lshl_b32 s{S_T}, s{S_WAVE}, 4")
    a(f"v_add_u32 {v(t0)}, s{S_T}, {v(t0)}")
    a(f"v_mul_u32_u24 v1, 1280, {v(t0)}")
    a(f"v_add_u32 v1, v1, {v(t2)}")
    if g.NC == 128:
        a(f"v_lshrrev_b32 {v(t0)}, 4, v0")
        a(f"v_and_b32 {v(t1)}, 15, v0")
        a(f"v_lshlrev_b32 {v(t2)}, 2, {v(t0)}")
        a(f"v_xor_b32 {v(t1)}, {v(t1)}, {v(t2)}")
        if colmode == 'qkv':
            a(f"v_mov_b32 {v(t2)}, 0")
            for lim, add in ((5, 1200), (10, 2400), (15, -240)):
                a(f"v_cmp_le_u32 vcc, {lim}, {v(t1)}")
                a(f"v_mov_b32 {v(t3)}, {add}")
                a("s_nop 0")
                a(f"v_cndmask_b32 {v(t2)}, {v(t2)}, {v(t3)}, vcc")
            a(f"v_lshlrev_b32 {v(t1)}, 4, {v(t1)}")
            a(f"v_add_u32 {v(t1)}, {v(t1)}, {v(t2)}")
        else:
            a(f"v_lshlrev_b32 {v(t1)}, 4, {v(t1)}")
        a(f"s_lshl_b32 s{S_T}, s{S_WAVE}, 3")
        a(f"v_add_u32 {v(t0)}, s{S_T}, {v(t0)}")
        a(f"v_mul_u32_u24 v2, {g.wstride}, {v(t0)}")
        a(f"v_add_u32 v2, v2, {v(t1)}")
    elif g.NC == 64:
        a(f"v_lshrrev_b32 {v(t0)}, 3, v0")
        a(f"v_and_b32 {v(t1)}, 7, v0")
        a(f"v_bfe_u32 {v(t2)}, {v(t0)}, 1, 1")
        a(f"v_lshlrev_b32 {v(t2)}, 2, {v(t2)}")
        a(f"v_xor_b32 {v(t1)}, {v(t1)}, {v(t2)}")
        a(f"v_lshlrev_b32 {v(t1)}, 4, {v(t1)}")
        a(f"s_lshl_b32 s{S_T}, s{S_WAVE}, 3")
        a(f"v_add_u32 {v(t0)}, s{S_T}, {v(t0)}")
        a(f"v_mul_u32_u24 v2, {g.wstride}, {v(t0)}")
        a(f"v_add_u32 v2, v2, {v(t1)}")
    else:
        a(f"s_lshl_b32 s{S_T}, s{S_WAVE}, 6")
        a(f"v_add_u32 {v(t0)}, s{S_T}, v0")
        a(f"v_mul_u32_u24 {v(t1)}, 43691, {v(t0)}")
        a(f"v_lshrrev_b32 {v(t1)}, 19, {v(t1)}")
        a(f"v_mul_u32_u24 {v(t2)}, 12, {v(t1)}")
        a(f"v_sub_u32 {v(t2)}, {v(t0)}, {v(t2)}")
        a(f"v_lshlrev_b32 {v(t3)}, 4, {v(t2)}")
        if colmode == 'kv':
            a(f"v_cmp_le_u32 vcc, 5, {v(t2)}")
            a(f"v_mov_b32 {v(t0)}, 1200")
            a("s_nop 0")
            a(f"v_cndmask_b32 {v(t0)}, 0, {v(t0)}, vcc")
            a(f"v_cmp_le_u32 vcc, 10, {v(t2)}")
            a(f"v_mov_b32 {v(t2)}, -160")
            a("s_nop 0")
            a(f"v_cndmask_b32 {v(t0)}, {v(t0)}, {v(t2)}, vcc")
            a(f"v_add_u32 {v(t3)}, {v(t3)}, {v(t0)}")
        a(f"v_mul_u32_u24 v2, {g.wstride}, {v(t1)}")
        a(f"v_add_u32 v2, v2, {v(t3)}")

S_KS = 58
def loader_issue(a, g, with_w=True, slot=0):
    sx = f"s[{S_X}:{S_X+3}]"; sw = f"s[{S_W}:{S_W+3}]"
    fx = " nt" if GOPT['ntx'] else ""; fw = " nt" if GOPT['ntw'] else ""
    a(f"s_add_u32 m0, s{S_T+2}, {slot*XBYTES}")
    a(f"s_add_u32 s{S_T+1}, s{S_XOFF}, {64*1280}")
    a(f"buffer_load_dwordx4 v1, {sx}, s{S_XOFF} offen{fx} lds")
    a(f"s_add_u32 m0, m0, 4096")
    a(f"s_add_u32 s{S_XOFF}, s{S_XOFF}, {BK*2}")
    a(f"buffer_load_dwordx4 v1, {sx}, s{S_T+1} offen{fx} lds")
    n = 2
    if with_w:
        a(f"s_add_u32 m0, s{S_T+3}, {g.wbase + slot*g.wbytes}")
        if g.NC == 128:
            a(f"s_add_u32 s{S_T+1}, s{S_WOFF}, {4*g.wstride-1024}")
            a(f"buffer_load_dwordx4 v2, {sw}, s{S_WOFF} offen{fw} lds")
            a(f"buffer_load_dwordx4 v2, {sw}, s{S_T+1} offen offset:1024{fw} lds")
            n += 2
        elif g.NC == 64:
            a("s_nop 0")
            a(f"buffer_load_dwordx4 v2, {sw}, s{S_WOFF} offen{fw} lds")
            n += 1
        else:
            a(f"s_add_u32 s{S_T+1}, s{S_WOFF}, {16*g.wstride-3072}")
            a(f"buffer_load_dwordx4 v2, {sw}, s{S_WOFF} offen{fw} lds")
            a(f"buffer_load_dwordx4 v2, {sw}, s{S_T+1} offen offset:3072{fw} lds")
            n += 2
    a(f"s_add_u32 s{S_WOFF}, s{S_WOFF}, {BK*g.wstride}")
    a(f"s_add_u32 s{S_KS}, s{S_KS}, 1")
    a(f"s_cmp_eq_u32 s{S_KS}, {NST}")
    a(f"s_cselect_b32 s{S_T+4}, {640*2}, 0")
    a(f"s_sub_u32 s{S_XOFF}, s{S_XOFF}, s{S_T+4}")
    a(f"s_cmp_eq_u32 s{S_KS}, {NST}")
    a(f"s_cselect_b32 s{S_T+4}, {640*g.wstride}, 0")
    a(f"s_sub_u32 s{S_WOFF}, s{S_WOFF}, s{S_T+4}")
    return n

def loader_body(a, g, with_w, tail=None):
    issued = 0
    n = None
    def issue():
        nonlocal issued, n
        n = loader_issue(a, g, with_w, issued % g.NB)
        issued += 1
    for i in range(g.INIT): issue()
    for s_ in range(NST):
        out = (issued - s_ - 1) * n
        assert out <= 63
        a(f"s_waitcnt vmcnt({out})")
        a("s_barrier")
        if GOPT['noload']: continue
        k = 0
        while issued < NST and issued <= s_ + g.NB - 2 and k < 2:
            issue(); k += 1
    if tail: tail()
    a("s_endpgm")

def loader(a, g, colmode, tail=None):
    if PFOPT['ldelay']: a(f"s_sleep {PFOPT['ldelay']}")
    if getattr(g, 'lprio', 0): a(f"s_setprio {g.lprio}")
    loader_addrs(a, g, colmode)
    a(f"s_mov_b32 s{S_KS}, s59")
    a(f"s_mul_i32 s{S_T+4}, s59, {BK*2}")
    a(f"s_add_u32 s{S_XOFF}, s{S_XOFF}, s{S_T+4}")
    a(f"s_mul_i32 s{S_T+4}, s59, {BK*g.wstride}")
    a(f"s_add_u32 s{S_WOFF}, s{S_WOFF}, s{S_T+4}")
    a(f"s_lshl_b32 s{S_T+2}, s{S_WAVE}, 10")
    if g.NC == 128:
        a(f"s_lshl_b32 s{S_T+3}, s{S_WAVE}, 11")
    else:
        a(f"s_lshl_b32 s{S_T+3}, s{S_WAVE}, 10")
    if g.NC == 96:
        l3 = a.newlabel("gl_w3")
        a(f"s_cmp_eq_u32 s{S_WAVE}, 3")
        a(f"s_cbranch_scc1 {l3}")
        loader_body(a, g, True, tail)
        a.label(l3)
        loader_body(a, g, False, tail)
    else:
        loader_body(a, g, True, tail)

def compute_addrs(a, g, vt):
    t0, t1, t2 = vt, vt + 1, vt + 2
    a(f"v_and_b32 {v(t0)}, 31, v0")
    a(f"s_lshl_b32 s{S_T}, s{S_WAVE}, 5")
    a(f"v_add_u32 {v(t0)}, s{S_T}, {v(t0)}")
    a(f"v_bfe_u32 {v(t1)}, {v(t0)}, 2, 2")
    a(f"v_lshrrev_b32 {v(t2)}, 5, v0")
    a(f"v_xor_b32 {v(t1)}, {v(t1)}, {v(t2)}")
    a(f"v_lshlrev_b32 {v(t1)}, 4, {v(t1)}")
    a(f"v_lshlrev_b32 {v(t0)}, 6, {v(t0)}")
    a(f"v_add_u32 {v(g.vxr)}, {v(t0)}, {v(t1)}")
    a(f"v_xor_b32 {v(g.vxr+1)}, 32, {v(g.vxr)}")
    a(f"v_bfe_u32 {v(t0)}, v0, 2, 2")
    a(f"v_lshrrev_b32 {v(t1)}, 5, v0")
    a(f"v_lshlrev_b32 {v(t1)}, 3, {v(t1)}")
    a(f"v_add_u32 {v(t1)}, {v(t1)}, {v(t0)}")
    a(f"v_mul_u32_u24 {v(t1)}, {g.rowb}, {v(t1)}")
    a(f"v_bfe_u32 {v(t2)}, v0, 4, 1")
    a(f"v_lshlrev_b32 {v(t2)}, 5, {v(t2)}")
    a(f"v_add_u32 {v(t1)}, {v(t1)}, {v(t2)}")
    a(f"v_and_b32 {v(t2)}, 3, v0")
    a(f"v_lshlrev_b32 {v(t2)}, 3, {v(t2)}")
    a(f"v_add_u32 {v(t1)}, {v(t1)}, {v(t2)}")
    a(f"v_add_u32 {v(t1)}, {g.wbase}, {v(t1)}")
    if g.NC == 128:
        for ct in range(4):
            a(f"v_xor_b32 {v(t2)}, {ct}, {v(t0)}")
            a(f"v_lshlrev_b32 {v(t2)}, 6, {v(t2)}")
            a(f"v_add_u32 {v(g.vwr+ct)}, {v(t1)}, {v(t2)}")
    elif g.NC == 96:
        a(f"v_mov_b32 {v(g.vwr)}, {v(t1)}")
    else:
        a(f"v_lshrrev_b32 {v(t0)}, 1, {v(t0)}")
        for ct in range(2):
            a(f"v_xor_b32 {v(t2)}, {ct}, {v(t0)}")
            a(f"v_lshlrev_b32 {v(t2)}, 6, {v(t2)}")
            a(f"v_add_u32 {v(g.vwr+ct)}, {v(t1)}, {v(t2)}")
    for st in range(1, g.NSET):
        for i in range(2):
            a(f"v_add_u32 {v(g.vxr+2*st+i)}, {st*SPS*XBYTES}, {v(g.vxr+i)}")
        for i in range(g.nwr):
            a(f"v_add_u32 {v(g.vwr+g.nwr*st+i)}, {st*SPS*g.wbytes}, {v(g.vwr+i)}")

def rd_list(g, buf, ks, b):
    st, sl = divmod(buf, SPS)
    L = [f"ds_read_b128 {v(g.xf[b],4)}, {v(g.vxr+2*st+ks)} offset:{sl*XBYTES}"]
    base = sl * g.wbytes
    for i in range(g.NT):
        if g.NC == 96:
            addr = g.vwr + g.nwr*st; off = base + i*64 + ks*16*g.rowb
        else:
            addr = g.vwr + g.nwr*st + i; off = base + ks*16*g.rowb
        L.append(f"ds_read_b64_tr_b16 {v(g.wf[b][i],2)}, {v(addr)} offset:{off}")
        L.append(f"ds_read_b64_tr_b16 {v(g.wf[b][i]+2,2)}, {v(addr)} offset:{off+4*g.rowb}")
    if GOPT['nocomp']: L = []
    return L

def mf_list(g, b, orient):
    L = []
    for i in range(g.NT):
        d = g.acc + 16*i
        if orient[i] == 'FT':
            L.append(f"v_mfma_f32_32x32x16_bf16 {v(d,16)}, {v(g.wf[b][i],4)}, {v(g.xf[b],4)}, {v(d,16)}")
        else:
            L.append(f"v_mfma_f32_32x32x16_bf16 {v(d,16)}, {v(g.xf[b],4)}, {v(g.wf[b][i],4)}, {v(d,16)}")
    if GOPT['nocomp'] or GOPT['nomfma']: L = []
    return L

def mfmas(a, g, b, orient):
    for m in mf_list(g, b, orient): a(m)

def interleave(a, g, mf, rd):
    nrd = 1 + 2*g.NT
    if not rd:
        for m in mf: a(m)
        return
    per = [3] + [2]*(g.NT-1)
    k = 0
    for i in range(g.NT):
        old_younger = nrd - 3 - 2*i
        a(f"s_waitcnt lgkmcnt({old_younger + k})")
        if mf: a(mf[i])
        for j in range(per[i]):
            a(rd[k]); k += 1

def compute_loop(a, g, orient, dbg=False, pre_loop=None, per_iter=None):
    for r in range(g.acc, g.acc + 16*g.NT):
        a(f"v_mov_b32 {v(r)}, 0")
    for r in list(range(g.xf[1], g.xf[1]+4)) + [g.wf[1][i]+k for i in range(g.NT) for k in range(4)]:
        a(f"v_mov_b32 {v(r)}, 0")
    if pre_loop: pre_loop()
    a(f"s_mov_b32 s{S_ST}, 0")
    if dbg:
        a("s_memtime s[78:79]")
        a("s_waitcnt lgkmcnt(0)")
    loop = a.newlabel("gc_loop")
    a.label(loop)
    for b in range(g.NB):
        a("s_barrier")
        if dbg and b == 0:
            sk = a.newlabel("st")
            a(f"s_cmp_lg_u32 s{S_ST}, 0")
            a(f"s_cbranch_scc1 {sk}")
            a("s_memtime s[76:77]")
            a("s_waitcnt lgkmcnt(0)")
            a.label(sk)
        if b == 0 and per_iter: per_iter()
        interleave(a, g, mf_list(g, 1, orient), rd_list(g, b, 0, 0))
        interleave(a, g, mf_list(g, 0, orient), rd_list(g, b, 1, 1))
    a(f"s_add_u32 s{S_ST}, s{S_ST}, {g.NB}")
    a(f"s_cmp_lt_u32 s{S_ST}, {NST}")
    a(f"s_cbranch_scc1 {loop}")
    a("s_waitcnt lgkmcnt(0)")
    mfmas(a, g, 1, orient)
    if per_iter: a("s_waitcnt vmcnt(0)")

S_PFO = 44+12
S_PFS = 57
class PF:
    SRD = 60
    def __init__(self, vaddr, vdummy):
        self.va = vaddr; self.vd = vdummy
    def issue(self, a):
        a(f"buffer_load_dword {v(self.vd)}, {v(self.va)}, s[{self.SRD}:{self.SRD+3}], s{S_PFO} offen" + (" nt" if GOPT['ntpf'] else ""))
        a(f"s_add_u32 s{S_PFO}, s{S_PFO}, s{S_PFS}")
    def pre(self, a):
        lab = a.newlabel("pf_skip")
        a(f"s_cmp_eq_u32 s{S_WAVE}, 3")
        a(f"s_cbranch_scc1 {lab}")
        if PFOPT['delay0']: a(f"s_sleep {PFOPT['delay0']}")
        self.issue(a)
        if PFOPT['allpre']:
            if PFOPT['delay1']: a(f"s_sleep {PFOPT['delay1']}")
            self.issue(a)
            if PFOPT['delay1']: a(f"s_sleep {PFOPT['delay1']}")
            self.issue(a)
        a.label(lab)
    def iter(self, a):
        if PFOPT['allpre']: return
        lab = a.newlabel("pf_skip")
        a(f"s_cmp_eq_u32 s{S_WAVE}, 3")
        a(f"s_cbranch_scc1 {lab}")
        a(f"s_cmp_ge_u32 s{S_ST}, 10")
        a(f"s_cbranch_scc1 {lab}")
        self.issue(a)
        a.label(lab)
    def select_srd(self, a):
        a(f"s_cmp_eq_u32 s{S_WAVE}, 1")
        for i in range(4):
            a(f"s_cselect_b32 s{self.SRD+i}, s{S_X+i}, s{S_W+i}")
```

```python
from asmlib import *
from layout import *
from gemm import *
import struct, os
BNB = int(os.environ.get('BNB','10'))
BINIT = int(os.environ.get('BINIT','5'))
ROT = int(os.environ.get('ROT','1'))

def f32hex(x):
    return "0x%08x" % struct.unpack("<I", struct.pack("<f", x))[0]

def srd(a, s0, kaoff, nbytes):
    a(f"s_load_dwordx2 s[{s0}:{s0+1}], s[0:1], {kaoff}")
def srd_fin(a, s0, nbytes):
    a(f"s_mov_b32 s{s0+2}, {nbytes}")
    a(f"s_mov_b32 s{s0+3}, 0x00020000")

def wave_lane(a, vt):
    a(f"v_lshrrev_b32 {v(vt)}, 6, v0")
    a(f"v_and_b32 v0, 63, v0")
    a(f"v_readfirstlane_b32 s{S_WAVE}, {v(vt)}")
    a("s_nop 3")
    a(f"s_lshr_b32 s{S_T+14}, s{S_WAVE}, 2")
    a(f"s_and_b32 s{S_WAVE}, s{S_WAVE}, 3")

def split_roles(a, g, colmode, tail=None):
    lc = a.newlabel("compute")
    a(f"s_cmp_eq_u32 s{S_T+14}, 0")
    a(f"s_cbranch_scc1 {lc}")
    loader(a, g, colmode, tail)
    a.label(lc)

PREFETCH = False
TOUCH = False
def IDLE_PF(a, g, VT):
    t0 = VT; t1 = VT+1; va = VT+2
    a(f"v_lshrrev_b32 {v(t0)}, 5, v0")
    a(f"v_lshlrev_b32 {v(t0)}, 6, {v(t0)}")
    a(f"v_bfe_u32 {v(t1)}, v0, 4, 1")
    a(f"v_add_u32 {v(t0)}, {v(t0)}, {v(t1)}")
    a(f"s_lshl_b32 s{S_T}, s64, 1")
    a(f"v_add_u32 {v(t0)}, s{S_T}, {v(t0)}")
    a(f"v_mul_u32_u24 {v(va)}, 3840, {v(t0)}")
    a(f"v_and_b32 {v(t1)}, 15, v0")
    a(f"v_lshlrev_b32 {v(t1)}, 7, {v(t1)}")
    a(f"v_add_u32 {v(va)}, {v(va)}, {v(t1)}")
    a(f"s_lshl_b32 s{S_T}, s{S_WAVE}, 1")
    a(f"s_mul_i32 s{S_T}, s{S_T}, {64*3840}")
    a(f"s_lshl_b32 s{S_T+4}, s65, 11")
    a(f"s_add_u32 s{S_T}, s{S_T}, s{S_T+4}")
    a(f"buffer_load_dword {v(VT+3)}, {v(va)}, s[{S_W}:{S_W+3}], s{S_T} offen")
    a(f"s_add_u32 s{S_T}, s{S_T}, {8*64*3840}")
    a(f"buffer_load_dword {v(VT+4)}, {v(va)}, s[{S_W}:{S_W+3}], s{S_T} offen")
    a(f"v_and_b32 {v(t0)}, 15, v0")
    a(f"s_lshl_b32 s{S_T}, s64, 4")
    a(f"v_add_u32 {v(t0)}, s{S_T}, {v(t0)}")
    a(f"v_mul_u32_u24 {v(va)}, 1280, {v(t0)}")
    a(f"v_lshrrev_b32 {v(t1)}, 4, v0")
    a(f"v_lshlrev_b32 {v(t1)}, 7, {v(t1)}")
    a(f"v_add_u32 {v(va)}, {v(va)}, {v(t1)}")
    a(f"s_mul_i32 s{S_T}, s66, {128*1280}")
    a(f"s_lshl_b32 s{S_T+4}, s{S_WAVE}, 9")
    a(f"s_add_u32 s{S_T}, s{S_T}, s{S_T+4}")
    a(f"buffer_load_dword {v(VT+5)}, {v(va)}, s[{S_X}:{S_X+3}], s{S_T} offen")
BQ = G(NC=128, wstride=3840, acc0=64, vbase=1, NB=5, INIT=3)
BQ_NVGPR = 128
def role_bqkv(a, dbg=False):
    g = BQ
    VT = 52
    assert g.vend <= VT, g.vend
    if dbg: stamp(a, 0)
    srd(a, S_X, KA_BX, 0); srd(a, S_W, KA_BWQKV, 0); srd(a, S_O, KA_WS, 0)
    wave_lane(a, VT)
    a(f"s_and_b32 s{S_T}, s2, 7")
    a(f"s_lshr_b32 s{S_T+1}, s2, 3")
    a(f"s_lshr_b32 s{S_T+2}, s{S_T}, 1")
    a(f"s_lshl_b32 s{S_T+2}, s{S_T+2}, 2")
    a(f"s_and_b32 s{S_T+3}, s{S_T}, 1")
    a(f"s_lshr_b32 s{S_T+4}, s{S_T+1}, 3")
    a(f"s_and_b32 s{S_T+5}, s{S_T+1}, 7")
    a(f"s_mul_i32 s{S_T+6}, s{S_T+1}, 37")
    a(f"s_lshr_b32 s{S_T+6}, s{S_T+6}, 8")
    a(f"s_mul_i32 s{S_T+7}, s{S_T+6}, 7")
    a(f"s_sub_u32 s{S_T+7}, s{S_T+1}, s{S_T+7}")
    a(f"s_add_u32 s{S_T+7}, s{S_T+7}, 8")
    a(f"s_cmp_eq_u32 s{S_T+3}, 0")
    a(f"s_cselect_b32 s{S_RB}, s{S_T+4}, s{S_T+6}")
    a(f"s_cselect_b32 s{S_CB}, s{S_T+5}, s{S_T+7}")
    a(f"s_add_u32 s{S_RB}, s{S_RB}, s{S_T+2}")
    a(f"s_mul_i32 s{S_XOFF}, s{S_RB}, {128*1280}")
    a(f"s_lshl_b32 s{S_WOFF}, s{S_CB}, 8")
    a("s_waitcnt lgkmcnt(0)")
    srd_fin(a, S_X, 2048*1280); srd_fin(a, S_W, 640*3840); srd_fin(a, S_O, WS_SIZE_SRD)
    lgo = a.newlabel("bq_go")
    a(f"s_cmp_eq_u32 s{S_T+3}, 0")
    a(f"s_cbranch_scc1 {lgo}")
    a(f"s_cmp_lt_u32 s{S_T+1}, 28")
    a(f"s_cbranch_scc1 {lgo}")
    if PREFETCH:
        lnp = a.newlabel("bq_idle_nopf")
        a(f"s_cmp_lg_u32 s{S_T+14}, 0")
        a(f"s_cbranch_scc1 {lnp}")
        a(f"s_mov_b32 s64, s{S_T+1}")
        a(f"s_mov_b32 s65, s{S_T+3}")
        a(f"s_mov_b32 s66, s{S_T+2}")
        IDLE_PF(a, g, VT)
        a.label(lnp)
    a(f"s_cmp_lg_u32 s2, {28*8+1}")
    lz0 = a.newlabel("bq_z0")
    a(f"s_cbranch_scc1 {lz0}")
    a(f"s_mov_b32 s{S_T}, {WS_FLAG}")
    a(f"s_lshl_b32 s{S_T+2}, s{S_T+14}, 2")
    a(f"s_add_u32 s{S_T+2}, s{S_T+2}, s{S_WAVE}")
    a(f"s_lshl_b32 s{S_T+2}, s{S_T+2}, 6")
    a(f"v_add_u32 {v(VT)}, s{S_T+2}, v0")
    a(f"v_lshlrev_b32 {v(VT+1)}, 4, {v(VT)}")
    for i in range(4):
        a(f"v_mov_b32 {v(VT+4+i)}, 0")
    a(f"v_cmp_gt_u32 vcc, 128, {v(VT)}")
    a("s_nop 1")
    a("s_and_b64 exec, exec, vcc")
    lz = a.newlabel("bq_zskip")
    a(f"s_cbranch_execz {lz}")
    a(f"buffer_store_dwordx4 {v(VT+4,4)}, {v(VT+1)}, s[{S_O}:{S_O+3}], s{S_T} offen sc1")
    a.label(lz)
    a.label(lz0)
    a("s_endpgm")
    a.label(lgo)
    if ROT:
        a(f"s_and_b32 s{S_T+8}, s{S_RB}, 3")
        a(f"s_mul_i32 s{S_T+8}, s{S_T+8}, 10")
        a(f"s_and_b32 s{S_T+9}, s{S_CB}, 7")
        a(f"s_mul_i32 s{S_T+9}, s{S_T+9}, 5")
        a(f"s_add_u32 s{S_T+8}, s{S_T+8}, s{S_T+9}")
        a(f"s_lshr_b32 s{S_T+8}, s{S_T+8}, 1")
        a(f"s_cmp_ge_u32 s{S_T+8}, 20")
        a(f"s_cselect_b32 s{S_T+9}, 20, 0")
        a(f"s_sub_u32 s59, s{S_T+8}, s{S_T+9}")
    else:
        a("s_mov_b32 s59, 0")
    a(f"s_mov_b32 s64, s{S_T+1}")
    a(f"s_mov_b32 s65, s{S_T+3}")
    a(f"s_mov_b32 s66, s{S_T+2}")
    pf = PF(VT+8, VT+9)
    def pf_setup():
        if not PREFETCH: return
        va = pf.va; t0 = VT; t1 = VT+1
        lx = a.newlabel("pf_x"); ld = a.newlabel("pf_d")
        pf.select_srd(a)
        a(f"s_cmp_eq_u32 s{S_WAVE}, 1")
        a(f"s_cbranch_scc1 {lx}")
        a(f"v_lshrrev_b32 {v(t0)}, 5, v0")
        a(f"v_lshlrev_b32 {v(t0)}, 6, {v(t0)}")
        a(f"v_bfe_u32 {v(t1)}, v0, 4, 1")
        a(f"v_add_u32 {v(t0)}, {v(t0)}, {v(t1)}")
        a(f"s_lshl_b32 s{S_T}, s64, 1")
        a(f"v_add_u32 {v(t0)}, s{S_T}, {v(t0)}")
        a(f"v_mul_u32_u24 {v(va)}, 3840, {v(t0)}")
        a(f"v_and_b32 {v(t1)}, 15, v0")
        a(f"v_lshlrev_b32 {v(t1)}, 7, {v(t1)}")
        a(f"v_add_u32 {v(va)}, {v(va)}, {v(t1)}")
        a(f"s_mul_i32 s{S_PFO}, s{S_WAVE}, {64*3840}")
        a(f"s_lshl_b32 s{S_T}, s65, 11")
        a(f"s_add_u32 s{S_PFO}, s{S_PFO}, s{S_T}")
        a(f"s_mov_b32 s{S_PFS}, {4*64*3840}")
        a(f"s_branch {ld}")
        a.label(lx)
        a(f"v_and_b32 {v(t0)}, 15, v0")
        a(f"s_lshl_b32 s{S_T}, s64, 4")
        a(f"v_add_u32 {v(t0)}, s{S_T}, {v(t0)}")
        a(f"v_mul_u32_u24 {v(va)}, 1280, {v(t0)}")
        a(f"v_lshrrev_b32 {v(t1)}, 4, v0")
        a(f"v_lshlrev_b32 {v(t1)}, 7, {v(t1)}")
        a(f"v_add_u32 {v(va)}, {v(va)}, {v(t1)}")
        a(f"s_mul_i32 s{S_PFO}, s66, {128*1280}")
        a(f"s_mov_b32 s{S_PFS}, 512")
        a.label(ld)
        pf.pre(a)
    pf_iter = (lambda: None) if PREFETCH else None
    lcomp = a.newlabel("bq_comp")
    if PREFETCH:
        lld = a.newlabel("bq_ld")
        a(f"s_cmp_lg_u32 s{S_T+14}, 0")
        a(f"s_cbranch_scc1 {lld}")
        pf_setup()
        a.label(lld)
    def touch_tail():
        if not TOUCH: return
        a(f"s_load_dwordx2 s[68:69], s[0:1], {KA_AX}")
        a(f"s_load_dwordx2 s[70:71], s[0:1], {KA_AWQKV}")
        a(f"s_load_dwordx2 s[72:73], s[0:1], {KA_AWO}")
        a(f"s_load_dwordx2 s[74:75], s[0:1], {KA_BWO}")
        a(f"s_and_b32 s{S_T}, s2, 7")
        a(f"s_lshr_b32 s{S_T+1}, s{S_T}, 1")
        a(f"s_mul_i32 s{S_T+1}, s{S_T+1}, 60")
        a(f"s_lshl_b32 s{S_T+4}, s65, 5")
        a(f"s_add_u32 s{S_T+1}, s{S_T+1}, s{S_T+4}")
        a(f"s_add_u32 s{S_T+1}, s{S_T+1}, s64")
        a(f"s_lshl_b32 s{S_T+1}, s{S_T+1}, 2")
        a(f"s_add_u32 s{S_T+1}, s{S_T+1}, s{S_WAVE}")
        a("s_waitcnt lgkmcnt(0)")
        a(f"s_mov_b32 s78, {2048*1280}")
        a(f"s_mov_b32 s80, 0")
        for lim, reg, nb in ((320, 70, 640*3840), (620, 72, 640*1280), (720, 74, 640*1280)):
            a(f"s_cmp_ge_u32 s{S_T+1}, {lim}")
            a(f"s_cselect_b32 s68, s{reg}, s68")
            a(f"s_cselect_b32 s69, s{reg+1}, s69")
            a(f"s_cselect_b32 s78, {nb}, s78")
            a(f"s_cselect_b32 s80, {lim}, s80")
        a(f"s_mov_b32 s76, s68")
        a(f"s_mov_b32 s77, s69")
        a(f"s_mov_b32 s79, 0x00020000")
        a(f"s_sub_u32 s{S_T+1}, s{S_T+1}, s80")
        a(f"s_lshl_b32 s{S_T+1}, s{S_T+1}, 13")
        a(f"v_lshlrev_b32 v3, 7, v0")
        a(f"buffer_load_dword v4, v3, s[76:79], s{S_T+1} offen")
    split_roles(a, g, 'lin', tail=touch_tail)
    compute_addrs(a, g, VT)
    lv = a.newlabel("bq_v")
    a(f"s_cmp_ge_u32 s{S_CB}, 10")
    a(f"s_cbranch_scc1 {lv}")
    compute_loop(a, g, ['FT']*4, dbg, per_iter=pf_iter)
    if dbg: a('s_memtime s[72:73]')
    so = f"s[{S_O}:{S_O+3}]"
    VL16, VL8 = VT, VT+1
    a(f"v_lshlrev_b32 {v(VL16)}, 4, v0")
    a(f"v_lshlrev_b32 {v(VL8)}, 3, v0")
    a(f"s_lshl_b32 s{S_T}, s{S_RB}, 2")
    a(f"s_add_u32 s{S_T}, s{S_T}, s{S_WAVE}")
    lk = a.newlabel("bq_k")
    lend = a.newlabel("bq_end")
    a(f"s_cmp_ge_u32 s{S_CB}, 5")
    a(f"s_cbranch_scc1 {lk}")
    for typ in ('Q', 'K'):
        if typ == 'K':
            a.label(lk)
            a(f"s_sub_u32 s{S_CB}, s{S_CB}, 5")
            a(f"s_add_u32 s{S_T}, s{S_T}, 63")
            a(f"s_and_b32 s{S_T}, s{S_T}, 63")
            a(f"s_mul_i32 s{S_T+1}, s{S_T}, {TILE_REC}")
            a(f"s_add_u32 s{S_T+2}, s{S_T+1}, 3072")
            h1, h2 = KV_HEAD, None
        else:
            a(f"s_lshl_b32 s{S_T+1}, s{S_T}, 10")
            a(f"s_add_u32 s{S_T+1}, s{S_T+1}, {WS_Q1}")
            a(f"s_lshl_b32 s{S_T+2}, s{S_T}, 9")
            a(f"s_add_u32 s{S_T+2}, s{S_T+2}, {WS_Q2}")
            h1 = 65536
            a(f"s_mov_b32 s{S_T+4}, {f32hex(QSCALE)}")
        labs = [a.newlabel(f"bq_{typ}{s_}") for s_ in range(5)]
        for s_ in range(1, 5):
            a(f"s_cmp_eq_u32 s{S_CB}, {s_}")
            a(f"s_cbranch_scc1 {labs[s_]}")
        a("s_nop 7")
        for s_ in range(5):
            a.label(labs[s_])
            a("s_nop 7")
            a("s_nop 3")
            for ct in range(4):
                for gq in range(4):
                    Gi = 16*s_ + 4*ct + gq
                    p, r = divmod(Gi, 5)
                    R = g.acc + 16*ct + 4*gq
                    tp = VT + 2 + 2*((ct*4+gq) % 4)
                    if typ == 'Q':
                        for i in range(4):
                            a(f"v_mul_f32 {v(R+i)}, s{S_T+4}, {v(R+i)}")
                    a(f"v_cvt_pk_bf16_f32 {v(tp)}, {v(R)}, {v(R+1)}")
                    a(f"v_cvt_pk_bf16_f32 {v(tp+1)}, {v(R+2)}, {v(R+3)}")
                    if r != 2:
                        head = 2*p + (1 if r >= 3 else 0)
                        off8 = 8*(r if r < 2 else r-3)
                        a(f"s_add_u32 s{S_T+3}, s{S_T+1}, {head*h1}")
                        a(f"buffer_store_dwordx2 {v(tp,2)}, {v(VL16)}, {so}, s{S_T+3} offen offset:{off8}")
                    elif typ == 'Q':
                        a(f"s_add_u32 s{S_T+3}, s{S_T+2}, {p*32768}")
                        a(f"buffer_store_dwordx2 {v(tp,2)}, {v(VL8)}, {so}, s{S_T+3} offen")
                    else:
                        a(f"s_add_u32 s{S_T+3}, s{S_T+2}, {2*p*KV_HEAD}")
                        a(f"buffer_store_dwordx2 {v(tp,2)}, {v(VL8)}, {so}, s{S_T+3} offen")
                        a(f"s_add_u32 s{S_T+3}, s{S_T+3}, {KV_HEAD}")
                        a(f"buffer_store_dwordx2 {v(tp,2)}, {v(VL8)}, {so}, s{S_T+3} offen")
            a(f"s_branch {lend}")
    a.label(lv)
    compute_loop(a, g, ['TF']*4, dbg, per_iter=pf_iter)
    if dbg: a('s_memtime s[72:73]')
    a(f"s_sub_u32 s{S_CB}, s{S_CB}, 10")
    a(f"s_lshl_b32 s{S_T}, s{S_RB}, 2")
    a(f"s_add_u32 s{S_T}, s{S_T}, s{S_WAVE}")
    a(f"s_mul_i32 s{S_T+1}, s{S_T}, {TILE_REC}")
    a(f"s_add_u32 s{S_T+1}, s{S_T+1}, 1024")
    a(f"s_lshl_b32 s{S_T+2}, s{S_CB}, 7")
    ONE = VT + 8
    for i in range(4):
        a(f"v_mov_b32 {v(ONE+i)}, 0x3f803f80")
    VA, VD, VH, VB = VT, VT+1, VT+2, VT+3
    PK = g.xf[0]
    a(f"v_lshrrev_b32 {v(VH)}, 5, v0")
    a(f"v_lshlrev_b32 {v(VH)}, 9, {v(VH)}")
    a(f"s_mov_b32 s{S_T+3}, {KV_HEAD}")
    a("s_nop 7")
    for ct in range(4):
        a(f"v_and_b32 {v(VD)}, 31, v0")
        a(f"v_add_u32 {v(VD)}, s{S_T+2}, {v(VD)}")
        if ct: a(f"v_add_u32 {v(VD)}, {32*ct}, {v(VD)}")
        a(f"v_mul_u32_u24 {v(VA)}, 52429, {v(VD)}")
        a(f"v_lshrrev_b32 {v(VA)}, 20, {v(VA)}")
        a(f"v_mul_u32_u24 {v(VB)}, 20, {v(VA)}")
        a(f"v_sub_u32 {v(VD)}, {v(VD)}, {v(VB)}")
        a(f"v_mul_lo_u32 {v(VA)}, {v(VA)}, s{S_T+3}")
        a(f"v_lshlrev_b32 {v(VB)}, 4, {v(VD)}")
        a(f"v_add3_u32 {v(VA)}, {v(VA)}, {v(VB)}, {v(VH)}")
        for mf in range(2):
            R = g.acc + 16*ct + 8*mf
            P_ = PK + 4*mf
            for i in range(4):
                a(f"v_cvt_pk_bf16_f32 {v(P_+i)}, {v(R+2*i)}, {v(R+2*i+1)}")
            a(f"buffer_store_dwordx4 {v(P_,4)}, {v(VA)}, {so}, s{S_T+1} offen offset:{1024*mf}")
        a(f"v_cmp_eq_u32 vcc, 19, {v(VD)}")
        a(f"v_mov_b32 {v(VB)}, 80")
        a("s_nop 0")
        a(f"v_cndmask_b32 {v(VB)}, 32, {v(VB)}, vcc")
        a(f"v_add_u32 {v(VA)}, {v(VA)}, {v(VB)}")
        a(f"v_cmp_le_u32 vcc, 18, {v(VD)}")
        a(f"s_and_saveexec_b64 s[{S_T+5}:{S_T+6}], vcc") if (S_T+5) % 2 == 0 else a(f"s_and_saveexec_b64 s[{S_T+6}:{S_T+7}], vcc")
        lsk = a.newlabel("bq_noones")
        a(f"s_cbranch_execz {lsk}")
        for mf in range(2):
            a(f"buffer_store_dwordx4 {v(ONE,4)}, {v(VA)}, {so}, s{S_T+1} offen offset:{1024*mf}")
        a.label(lsk)
        a("s_mov_b64 exec, -1")
        a("s_nop 1")
    a.label(lend)
    if dbg:
        a('s_memtime s[74:75]')
        a("s_waitcnt vmcnt(0)")
        stamp_end(a, WS_DBG, KA_WS, S_WAVE)
    a("s_endpgm")

OP = G(NC=96, wstride=1280, acc0=80, vbase=1, NB=BNB, INIT=BINIT)
OP_NVGPR = 128
def role_out(a, dbg=False):
    g = OP
    VT = 64
    assert g.vend <= VT, g.vend
    if dbg: stamp(a, 0)
    srd(a, S_X, KA_WS, 0); srd(a, S_O, KA_OUT, 0)
    a(f"s_load_dwordx2 s[{S_W}:{S_W+1}], s[0:1], {KA_AWO}")
    a(f"s_load_dwordx2 s[{S_T+8}:{S_T+9}], s[0:1], {KA_BWO}") if (S_T+8) % 2 == 0 else a(f"s_load_dwordx2 s[{S_T+9}:{S_T+10}], s[0:1], {KA_BWO}")
    BW = S_T+8 if (S_T+8) % 2 == 0 else S_T+9
    wave_lane(a, VT)
    a(f"s_and_b32 s{S_T}, s2, 7")
    a(f"s_lshr_b32 s{S_T+1}, s2, 3")
    a(f"s_lshr_b32 s{S_T+2}, s{S_T}, 2")
    a(f"s_and_b32 s{S_T}, s{S_T}, 3")
    a(f"s_lshl_b32 s{S_RB}, s{S_T}, 2")
    a(f"s_lshr_b32 s{S_T+3}, s{S_T+1}, 3")
    a(f"s_add_u32 s{S_RB}, s{S_RB}, s{S_T+3}")
    a(f"s_and_b32 s{S_CB}, s{S_T+1}, 7")
    a(f"s_mov_b32 s{S_T+6}, s{S_T+2}")
    a(f"s_mul_i32 s{S_XOFF}, s{S_RB}, {128*1280}")
    a(f"s_mul_i32 s{S_T+4}, s{S_T+6}, {WS_OB-WS_OA}")
    a(f"s_add_u32 s{S_T+4}, s{S_T+4}, {WS_OA}")
    a(f"s_add_u32 s{S_XOFF}, s{S_XOFF}, s{S_T+4}")
    a(f"s_mul_i32 s{S_WOFF}, s{S_CB}, 160")
    a("s_waitcnt lgkmcnt(0)")
    a(f"s_cmp_eq_u32 s{S_T+6}, 0")
    a(f"s_cselect_b32 s{S_W}, s{S_W}, s{BW}")
    a(f"s_cselect_b32 s{S_W+1}, s{S_W+1}, s{BW+1}")
    srd_fin(a, S_X, WS_SIZE_SRD); srd_fin(a, S_W, 640*1280); srd_fin(a, S_O, 2048*2560)
    a(f"s_mov_b32 s42, s{S_T+6}")
    if ROT:
        a(f"s_and_b32 s{S_T+8}, s{S_RB}, 3")
        a(f"s_mul_i32 s{S_T+8}, s{S_T+8}, 10")
        a(f"s_mul_i32 s{S_T+9}, s{S_CB}, 5")
        a(f"s_add_u32 s{S_T+8}, s{S_T+8}, s{S_T+9}")
        a(f"s_lshr_b32 s{S_T+8}, s{S_T+8}, 1")
        a(f"s_cmp_ge_u32 s{S_T+8}, 20")
        a(f"s_cselect_b32 s{S_T+9}, 20, 0")
        a(f"s_sub_u32 s59, s{S_T+8}, s{S_T+9}")
    else:
        a("s_mov_b32 s59, 0")
    a(f"s_mov_b32 s64, s{S_T+1}")
    a(f"s_mov_b32 s65, s{S_T+4}")
    pf = PF(VT+8, VT+9)
    def pf_setup():
        if not PREFETCH: return
        va = pf.va; t0 = VT; t1 = VT+1
        lx = a.newlabel("pf_x"); ld = a.newlabel("pf_d")
        pf.select_srd(a)
        a(f"s_cmp_eq_u32 s{S_WAVE}, 1")
        a(f"s_cbranch_scc1 {lx}")
        a(f"v_mul_u32_u24 {v(t0)}, 3277, v0")
        a(f"v_lshrrev_b32 {v(t0)}, 16, {v(t0)}")
        a(f"v_mul_u32_u24 {v(t1)}, 20, {v(t0)}")
        a(f"v_sub_u32 {v(t1)}, v0, {v(t1)}")
        a(f"s_mul_i32 s{S_T}, s64, 20")
        a(f"v_add_u32 {v(t1)}, s{S_T}, {v(t1)}")
        a(f"v_lshlrev_b32 {v(t1)}, 7, {v(t1)}")
        a(f"v_mul_u32_u24 {v(va)}, 81920, {v(t0)}")
        a(f"v_add_u32 {v(va)}, {v(va)}, {v(t1)}")
        a(f"s_mul_i32 s{S_PFO}, s{S_WAVE}, {81920*3//2}")
        a(f"s_mov_b32 s{S_PFS}, {6*81920}")
        a(f"s_branch {ld}")
        a.label(lx)
        a(f"v_and_b32 {v(t0)}, 15, v0")
        a(f"s_lshl_b32 s{S_T}, s64, 4")
        a(f"v_add_u32 {v(t0)}, s{S_T}, {v(t0)}")
        a(f"v_mul_u32_u24 {v(va)}, 1280, {v(t0)}")
        a(f"v_lshrrev_b32 {v(t1)}, 4, v0")
        a(f"v_lshlrev_b32 {v(t1)}, 7, {v(t1)}")
        a(f"v_add_u32 {v(va)}, {v(va)}, {v(t1)}")
        a(f"s_and_b32 s{S_T}, s{S_RB}, 12")
        a(f"s_mul_i32 s{S_PFO}, s{S_T}, {128*1280}")
        a(f"s_add_u32 s{S_PFO}, s{S_PFO}, s65")
        a(f"s_mov_b32 s{S_PFS}, 512")
        a.label(ld)
        pf.pre(a)
    if PREFETCH:
        lld = a.newlabel("op_ld")
        a(f"s_cmp_lg_u32 s{S_T+14}, 0")
        a(f"s_cbranch_scc1 {lld}")
        pf_setup()
        a.label(lld)
    split_roles(a, g, 'lin')
    compute_addrs(a, g, VT)
    compute_loop(a, g, ['FT']*3, dbg, per_iter=(lambda: None) if PREFETCH else None)
    if dbg: a('s_memtime s[72:73]')
    so = f"s[{S_O}:{S_O+3}]"
    VA = VT
    a(f"v_and_b32 {v(VA)}, 31, v0")
    a(f"s_lshl_b32 s{S_T}, s{S_RB}, 7")
    a(f"s_lshl_b32 s{S_T+1}, s{S_WAVE}, 5")
    a(f"s_add_u32 s{S_T}, s{S_T}, s{S_T+1}")
    a(f"v_add_u32 {v(VA)}, s{S_T}, {v(VA)}")
    a(f"v_mul_u32_u24 {v(VA)}, 2560, {v(VA)}")
    a(f"v_lshrrev_b32 {v(VA+1)}, 5, v0")
    a(f"v_lshlrev_b32 {v(VA+1)}, 4, {v(VA+1)}")
    a(f"v_add_u32 {v(VA)}, {v(VA)}, {v(VA+1)}")
    a(f"s_mul_i32 s{S_T+2}, s42, 1280")
    a(f"s_mul_i32 s{S_T+3}, s{S_CB}, 160")
    a(f"s_add_u32 s{S_T+2}, s{S_T+2}, s{S_T+3}")
    a("s_nop 7")
    a("s_nop 3")
    for pr in range(5):
        G0 = 2*pr
        R0 = g.acc + 16*(G0//4) + 4*(G0 % 4)
        R1 = R0 + 4
        P_ = VT + 4 + 4*(pr % 2)
        a(f"v_cvt_pk_bf16_f32 {v(P_)}, {v(R0)}, {v(R0+1)}")
        a(f"v_cvt_pk_bf16_f32 {v(P_+1)}, {v(R0+2)}, {v(R0+3)}")
        a(f"v_cvt_pk_bf16_f32 {v(P_+2)}, {v(R1)}, {v(R1+1)}")
        a(f"v_cvt_pk_bf16_f32 {v(P_+3)}, {v(R1+2)}, {v(R1+3)}")
        a("s_nop 1")
        a(f"v_permlane32_swap_b32 {v(P_)}, {v(P_+2)}")
        a(f"v_permlane32_swap_b32 {v(P_+1)}, {v(P_+3)}")
        a("s_nop 1")
        a(f"buffer_store_dwordx4 {v(P_,4)}, {v(VA)}, {so}, s{S_T+2} offen offset:{32*pr}")
    if dbg:
        a('s_memtime s[74:75]')
        a("s_waitcnt vmcnt(0)")
        stamp_end(a, WS_DBG, KA_WS, S_WAVE)
    a("s_endpgm")
```

```python
import sys, os
from asmlib import *
from layout import *
import attn
import roles
import arole

HEADER = open('concat_heads__linear_kernel_hedgehog__mha_block__prompt.s.ref').read().split('; Override launch geometry')[0] if False else None

HDR = """; Kernarg layout for this problem (80 bytes, ptrs only, base s[0:1]):
;   offset  56: d_out     shape=(1, 2048, 1280) dtype=bfloat16 (2 bytes/elem)
"""

def build(launches, kernels):
    out = HDR
    for (n, g, b, lds) in launches:
        out += f"; @launch kernel={n} grid=({g},1,1) block=({b},1,1) lds={lds}\n"
    out += '.amdgcn_target "amdgcn-amd-amdhsa--gfx950"\n.text\n'
    for (n, fn, nv) in kernels:
        a = Asm()
        a.uid = 1000 * (1 + [k[0] for k in kernels].index(n))
        import asmlib
        asmlib.DBGK[0] = {"qkv_kernel":0, "attn_kernel":1, "proj_kernel":2}[n] if len(kernels) == 3 else 0
        kernel_header(a, n)
        fn(a)
        txt_k = a.text()
        fl = os.environ.get('STF_' + n.split('_')[0].upper(), '')
        if fl:
            lines = []
            for ln in txt_k.split("\n"):
                if ln.strip().startswith("buffer_store") and " sc1" not in ln and "s[88:91]" not in ln:
                    ln = ln + " " + fl
                lines.append(ln)
            txt_k = "\n".join(lines)
        out += txt_k
    out += '.section .rodata,"a"\n'
    for (n, fn, nv) in kernels:
        out += kernel_desc(n, nv)
    return out

def k2(a):
    done = a.newlabel("done")
    la = a.newlabel("arole")
    a("s_cmp_ge_u32 s2, 512")
    a(f"s_cbranch_scc1 {done}")
    a("s_cmp_ge_u32 s2, 256")
    a(f"s_cbranch_scc1 {la}")
    attn.gen_attn(a, dbg_time=DBG)
    a.label(la)
    a("s_mov_b32 s54, s2")
    a("s_sub_u32 s2, s2, 256")
    if AMODE == 'k1': arole.role_a2(a, dbg=DBG)
    else: arole.role_a(a, dbg=DBG, mode='k2')
    a.label(done)
    a("s_endpgm")
AMODE = os.environ.get('AMODE', 'k2')
WITH_A = False
WITH_B = True

def k1(a):
    done = a.newlabel("done")
    if AMODE == 'k1':
        lb = a.newlabel("brole")
        a("s_cmp_ge_u32 s2, 512")
        a(f"s_cbranch_scc1 {done}")
        a("s_cmp_ge_u32 s2, 256")
        a(f"s_cbranch_scc1 {lb}")
        arole.role_a(a, dbg=DBG, mode='k1')
        a.label(lb)
        a("s_sub_u32 s2, s2, 256")
    else:
        a("s_cmp_ge_u32 s2, 256")
        a(f"s_cbranch_scc1 {done}")
    roles.role_bqkv(a, dbg=DBG)
    a.label(done)
    a("s_endpgm")
def k3(a):
    done = a.newlabel("done")
    a("s_cmp_ge_u32 s2, 256")
    a(f"s_cbranch_scc1 {done}")
    roles.role_out(a, dbg=DBG)
    a.label(done)
    a("s_endpgm")
DBG = False
if __name__ == "__main__":
    DBG = len(sys.argv) > 3 and sys.argv[3] == "dbg"
    for kv in sys.argv[4:]:
        k_, v_ = kv.split("=")
        import gemm
        if k_ in attn.OPT: attn.OPT[k_] = (v_ == "1")
        elif k_ in gemm.GOPT: gemm.GOPT[k_] = (v_ == "1")
        elif k_ in gemm.PFOPT: gemm.PFOPT[k_] = int(v_)
        else: setattr(roles, k_, v_ == "1")
    mode = sys.argv[1]
    outp = sys.argv[2]
    if mode == "attn":
        txt = build([("attn_kernel", 256, 512, 2*attn.CH_BYTES)], [("attn_kernel", k2, attn.ATTN_NVGPR)])
    if mode == "bqkv":
        txt = build([("qkv_kernel", 256, 512, roles.BQ.lds)], [("qkv_kernel", k1, roles.BQ_NVGPR)])
    if mode == "out":
        txt = build([("proj_kernel", 256, 512, roles.OP.lds)], [("proj_kernel", k3, roles.OP_NVGPR)])
    if mode == "arole":
        WITH_A = True; WITH_B = False
        txt = build([("qkv_kernel", 256, 512, roles.BQ.lds), ("attn_kernel", 512, 512, arole.AG.lds)],
                    [("qkv_kernel", k1, roles.BQ_NVGPR), ("attn_kernel", k2, 128)])
    if mode == "full":
        WITH_A = True; WITH_B = True
        arole.AG.lprio = int(os.environ.get('ALPRIO', '3'))
        if AMODE == 'k2': arole.AG.lprio = 0
        txt = build([("qkv_kernel", 512 if AMODE == 'k1' else 256, 512, roles.BQ.lds), ("attn_kernel", 512, 512, 2*attn.CH_BYTES if AMODE == 'k1' else arole.AG.lds), ("proj_kernel", 256, 512, roles.OP.lds)],
                    [("qkv_kernel", k1, roles.BQ_NVGPR), ("attn_kernel", k2, 128), ("proj_kernel", k3, roles.OP_NVGPR)])
    open(outp, "w").write(txt)
```

```python
from asmlib import *
from layout import *
from gemm import *
from roles import f32hex, srd, srd_fin, wave_lane, split_roles
import roles, outp
FUSE = True

APRIO = 2
AG = G(NC=128, wstride=3840, acc0=64, vbase=1)
A_NVGPR = 128
LOG2E = 1.4426950408889634
S_PH = 44
S_DB = 48
S_L = 52
S_NL = 53
WPE1, WPO1, WPE2, WPO2 = 52, 56, 60, 62

def halves_reduce(a, x, t, op):
    a(f"v_mov_b32 {v(t)}, {v(x)}")
    a("s_nop 1")
    a(f"v_permlane32_swap_b32 {v(x)}, {v(t)}")
    a("s_nop 1")
    a(f"{op} {v(x)}, {v(x)}, {v(t)}")

def feature_task(a, B1, B2, WP1, WP2, D, E, T, POS, NEG):
    a(f"v_mfma_f32_32x32x16_bf16 {v(D,16)}, {v(WP1,4)}, {v(B1,4)}, 0")
    a(f"v_mfma_f32_32x32x8_bf16 {v(D,16)}, {v(WP2,2)}, {v(B2,2)}, {v(D,16)}")
    a("s_nop 7")
    a("s_nop 4")
    MX, MN, TT, SP, SN = T, T+1, T+2, T+3, T+4
    x = [D+i for i in range(10)]
    a(f"v_max3_f32 {v(MX)}, {v(x[0])}, {v(x[1])}, {v(x[2])}")
    a(f"v_min3_f32 {v(MN)}, {v(x[0])}, {v(x[1])}, {v(x[2])}")
    for i in (3, 5, 7):
        a(f"v_max3_f32 {v(MX)}, {v(MX)}, {v(x[i])}, {v(x[i+1])}")
        a(f"v_min3_f32 {v(MN)}, {v(MN)}, {v(x[i])}, {v(x[i+1])}")
    a(f"v_max_f32 {v(MX)}, {v(MX)}, {v(x[9])}")
    a(f"v_min_f32 {v(MN)}, {v(MN)}, {v(x[9])}")
    a(f"v_mov_b32 {v(TT)}, {v(MX)}")
    a(f"v_mov_b32 {v(TT+3)}, {v(MN)}")
    a("s_nop 1")
    a(f"v_permlane32_swap_b32 {v(MX)}, {v(TT)}")
    a(f"v_permlane32_swap_b32 {v(MN)}, {v(TT+3)}")
    a("s_nop 1")
    a(f"v_max_f32 {v(MX)}, {v(MX)}, {v(TT)}")
    a(f"v_min_f32 {v(MN)}, {v(MN)}, {v(TT+3)}")
    a(f"v_mul_f32 {v(MX)}, s{S_NL}, {v(MX)}")
    a(f"v_mul_f32 {v(MN)}, s{S_L}, {v(MN)}")
    e = [E+i for i in range(10)]
    for i in range(10):
        a(f"v_fma_f32 {v(e[i])}, {v(x[i])}, s{S_NL}, {v(MN)}")
        a(f"v_fma_f32 {v(x[i])}, {v(x[i])}, s{S_L}, {v(MX)}")
    for i in range(10):
        a(f"v_exp_f32 {v(x[i])}, {v(x[i])}")
        a(f"v_exp_f32 {v(e[i])}, {v(e[i])}")
    a("s_nop 0")
    a(f"v_add_f32 {v(SP)}, {v(x[0])}, {v(x[1])}")
    a(f"v_add_f32 {v(SN)}, {v(e[0])}, {v(e[1])}")
    for i in range(2, 10):
        a(f"v_add_f32 {v(SP)}, {v(SP)}, {v(x[i])}")
        a(f"v_add_f32 {v(SN)}, {v(SN)}, {v(e[i])}")
    a(f"v_mov_b32 {v(TT)}, {v(SP)}")
    a(f"v_mov_b32 {v(TT+3)}, {v(SN)}")
    a("s_nop 1")
    a(f"v_permlane32_swap_b32 {v(SP)}, {v(TT)}")
    a(f"v_permlane32_swap_b32 {v(SN)}, {v(TT+3)}")
    a("s_nop 1")
    a(f"v_add_f32 {v(SP)}, {v(SP)}, {v(TT)}")
    a(f"v_add_f32 {v(SN)}, {v(SN)}, {v(TT+3)}")
    a(f"v_rcp_f32 {v(SP)}, {v(SP)}")
    a(f"v_rcp_f32 {v(SN)}, {v(SN)}")
    a("s_nop 0")
    for i in range(10):
        a(f"v_mul_f32 {v(x[i])}, {v(x[i])}, {v(SP)}")
        a(f"v_mul_f32 {v(e[i])}, {v(e[i])}, {v(SN)}")
    for i in range(5):
        a(f"v_cvt_pk_bf16_f32 {v(POS+i)}, {v(x[2*i])}, {v(x[2*i+1])}")
        a(f"v_cvt_pk_bf16_f32 {v(NEG+i)}, {v(e[2*i])}, {v(e[2*i+1])}")

def role_a(a, dbg=False, mode='k1'):
    g = AG
    SC = ' sc1' if mode == 'k2' else ''
    VT = 44
    if dbg: stamp(a, 0)
    srd(a, S_X, KA_AX, 0); srd(a, S_W, KA_AWQKV, 0); srd(a, S_O, KA_WS, 0); srd(a, S_PH, KA_AWPHI, 0);
    wave_lane(a, 3)
    a(f"s_and_b32 s{S_T}, s2, 7")
    a(f"s_lshr_b32 s{S_T+1}, s2, 3")
    a(f"s_lshr_b32 s{S_T+2}, s{S_T}, 1")
    a(f"s_lshl_b32 s{S_RB}, s{S_T+2}, 2")
    a(f"s_lshr_b32 s{S_T+2}, s{S_T+1}, 3")
    a(f"s_add_u32 s{S_RB}, s{S_RB}, s{S_T+2}")
    a(f"s_and_b32 s{S_CB}, s{S_T}, 1")
    a(f"s_lshl_b32 s{S_CB}, s{S_CB}, 3")
    a(f"s_and_b32 s{S_T+2}, s{S_T+1}, 7")
    a(f"s_add_u32 s{S_CB}, s{S_CB}, s{S_T+2}")
    a(f"s_mul_i32 s{S_XOFF}, s{S_RB}, {128*1280}")
    a(f"s_mul_i32 s{S_WOFF}, s{S_CB}, 80")
    a(f"s_mov_b32 s{S_L}, {f32hex(LOG2E)}")
    a(f"s_mov_b32 s{S_NL}, {f32hex(-LOG2E)}")
    a("s_waitcnt lgkmcnt(0)")
    srd_fin(a, S_X, 2048*1280); srd_fin(a, S_W, 640*3840); srd_fin(a, S_O, WS_SIZE_SRD)
    srd_fin(a, S_PH, 25600)
    a(f"s_and_b32 s{S_T+8}, s{S_RB}, 3")
    a(f"s_mul_i32 s{S_T+8}, s{S_T+8}, 10")
    a(f"s_and_b32 s{S_T+9}, s{S_CB}, 7")
    a(f"s_mul_i32 s{S_T+9}, s{S_T+9}, 5")
    a(f"s_add_u32 s{S_T+8}, s{S_T+8}, s{S_T+9}")
    a(f"s_lshr_b32 s{S_T+8}, s{S_T+8}, 1")
    a(f"s_cmp_ge_u32 s{S_T+8}, 20")
    a(f"s_cselect_b32 s{S_T+9}, 20, 0")
    a(f"s_sub_u32 s59, s{S_T+8}, s{S_T+9}")
    def a_loader_tail():
        if mode != 'k2' or not FUSE: return
        lx = a.newlabel("ald_exit")
        a("s_bitcmp0_b32 s2, 3")
        a(f"s_cbranch_scc1 {lx}")
        for i in range(5): a("s_barrier")
        outp.loader(a, 0)
        a.label(lx)
    split_roles(a, g, 'qkv', tail=a_loader_tail)
    if mode == 'k1' and APRIO: a(f"s_setprio {APRIO}")
    t0, t1, t2, t3 = 12, 13, 14, 15
    sph = f"s[{S_PH}:{S_PH+3}]"
    a(f"v_and_b32 {v(t0)}, 31, v0")
    a(f"v_lshrrev_b32 {v(t1)}, 5, v0")
    a(f"v_subrev_u32 {v(t2)}, 2, {v(t0)}")
    a(f"v_cmp_le_u32 vcc, 20, {v(t0)}")
    a("s_nop 1")
    a(f"v_cndmask_b32 {v(t2)}, {v(t0)}, {v(t2)}, vcc")
    a(f"v_lshlrev_b32 {v(t2)}, 1, {v(t2)}")
    a(f"v_and_b32 {v(t3)}, 30, {v(t0)}")
    a(f"v_cmp_eq_u32 vcc, 18, {v(t3)}")
    a(f"v_cmp_le_u32 s[{S_T+2-1}:{S_T+2}], 22, {v(t0)}") if (S_T+1) % 2 == 0 else a(f"v_cmp_le_u32 s[{S_T+3}:{S_T+4}], 22, {v(t0)}")
    PAIR = (S_T+1) if (S_T+1) % 2 == 0 else (S_T+3)
    a("s_nop 1")
    a(f"s_or_b64 vcc, vcc, s[{PAIR}:{PAIR+1}]")
    a(f"v_mov_b32 {v(t3)}, 0x20000")
    a("s_nop 1")
    a(f"v_cndmask_b32 {v(t2)}, {v(t2)}, {v(t3)}, vcc")
    a(f"v_mul_u32_u24 {v(t3)}, 160, {v(t1)}")
    a(f"v_add_u32 {v(t0)}, {v(t2)}, {v(t3)}")
    a(f"s_mul_i32 s{S_T}, s{S_CB}, 1600")
    TMP = 64
    n_ = 0
    packs = []
    for (reg, hoff, dadd) in ((WPE1, 0, 0), (WPO1, 800, 4)):
        for j in range(8):
            d = dadd + (j if j < 4 else j + 4)
            a(f"buffer_load_ushort {v(TMP+n_)}, {v(t0)}, {sph}, s{S_T} offen offset:{hoff + d*40}")
            if j & 1: packs.append((reg + j//2, TMP+n_-1, TMP+n_))
            n_ += 1
    a(f"v_cmp_eq_u32 vcc, 0, {v(t1)}")
    a(f"v_mov_b32 {v(t3)}, 0x20000")
    a("s_nop 0")
    a(f"v_cndmask_b32 {v(t0)}, {v(t3)}, {v(t2)}, vcc")
    a(f"v_cndmask_b32 {v(t1)}, {v(t2)}, {v(t3)}, vcc")
    for (reg, va, base) in ((WPE2, t0, 16*40), (WPO2, t1, 800)):
        for j in range(4):
            a(f"buffer_load_ushort {v(TMP+n_)}, {v(va)}, {sph}, s{S_T} offen offset:{base + j*40}")
            if j & 1: packs.append((reg + j//2, TMP+n_-1, TMP+n_))
            n_ += 1
    a("s_waitcnt vmcnt(0)")
    for (dst, lo, hi) in packs:
        a(f"v_lshl_or_b32 {v(dst)}, {v(hi)}, 16, {v(lo)}")
    compute_addrs(a, g, 12)
    compute_loop(a, g, ['FT']*4)
    if dbg: a('s_memtime s[72:73]')
    if mode == 'k2': a("s_setprio 3")
    PG = 4
    a("s_nop 7")
    a("s_nop 3")
    for Gc in range(15):
        R = g.acc + 16*(Gc//4) + 4*(Gc % 4)
        a(f"v_cvt_pk_bf16_f32 {v(PG+2*Gc)}, {v(R)}, {v(R+1)}")
        a(f"v_cvt_pk_bf16_f32 {v(PG+2*Gc+1)}, {v(R+2)}, {v(R+3)}")
    a("s_barrier")
    D, E, T = 64, 80, 92
    POS, NEG = 100, 106
    VA_, VS_, VH_ = 34, 35, 36
    a(f"v_and_b32 {v(VA_)}, 31, v0")
    a(f"s_lshl_b32 s{S_T}, s{S_WAVE}, 5")
    a(f"v_add_u32 {v(VA_)}, s{S_T}, {v(VA_)}")
    a(f"v_bfe_u32 {v(VS_)}, {v(VA_)}, 1, 3")
    a(f"v_lshlrev_b32 {v(VA_)}, 6, {v(VA_)}")
    a(f"v_lshrrev_b32 {v(VH_)}, 5, v0")
    def piece_addr(dst, pc_lo, pc_hi, extra_lo=0, extra_hi=0):
        if pc_hi - pc_lo == 1 and extra_hi == extra_lo:
            a(f"v_add_u32 {v(dst)}, {pc_lo}, {v(VH_)}")
            a(f"v_xor_b32 {v(dst)}, {v(dst)}, {v(VS_)}")
            a(f"v_lshl_add_u32 {v(dst)}, {v(dst)}, 3, {v(VA_)}")
            if extra_lo: a(f"v_add_u32 {v(dst)}, {extra_lo}, {v(dst)}")
        else:
            a(f"v_mul_i32_i24 {v(dst)}, {pc_hi-pc_lo}, {v(VH_)}")
            a(f"v_add_u32 {v(dst)}, {pc_lo}, {v(dst)}")
            a(f"v_xor_b32 {v(dst)}, {v(dst)}, {v(VS_)}")
            a(f"v_lshl_add_u32 {v(dst)}, {v(dst)}, 3, {v(VA_)}")
            a(f"v_mul_i32_i24 {v(37)}, {extra_hi-extra_lo}, {v(VH_)}")
            a(f"v_add_u32 {v(dst)}, {v(dst)}, {v(37)}")
            if extra_lo: a(f"v_add_u32 {v(dst)}, {extra_lo}, {v(dst)}")
    PHI_OFF = 0
    VP_OFF = 32768
    A01, A23, A4 = 38, 39, 40
    piece_addr(A01, 0, 1)
    piece_addr(A23, 2, 3)
    piece_addr(A4, 4, 4, 0, 4)
    for hd, (B1, B2, W1, W2) in enumerate(((PG+10, PG+14, WPE1, WPE2), (PG+16, PG+14, WPO1, WPO2))):
        feature_task(a, B1, B2, W1, W2, D, E, T, POS, NEG)
        for pn, P_ in enumerate((POS, NEG)):
            off = PHI_OFF + (hd*2 + pn)*8192
            a(f"ds_write_b64 {v(A01)}, {v(P_,2)} offset:{off}")
            a(f"ds_write_b64 {v(A23)}, {v(P_+2,2)} offset:{off}")
            a(f"ds_write_b32 {v(A4)}, {v(P_+4)} offset:{off}")
    AV = 41
    vmap = [((0, 0), (0, 1)), ((0, 2), (0, 3)), ((0, 4), (1, 0)), ((1, 1), (1, 2)), ((1, 3), (1, 4))]
    for Gv in range(5):
        (h0, p0), (h1, p1) = vmap[Gv]
        piece_addr(AV, p0, p1, h0*8192, h1*8192)
        a(f"ds_write_b64 {v(AV)}, {v(PG+2*(10+Gv),2)} offset:{VP_OFF}")
    piece_addr(AV, 5, 5, 0, 8192)
    a(f"v_mov_b32 {v(T)}, 0x3f80")
    a(f"v_mov_b32 {v(T+1)}, 0")
    a(f"ds_write_b64 {v(AV)}, {v(T,2)} offset:{VP_OFF}")
    a("s_waitcnt lgkmcnt(0)")
    a("s_barrier")
    R0, R1 = 38, 39
    a(f"v_bfe_u32 {v(T)}, v0, 2, 2")
    a(f"v_lshrrev_b32 {v(T+1)}, 5, v0")
    a(f"v_lshlrev_b32 {v(T+2)}, 3, {v(T+1)}")
    a(f"v_add_u32 {v(T+2)}, {v(T+2)}, {v(T)}")
    a(f"v_lshlrev_b32 {v(T+2)}, 6, {v(T+2)}")
    a(f"v_bfe_u32 {v(T+3)}, v0, 4, 1")
    a(f"v_lshlrev_b32 {v(T+3)}, 2, {v(T+3)}")
    a(f"v_and_b32 {v(T+4)}, 3, v0")
    a(f"v_add_u32 {v(T+3)}, {v(T+3)}, {v(T+4)}")
    a(f"v_lshlrev_b32 {v(T+4)}, 2, {v(T+1)}")
    a(f"v_lshrrev_b32 {v(T+5)}, 1, {v(T)}")
    a(f"v_add_u32 {v(T+4)}, {v(T+4)}, {v(T+5)}")
    a(f"v_xor_b32 {v(T+5)}, {v(T+3)}, {v(T+4)}")
    a(f"v_lshl_add_u32 {v(R0)}, {v(T+5)}, 3, {v(T+2)}")
    a(f"v_add_u32 {v(T+4)}, 2, {v(T+4)}")
    a(f"v_xor_b32 {v(T+5)}, {v(T+3)}, {v(T+4)}")
    a(f"v_lshl_add_u32 {v(R1)}, {v(T+5)}, 3, {v(T+2)}")
    a(f"v_add_u32 {v(R1)}, 256, {v(R1)}")
    a(f"s_and_b32 s{S_T}, s{S_WAVE}, 1")
    a(f"s_lshr_b32 s{S_T+1}, s{S_WAVE}, 1")
    a(f"s_lshl_b32 s{S_T+2}, s{S_T}, 1")
    a(f"s_add_u32 s{S_T+2}, s{S_T+2}, s{S_T+1}")
    a(f"s_lshl_b32 s{S_T+2}, s{S_T+2}, 13")
    a(f"s_lshl_b32 s{S_T+3}, s{S_T}, 13")
    a(f"s_add_u32 s{S_T+3}, s{S_T+3}, {VP_OFF}")
    PA0, PA1, VB0, VB1 = 40, 41, 42, 43
    a(f"v_add_u32 {v(PA0)}, s{S_T+2}, {v(R0)}")
    a(f"v_add_u32 {v(PA1)}, s{S_T+2}, {v(R1)}")
    a(f"v_add_u32 {v(VB0)}, s{S_T+3}, {v(R0)}")
    a(f"v_add_u32 {v(VB1)}, s{S_T+3}, {v(R1)}")
    FA, FB = 80, 112
    for half in range(2):
        for ks in range(4):
            k_ = half*4 + ks
            a(f"ds_read_b64_tr_b16 {v(80+8*ks,2)}, {v(VB0)} offset:{k_*1024}")
            a(f"ds_read_b64_tr_b16 {v(80+8*ks+2,2)}, {v(VB1)} offset:{k_*1024}")
            a(f"ds_read_b64_tr_b16 {v(80+8*ks+4,2)}, {v(PA0)} offset:{k_*1024}")
            a(f"ds_read_b64_tr_b16 {v(80+8*ks+6,2)}, {v(PA1)} offset:{k_*1024}")
        for ks in range(4):
            a(f"s_waitcnt lgkmcnt({4*(3-ks)})")
            c = "0" if (half == 0 and ks == 0) else v(D,16)
            a(f"v_mfma_f32_32x32x16_bf16 {v(D,16)}, {v(80+8*ks+4,4)}, {v(80+8*ks,4)}, {c}")
    so = f"s[{S_O}:{S_O+3}]"
    a(f"v_and_b32 {v(T)}, 31, v0")
    a(f"v_lshrrev_b32 {v(T+1)}, 5, v0")
    a(f"v_mul_u32_u24 {v(T+2)}, 80, {v(T)}")
    a(f"v_lshl_add_u32 {v(T+2)}, {v(T+1)}, 4, {v(T+2)}")
    a(f"s_lshl_b32 s{S_T+2}, s{S_CB}, 1")
    a(f"s_add_u32 s{S_T+2}, s{S_T+2}, s{S_T}")
    a(f"s_lshl_b32 s{S_T+2}, s{S_T+2}, 1")
    a(f"s_add_u32 s{S_T+2}, s{S_T+2}, s{S_T+1}")
    a(f"s_lshl_b32 s{S_T+3}, s{S_RB}, 6")
    a(f"s_add_u32 s{S_T+2}, s{S_T+2}, s{S_T+3}")
    a(f"s_mul_i32 s{S_T+2}, s{S_T+2}, {KVS_REC}")
    a(f"s_add_u32 s{S_T+2}, s{S_T+2}, {WS_KVP}")
    a(f"v_cmp_ge_u32 vcc, 20, {v(T)}")
    a("s_nop 4")
    a("s_and_b64 exec, exec, vcc")
    a(f"buffer_store_dwordx4 {v(D,4)}, {v(T+2)}, {so}, s{S_T+2} offen{SC}")
    a(f"buffer_store_dwordx4 {v(D+4,4)}, {v(T+2)}, {so}, s{S_T+2} offen offset:32{SC}")
    a("s_mov_b32 exec_hi, 0")
    a(f"buffer_store_dwordx4 {v(D+8,4)}, {v(T+2)}, {so}, s{S_T+2} offen offset:64{SC}")
    a("s_mov_b64 exec, -1")
    D2 = 112
    QP = [[100, 106], [14, 20]]
    for hd, (B1, B2, W1, W2) in enumerate(((PG+0, PG+4, WPE1, WPE2), (PG+6, PG+4, WPO1, WPO2))):
        feature_task(a, B1, B2, W1, W2, D2, E, T, QP[hd][0], QP[hd][1])
        P_, N_ = QP[hd]
        if mode == 'k2':
            a(f"v_mov_b32 {v(P_+5)}, 0")
            a(f"v_mov_b32 {v(N_+5)}, 0")
            continue
        if hd == 0:
            a(f"s_lshl_b32 s{S_T}, s{S_RB}, 2")
            a(f"s_add_u32 s{S_T}, s{S_T}, s{S_WAVE}")
            a(f"s_lshl_b32 s{S_T}, s{S_T}, 5")
            a(f"s_lshl_b32 s{S_T+1}, s{S_CB}, 1")
            a(f"s_add_u32 s{S_T}, s{S_T}, s{S_T+1}")
            a(f"s_mul_i32 s{S_T}, s{S_T}, 2560")
            a(f"s_add_u32 s{S_T}, s{S_T}, {WS_PHQ}")
            a(f"v_lshlrev_b32 {v(44)}, 4, v0")
            a(f"v_lshlrev_b32 {v(45)}, 3, v0")
        else:
            a(f"s_add_u32 s{S_T}, s{S_T}, 2560")
        a(f"v_mov_b32 {v(P_+5)}, {v(N_+4)}")
        a(f"buffer_store_dwordx4 {v(P_,4)}, {v(44)}, {so}, s{S_T} offen")
        a(f"buffer_store_dwordx4 {v(N_,4)}, {v(44)}, {so}, s{S_T} offen offset:1024")
        a(f"buffer_store_dwordx2 {v(P_+4,2)}, {v(45)}, {so}, s{S_T} offen offset:2048")
    if mode == 'k2':
        if dbg: a('s_memtime s[74:75]')
        a("s_waitcnt vmcnt(0)")
        a("s_barrier")
        lw = a.newlabel("a_wait_done")
        a(f"s_cmp_lg_u32 s{S_WAVE}, 0")
        a(f"s_cbranch_scc1 {lw}")
        a(f"s_lshl_b32 s{S_T}, s{S_CB}, 7")
        a(f"s_add_u32 s{S_T}, s{S_T}, {WS_FLAG}")
        a(f"s_lshl_b32 s{S_T+3}, s{S_RB}, 2")
        a(f"v_mov_b32 {v(T)}, s{S_T+3}")
        a(f"v_mov_b32 {v(T+1)}, 1")
        a("s_mov_b64 exec, 1")
        a(f"buffer_store_dword {v(T+1)}, {v(T)}, {so}, s{S_T} offen sc1")
        a("s_mov_b64 exec, 0xffff")
        a(f"v_lshlrev_b32 {v(T)}, 2, v0")
        a(f"s_mov_b32 s{S_T+1}, 0")
        lp = a.newlabel("a_poll")
        a.label(lp)
        a(f"buffer_load_dword {v(T+2)}, {v(T)}, {so}, s{S_T} offen sc1")
        a("s_waitcnt vmcnt(0)")
        a(f"v_cmp_eq_u32 vcc, 1, {v(T+2)}")
        a(f"s_add_u32 s{S_T+1}, s{S_T+1}, 1")
        a("s_nop 1")
        a(f"s_cmp_eq_u32 vcc_lo, 0xffff")
        lpd = a.newlabel("a_poll_done")
        a(f"s_cbranch_scc1 {lpd}")
        a("s_sleep 8")
        a(f"s_cmp_lt_u32 s{S_T+1}, 0x40000")
        a(f"s_cbranch_scc1 {lp}")
        a.label(lpd)
        a("s_mov_b64 exec, -1")
        a.label(lw)
        a("s_barrier")
        if dbg: a('s_memtime s[76:77]')
        back_part(a, dbg, sc=' sc1', fix_p4=False)
        return
    if dbg:
        a('s_memtime s[74:75]')
        a("s_waitcnt vmcnt(0)")
        a('s_memtime s[76:77]')
        stamp_end(a, WS_DBG + 256*512, KA_WS, S_WAVE, idsgpr="s2")
    a("s_endpgm")

def role_a2(a, dbg=False):
    T = 92
    QP = [[100, 106], [14, 20]]
    if dbg: stamp(a, 0)
    srd(a, S_O, KA_WS, 0)
    wave_lane(a, 3)
    a(f"s_cmp_lg_u32 s{S_T+14}, 0")
    lq = a.newlabel("a2_go")
    a(f"s_cbranch_scc0 {lq}")
    a("s_endpgm")
    a.label(lq)
    a(f"s_and_b32 s{S_T}, s2, 7")
    a(f"s_lshr_b32 s{S_T+1}, s2, 3")
    a(f"s_lshr_b32 s{S_T+2}, s{S_T}, 1")
    a(f"s_lshl_b32 s{S_RB}, s{S_T+2}, 2")
    a(f"s_lshr_b32 s{S_T+2}, s{S_T+1}, 3")
    a(f"s_add_u32 s{S_RB}, s{S_RB}, s{S_T+2}")
    a(f"s_and_b32 s{S_CB}, s{S_T}, 1")
    a(f"s_lshl_b32 s{S_CB}, s{S_CB}, 3")
    a(f"s_and_b32 s{S_T+2}, s{S_T+1}, 7")
    a(f"s_add_u32 s{S_CB}, s{S_CB}, s{S_T+2}")
    a("s_waitcnt lgkmcnt(0)")
    srd_fin(a, S_O, WS_SIZE_SRD)
    so = f"s[{S_O}:{S_O+3}]"
    a(f"s_lshl_b32 s{S_T}, s{S_RB}, 2")
    a(f"s_add_u32 s{S_T}, s{S_T}, s{S_WAVE}")
    a(f"s_lshl_b32 s{S_T}, s{S_T}, 5")
    a(f"s_lshl_b32 s{S_T+1}, s{S_CB}, 1")
    a(f"s_add_u32 s{S_T}, s{S_T}, s{S_T+1}")
    a(f"s_mul_i32 s{S_T}, s{S_T}, 2560")
    a(f"s_add_u32 s{S_T}, s{S_T}, {WS_PHQ}")
    a(f"v_lshlrev_b32 {v(44)}, 4, v0")
    a(f"v_lshlrev_b32 {v(45)}, 3, v0")
    for hd in range(2):
        P_, N_ = QP[hd]
        a(f"buffer_load_dwordx4 {v(P_,4)}, {v(44)}, {so}, s{S_T} offen offset:{0}")
        a(f"buffer_load_dwordx4 {v(N_,4)}, {v(44)}, {so}, s{S_T} offen offset:{1024}")
        a(f"buffer_load_dwordx2 {v(48+2*hd,2)}, {v(45)}, {so}, s{S_T} offen offset:{2048}")
        if hd == 0: a(f"s_add_u32 s{S_T}, s{S_T}, 2560")
    if dbg:
        a('s_memtime s[72:73]'); a('s_memtime s[74:75]'); a('s_memtime s[76:77]')
    back_part(a, dbg, sc='', fix_p4=True)

def back_part(a, dbg, sc, fix_p4):
    T = 92
    QP = [[100, 106], [14, 20]]
    so = f"s[{S_O}:{S_O+3}]"
    a(f"s_and_b32 s{S_T}, s{S_WAVE}, 1")
    a(f"s_lshr_b32 s{S_T+1}, s{S_WAVE}, 1")
    a(f"s_lshl_b32 s{S_T}, s{S_T}, 1")
    a(f"s_add_u32 s{S_T}, s{S_T}, s{S_T+1}")
    a(f"s_lshl_b32 s{S_T+1}, s{S_CB}, 2")
    a(f"s_add_u32 s{S_T+1}, s{S_T+1}, s{S_T}")
    a(f"s_mul_i32 s{S_T+1}, s{S_T+1}, {KVS_REC}")
    a(f"s_add_u32 s{S_T+1}, s{S_T+1}, {WS_KVP}")
    a(f"v_lshlrev_b32 {v(44)}, 4, v0")
    a(f"v_add_u32 {v(45)}, 1024, {v(44)}")
    a(f"v_mov_b32 {v(46)}, 0x7000000")
    a(f"v_cmp_gt_u32 vcc, 41, v0")
    a("s_nop 1")
    a(f"v_cndmask_b32 {v(45)}, {v(46)}, {v(45)}, vcc")
    ACC = 26
    RB0 = 64
    for i in range(8):
        a(f"v_mov_b32 {v(ACC+i)}, 0")
    def issue(b, base):
        for r_ in range(4):
            rb_ = 4*b + r_
            a(f"s_add_u32 s{S_T+2}, s{S_T+1}, {rb_*64*KVS_REC}")
            a(f"buffer_load_dwordx4 {v(base+8*r_,4)}, {v(44)}, {so}, s{S_T+2} offen{sc}")
            a(f"buffer_load_dwordx4 {v(base+8*r_+4,4)}, {v(45)}, {so}, s{S_T+2} offen{sc}")
    def accum(base, nvm):
        a(f"s_waitcnt vmcnt({nvm})")
        for r_ in range(4):
            for i in range(8):
                a(f"v_add_f32 {v(ACC+i)}, {v(ACC+i)}, {v(base+8*r_+i)}")
    BA, BB = 64, 112 - 0
    issue(0, 64)
    def issue2(rb0, base):
        for r_ in range(2):
            rb_ = rb0 + r_
            a(f"s_add_u32 s{S_T+2}, s{S_T+1}, {rb_*64*KVS_REC}")
            a(f"buffer_load_dwordx4 {v(base+8*r_,4)}, {v(44)}, {so}, s{S_T+2} offen{sc}")
            a(f"buffer_load_dwordx4 {v(base+8*r_+4,4)}, {v(45)}, {so}, s{S_T+2} offen{sc}")
    def accum2(base, nvm):
        a(f"s_waitcnt vmcnt({nvm})")
        for r_ in range(2):
            for i in range(8):
                a(f"v_add_f32 {v(ACC+i)}, {v(ACC+i)}, {v(base+8*r_+i)}")
    issue2(4, 112)
    accum(64, 4)
    issue(0, 64) if False else None
    for r_ in range(4):
        rb_ = 6 + r_
        a(f"s_add_u32 s{S_T+2}, s{S_T+1}, {rb_*64*KVS_REC}")
        a(f"buffer_load_dwordx4 {v(64+8*r_,4)}, {v(44)}, {so}, s{S_T+2} offen{sc}")
        a(f"buffer_load_dwordx4 {v(64+8*r_+4,4)}, {v(45)}, {so}, s{S_T+2} offen{sc}")
    accum2(112, 8)
    issue2(10, 112)
    accum(64, 4)
    for r_ in range(4):
        rb_ = 12 + r_
        a(f"s_add_u32 s{S_T+2}, s{S_T+1}, {rb_*64*KVS_REC}")
        a(f"buffer_load_dwordx4 {v(64+8*r_,4)}, {v(44)}, {so}, s{S_T+2} offen{sc}")
        a(f"buffer_load_dwordx4 {v(64+8*r_+4,4)}, {v(45)}, {so}, s{S_T+2} offen{sc}")
    accum2(112, 8)
    accum(64, 0)
    a(f"s_lshl_b32 s{S_T}, s{S_T}, 11")
    a(f"v_add_u32 {v(46)}, s{S_T}, {v(44)}")
    a(f"ds_write_b128 {v(46)}, {v(ACC,4)}")
    a(f"s_mov_b64 s[{S_T+1}:{S_T+2}], exec")
    a(f"v_cmp_gt_u32 vcc, 41, v0")
    a("s_nop 1")
    a("s_and_b64 exec, exec, vcc")
    a(f"ds_write_b128 {v(46)}, {v(ACC+4,4)} offset:1024")
    a("s_mov_b64 exec, -1")
    a("s_waitcnt lgkmcnt(0)")
    a("s_barrier")
    a(f"v_and_b32 {v(T)}, 31, v0")
    a(f"v_lshrrev_b32 {v(T+1)}, 5, v0")
    a(f"v_mov_b32 {v(T+2)}, 20")
    a(f"v_cmp_eq_u32 vcc, 24, {v(T)}")
    a("s_nop 1")
    a(f"v_cndmask_b32 {v(T)}, {v(T)}, {v(T+2)}, vcc")
    a(f"v_min_u32 {v(T+3)}, 20, {v(T)}")
    a(f"v_mul_u32_u24 {v(T+2)}, 80, {v(T+3)}")
    a(f"v_lshl_add_u32 {v(44)}, {v(T+1)}, 4, {v(T+2)}")
    a(f"v_lshl_add_u32 {v(45)}, {v(T+1)}, 3, {v(T+2)}")
    a(f"v_cmp_lt_u32 vcc, 20, {v(T)}")
    RAW = [64, 74, 84, 116]
    for c in range(4):
        a(f"ds_read_b128 {v(RAW[c],4)}, {v(44)} offset:{c*2048}")
        a(f"ds_read_b128 {v(RAW[c]+4,4)}, {v(44)} offset:{c*2048+32}")
        a(f"ds_read_b64 {v(RAW[c]+8,2)}, {v(45)} offset:{c*2048+64}")
    KF = [26, 32, 38, 94]
    for c in range(4):
        a(f"s_waitcnt lgkmcnt({3*(3-c)})")
        for i in range(5):
            a(f"v_cvt_pk_bf16_f32 {v(KF[c]+i)}, {v(RAW[c]+2*i)}, {v(RAW[c]+2*i+1)}")
            a(f"v_cndmask_b32 {v(KF[c]+i)}, {v(KF[c]+i)}, 0, vcc") if False else None
        a(f"v_mov_b32 {v(KF[c]+5)}, 0")
    a("s_nop 1")
    for hd in range(2 if fix_p4 else 0):
        P_, N_ = QP[hd]
        a(f"v_mov_b32 {v(P_+4)}, {v(48+2*hd)}")
        a(f"v_mov_b32 {v(N_+4)}, {v(48+2*hd+1)}")
        a(f"v_mov_b32 {v(P_+5)}, 0")
        a(f"v_mov_b32 {v(N_+5)}, 0")
    a("s_nop 1")
    DO = [64, 112]
    for hd in range(2):
        P_, N_ = QP[hd]
        a(f"v_mfma_f32_32x32x16_bf16 {v(DO[hd],16)}, {v(KF[2*hd],4)}, {v(P_,4)}, 0")
        a(f"v_mfma_f32_32x32x8_bf16 {v(DO[hd],16)}, {v(KF[2*hd]+4,2)}, {v(P_+4,2)}, {v(DO[hd],16)}")
        a(f"v_mfma_f32_32x32x16_bf16 {v(DO[hd],16)}, {v(KF[2*hd+1],4)}, {v(N_,4)}, {v(DO[hd],16)}")
        a(f"v_mfma_f32_32x32x8_bf16 {v(DO[hd],16)}, {v(KF[2*hd+1]+4,2)}, {v(N_+4,2)}, {v(DO[hd],16)}")
    TT = 100
    a(f"v_and_b32 {v(TT)}, 31, v0")
    a(f"v_lshrrev_b32 {v(TT+1)}, 5, v0")
    a(f"v_cmp_eq_u32 vcc, 0, {v(TT+1)}")
    if FUSE:
        a(f"s_mul_i32 s{S_T}, s{S_WAVE}, 2560")
        a(f"s_add_u32 s{S_T}, s{S_T}, 16384")
        a(f"v_mul_u32_u24 {v(TT)}, 40, {v(TT)}")
        a(f"v_lshl_add_u32 {v(TT)}, {v(TT+1)}, 3, {v(TT)}")
        a(f"v_add_u32 {v(TT)}, s{S_T}, {v(TT)}")
        a(f"v_lshlrev_b32 {v(TT+2)}, 4, v0")
        a(f"v_add_u32 {v(TT+10)}, s{S_T}, {v(TT+2)}")
        a(f"s_lshl_b32 s{S_T+1}, s{S_RB}, 5")
        a(f"s_lshl_b32 s{S_T+2}, s{S_CB}, 1")
        a(f"s_add_u32 s{S_T+1}, s{S_T+1}, s{S_T+2}")
        a(f"s_mul_i32 s{S_T+1}, s{S_T+1}, 5120")
        a(f"s_mul_i32 s{S_T+2}, s{S_WAVE}, 1280")
        a(f"s_add_u32 s{S_T+2}, s{S_T+2}, s{S_T+1}")
        a(f"s_add_u32 s{S_T+2}, s{S_T+2}, {WS_OA}")
    else:
        a(f"s_lshl_b32 s{S_T}, s{S_RB}, 7")
        a(f"s_lshl_b32 s{S_T+1}, s{S_WAVE}, 5")
        a(f"s_add_u32 s{S_T}, s{S_T}, s{S_T+1}")
        a(f"v_add_u32 {v(TT)}, s{S_T}, {v(TT)}")
        a(f"v_mul_u32_u24 {v(TT)}, 1280, {v(TT)}")
        a(f"v_lshlrev_b32 {v(TT+2)}, 3, {v(TT+1)}")
        a(f"v_add_u32 {v(TT)}, {v(TT)}, {v(TT+2)}")
        a(f"s_mul_i32 s{S_T+2}, s{S_CB}, 80")
        a(f"s_add_u32 s{S_T+2}, s{S_T+2}, {WS_OA}")
    a(f"s_mov_b32 s{S_T+3}, {f32hex(1e-6)}")
    a("s_nop 7")
    a("s_nop 7")
    for hd in range(2):
        O = DO[hd]
        a(f"v_cndmask_b32 {v(TT+3)}, {v(O+8)}, {v(O+12)}, vcc")
        a(f"v_add_f32 {v(TT+3)}, s{S_T+3}, {v(TT+3)}")
        a(f"v_rcp_f32 {v(TT+3)}, {v(TT+3)}")
        a("s_nop 0")
        for i in range(12):
            a(f"v_mul_f32 {v(O+i)}, {v(O+i)}, {v(TT+3)}")
        for i in range(6):
            a(f"v_cvt_pk_bf16_f32 {v(TT+4+i)}, {v(O+2*i)}, {v(O+2*i+1)}")
        if FUSE:
            off = hd*1280
            a(f"ds_write_b64 {v(TT)}, {v(TT+4,2)} offset:{off}")
            a(f"ds_write_b64 {v(TT)}, {v(TT+6,2)} offset:{off+16}")
            a("s_mov_b32 exec_hi, 0")
            a(f"ds_write_b64 {v(TT)}, {v(TT+8,2)} offset:{off+32}")
            a("s_mov_b64 exec, -1")
        else:
            a(f"buffer_store_dwordx2 {v(TT+4,2)}, {v(TT)}, {so}, s{S_T+2} offen offset:{40*hd}")
            a(f"buffer_store_dwordx2 {v(TT+6,2)}, {v(TT)}, {so}, s{S_T+2} offen offset:{40*hd+16}")
            a("s_mov_b32 exec_hi, 0")
            a(f"buffer_store_dwordx2 {v(TT+8,2)}, {v(TT)}, {so}, s{S_T+2} offen offset:{40*hd+32}")
            a("s_mov_b64 exec, -1")
    if FUSE:
        a("s_waitcnt lgkmcnt(0)")
        a(f"ds_read_b128 {v(4,4)}, {v(TT+10)}")
        a(f"ds_read_b128 {v(8,4)}, {v(TT+10)} offset:1280")
        a(f"ds_read_b128 {v(16,4)}, {v(TT+10)} offset:1024")
        a(f"ds_read_b128 {v(20,4)}, {v(TT+10)} offset:2304")
        a("s_waitcnt lgkmcnt(0)")
        a(f"buffer_store_dwordx4 {v(4,4)}, {v(TT+2)}, {so}, s{S_T+2} offen sc1")
        a(f"s_add_u32 s{S_T+3}, s{S_T+2}, 5120")
        a(f"buffer_store_dwordx4 {v(8,4)}, {v(TT+2)}, {so}, s{S_T+3} offen sc1")
        a("s_mov_b64 exec, 0xffff")
        a(f"buffer_store_dwordx4 {v(16,4)}, {v(TT+2)}, {so}, s{S_T+2} offen offset:1024 sc1")
        a(f"buffer_store_dwordx4 {v(20,4)}, {v(TT+2)}, {so}, s{S_T+3} offen offset:1024 sc1")
        a("s_mov_b64 exec, -1")
    if FUSE:
        a("s_waitcnt vmcnt(0)")
        a("s_barrier")
        lnf = a.newlabel("a_noflag")
        a(f"s_cmp_lg_u32 s{S_WAVE}, 0")
        a(f"s_cbranch_scc1 {lnf}")
        a(f"s_lshl_b32 s{S_T}, s{S_RB}, 7")
        a(f"s_add_u32 s{S_T}, s{S_T}, {WS_FLAGA}")
        a(f"s_lshl_b32 s{S_T+1}, s{S_CB}, 2")
        a(f"v_mov_b32 {v(TT)}, s{S_T+1}")
        a(f"v_mov_b32 {v(TT+1)}, 1")
        a("s_mov_b64 exec, 1")
        a(f"buffer_store_dword {v(TT+1)}, {v(TT)}, {so}, s{S_T} offen sc1")
        a("s_mov_b64 exec, -1")
        a.label(lnf)
        lx = a.newlabel("a_exit")
        a("s_bitcmp0_b32 s2, 3")
        a(f"s_cbranch_scc1 {lx}")
        a("s_setprio 0")
        outp.scalars(a, 0)
        outp.compute(a, False)
        a.label(lx)
    if dbg:
        a("s_waitcnt vmcnt(0)")
        stamp_end(a, WS_DBG, KA_WS, S_WAVE, idsgpr="s54")
    a("s_endpgm")
```

```python
from asmlib import *
from layout import *
import roles, gemm, outp
FUSE = True
WOPF = True

CH = 8
CH_BYTES = CH * TILE_REC
NCH = 64 // CH
OPT = dict(nodma=False, nobar=False, nolds=False, prio=False)

V_A16 = 1
V_A8  = 2
V_G16 = 3
SA, SB = 4, 20
OA, OB = 36, 52
PA, PB = 68, 76
Q1A, Q1B = 84, 88
Q2A, Q2B = 92, 94
K1 = [96, 100]
VV0 = [104, 112]
VV1 = [108, 116]
K2 = [120, 122]
ATTN_NVGPR = 124
V_T0 = SA

S_WS = 8
S_HEAD = 12
S_QB = 13
S_WAVE = 14
S_DMAOFF = 15
S_LDSW = 16
S_BUFD = 17
S_CNT = 18
S_DMABUF = 19
S_T = 20

def mfma32(a, d, A, B, C, k16=True):
    op = "v_mfma_f32_32x32x16_bf16" if k16 else "v_mfma_f32_32x32x8_bf16"
    n = 4 if k16 else 2
    c = "0" if C is None else v(C, 16)
    a(f"{op} {v(d,16)}, {v(A,n)}, {v(B,n)}, {c}")

PENDING = []
def cvts(a, Sr, P, q):
    a(f"v_cvt_pk_bf16_f32 {v(P+2*q)}, {v(Sr+4*q)}, {v(Sr+4*q+1)}")
    a(f"v_cvt_pk_bf16_f32 {v(P+2*q+1)}, {v(Sr+4*q+2)}, {v(Sr+4*q+3)}")
def flush_cvts(a):
    while PENDING:
        cvts(a, *PENDING.pop(0))
def exps(a, Sr, P, q):
    for i in range(4):
        a(f"v_exp_f32 {v(Sr+4*q+i)}, {v(Sr+4*q+i)}")
    flush_cvts(a)
    PENDING.append((Sr, P, q))

def dma_chunk(a):
    srd = f"s[{S_WS}:{S_WS+3}]"
    a(f"s_add_u32 m0, s{S_DMABUF}, s{S_LDSW}")
    a("s_nop 0")
    for i in range(4):
        a(f"buffer_load_dwordx4 {v(V_G16)}, {srd}, s{S_DMAOFF} offen offset:{i*1024} lds")
    a(f"s_add_u32 m0, m0, 4096")
    a(f"s_add_u32 s{S_DMAOFF}, s{S_DMAOFF}, 4096")
    for i in range(3):
        a(f"buffer_load_dwordx4 {v(V_G16)}, {srd}, s{S_DMAOFF} offen offset:{i*1024} lds")
    a(f"s_add_u32 s{S_DMAOFF}, s{S_DMAOFF}, {CH_BYTES-4096}")

def gen_attn(a, dbg_time=False):
    srd = f"s[{S_WS}:{S_WS+3}]"
    if dbg_time: stamp(a, 0)
    a(f"s_load_dwordx2 s[{S_WS}:{S_WS+1}], s[0:1], {KA_WS}")
    a(f"s_and_b32 s{S_T}, s2, 7")
    a(f"s_lshr_b32 s{S_T+1}, s2, 3")
    a(f"s_and_b32 s{S_T+2}, s{S_T+1}, 3")
    a(f"s_lshl_b32 s{S_HEAD}, s{S_T}, 2")
    a(f"s_add_u32 s{S_HEAD}, s{S_HEAD}, s{S_T+2}")
    a(f"s_lshr_b32 s{S_QB}, s{S_T+1}, 2")
    a(f"v_lshrrev_b32 {v(SA)}, 6, v0")
    a(f"v_and_b32 v0, 63, v0")
    a(f"v_readfirstlane_b32 s{S_WAVE}, {v(SA)}")
    a(f"v_lshlrev_b32 {v(V_G16)}, 4, v0")
    a(f"s_mul_i32 s{S_T+6}, s{S_HEAD}, {KV_HEAD}")
    a("s_waitcnt lgkmcnt(0)")
    a(f"s_mov_b32 s{S_WS+2}, {WS_SIZE_SRD}")
    a(f"s_mov_b32 s{S_WS+3}, 0x00020000")
    a(f"s_mov_b32 s61, s{S_WAVE}")
    lcomp = a.newlabel("attn_compute")
    a(f"s_cmp_lt_u32 s{S_WAVE}, 4")
    a(f"s_cbranch_scc1 {lcomp}")
    if FUSE and WOPF:
        a(f"s_load_dwordx2 s[40:41], s[0:1], {KA_AWO}")
        a(f"s_load_dwordx2 s[42:43], s[0:1], {KA_BWO}")
        a(f"s_lshr_b32 s{S_T}, s2, 3")
        a(f"s_mul_i32 s{S_T}, s{S_T}, 200")
        a(f"s_sub_u32 s{S_T+1}, s{S_WAVE}, 4")
        a(f"s_lshl_b32 s{S_T+1}, s{S_T+1}, 6")
        a(f"s_add_u32 s{S_T}, s{S_T}, s{S_T+1}")
        a(f"v_add_u32 v4, s{S_T}, v0")
        a(f"v_lshlrev_b32 v4, 7, v4")
        a(f"s_mov_b32 s46, {640*1280}")
        a(f"s_mov_b32 s47, 0x00020000")
        a("s_waitcnt lgkmcnt(0)")
    a(f"s_sub_u32 s{S_T}, s{S_WAVE}, 4")
    a(f"s_mul_i32 s{S_LDSW}, s{S_T}, 7168")
    a(f"s_add_u32 s{S_DMAOFF}, s{S_T+6}, s{S_LDSW}")
    a(f"s_mov_b32 s{S_DMABUF}, 0")
    dma_chunk(a)
    a(f"s_mov_b32 s{S_DMABUF}, {CH_BYTES}")
    a(f"s_mov_b32 s{S_CNT}, 0")
    a("s_waitcnt vmcnt(0)")
    a("s_barrier")
    lloop = a.newlabel("ld_loop"); lskip = a.newlabel("ld_skip")
    a.label(lloop)
    a(f"s_cmp_ge_u32 s{S_CNT}, {NCH-1}")
    a(f"s_cbranch_scc1 {lskip}")
    if not OPT['nodma']:
        dma_chunk(a)
    if FUSE and WOPF:
        lsk = a.newlabel("wopf_skip")
        a(f"s_sub_u32 s{S_T+1}, s{S_CNT}, 1")
        a(f"s_cmp_gt_u32 s{S_T+1}, 1")
        a(f"s_cbranch_scc1 {lsk}")
        a(f"s_cmp_eq_u32 s{S_CNT}, 1")
        a(f"s_cselect_b32 s44, s40, s42")
        a(f"s_cselect_b32 s45, s41, s43")
        a(f"buffer_load_dword v5, v4, s[44:47], 0 offen")
        a.label(lsk)
    a(f"s_sub_u32 s{S_DMABUF}, {CH_BYTES}, s{S_DMABUF}")
    a("s_waitcnt vmcnt(0)")
    a.label(lskip)
    if not OPT['nobar']:
        a("s_barrier")
    a(f"s_add_u32 s{S_CNT}, s{S_CNT}, 1")
    a(f"s_cmp_lt_u32 s{S_CNT}, {NCH}")
    a(f"s_cbranch_scc1 {lloop}")
    if FUSE:
        lx = a.newlabel("ld_exit")
        a("s_bitcmp1_b32 s2, 3")
        a(f"s_cbranch_scc1 {lx}")
        a(f"s_and_b32 s{gemm.S_WAVE}, s{S_WAVE}, 3")
        outp.loader(a, 1)
        a.label(lx)
    a("s_endpgm")
    a.label(lcomp)
    if OPT['prio']: a("s_setprio 2")
    a(f"v_mov_b32 {v(V_A16)}, {v(V_G16)}")
    a(f"v_lshlrev_b32 {v(V_A8)}, 3, v0")
    a(f"s_lshl_b32 s{S_T}, s{S_QB}, 3")
    a(f"s_lshl_b32 s{S_T+1}, s{S_WAVE}, 1")
    a(f"s_add_u32 s{S_T}, s{S_T}, s{S_T+1}")
    a(f"s_lshl_b32 s{S_T+1}, s{S_HEAD}, 6")
    a(f"s_add_u32 s{S_T+1}, s{S_T+1}, s{S_T}")
    a(f"s_lshl_b32 s{S_T+1}, s{S_T+1}, 10")
    a(f"s_add_u32 s{S_T+1}, s{S_T+1}, {WS_Q1}")
    a(f"buffer_load_dwordx4 {v(Q1A,4)}, {v(V_G16)}, {srd}, s{S_T+1} offen")
    a(f"buffer_load_dwordx4 {v(Q1B,4)}, {v(V_G16)}, {srd}, s{S_T+1} offen offset:1024")
    a(f"s_lshr_b32 s{S_T+2}, s{S_HEAD}, 1")
    a(f"s_lshl_b32 s{S_T+2}, s{S_T+2}, 6")
    a(f"s_add_u32 s{S_T+2}, s{S_T+2}, s{S_T}")
    a(f"s_lshl_b32 s{S_T+2}, s{S_T+2}, 9")
    a(f"s_add_u32 s{S_T+2}, s{S_T+2}, {WS_Q2}")
    a(f"buffer_load_dwordx2 {v(Q2A,2)}, {v(V_A8)}, {srd}, s{S_T+2} offen")
    a(f"buffer_load_dwordx2 {v(Q2B,2)}, {v(V_A8)}, {srd}, s{S_T+2} offen offset:512")
    a(f"s_add_u32 s{S_T+3}, s{S_T+6}, {63*TILE_REC}")
    a(f"buffer_load_dwordx4 {v(K1[1],4)}, {v(V_G16)}, {srd}, s{S_T+3} offen")
    a(f"buffer_load_dwordx2 {v(K2[1],2)}, {v(V_A8)}, {srd}, s{S_T+3} offen offset:3072")
    for r in list(range(OA, OA+32)) + list(range(PB, PB+8)) + list(range(VV0[1], VV0[1]+4)) + list(range(VV1[1], VV1[1]+4)):
        a(f"v_mov_b32 {v(r)}, 0")
    a(f"s_and_b32 s{S_T+3}, s{S_HEAD}, 1")
    a(f"s_cmp_eq_u32 s{S_T+3}, 0")
    a(f"s_cselect_b32 s{S_T+4}, 0, -1")
    a(f"s_cselect_b32 s{S_T+5}, -1, 0")
    a(f"s_mov_b32 s{S_BUFD}, {CH_BYTES}")
    a("s_waitcnt vmcnt(0)")
    a(f"s_mov_b64 exec, s[{S_T+4}:{S_T+5}]")
    for r in (Q2A, Q2A+1, Q2B, Q2B+1):
        a(f"v_mov_b32 {v(r)}, 0")
    a("s_mov_b64 exec, -1")
    a("s_nop 1")
    mfma32(a, SA, K1[1], Q1A, None)
    mfma32(a, SA, K2[1], Q2A, SA, k16=False)
    a(f"s_mov_b32 s{S_CNT}, 0")
    a("s_barrier")
    def rd(txt):
        if not OPT['nolds']: a(txt)
    def reads(st, off):
        rd(f"ds_read_b128 {v(K1[st],4)}, {v(V_A16)} offset:{off}")
        rd(f"ds_read_b128 {v(VV0[st],4)}, {v(V_A16)} offset:{off+1024}")
        rd(f"ds_read_b64 {v(K2[st],2)}, {v(V_A8)} offset:{off+3072}")
        rd(f"ds_read_b128 {v(VV1[st],4)}, {v(V_A16)} offset:{off+2048}")
    reads(0, 0)
    a("s_nop 7")
    if dbg_time:
        stamp(a, 1)
        a("s_waitcnt lgkmcnt(0)")
    loop = a.newlabel("attn_loop")
    a.raw(".p2align 6")
    a.label(loop)
    def E(Sr, i): a(f"v_exp_f32 {v(Sr+i)}, {v(Sr+i)}")
    def C(Sr, P, k): a(f"v_cvt_pk_bf16_f32 {v(P+k)}, {v(Sr+2*k)}, {v(Sr+2*k+1)}")
    def phase(Sr, P, m, rds):
        m[0]()
        for r_ in rds[0:2]: rd(r_)
        for i in (0, 1, 2): E(Sr, i)
        m[1]()
        for r_ in rds[2:4]: rd(r_)
        for i in (3, 4, 5, 6, 7): E(Sr, i)
        for k in (0, 1, 2, 3): C(Sr, P, k)
        m[2]()
        for i in (8, 9, 10): E(Sr, i)
        m[3]()
        for i in (11, 12, 13, 14, 15): E(Sr, i)
        for k in (4, 5, 6, 7): C(Sr, P, k)
    for j in range(CH):
        p = j & 1; pn = p ^ 1
        phase(SA, PA, [lambda: mfma32(a, OB, VV0[pn], PB, OB), lambda: mfma32(a, SB, K1[pn], Q1B, None),
                       lambda: mfma32(a, SB, K2[pn], Q2B, SB, k16=False), lambda: mfma32(a, OB, VV1[pn], PB+4, OB)], [])
        if not OPT['nolds']: a("s_waitcnt lgkmcnt(0)")
        if j == CH-1:
            if not OPT['nobar']:
                a("s_barrier")
            a(f"v_add_u32 {v(V_A16)}, s{S_BUFD}, {v(V_A16)}")
            a(f"v_add_u32 {v(V_A8)}, s{S_BUFD}, {v(V_A8)}")
            a(f"s_sub_u32 s{S_BUFD}, 0, s{S_BUFD}")
            off = 0
        else:
            off = (j+1)*TILE_REC
        rds = [f"ds_read_b128 {v(K1[pn],4)}, {v(V_A16)} offset:{off}",
               f"ds_read_b128 {v(VV0[pn],4)}, {v(V_A16)} offset:{off+1024}",
               f"ds_read_b64 {v(K2[pn],2)}, {v(V_A8)} offset:{off+3072}",
               f"ds_read_b128 {v(VV1[pn],4)}, {v(V_A16)} offset:{off+2048}"]
        phase(SB, PB, [lambda: mfma32(a, OA, VV0[p], PA, OA), lambda: mfma32(a, SA, K1[p], Q1A, None),
                       lambda: mfma32(a, SA, K2[p], Q2A, SA, k16=False), lambda: mfma32(a, OA, VV1[p], PA+4, OA)], rds)
    a(f"s_add_u32 s{S_CNT}, s{S_CNT}, 1")
    a(f"s_cmp_lt_u32 s{S_CNT}, {NCH}")
    a(f"s_cbranch_scc1 {loop}")
    if dbg_time: stamp(a, 2)
    a("s_nop 1")
    mfma32(a, OB, VV0[1], PB, OB)
    mfma32(a, OB, VV1[1], PB+4, OB)
    T = 84
    a(f"v_and_b32 {v(T)}, 31, v0")
    a(f"v_lshrrev_b32 {v(T+1)}, 5, v0")
    a(f"v_cmp_eq_u32 vcc, 0, {v(T+1)}")
    if FUSE:
        a(f"s_mul_i32 s{S_T}, s{S_WAVE}, 2560")
        a(f"s_add_u32 s{S_T}, s{S_T}, 61440")
        a(f"v_mul_u32_u24 {v(T)}, 40, {v(T)}")
        a(f"v_lshl_add_u32 {v(T)}, {v(T+1)}, 3, {v(T)}")
        a(f"v_add_u32 {v(T)}, s{S_T}, {v(T)}")
        a(f"v_lshlrev_b32 {v(T+2)}, 4, v0")
        a(f"v_add_u32 {v(T+10)}, s{S_T}, {v(T+2)}")
        a(f"s_lshl_b32 s{S_T+1}, s{S_QB}, 1")
        a(f"s_lshr_b32 s{S_T+2}, s{S_WAVE}, 1")
        a(f"s_add_u32 s{S_T+1}, s{S_T+1}, s{S_T+2}")
        a(f"s_lshl_b32 s{S_T+1}, s{S_T+1}, 5")
        a(f"s_add_u32 s{S_T+1}, s{S_T+1}, s{S_HEAD}")
        a(f"s_mul_i32 s{S_T+1}, s{S_T+1}, 5120")
        a(f"s_and_b32 s{S_T+2}, s{S_WAVE}, 1")
        a(f"s_mul_i32 s{S_T+2}, s{S_T+2}, 2560")
        a(f"s_add_u32 s{S_T+2}, s{S_T+2}, s{S_T+1}")
        a(f"s_add_u32 s{S_T+2}, s{S_T+2}, {WS_OB}")
    else:
        a(f"s_lshl_b32 s{S_T}, s{S_QB}, 8")
        a(f"s_lshl_b32 s{S_T+1}, s{S_WAVE}, 6")
        a(f"s_add_u32 s{S_T}, s{S_T}, s{S_T+1}")
        a(f"v_add_u32 {v(T)}, s{S_T}, {v(T)}")
        a(f"v_mul_u32_u24 {v(T)}, 1280, {v(T)}")
        a(f"v_lshlrev_b32 {v(T+2)}, 3, {v(T+1)}")
        a(f"v_add_u32 {v(T)}, {v(T)}, {v(T+2)}")
        a(f"s_mul_i32 s{S_T+2}, s{S_HEAD}, 40")
        a(f"s_add_u32 s{S_T+2}, s{S_T+2}, {WS_OB}")
    a("s_nop 1")
    for n_, (O, extra) in enumerate(((OA, 0), (OB, 32*1280))):
        if n_ == 1:
            a("s_nop 7")
        a(f"v_cndmask_b32 {v(T+3)}, {v(O+8)}, {v(O+12)}, vcc")
        a(f"v_rcp_f32 {v(T+3)}, {v(T+3)}")
        a("s_nop 0")
        for i in range(12):
            a(f"v_mul_f32 {v(O+i)}, {v(O+i)}, {v(T+3)}")
        for i in range(6):
            a(f"v_cvt_pk_bf16_f32 {v(T+4+i)}, {v(O+2*i)}, {v(O+2*i+1)}")
        if FUSE:
            off = n_*1280
            a(f"ds_write_b64 {v(T)}, {v(T+4,2)} offset:{off}")
            a(f"ds_write_b64 {v(T)}, {v(T+6,2)} offset:{off+16}")
            a("s_mov_b32 exec_hi, 0")
            a(f"ds_write_b64 {v(T)}, {v(T+8,2)} offset:{off+32}")
            a(f"s_mov_b64 exec, -1")
        else:
            if extra:
                a(f"s_add_u32 s{S_T+2}, s{S_T+2}, {extra}")
            a(f"buffer_store_dwordx2 {v(T+4,2)}, {v(T)}, {srd}, s{S_T+2} offen")
            a(f"buffer_store_dwordx2 {v(T+6,2)}, {v(T)}, {srd}, s{S_T+2} offen offset:16")
            a("s_mov_b32 exec_hi, 0")
            a(f"buffer_store_dwordx2 {v(T+8,2)}, {v(T)}, {srd}, s{S_T+2} offen offset:32")
            a(f"s_mov_b64 exec, -1")
    if FUSE:
        a("s_waitcnt lgkmcnt(0)")
        a(f"ds_read_b128 {v(4,4)}, {v(T+10)}")
        a(f"ds_read_b128 {v(8,4)}, {v(T+10)} offset:1024")
        a(f"ds_read_b128 {v(12,4)}, {v(T+10)} offset:2048")
        a("s_waitcnt lgkmcnt(0)")
        a(f"buffer_store_dwordx4 {v(4,4)}, {v(T+2)}, {srd}, s{S_T+2} offen sc1")
        a(f"buffer_store_dwordx4 {v(8,4)}, {v(T+2)}, {srd}, s{S_T+2} offen offset:1024 sc1")
        a("s_mov_b32 exec_hi, 0")
        a(f"buffer_store_dwordx4 {v(12,4)}, {v(T+2)}, {srd}, s{S_T+2} offen offset:2048 sc1")
        a(f"s_mov_b64 exec, -1")
    if FUSE:
        if dbg_time: a("s_memtime s[76:77]")
        a("s_waitcnt vmcnt(0) lgkmcnt(0)")
        a("s_barrier")
        lnf = a.newlabel("att_noflag")
        a(f"s_cmp_lg_u32 s{S_WAVE}, 0")
        a(f"s_cbranch_scc1 {lnf}")
        a(f"s_lshl_b32 s{S_T}, s{S_QB}, 7")
        a(f"s_add_u32 s{S_T}, s{S_T}, {WS_FLAGB}")
        a(f"s_lshl_b32 s{S_T+1}, s{S_HEAD}, 2")
        a(f"v_mov_b32 {v(T)}, s{S_T+1}")
        a(f"v_mov_b32 {v(T+1)}, 1")
        a("s_mov_b64 exec, 1")
        a(f"buffer_store_dword {v(T+1)}, {v(T)}, {srd}, s{S_T} offen sc1")
        a("s_mov_b64 exec, -1")
        a.label(lnf)
        lx = a.newlabel("att_exit")
        a("s_bitcmp1_b32 s2, 3")
        a(f"s_cbranch_scc1 {lx}")
        a(f"s_mov_b32 s60, s{S_WAVE}")
        a(f"s_mov_b32 s{gemm.S_WAVE}, s60")
        a("s_setprio 0")
        outp.scalars(a, 1)
        if dbg_time: a("s_memtime s[78:79]")
        outp.compute(a, dbg_time)
        a.label(lx)
        if dbg_time: a(f"s_mov_b32 s{S_WAVE}, s60") if False else None
    if dbg_time:
        a("s_waitcnt vmcnt(0)")
        stamp_end(a, WS_DBG, KA_WS, 61)
    a("s_endpgm")
```

```python
from asmlib import *
from layout import *

S_X = 8
S_W = 12
S_O = 16
S_WAVE = 20
S_XOFF = 21
S_WOFF = 22
S_LB = 23
S_ST = 24
S_T = 25
S_LBW = 43
S_RB = 40
S_CB = 41
BK = 32
NST = 640 // BK
SPS = 5
XBYTES = 128 * 64

PFOPT = dict(allpre=1, delay0=0, delay1=0, ldelay=0)
GOPT = dict(noload=False, nocomp=False, nomfma=False, ntx=False, ntw=False, ntpf=False, ststamp=False)
class G:
    def __init__(self, NC, wstride, acc0, vbase, NB=5, INIT=None):
        self.NC = NC; self.wstride = wstride
        self.INIT = INIT if INIT is not None else NB - 2
        self.NB = NB; self.DEPTH = NB - 2; self.NSET = NB // SPS
        assert NB % SPS == 0 and NST % NB == 0
        self.NT = NC // 32
        self.rowb = NC * 2
        self.wbytes = BK * self.rowb
        self.wbase = NB * XBYTES
        self.lds = NB * (XBYTES + self.wbytes)
        self.acc = acc0
        r = vbase
        self.nwr = {128: 4, 96: 1, 64: 2}[NC]
        self.vxr = r; r += 2 * self.NSET
        self.vwr = r; r += self.nwr * self.NSET
        r = (r + 3) // 4 * 4
        self.xf = [r, r + 4]; r += 8
        self.wf = [[r + 4 * i + 4 * self.NT * b for i in range(self.NT)] for b in range(2)]; r += 8 * self.NT
        self.vend = r

def loader_addrs(a, g, colmode):
    t0, t1, t2, t3 = 3, 4, 5, 6
    a(f"v_lshrrev_b32 {v(t0)}, 2, v0")
    a(f"v_lshrrev_b32 {v(t1)}, 4, v0")
    a(f"v_and_b32 {v(t2)}, 3, v0")
    a(f"v_xor_b32 {v(t2)}, {v(t2)}, {v(t1)}")
    a(f"v_lshlrev_b32 {v(t2)}, 4, {v(t2)}")
    a(f"s_lshl_b32 s{S_T}, s{S_WAVE}, 4")
    a(f"v_add_u32 {v(t0)}, s{S_T}, {v(t0)}")
    a(f"v_mul_u32_u24 v1, 1280, {v(t0)}")
    a(f"v_add_u32 v1, v1, {v(t2)}")
    if g.NC == 128:
        a(f"v_lshrrev_b32 {v(t0)}, 4, v0")
        a(f"v_and_b32 {v(t1)}, 15, v0")
        a(f"v_lshlrev_b32 {v(t2)}, 2, {v(t0)}")
        a(f"v_xor_b32 {v(t1)}, {v(t1)}, {v(t2)}")
        if colmode == 'qkv':
            a(f"v_mov_b32 {v(t2)}, 0")
            for lim, add in ((5, 1200), (10, 2400), (15, -240)):
                a(f"v_cmp_le_u32 vcc, {lim}, {v(t1)}")
                a(f"v_mov_b32 {v(t3)}, {add}")
                a("s_nop 0")
                a(f"v_cndmask_b32 {v(t2)}, {v(t2)}, {v(t3)}, vcc")
            a(f"v_lshlrev_b32 {v(t1)}, 4, {v(t1)}")
            a(f"v_add_u32 {v(t1)}, {v(t1)}, {v(t2)}")
        else:
            a(f"v_lshlrev_b32 {v(t1)}, 4, {v(t1)}")
        a(f"s_lshl_b32 s{S_T}, s{S_WAVE}, 3")
        a(f"v_add_u32 {v(t0)}, s{S_T}, {v(t0)}")
        a(f"v_mul_u32_u24 v2, {g.wstride}, {v(t0)}")
        a(f"v_add_u32 v2, v2, {v(t1)}")
    elif g.NC == 64:
        a(f"v_lshrrev_b32 {v(t0)}, 3, v0")
        a(f"v_and_b32 {v(t1)}, 7, v0")
        a(f"v_bfe_u32 {v(t2)}, {v(t0)}, 1, 1")
        a(f"v_lshlrev_b32 {v(t2)}, 2, {v(t2)}")
        a(f"v_xor_b32 {v(t1)}, {v(t1)}, {v(t2)}")
        a(f"v_lshlrev_b32 {v(t1)}, 4, {v(t1)}")
        a(f"s_lshl_b32 s{S_T}, s{S_WAVE}, 3")
        a(f"v_add_u32 {v(t0)}, s{S_T}, {v(t0)}")
        a(f"v_mul_u32_u24 v2, {g.wstride}, {v(t0)}")
        a(f"v_add_u32 v2, v2, {v(t1)}")
    else:
        a(f"s_lshl_b32 s{S_T}, s{S_WAVE}, 6")
        a(f"v_add_u32 {v(t0)}, s{S_T}, v0")
        a(f"v_mul_u32_u24 {v(t1)}, 43691, {v(t0)}")
        a(f"v_lshrrev_b32 {v(t1)}, 19, {v(t1)}")
        a(f"v_mul_u32_u24 {v(t2)}, 12, {v(t1)}")
        a(f"v_sub_u32 {v(t2)}, {v(t0)}, {v(t2)}")
        a(f"v_lshlrev_b32 {v(t3)}, 4, {v(t2)}")
        if colmode == 'kv':
            a(f"v_cmp_le_u32 vcc, 5, {v(t2)}")
            a(f"v_mov_b32 {v(t0)}, 1200")
            a("s_nop 0")
            a(f"v_cndmask_b32 {v(t0)}, 0, {v(t0)}, vcc")
            a(f"v_cmp_le_u32 vcc, 10, {v(t2)}")
            a(f"v_mov_b32 {v(t2)}, -160")
            a("s_nop 0")
            a(f"v_cndmask_b32 {v(t0)}, {v(t0)}, {v(t2)}, vcc")
            a(f"v_add_u32 {v(t3)}, {v(t3)}, {v(t0)}")
        a(f"v_mul_u32_u24 v2, {g.wstride}, {v(t1)}")
        a(f"v_add_u32 v2, v2, {v(t3)}")

S_KS = 58
def loader_issue(a, g, with_w=True, slot=0):
    sx = f"s[{S_X}:{S_X+3}]"; sw = f"s[{S_W}:{S_W+3}]"
    fx = " nt" if GOPT['ntx'] else ""; fw = " nt" if GOPT['ntw'] else ""
    fx += getattr(g, 'xflags', '')
    a(f"s_add_u32 m0, s{S_T+2}, {slot*XBYTES}")
    a(f"s_add_u32 s{S_KS}, s{S_KS}, 1")
    a(f"buffer_load_dwordx4 v1, {sx}, s{S_XOFF} offen{fx} lds")
    a(f"s_add_u32 m0, s{S_T+2}, {slot*XBYTES + 4096}")
    a(f"s_cmp_eq_u32 s{S_KS}, {NST}")
    a(f"buffer_load_dwordx4 v8, {sx}, s{S_XOFF} offen{fx} lds")
    n = 2
    a(f"s_cselect_b32 s{S_T+4}, {BK*2 - 1280}, {BK*2}")
    if with_w:
        a(f"s_add_u32 m0, s{S_T+3}, {g.wbase + slot*g.wbytes}")
    a(f"s_add_u32 s{S_XOFF}, s{S_XOFF}, s{S_T+4}")
    if with_w:
        a(f"buffer_load_dwordx4 v2, {sw}, s{S_WOFF} offen{fw} lds")
        n += 1
        if g.NC == 128:
            a(f"buffer_load_dwordx4 v9, {sw}, s{S_WOFF} offen offset:1024{fw} lds")
            n += 1
        elif g.NC == 96:
            a(f"buffer_load_dwordx4 v9, {sw}, s{S_WOFF} offen offset:3072{fw} lds")
            n += 1
    a(f"s_cmp_eq_u32 s{S_KS}, {NST}")
    a(f"s_cselect_b32 s{S_T+4}, s69, s68")
    a(f"s_add_u32 s{S_WOFF}, s{S_WOFF}, s{S_T+4}")
    return n

def loader_body(a, g, with_w, tail=None):
    issued = 0
    n = None
    def issue():
        nonlocal issued, n
        n = loader_issue(a, g, with_w, issued % g.NB)
        issued += 1
    for i in range(g.INIT): issue()
    extra = 0
    if getattr(g, 'pfw', 0):
        LPR = 2 if g.NC == 128 else 2
        nslots = g.pfw * 32 * LPR
        a(f"s_lshl_b32 s{S_T+4}, s{S_WAVE}, 6")
        a(f"v_add_u32 v3, s{S_T+4}, v0")
        a(f"v_lshrrev_b32 v4, 1, v3")
        a(f"v_and_b32 v5, 1, v3")
        a(f"v_lshlrev_b32 v5, 7, v5")
        a(f"s_lshl_b32 s{S_T+4}, s{S_KS}, 5")
        a(f"v_add_u32 v4, s{S_T+4}, v4")
        a(f"v_subrev_u32 v6, 640, v4")
        a(f"v_cmp_le_u32 vcc, 640, v4")
        a("s_nop 1")
        a(f"v_cndmask_b32 v4, v4, v6, vcc")
        a(f"v_mul_u32_u24 v4, {g.wstride}, v4")
        a(f"v_add_u32 v4, v4, v5")
        a(f"v_cmp_gt_u32 vcc, {nslots}, v3")
        a(f"v_mov_b32 v5, 0x7ffffff0")
        a("s_nop 0")
        a(f"v_cndmask_b32 v4, v5, v4, vcc")
        a(f"buffer_load_dword v7, v4, s[{S_W}:{S_W+3}], s67 offen")
        extra = 1
    for s_ in range(NST):
        out = (issued - s_ - 1) * n + (extra if s_ < g.INIT else 0)
        assert out <= 63
        if GOPT['ststamp']:
            a("s_memtime s[90:91]")
            a("s_waitcnt lgkmcnt(0)")
            a(f"v_writelane_b32 v11, s90, {s_}")
        a(f"s_waitcnt vmcnt({out})")
        if GOPT['ststamp']:
            a("s_memtime s[90:91]")
            a("s_waitcnt lgkmcnt(0)")
            a(f"v_writelane_b32 v12, s90, {s_}")
        a("s_barrier")
        if GOPT['ststamp']:
            a("s_memtime s[90:91]")
            a("s_waitcnt lgkmcnt(0)")
            a(f"v_writelane_b32 v10, s90, {s_}")
        if GOPT['noload']: continue
        k = 0
        while issued < NST and issued <= s_ + g.NB - 2 and k < 2:
            issue(); k += 1
    if GOPT['ststamp']:
        a(f"s_load_dwordx2 s[88:89], s[0:1], {KA_WS}")
        a("s_waitcnt lgkmcnt(0)")
        a("s_mov_b32 s90, 0x2000000")
        a("s_mov_b32 s91, 0x00020000")
        a(f"s_lshl_b32 s92, s2, 11")
        a(f"s_lshl_b32 s93, s{S_WAVE}, 9")
        a("s_add_u32 s92, s92, s93")
        import asmlib
        a(f"s_add_u32 s92, s92, {0x1A00000 + asmlib.DBGK[0]*0x100000 + getattr(g, 'stoff', 0)}")
        a("v_lshlrev_b32 v13, 2, v0")
        a("s_mov_b64 exec, 0x1fffff")
        a("buffer_store_dword v10, v13, s[88:91], s92 offen")
        a("buffer_store_dword v11, v13, s[88:91], s92 offen offset:128")
        a("buffer_store_dword v12, v13, s[88:91], s92 offen offset:256")
        a("s_mov_b64 exec, -1")
    if tail: tail()
    a("s_endpgm")

def loader(a, g, colmode, tail=None):
    if PFOPT['ldelay']: a(f"s_sleep {PFOPT['ldelay']}")
    if getattr(g, 'lprio', 0): a(f"s_setprio {g.lprio}")
    loader_addrs(a, g, colmode)
    a(f"v_add_u32 v8, {64*1280}, v1")
    if g.NC == 128: a(f"v_add_u32 v9, {4*g.wstride-1024}, v2")
    if g.NC == 96: a(f"v_add_u32 v9, {16*g.wstride-3072}, v2")
    a(f"s_mov_b32 s68, {BK*g.wstride}")
    a(f"s_mov_b32 s69, {BK*g.wstride - 640*g.wstride}")
    a(f"s_mov_b32 s{S_KS}, s59")
    a(f"s_mul_i32 s{S_T+4}, s59, {BK*2}")
    a(f"s_add_u32 s{S_XOFF}, s{S_XOFF}, s{S_T+4}")
    a(f"s_mul_i32 s{S_T+4}, s59, {BK*g.wstride}")
    a(f"s_add_u32 s{S_WOFF}, s{S_WOFF}, s{S_T+4}")
    a(f"s_lshl_b32 s{S_T+2}, s{S_WAVE}, 10")
    if g.NC == 128:
        a(f"s_lshl_b32 s{S_T+3}, s{S_WAVE}, 11")
    else:
        a(f"s_lshl_b32 s{S_T+3}, s{S_WAVE}, 10")
    if g.NC == 96:
        l3 = a.newlabel("gl_w3")
        a(f"s_cmp_eq_u32 s{S_WAVE}, 3")
        a(f"s_cbranch_scc1 {l3}")
        loader_body(a, g, True, tail)
        a.label(l3)
        loader_body(a, g, False, tail)
    else:
        loader_body(a, g, True, tail)

def compute_addrs(a, g, vt):
    t0, t1, t2 = vt, vt + 1, vt + 2
    a(f"v_and_b32 {v(t0)}, 31, v0")
    a(f"s_lshl_b32 s{S_T}, s{S_WAVE}, 5")
    a(f"v_add_u32 {v(t0)}, s{S_T}, {v(t0)}")
    a(f"v_bfe_u32 {v(t1)}, {v(t0)}, 2, 2")
    a(f"v_lshrrev_b32 {v(t2)}, 5, v0")
    a(f"v_xor_b32 {v(t1)}, {v(t1)}, {v(t2)}")
    a(f"v_lshlrev_b32 {v(t1)}, 4, {v(t1)}")
    a(f"v_lshlrev_b32 {v(t0)}, 6, {v(t0)}")
    a(f"v_add_u32 {v(g.vxr)}, {v(t0)}, {v(t1)}")
    a(f"v_xor_b32 {v(g.vxr+1)}, 32, {v(g.vxr)}")
    a(f"v_bfe_u32 {v(t0)}, v0, 2, 2")
    a(f"v_lshrrev_b32 {v(t1)}, 5, v0")
    a(f"v_lshlrev_b32 {v(t1)}, 3, {v(t1)}")
    a(f"v_add_u32 {v(t1)}, {v(t1)}, {v(t0)}")
    a(f"v_mul_u32_u24 {v(t1)}, {g.rowb}, {v(t1)}")
    a(f"v_bfe_u32 {v(t2)}, v0, 4, 1")
    a(f"v_lshlrev_b32 {v(t2)}, 5, {v(t2)}")
    a(f"v_add_u32 {v(t1)}, {v(t1)}, {v(t2)}")
    a(f"v_and_b32 {v(t2)}, 3, v0")
    a(f"v_lshlrev_b32 {v(t2)}, 3, {v(t2)}")
    a(f"v_add_u32 {v(t1)}, {v(t1)}, {v(t2)}")
    a(f"v_add_u32 {v(t1)}, {g.wbase}, {v(t1)}")
    if g.NC == 128:
        for ct in range(4):
            a(f"v_xor_b32 {v(t2)}, {ct}, {v(t0)}")
            a(f"v_lshlrev_b32 {v(t2)}, 6, {v(t2)}")
            a(f"v_add_u32 {v(g.vwr+ct)}, {v(t1)}, {v(t2)}")
    elif g.NC == 96:
        a(f"v_mov_b32 {v(g.vwr)}, {v(t1)}")
    else:
        a(f"v_lshrrev_b32 {v(t0)}, 1, {v(t0)}")
        for ct in range(2):
            a(f"v_xor_b32 {v(t2)}, {ct}, {v(t0)}")
            a(f"v_lshlrev_b32 {v(t2)}, 6, {v(t2)}")
            a(f"v_add_u32 {v(g.vwr+ct)}, {v(t1)}, {v(t2)}")
    for st in range(1, g.NSET):
        for i in range(2):
            a(f"v_add_u32 {v(g.vxr+2*st+i)}, {st*SPS*XBYTES}, {v(g.vxr+i)}")
        for i in range(g.nwr):
            a(f"v_add_u32 {v(g.vwr+g.nwr*st+i)}, {st*SPS*g.wbytes}, {v(g.vwr+i)}")

def rd_list(g, buf, ks, b):
    st, sl = divmod(buf, SPS)
    L = [f"ds_read_b128 {v(g.xf[b],4)}, {v(g.vxr+2*st+ks)} offset:{sl*XBYTES}"]
    base = sl * g.wbytes
    for i in range(g.NT):
        if g.NC == 96:
            addr = g.vwr + g.nwr*st; off = base + i*64 + ks*16*g.rowb
        else:
            addr = g.vwr + g.nwr*st + i; off = base + ks*16*g.rowb
        L.append(f"ds_read_b64_tr_b16 {v(g.wf[b][i],2)}, {v(addr)} offset:{off}")
        L.append(f"ds_read_b64_tr_b16 {v(g.wf[b][i]+2,2)}, {v(addr)} offset:{off+4*g.rowb}")
    if GOPT['nocomp']: L = []
    return L

def mf_list(g, b, orient):
    L = []
    for i in range(g.NT):
        d = g.acc + 16*i
        if orient[i] == 'FT':
            L.append(f"v_mfma_f32_32x32x16_bf16 {v(d,16)}, {v(g.wf[b][i],4)}, {v(g.xf[b],4)}, {v(d,16)}")
        else:
            L.append(f"v_mfma_f32_32x32x16_bf16 {v(d,16)}, {v(g.xf[b],4)}, {v(g.wf[b][i],4)}, {v(d,16)}")
    if GOPT['nocomp'] or GOPT['nomfma']: L = []
    return L

def mfmas(a, g, b, orient):
    for m in mf_list(g, b, orient): a(m)

def interleave(a, g, mf, rd):
    nrd = 1 + 2*g.NT
    if not rd:
        for m in mf: a(m)
        return
    per = [3] + [2]*(g.NT-1)
    k = 0
    for i in range(g.NT):
        old_younger = nrd - 3 - 2*i
        a(f"s_waitcnt lgkmcnt({old_younger + k})")
        if mf: a(mf[i])
        for j in range(per[i]):
            a(rd[k]); k += 1

def compute_loop(a, g, orient, dbg=False, pre_loop=None, per_iter=None):
    for r in range(g.acc, g.acc + 16*g.NT):
        a(f"v_mov_b32 {v(r)}, 0")
    for r in list(range(g.xf[1], g.xf[1]+4)) + [g.wf[1][i]+k for i in range(g.NT) for k in range(4)]:
        a(f"v_mov_b32 {v(r)}, 0")
    if pre_loop: pre_loop()
    a(f"s_mov_b32 s{S_ST}, 0")
    if dbg:
        a("s_memtime s[78:79]")
        a("s_waitcnt lgkmcnt(0)")
    loop = a.newlabel("gc_loop")
    a.label(loop)
    for b in range(g.NB):
        a("s_barrier")
        if dbg and b == 0:
            sk = a.newlabel("st")
            a(f"s_cmp_lg_u32 s{S_ST}, 0")
            a(f"s_cbranch_scc1 {sk}")
            a("s_memtime s[76:77]")
            a("s_waitcnt lgkmcnt(0)")
            a.label(sk)
        if b == 0 and per_iter: per_iter()
        interleave(a, g, mf_list(g, 1, orient), rd_list(g, b, 0, 0))
        interleave(a, g, mf_list(g, 0, orient), rd_list(g, b, 1, 1))
    a(f"s_add_u32 s{S_ST}, s{S_ST}, {g.NB}")
    a(f"s_cmp_lt_u32 s{S_ST}, {NST}")
    a(f"s_cbranch_scc1 {loop}")
    a("s_waitcnt lgkmcnt(0)")
    mfmas(a, g, 1, orient)
    if per_iter: a("s_waitcnt vmcnt(0)")

S_PFO = 44+12
S_PFS = 57
class PF:
    SRD = 60
    def __init__(self, vaddr, vdummy):
        self.va = vaddr; self.vd = vdummy
    def issue(self, a):
        a(f"buffer_load_dword {v(self.vd)}, {v(self.va)}, s[{self.SRD}:{self.SRD+3}], s{S_PFO} offen" + (" nt" if GOPT['ntpf'] else ""))
        a(f"s_add_u32 s{S_PFO}, s{S_PFO}, s{S_PFS}")
    def pre(self, a):
        lab = a.newlabel("pf_skip")
        a(f"s_cmp_eq_u32 s{S_WAVE}, 3")
        a(f"s_cbranch_scc1 {lab}")
        if PFOPT['delay0']: a(f"s_sleep {PFOPT['delay0']}")
        self.issue(a)
        if PFOPT['allpre']:
            if PFOPT['delay1']: a(f"s_sleep {PFOPT['delay1']}")
            self.issue(a)
            if PFOPT['delay1']: a(f"s_sleep {PFOPT['delay1']}")
            self.issue(a)
        a.label(lab)
    def iter(self, a):
        if PFOPT['allpre']: return
        lab = a.newlabel("pf_skip")
        a(f"s_cmp_eq_u32 s{S_WAVE}, 3")
        a(f"s_cbranch_scc1 {lab}")
        a(f"s_cmp_ge_u32 s{S_ST}, 10")
        a(f"s_cbranch_scc1 {lab}")
        self.issue(a)
        a.label(lab)
    def select_srd(self, a):
        a(f"s_cmp_eq_u32 s{S_WAVE}, 1")
        for i in range(4):
            a(f"s_cselect_b32 s{self.SRD+i}, s{S_X+i}, s{S_W+i}")
```

```python
from asmlib import *
from layout import *
import gemm
from gemm import G, XBYTES, S_X, S_W, S_O, S_WAVE, S_T, S_RB, S_CB, GOPT, compute_addrs, rd_list, mf_list, interleave, mfmas
from roles import srd, srd_fin

NB = 5
NS = 24
OF = G(NC=96, wstride=1280, acc0=80, vbase=1, NB=5, INIT=3)
RBB = 32 * 5120
S_XO = 21; S_WO = 22; S_TT = 58

def scalars(a, branch):
    srd(a, S_X, KA_WS, 0); srd(a, S_O, KA_OUT, 0); srd(a, S_W, KA_AWO if branch == 0 else KA_BWO, 0)
    a(f"s_load_dwordx2 s[62:63], s[0:1], {KA_WS}")
    a(f"s_and_b32 s{S_T}, s2, 7")
    a(f"s_lshr_b32 s{S_T+1}, s2, 4")
    a(f"s_lshl_b32 s{S_RB}, s{S_T}, 1")
    a(f"s_lshr_b32 s{S_T+2}, s{S_T+1}, 3")
    a(f"s_add_u32 s{S_RB}, s{S_RB}, s{S_T+2}")
    a(f"s_and_b32 s{S_CB}, s{S_T+1}, 7")
    a(f"s_mov_b32 s42, {branch}")
    a(f"s_mul_i32 s{S_T+3}, s{S_RB}, {RBB}")
    a(f"s_add_u32 s{S_T+3}, s{S_T+3}, {WS_OA if branch == 0 else WS_OB}")
    a("s_waitcnt lgkmcnt(0)")
    a(f"s_add_u32 s{S_X}, s{S_X}, s{S_T+3}")
    a(f"s_addc_u32 s{S_X+1}, s{S_X+1}, 0")
    srd_fin(a, S_X, RBB); srd_fin(a, S_W, 640*1280); srd_fin(a, S_O, 2048*2560)
    a("s_mov_b32 s64, s62"); a("s_mov_b32 s65, s63")
    a(f"s_mov_b32 s66, {WS_SIZE_SRD}"); a("s_mov_b32 s67, 0x00020000")

def poll(a, branch):
    lw = a.newlabel("op_nopoll")
    a(f"s_cmp_lg_u32 s{S_WAVE}, 0")
    a(f"s_cbranch_scc1 {lw}")
    if branch == 1:
        a(f"s_lshr_b32 s{S_T}, s{S_RB}, 1")
        a(f"s_lshl_b32 s{S_T}, s{S_T}, 7")
        a(f"s_add_u32 s{S_T}, s{S_T}, {WS_FLAGB}")
        mask = "0xffffffff"
    else:
        a(f"s_lshl_b32 s{S_T}, s{S_RB}, 7")
        a(f"s_add_u32 s{S_T}, s{S_T}, {WS_FLAGA}")
        mask = "0xffff"
    a(f"s_mov_b32 exec_lo, {mask}")
    a(f"s_mov_b32 exec_hi, 0")
    a(f"v_lshlrev_b32 v3, 2, v0")
    a(f"s_mov_b32 s{S_T+1}, 0")
    lp = a.newlabel("op_poll"); lpd = a.newlabel("op_poll_done")
    a.label(lp)
    a(f"buffer_load_dword v4, v3, s[64:67], s{S_T} offen sc1")
    a("s_waitcnt vmcnt(0)")
    a(f"v_cmp_eq_u32 vcc, 1, v4")
    a(f"s_add_u32 s{S_T+1}, s{S_T+1}, 1")
    a("s_nop 1")
    a(f"s_cmp_eq_u32 vcc_lo, {mask}")
    a(f"s_cbranch_scc1 {lpd}")
    a("s_sleep 4")
    a(f"s_cmp_lt_u32 s{S_T+1}, 0x40000")
    a(f"s_cbranch_scc1 {lp}")
    a.label(lpd)
    if ACQ:
        a("buffer_inv sc1")
        a("s_waitcnt vmcnt(0)")
    a("s_mov_b64 exec, -1")
    a.label(lw)
    a("s_barrier")
ACQ = False

def div3(a, dst, src, tmp):
    a(f"v_mul_u32_u24 {v(dst)}, 171, {v(src)}")
    a(f"v_lshrrev_b32 {v(dst)}, 9, {v(dst)}")
    a(f"v_mul_u32_u24 {v(tmp)}, 3, {v(dst)}")
    a(f"v_sub_u32 {v(tmp)}, {v(src)}, {v(tmp)}")

VX = [16, 17, 18]
VW = [[20, 21], [22, 23], [24, 25]]
def loader_setup(a):
    t0, t1, t2, t3, t4 = 3, 4, 5, 6, 7
    a(f"v_lshrrev_b32 {v(t0)}, 2, v0")
    a(f"s_lshl_b32 s{S_T}, s{S_WAVE}, 4")
    a(f"v_add_u32 {v(t0)}, s{S_T}, {v(t0)}")
    a(f"v_mul_u32_u24 {v(t0)}, 40, {v(t0)}")
    a(f"v_lshrrev_b32 {v(t1)}, 4, v0")
    a(f"v_and_b32 {v(t2)}, 3, v0")
    a(f"v_xor_b32 {v(t2)}, {v(t2)}, {v(t1)}")
    for ph in range(3):
        a(f"v_add_u32 {v(t1)}, {4*ph}, {v(t2)}")
        div3(a, t3, t1, t4)
        a(f"v_mul_u32_u24 {v(t3)}, 5120, {v(t3)}")
        a(f"v_lshlrev_b32 {v(t4)}, 4, {v(t4)}")
        a(f"v_add3_u32 {v(VX[ph])}, {v(t0)}, {v(t3)}, {v(t4)}")
    for ii in range(2):
        a(f"s_lshl_b32 s{S_T}, s{S_WAVE}, 6")
        if ii: a(f"s_add_u32 s{S_T}, s{S_T}, 192")
        a(f"v_add_u32 {v(t0)}, s{S_T}, v0")
        a(f"v_mul_u32_u24 {v(t1)}, 43691, {v(t0)}")
        a(f"v_lshrrev_b32 {v(t1)}, 19, {v(t1)}")
        a(f"v_mul_u32_u24 {v(t2)}, 12, {v(t1)}")
        a(f"v_sub_u32 {v(t2)}, {v(t0)}, {v(t2)}")
        a(f"v_lshlrev_b32 {v(t2)}, 4, {v(t2)}")
        for ph in range(3):
            a(f"v_lshrrev_b32 {v(t0)}, 3, {v(t1)}")
            a(f"v_add_u32 {v(t0)}, {4*ph}, {v(t0)}")
            div3(a, t3, t0, t4)
            a(f"v_mul_u32_u24 {v(t3)}, 20, {v(t3)}")
            a(f"v_and_b32 {v(t0)}, 7, {v(t1)}")
            a(f"v_lshl_add_u32 {v(t4)}, {v(t4)}, 3, {v(t0)}")
            a(f"v_add_u32 {v(t3)}, {v(t3)}, {v(t4)}")
            a(f"v_mul_u32_u24 {v(t3)}, 1280, {v(t3)}")
            a(f"v_add_u32 {v(t3)}, {v(t3)}, {v(t2)}")
            a(f"v_cmp_le_u32 vcc, 20, {v(t4)}")
            a(f"v_mov_b32 {v(t4)}, 0x7ff00000")
            a("s_nop 0")
            a(f"v_cndmask_b32 {v(VW[ph][ii])}, {v(t3)}, {v(t4)}, vcc")
    a(f"s_mov_b32 s{S_TT}, s{S_CB}")
    a(f"s_mul_i32 s{S_XO}, s{S_CB}, 20480")
    a(f"s_mul_i32 s{S_WO}, s{S_CB}, 102400")
    a(f"s_mul_i32 s{S_T}, s{S_CB}, 160")
    a(f"s_add_u32 s{S_WO}, s{S_WO}, s{S_T}")
    a(f"s_lshl_b32 s{S_T+2}, s{S_WAVE}, 10")
    a(f"s_mov_b32 s68, {-7*20480}")
    a(f"s_mov_b32 s69, {-7*102400}")

def issue(a, s_, with_w, xpart=True, wpart=True):
    g = OF
    ph = s_ % 3; slot = s_ % NB
    sx = f"s[{S_X}:{S_X+3}]"; sw = f"s[{S_W}:{S_W+3}]"
    n = 0
    if with_w and wpart:
        a(f"s_add_u32 m0, s{S_T+2}, {g.wbase + slot*g.wbytes}")
        a("s_nop 0")
        a(f"buffer_load_dwordx4 {v(VW[ph][0])}, {sw}, s{S_WO} offen lds")
        a(f"s_add_u32 m0, s{S_T+2}, {g.wbase + slot*g.wbytes + 3072}")
        a("s_nop 0")
        a(f"buffer_load_dwordx4 {v(VW[ph][1])}, {sw}, s{S_WO} offen lds")
        n += 2
    if not xpart: return n
    a(f"s_add_u32 m0, s{S_T+2}, {slot*XBYTES}")
    a(f"s_add_u32 s{S_T+1}, s{S_XO}, 2560")
    a(f"buffer_load_dwordx4 {v(VX[ph])}, {sx}, s{S_XO} offen lds")
    a(f"s_add_u32 m0, s{S_T+2}, {slot*XBYTES + 4096}")
    a("s_nop 0")
    a(f"buffer_load_dwordx4 {v(VX[ph])}, {sx}, s{S_T+1} offen lds")
    n += 2
    if ph == 2:
        a(f"s_add_u32 s{S_TT}, s{S_TT}, 1")
        a(f"s_mov_b32 s{S_T+5}, 102400")
        a(f"s_cmp_eq_u32 s{S_TT}, 8")
        a(f"s_cselect_b32 s{S_T+4}, s68, 20480")
        a(f"s_cselect_b32 s{S_T+5}, s69, s{S_T+5}")
        a(f"s_add_u32 s{S_XO}, s{S_XO}, s{S_T+4}")
        a(f"s_add_u32 s{S_WO}, s{S_WO}, s{S_T+5}")
    return n

def loader_body(a, with_w, branch):
    a("s_barrier")
    for i in range(3): issue(a, i, with_w, xpart=False)
    poll(a, branch)
    for i in range(3): issue(a, i, with_w, wpart=False)
    seq = ([('w', i) for i in range(3) for _ in range(2)] if with_w else []) + [('x', i) for i in range(3) for _ in range(2)]
    issued = 3
    for s_ in range(NS):
        last = max(i for i, (k, st) in enumerate(seq) if st == s_)
        out = len(seq) - 1 - last
        if GOPT['ststamp']:
            a("s_memtime s[90:91]"); a("s_waitcnt lgkmcnt(0)"); a(f"v_writelane_b32 v11, s90, {s_}")
        a(f"s_waitcnt vmcnt({out})")
        if GOPT['ststamp']:
            a("s_memtime s[90:91]"); a("s_waitcnt lgkmcnt(0)"); a(f"v_writelane_b32 v12, s90, {s_}")
        a("s_barrier")
        if GOPT['ststamp']:
            a("s_memtime s[90:91]"); a("s_waitcnt lgkmcnt(0)"); a(f"v_writelane_b32 v10, s90, {s_}")
        while issued < NS and issued <= s_ + NB - 2:
            issue(a, issued, with_w)
            seq += ([('w', issued)]*2 if with_w else []) + [('x', issued)]*2
            issued += 1
    if GOPT['ststamp']:
        a(f"s_lshl_b32 s92, s2, 11")
        a(f"s_lshl_b32 s93, s{S_WAVE}, 9")
        a("s_add_u32 s92, s92, s93")
        a(f"s_add_u32 s92, s92, {0x1C00000} + s42*0") if False else None
        a(f"s_lshl_b32 s93, s42, 20")
        a(f"s_add_u32 s92, s92, s93")
        a(f"s_add_u32 s92, s92, {0x1C00000}")
        a("v_lshlrev_b32 v13, 2, v0")
        a("s_mov_b64 exec, 0x3ffffff")
        a("buffer_store_dword v10, v13, s[64:67], s92 offen")
        a("buffer_store_dword v11, v13, s[64:67], s92 offen offset:128")
        a("buffer_store_dword v12, v13, s[64:67], s92 offen offset:256")
        a("s_mov_b64 exec, -1")
    a("s_endpgm")

def loader(a, branch):
    scalars(a, branch)
    loader_setup(a)
    if GOPT['ststamp']:
        a('s_memtime s[94:95]'); a('s_waitcnt lgkmcnt(0)')
        a('v_writelane_b32 v10, s94, 24'); a('v_writelane_b32 v11, s94, 24'); a('v_writelane_b32 v12, s70, 24')
    l3 = a.newlabel("ol_w3")
    a(f"s_cmp_eq_u32 s{S_WAVE}, 3")
    a(f"s_cbranch_scc1 {l3}")
    loader_body(a, True, branch)
    a.label(l3)
    loader_body(a, False, branch)

def compute(a, dbg=False):
    g = OF
    VT = 64
    compute_addrs(a, g, VT)
    for r in range(g.acc, g.acc + 16*g.NT):
        a(f"v_mov_b32 {v(r)}, 0")
    for r in list(range(g.xf[1], g.xf[1]+4)) + [g.wf[1][i]+k for i in range(g.NT) for k in range(4)]:
        a(f"v_mov_b32 {v(r)}, 0")
    a("s_barrier")
    orient = ['FT']*3
    for s_ in range(NS):
        a("s_barrier")
        interleave(a, g, mf_list(g, 1, orient), rd_list(g, s_ % NB, 0, 0))
        interleave(a, g, mf_list(g, 0, orient), rd_list(g, s_ % NB, 1, 1))
    a("s_waitcnt lgkmcnt(0)")
    mfmas(a, g, 1, orient)
    so = f"s[{S_O}:{S_O+3}]"
    VA = VT
    a(f"v_and_b32 {v(VA)}, 31, v0")
    a(f"s_lshl_b32 s{S_T}, s{S_RB}, 7")
    a(f"s_lshl_b32 s{S_T+1}, s{S_WAVE}, 5")
    a(f"s_add_u32 s{S_T}, s{S_T}, s{S_T+1}")
    a(f"v_add_u32 {v(VA)}, s{S_T}, {v(VA)}")
    a(f"v_mul_u32_u24 {v(VA)}, 2560, {v(VA)}")
    a(f"v_lshrrev_b32 {v(VA+1)}, 5, v0")
    a(f"v_lshlrev_b32 {v(VA+1)}, 4, {v(VA+1)}")
    a(f"v_add_u32 {v(VA)}, {v(VA)}, {v(VA+1)}")
    a(f"s_mul_i32 s{S_T+2}, s42, 1280")
    a(f"s_mul_i32 s{S_T+3}, s{S_CB}, 160")
    a(f"s_add_u32 s{S_T+2}, s{S_T+2}, s{S_T+3}")
    a("s_nop 7")
    a("s_nop 3")
    for pr in range(5):
        G0 = 2*pr
        R0 = g.acc + 16*(G0//4) + 4*(G0 % 4)
        R1 = R0 + 4
        P_ = VT + 4 + 4*(pr % 2)
        a(f"v_cvt_pk_bf16_f32 {v(P_)}, {v(R0)}, {v(R0+1)}")
        a(f"v_cvt_pk_bf16_f32 {v(P_+1)}, {v(R0+2)}, {v(R0+3)}")
        a(f"v_cvt_pk_bf16_f32 {v(P_+2)}, {v(R1)}, {v(R1+1)}")
        a(f"v_cvt_pk_bf16_f32 {v(P_+3)}, {v(R1+2)}, {v(R1+3)}")
        a("s_nop 1")
        a(f"v_permlane32_swap_b32 {v(P_)}, {v(P_+2)}")
        a(f"v_permlane32_swap_b32 {v(P_+1)}, {v(P_+3)}")
        a("s_nop 1")
        a(f"buffer_store_dwordx4 {v(P_,4)}, {v(VA)}, {so}, s{S_T+2} offen offset:{32*pr}")

def publish_block(a, PK, vt, lds_base_sgpr, ntok, srd_txt, soff_sgpr):
    pass
```

```python
from asmlib import *
from layout import *
from gemm import *
import struct, os
BNB = int(os.environ.get('BNB','10'))
BINIT = int(os.environ.get('BINIT','5'))
ROT = int(os.environ.get('ROT','1'))

def f32hex(x):
    return "0x%08x" % struct.unpack("<I", struct.pack("<f", x))[0]

def srd(a, s0, kaoff, nbytes):
    a(f"s_load_dwordx2 s[{s0}:{s0+1}], s[0:1], {kaoff}")
def srd_fin(a, s0, nbytes):
    a(f"s_mov_b32 s{s0+2}, {nbytes}")
    a(f"s_mov_b32 s{s0+3}, 0x00020000")

def wave_lane(a, vt):
    a(f"v_lshrrev_b32 {v(vt)}, 6, v0")
    a(f"v_and_b32 v0, 63, v0")
    a(f"v_readfirstlane_b32 s{S_WAVE}, {v(vt)}")
    a("s_nop 3")
    a(f"s_lshr_b32 s{S_T+14}, s{S_WAVE}, 2")
    a(f"s_and_b32 s{S_WAVE}, s{S_WAVE}, 3")

def split_roles(a, g, colmode, tail=None):
    lc = a.newlabel("compute")
    a(f"s_cmp_eq_u32 s{S_T+14}, 0")
    a(f"s_cbranch_scc1 {lc}")
    loader(a, g, colmode, tail)
    a.label(lc)

PREFETCH = False
TOUCH = False
def IDLE_PF(a, g, VT):
    t0 = VT; t1 = VT+1; va = VT+2
    a(f"v_lshrrev_b32 {v(t0)}, 5, v0")
    a(f"v_lshlrev_b32 {v(t0)}, 6, {v(t0)}")
    a(f"v_bfe_u32 {v(t1)}, v0, 4, 1")
    a(f"v_add_u32 {v(t0)}, {v(t0)}, {v(t1)}")
    a(f"s_lshl_b32 s{S_T}, s64, 1")
    a(f"v_add_u32 {v(t0)}, s{S_T}, {v(t0)}")
    a(f"v_mul_u32_u24 {v(va)}, 3840, {v(t0)}")
    a(f"v_and_b32 {v(t1)}, 15, v0")
    a(f"v_lshlrev_b32 {v(t1)}, 7, {v(t1)}")
    a(f"v_add_u32 {v(va)}, {v(va)}, {v(t1)}")
    a(f"s_lshl_b32 s{S_T}, s{S_WAVE}, 1")
    a(f"s_mul_i32 s{S_T}, s{S_T}, {64*3840}")
    a(f"s_lshl_b32 s{S_T+4}, s65, 11")
    a(f"s_add_u32 s{S_T}, s{S_T}, s{S_T+4}")
    a(f"buffer_load_dword {v(VT+3)}, {v(va)}, s[{S_W}:{S_W+3}], s{S_T} offen")
    a(f"s_add_u32 s{S_T}, s{S_T}, {8*64*3840}")
    a(f"buffer_load_dword {v(VT+4)}, {v(va)}, s[{S_W}:{S_W+3}], s{S_T} offen")
    a(f"v_and_b32 {v(t0)}, 15, v0")
    a(f"s_lshl_b32 s{S_T}, s64, 4")
    a(f"v_add_u32 {v(t0)}, s{S_T}, {v(t0)}")
    a(f"v_mul_u32_u24 {v(va)}, 1280, {v(t0)}")
    a(f"v_lshrrev_b32 {v(t1)}, 4, v0")
    a(f"v_lshlrev_b32 {v(t1)}, 7, {v(t1)}")
    a(f"v_add_u32 {v(va)}, {v(va)}, {v(t1)}")
    a(f"s_mul_i32 s{S_T}, s66, {128*1280}")
    a(f"s_lshl_b32 s{S_T+4}, s{S_WAVE}, 9")
    a(f"s_add_u32 s{S_T}, s{S_T}, s{S_T+4}")
    a(f"buffer_load_dword {v(VT+5)}, {v(va)}, s[{S_X}:{S_X+3}], s{S_T} offen")
BQ = G(NC=128, wstride=3840, acc0=64, vbase=1, NB=5, INIT=3)
BQ.pfw = int(os.environ.get('PFW','2'))
BQ_NVGPR = 128
def role_bqkv(a, dbg=False):
    g = BQ
    VT = 52
    assert g.vend <= VT, g.vend
    if dbg: stamp(a, 0)
    srd(a, S_X, KA_BX, 0); srd(a, S_W, KA_BWQKV, 0); srd(a, S_O, KA_WS, 0)
    wave_lane(a, VT)
    a(f"s_and_b32 s{S_T}, s2, 7")
    a(f"s_lshr_b32 s{S_T+1}, s2, 3")
    a(f"s_lshr_b32 s{S_T+2}, s{S_T}, 1")
    a(f"s_lshl_b32 s{S_T+2}, s{S_T+2}, 2")
    a(f"s_and_b32 s{S_T+3}, s{S_T}, 1")
    a(f"s_lshr_b32 s{S_T+4}, s{S_T+1}, 3")
    a(f"s_and_b32 s{S_T+5}, s{S_T+1}, 7")
    a(f"s_mul_i32 s{S_T+6}, s{S_T+1}, 37")
    a(f"s_lshr_b32 s{S_T+6}, s{S_T+6}, 8")
    a(f"s_mul_i32 s{S_T+7}, s{S_T+6}, 7")
    a(f"s_sub_u32 s{S_T+7}, s{S_T+1}, s{S_T+7}")
    a(f"s_add_u32 s{S_T+7}, s{S_T+7}, 8")
    a(f"s_cmp_eq_u32 s{S_T+3}, 0")
    a(f"s_cselect_b32 s{S_RB}, s{S_T+4}, s{S_T+6}")
    a(f"s_cselect_b32 s{S_CB}, s{S_T+5}, s{S_T+7}")
    a(f"s_add_u32 s{S_RB}, s{S_RB}, s{S_T+2}")
    a(f"s_mul_i32 s{S_XOFF}, s{S_RB}, {128*1280}")
    a(f"s_lshl_b32 s{S_WOFF}, s{S_CB}, 8")
    a("s_waitcnt lgkmcnt(0)")
    srd_fin(a, S_X, 2048*1280); srd_fin(a, S_W, 640*3840); srd_fin(a, S_O, WS_SIZE_SRD)
    lgo = a.newlabel("bq_go")
    a(f"s_cmp_eq_u32 s{S_T+3}, 0")
    a(f"s_cbranch_scc1 {lgo}")
    a(f"s_cmp_lt_u32 s{S_T+1}, 28")
    a(f"s_cbranch_scc1 {lgo}")
    if PREFETCH:
        lnp = a.newlabel("bq_idle_nopf")
        a(f"s_cmp_lg_u32 s{S_T+14}, 0")
        a(f"s_cbranch_scc1 {lnp}")
        a(f"s_mov_b32 s64, s{S_T+1}")
        a(f"s_mov_b32 s65, s{S_T+3}")
        a(f"s_mov_b32 s66, s{S_T+2}")
        IDLE_PF(a, g, VT)
        a.label(lnp)
    a(f"s_cmp_lg_u32 s2, {28*8+1}")
    lz0 = a.newlabel("bq_z0")
    a(f"s_cbranch_scc1 {lz0}")
    a(f"s_mov_b32 s{S_T}, {WS_FLAG}")
    a(f"s_lshl_b32 s{S_T+2}, s{S_T+14}, 2")
    a(f"s_add_u32 s{S_T+2}, s{S_T+2}, s{S_WAVE}")
    a(f"s_lshl_b32 s{S_T+2}, s{S_T+2}, 6")
    a(f"v_add_u32 {v(VT)}, s{S_T+2}, v0")
    a(f"v_lshlrev_b32 {v(VT+1)}, 4, {v(VT)}")
    for i in range(4):
        a(f"v_mov_b32 {v(VT+4+i)}, 0")
    a(f"v_cmp_gt_u32 vcc, 512, {v(VT)}")
    a("s_nop 1")
    a("s_and_b64 exec, exec, vcc")
    lz = a.newlabel("bq_zskip")
    a(f"s_cbranch_execz {lz}")
    a(f"buffer_store_dwordx4 {v(VT+4,4)}, {v(VT+1)}, s[{S_O}:{S_O+3}], s{S_T} offen sc1")
    a.label(lz)
    a.label(lz0)
    a("s_endpgm")
    a.label(lgo)
    if ROT:
        a(f"s_and_b32 s{S_T+8}, s{S_RB}, 3")
        a(f"s_mul_i32 s{S_T+8}, s{S_T+8}, 10")
        a(f"s_and_b32 s{S_T+9}, s{S_CB}, 7")
        a(f"s_mul_i32 s{S_T+9}, s{S_T+9}, 5")
        a(f"s_add_u32 s{S_T+8}, s{S_T+8}, s{S_T+9}")
        a(f"s_lshr_b32 s{S_T+8}, s{S_T+8}, 1")
        a(f"s_cmp_ge_u32 s{S_T+8}, 20")
        a(f"s_cselect_b32 s{S_T+9}, 20, 0")
        a(f"s_sub_u32 s59, s{S_T+8}, s{S_T+9}")
    else:
        a("s_mov_b32 s59, 0")
    a(f"s_mov_b32 s67, s{S_WOFF}")
    a(f"s_mov_b32 s64, s{S_T+1}")
    a(f"s_mov_b32 s65, s{S_T+3}")
    a(f"s_mov_b32 s66, s{S_T+2}")
    pf = PF(VT+8, VT+9)
    def pf_setup():
        if not PREFETCH: return
        va = pf.va; t0 = VT; t1 = VT+1
        lx = a.newlabel("pf_x"); ld = a.newlabel("pf_d")
        pf.select_srd(a)
        a(f"s_cmp_eq_u32 s{S_WAVE}, 1")
        a(f"s_cbranch_scc1 {lx}")
        a(f"v_lshrrev_b32 {v(t0)}, 5, v0")
        a(f"v_lshlrev_b32 {v(t0)}, 6, {v(t0)}")
        a(f"v_bfe_u32 {v(t1)}, v0, 4, 1")
        a(f"v_add_u32 {v(t0)}, {v(t0)}, {v(t1)}")
        a(f"s_lshl_b32 s{S_T}, s64, 1")
        a(f"v_add_u32 {v(t0)}, s{S_T}, {v(t0)}")
        a(f"v_mul_u32_u24 {v(va)}, 3840, {v(t0)}")
        a(f"v_and_b32 {v(t1)}, 15, v0")
        a(f"v_lshlrev_b32 {v(t1)}, 7, {v(t1)}")
        a(f"v_add_u32 {v(va)}, {v(va)}, {v(t1)}")
        a(f"s_mul_i32 s{S_PFO}, s{S_WAVE}, {64*3840}")
        a(f"s_lshl_b32 s{S_T}, s65, 11")
        a(f"s_add_u32 s{S_PFO}, s{S_PFO}, s{S_T}")
        a(f"s_mov_b32 s{S_PFS}, {4*64*3840}")
        a(f"s_branch {ld}")
        a.label(lx)
        a(f"v_and_b32 {v(t0)}, 15, v0")
        a(f"s_lshl_b32 s{S_T}, s64, 4")
        a(f"v_add_u32 {v(t0)}, s{S_T}, {v(t0)}")
        a(f"v_mul_u32_u24 {v(va)}, 1280, {v(t0)}")
        a(f"v_lshrrev_b32 {v(t1)}, 4, v0")
        a(f"v_lshlrev_b32 {v(t1)}, 7, {v(t1)}")
        a(f"v_add_u32 {v(va)}, {v(va)}, {v(t1)}")
        a(f"s_mul_i32 s{S_PFO}, s66, {128*1280}")
        a(f"s_mov_b32 s{S_PFS}, 512")
        a.label(ld)
        pf.pre(a)
    pf_iter = (lambda: None) if PREFETCH else None
    lcomp = a.newlabel("bq_comp")
    if PREFETCH:
        lld = a.newlabel("bq_ld")
        a(f"s_cmp_lg_u32 s{S_T+14}, 0")
        a(f"s_cbranch_scc1 {lld}")
        pf_setup()
        a.label(lld)
    def touch_tail():
        if not TOUCH: return
        a(f"s_load_dwordx2 s[68:69], s[0:1], {KA_AX}")
        a(f"s_load_dwordx2 s[70:71], s[0:1], {KA_AWQKV}")
        a(f"s_load_dwordx2 s[72:73], s[0:1], {KA_AWO}")
        a(f"s_load_dwordx2 s[74:75], s[0:1], {KA_BWO}")
        a(f"s_and_b32 s{S_T}, s2, 7")
        a(f"s_lshr_b32 s{S_T+1}, s{S_T}, 1")
        a(f"s_mul_i32 s{S_T+1}, s{S_T+1}, 60")
        a(f"s_lshl_b32 s{S_T+4}, s65, 5")
        a(f"s_add_u32 s{S_T+1}, s{S_T+1}, s{S_T+4}")
        a(f"s_add_u32 s{S_T+1}, s{S_T+1}, s64")
        a(f"s_lshl_b32 s{S_T+1}, s{S_T+1}, 2")
        a(f"s_add_u32 s{S_T+1}, s{S_T+1}, s{S_WAVE}")
        a("s_waitcnt lgkmcnt(0)")
        a(f"s_mov_b32 s78, {2048*1280}")
        a(f"s_mov_b32 s80, 0")
        for lim, reg, nb in ((320, 70, 640*3840), (620, 72, 640*1280), (720, 74, 640*1280)):
            a(f"s_cmp_ge_u32 s{S_T+1}, {lim}")
            a(f"s_cselect_b32 s68, s{reg}, s68")
            a(f"s_cselect_b32 s69, s{reg+1}, s69")
            a(f"s_cselect_b32 s78, {nb}, s78")
            a(f"s_cselect_b32 s80, {lim}, s80")
        a(f"s_mov_b32 s76, s68")
        a(f"s_mov_b32 s77, s69")
        a(f"s_mov_b32 s79, 0x00020000")
        a(f"s_sub_u32 s{S_T+1}, s{S_T+1}, s80")
        a(f"s_lshl_b32 s{S_T+1}, s{S_T+1}, 13")
        a(f"v_lshlrev_b32 v3, 7, v0")
        a(f"buffer_load_dword v4, v3, s[76:79], s{S_T+1} offen")
    split_roles(a, g, 'lin', tail=touch_tail)
    compute_addrs(a, g, VT)
    lv = a.newlabel("bq_v")
    a(f"s_cmp_ge_u32 s{S_CB}, 10")
    a(f"s_cbranch_scc1 {lv}")
    compute_loop(a, g, ['FT']*4, dbg, per_iter=pf_iter)
    if dbg: a('s_memtime s[72:73]')
    so = f"s[{S_O}:{S_O+3}]"
    VL16, VL8 = VT, VT+1
    a(f"v_lshlrev_b32 {v(VL16)}, 4, v0")
    a(f"v_lshlrev_b32 {v(VL8)}, 3, v0")
    a(f"s_lshl_b32 s{S_T}, s{S_RB}, 2")
    a(f"s_add_u32 s{S_T}, s{S_T}, s{S_WAVE}")
    lk = a.newlabel("bq_k")
    lend = a.newlabel("bq_end")
    a(f"s_cmp_ge_u32 s{S_CB}, 5")
    a(f"s_cbranch_scc1 {lk}")
    for typ in ('Q', 'K'):
        if typ == 'K':
            a.label(lk)
            a(f"s_sub_u32 s{S_CB}, s{S_CB}, 5")
            a(f"s_add_u32 s{S_T}, s{S_T}, 63")
            a(f"s_and_b32 s{S_T}, s{S_T}, 63")
            a(f"s_mul_i32 s{S_T+1}, s{S_T}, {TILE_REC}")
            a(f"s_add_u32 s{S_T+2}, s{S_T+1}, 3072")
            h1, h2 = KV_HEAD, None
        else:
            a(f"s_lshl_b32 s{S_T+1}, s{S_T}, 10")
            a(f"s_add_u32 s{S_T+1}, s{S_T+1}, {WS_Q1}")
            a(f"s_lshl_b32 s{S_T+2}, s{S_T}, 9")
            a(f"s_add_u32 s{S_T+2}, s{S_T+2}, {WS_Q2}")
            h1 = 65536
            a(f"s_mov_b32 s{S_T+4}, {f32hex(QSCALE)}")
        labs = [a.newlabel(f"bq_{typ}{s_}") for s_ in range(5)]
        for s_ in range(1, 5):
            a(f"s_cmp_eq_u32 s{S_CB}, {s_}")
            a(f"s_cbranch_scc1 {labs[s_]}")
        a("s_nop 7")
        for s_ in range(5):
            a.label(labs[s_])
            a("s_nop 7")
            a("s_nop 3")
            for ct in range(4):
                for gq in range(4):
                    Gi = 16*s_ + 4*ct + gq
                    p, r = divmod(Gi, 5)
                    R = g.acc + 16*ct + 4*gq
                    tp = VT + 2 + 2*((ct*4+gq) % 4)
                    if typ == 'Q':
                        for i in range(4):
                            a(f"v_mul_f32 {v(R+i)}, s{S_T+4}, {v(R+i)}")
                    a(f"v_cvt_pk_bf16_f32 {v(tp)}, {v(R)}, {v(R+1)}")
                    a(f"v_cvt_pk_bf16_f32 {v(tp+1)}, {v(R+2)}, {v(R+3)}")
                    if r != 2:
                        head = 2*p + (1 if r >= 3 else 0)
                        off8 = 8*(r if r < 2 else r-3)
                        a(f"s_add_u32 s{S_T+3}, s{S_T+1}, {head*h1}")
                        a(f"buffer_store_dwordx2 {v(tp,2)}, {v(VL16)}, {so}, s{S_T+3} offen offset:{off8}")
                    elif typ == 'Q':
                        a(f"s_add_u32 s{S_T+3}, s{S_T+2}, {p*32768}")
                        a(f"buffer_store_dwordx2 {v(tp,2)}, {v(VL8)}, {so}, s{S_T+3} offen")
                    else:
                        a(f"s_add_u32 s{S_T+3}, s{S_T+2}, {2*p*KV_HEAD}")
                        a(f"buffer_store_dwordx2 {v(tp,2)}, {v(VL8)}, {so}, s{S_T+3} offen")
                        a(f"s_add_u32 s{S_T+3}, s{S_T+3}, {KV_HEAD}")
                        a(f"buffer_store_dwordx2 {v(tp,2)}, {v(VL8)}, {so}, s{S_T+3} offen")
            a(f"s_branch {lend}")
    a.label(lv)
    compute_loop(a, g, ['TF']*4, dbg, per_iter=pf_iter)
    if dbg: a('s_memtime s[72:73]')
    a(f"s_sub_u32 s{S_CB}, s{S_CB}, 10")
    a(f"s_lshl_b32 s{S_T}, s{S_RB}, 2")
    a(f"s_add_u32 s{S_T}, s{S_T}, s{S_WAVE}")
    a(f"s_mul_i32 s{S_T+1}, s{S_T}, {TILE_REC}")
    a(f"s_add_u32 s{S_T+1}, s{S_T+1}, 1024")
    a(f"s_lshl_b32 s{S_T+2}, s{S_CB}, 7")
    ONE = VT + 8
    for i in range(4):
        a(f"v_mov_b32 {v(ONE+i)}, 0x3f803f80")
    VA, VD, VH, VB = VT, VT+1, VT+2, VT+3
    PK = g.xf[0]
    a(f"v_lshrrev_b32 {v(VH)}, 5, v0")
    a(f"v_lshlrev_b32 {v(VH)}, 9, {v(VH)}")
    a(f"s_mov_b32 s{S_T+3}, {KV_HEAD}")
    a("s_nop 7")
    for ct in range(4):
        a(f"v_and_b32 {v(VD)}, 31, v0")
        a(f"v_add_u32 {v(VD)}, s{S_T+2}, {v(VD)}")
        if ct: a(f"v_add_u32 {v(VD)}, {32*ct}, {v(VD)}")
        a(f"v_mul_u32_u24 {v(VA)}, 52429, {v(VD)}")
        a(f"v_lshrrev_b32 {v(VA)}, 20, {v(VA)}")
        a(f"v_mul_u32_u24 {v(VB)}, 20, {v(VA)}")
        a(f"v_sub_u32 {v(VD)}, {v(VD)}, {v(VB)}")
        a(f"v_mul_lo_u32 {v(VA)}, {v(VA)}, s{S_T+3}")
        a(f"v_lshlrev_b32 {v(VB)}, 4, {v(VD)}")
        a(f"v_add3_u32 {v(VA)}, {v(VA)}, {v(VB)}, {v(VH)}")
        for mf in range(2):
            R = g.acc + 16*ct + 8*mf
            P_ = PK + 4*mf
            for i in range(4):
                a(f"v_cvt_pk_bf16_f32 {v(P_+i)}, {v(R+2*i)}, {v(R+2*i+1)}")
            a(f"buffer_store_dwordx4 {v(P_,4)}, {v(VA)}, {so}, s{S_T+1} offen offset:{1024*mf}")
        a(f"v_cmp_eq_u32 vcc, 19, {v(VD)}")
        a(f"v_mov_b32 {v(VB)}, 80")
        a("s_nop 0")
        a(f"v_cndmask_b32 {v(VB)}, 32, {v(VB)}, vcc")
        a(f"v_add_u32 {v(VA)}, {v(VA)}, {v(VB)}")
        a(f"v_cmp_le_u32 vcc, 18, {v(VD)}")
        a(f"s_and_saveexec_b64 s[{S_T+5}:{S_T+6}], vcc") if (S_T+5) % 2 == 0 else a(f"s_and_saveexec_b64 s[{S_T+6}:{S_T+7}], vcc")
        lsk = a.newlabel("bq_noones")
        a(f"s_cbranch_execz {lsk}")
        for mf in range(2):
            a(f"buffer_store_dwordx4 {v(ONE,4)}, {v(VA)}, {so}, s{S_T+1} offen offset:{1024*mf}")
        a.label(lsk)
        a("s_mov_b64 exec, -1")
        a("s_nop 1")
    a.label(lend)
    if dbg:
        a('s_memtime s[74:75]')
        a("s_waitcnt vmcnt(0)")
        stamp_end(a, WS_DBG, KA_WS, S_WAVE)
    a("s_endpgm")

OP = G(NC=96, wstride=1280, acc0=80, vbase=1, NB=BNB, INIT=BINIT)
OP.pfw = int(os.environ.get('PFW','2'))
OP_NVGPR = 128
def role_out(a, dbg=False):
    g = OP
    VT = 64
    assert g.vend <= VT, g.vend
    if dbg: stamp(a, 0)
    srd(a, S_X, KA_WS, 0); srd(a, S_O, KA_OUT, 0)
    a(f"s_load_dwordx2 s[{S_W}:{S_W+1}], s[0:1], {KA_AWO}")
    a(f"s_load_dwordx2 s[{S_T+8}:{S_T+9}], s[0:1], {KA_BWO}") if (S_T+8) % 2 == 0 else a(f"s_load_dwordx2 s[{S_T+9}:{S_T+10}], s[0:1], {KA_BWO}")
    BW = S_T+8 if (S_T+8) % 2 == 0 else S_T+9
    wave_lane(a, VT)
    a(f"s_and_b32 s{S_T}, s2, 7")
    a(f"s_lshr_b32 s{S_T+1}, s2, 3")
    a(f"s_lshr_b32 s{S_T+2}, s{S_T}, 2")
    a(f"s_and_b32 s{S_T}, s{S_T}, 3")
    a(f"s_lshl_b32 s{S_RB}, s{S_T}, 2")
    a(f"s_lshr_b32 s{S_T+3}, s{S_T+1}, 3")
    a(f"s_add_u32 s{S_RB}, s{S_RB}, s{S_T+3}")
    a(f"s_and_b32 s{S_CB}, s{S_T+1}, 7")
    a(f"s_mov_b32 s{S_T+6}, s{S_T+2}")
    a(f"s_mul_i32 s{S_XOFF}, s{S_RB}, {128*1280}")
    a(f"s_mul_i32 s{S_T+4}, s{S_T+6}, {WS_OB-WS_OA}")
    a(f"s_add_u32 s{S_T+4}, s{S_T+4}, {WS_OA}")
    a(f"s_add_u32 s{S_XOFF}, s{S_XOFF}, s{S_T+4}")
    a(f"s_mul_i32 s{S_WOFF}, s{S_CB}, 160")
    a("s_waitcnt lgkmcnt(0)")
    a(f"s_cmp_eq_u32 s{S_T+6}, 0")
    a(f"s_cselect_b32 s{S_W}, s{S_W}, s{BW}")
    a(f"s_cselect_b32 s{S_W+1}, s{S_W+1}, s{BW+1}")
    srd_fin(a, S_X, WS_SIZE_SRD); srd_fin(a, S_W, 640*1280); srd_fin(a, S_O, 2048*2560)
    a(f"s_mov_b32 s42, s{S_T+6}")
    if ROT:
        a(f"s_and_b32 s{S_T+8}, s{S_RB}, 3")
        a(f"s_mul_i32 s{S_T+8}, s{S_T+8}, 10")
        a(f"s_mul_i32 s{S_T+9}, s{S_CB}, 5")
        a(f"s_add_u32 s{S_T+8}, s{S_T+8}, s{S_T+9}")
        a(f"s_lshr_b32 s{S_T+8}, s{S_T+8}, 1")
        a(f"s_cmp_ge_u32 s{S_T+8}, 20")
        a(f"s_cselect_b32 s{S_T+9}, 20, 0")
        a(f"s_sub_u32 s59, s{S_T+8}, s{S_T+9}")
    else:
        a("s_mov_b32 s59, 0")
    a(f"s_mov_b32 s67, s{S_WOFF}")
    a(f"s_mov_b32 s64, s{S_T+1}")
    a(f"s_mov_b32 s65, s{S_T+4}")
    pf = PF(VT+8, VT+9)
    def pf_setup():
        if not PREFETCH: return
        va = pf.va; t0 = VT; t1 = VT+1
        lx = a.newlabel("pf_x"); ld = a.newlabel("pf_d")
        pf.select_srd(a)
        a(f"s_cmp_eq_u32 s{S_WAVE}, 1")
        a(f"s_cbranch_scc1 {lx}")
        a(f"v_mul_u32_u24 {v(t0)}, 3277, v0")
        a(f"v_lshrrev_b32 {v(t0)}, 16, {v(t0)}")
        a(f"v_mul_u32_u24 {v(t1)}, 20, {v(t0)}")
        a(f"v_sub_u32 {v(t1)}, v0, {v(t1)}")
        a(f"s_mul_i32 s{S_T}, s64, 20")
        a(f"v_add_u32 {v(t1)}, s{S_T}, {v(t1)}")
        a(f"v_lshlrev_b32 {v(t1)}, 7, {v(t1)}")
        a(f"v_mul_u32_u24 {v(va)}, 81920, {v(t0)}")
        a(f"v_add_u32 {v(va)}, {v(va)}, {v(t1)}")
        a(f"s_mul_i32 s{S_PFO}, s{S_WAVE}, {81920*3//2}")
        a(f"s_mov_b32 s{S_PFS}, {6*81920}")
        a(f"s_branch {ld}")
        a.label(lx)
        a(f"v_and_b32 {v(t0)}, 15, v0")
        a(f"s_lshl_b32 s{S_T}, s64, 4")
        a(f"v_add_u32 {v(t0)}, s{S_T}, {v(t0)}")
        a(f"v_mul_u32_u24 {v(va)}, 1280, {v(t0)}")
        a(f"v_lshrrev_b32 {v(t1)}, 4, v0")
        a(f"v_lshlrev_b32 {v(t1)}, 7, {v(t1)}")
        a(f"v_add_u32 {v(va)}, {v(va)}, {v(t1)}")
        a(f"s_and_b32 s{S_T}, s{S_RB}, 12")
        a(f"s_mul_i32 s{S_PFO}, s{S_T}, {128*1280}")
        a(f"s_add_u32 s{S_PFO}, s{S_PFO}, s65")
        a(f"s_mov_b32 s{S_PFS}, 512")
        a.label(ld)
        pf.pre(a)
    if PREFETCH:
        lld = a.newlabel("op_ld")
        a(f"s_cmp_lg_u32 s{S_T+14}, 0")
        a(f"s_cbranch_scc1 {lld}")
        pf_setup()
        a.label(lld)
    split_roles(a, g, 'lin')
    compute_addrs(a, g, VT)
    compute_loop(a, g, ['FT']*3, dbg, per_iter=(lambda: None) if PREFETCH else None)
    if dbg: a('s_memtime s[72:73]')
    so = f"s[{S_O}:{S_O+3}]"
    VA = VT
    a(f"v_and_b32 {v(VA)}, 31, v0")
    a(f"s_lshl_b32 s{S_T}, s{S_RB}, 7")
    a(f"s_lshl_b32 s{S_T+1}, s{S_WAVE}, 5")
    a(f"s_add_u32 s{S_T}, s{S_T}, s{S_T+1}")
    a(f"v_add_u32 {v(VA)}, s{S_T}, {v(VA)}")
    a(f"v_mul_u32_u24 {v(VA)}, 2560, {v(VA)}")
    a(f"v_lshrrev_b32 {v(VA+1)}, 5, v0")
    a(f"v_lshlrev_b32 {v(VA+1)}, 4, {v(VA+1)}")
    a(f"v_add_u32 {v(VA)}, {v(VA)}, {v(VA+1)}")
    a(f"s_mul_i32 s{S_T+2}, s42, 1280")
    a(f"s_mul_i32 s{S_T+3}, s{S_CB}, 160")
    a(f"s_add_u32 s{S_T+2}, s{S_T+2}, s{S_T+3}")
    a("s_nop 7")
    a("s_nop 3")
    for pr in range(5):
        G0 = 2*pr
        R0 = g.acc + 16*(G0//4) + 4*(G0 % 4)
        R1 = R0 + 4
        P_ = VT + 4 + 4*(pr % 2)
        a(f"v_cvt_pk_bf16_f32 {v(P_)}, {v(R0)}, {v(R0+1)}")
        a(f"v_cvt_pk_bf16_f32 {v(P_+1)}, {v(R0+2)}, {v(R0+3)}")
        a(f"v_cvt_pk_bf16_f32 {v(P_+2)}, {v(R1)}, {v(R1+1)}")
        a(f"v_cvt_pk_bf16_f32 {v(P_+3)}, {v(R1+2)}, {v(R1+3)}")
        a("s_nop 1")
        a(f"v_permlane32_swap_b32 {v(P_)}, {v(P_+2)}")
        a(f"v_permlane32_swap_b32 {v(P_+1)}, {v(P_+3)}")
        a("s_nop 1")
        a(f"buffer_store_dwordx4 {v(P_,4)}, {v(VA)}, {so}, s{S_T+2} offen offset:{32*pr}")
    if dbg:
        a('s_memtime s[74:75]')
        a("s_waitcnt vmcnt(0)")
        stamp_end(a, WS_DBG, KA_WS, S_WAVE)
    a("s_endpgm")


OF = G(NC=96, wstride=1280, acc0=80, vbase=1, NB=5, INIT=3)
OF.xflags = " sc1"
OF.pfw = 0
def out_scalars(a, branch):
    srd(a, S_X, KA_WS, 0); srd(a, S_O, KA_OUT, 0); srd(a, S_W, KA_AWO if branch == 0 else KA_BWO, 0)
    a(f"s_and_b32 s{S_T}, s2, 7")
    a(f"s_lshr_b32 s{S_T+1}, s2, 4")
    a(f"s_lshl_b32 s{S_RB}, s{S_T}, 1")
    a(f"s_lshr_b32 s{S_T+2}, s{S_T+1}, 3")
    a(f"s_add_u32 s{S_RB}, s{S_RB}, s{S_T+2}")
    a(f"s_and_b32 s{S_CB}, s{S_T+1}, 7")
    a(f"s_mul_i32 s{S_XOFF}, s{S_RB}, {128*1280}")
    a(f"s_add_u32 s{S_XOFF}, s{S_XOFF}, {WS_OA if branch == 0 else WS_OB}")
    a(f"s_mul_i32 s{S_WOFF}, s{S_CB}, 160")
    a(f"s_mul_i32 s{S_T+8}, s{S_CB}, 5")
    a(f"s_lshr_b32 s{S_T+8}, s{S_T+8}, 1")
    a(f"s_mov_b32 s59, s{S_T+8}")
    a(f"s_mov_b32 s42, {branch}")
    a("s_waitcnt lgkmcnt(0)")
    srd_fin(a, S_X, WS_SIZE_SRD); srd_fin(a, S_W, 640*1280); srd_fin(a, S_O, 2048*2560)

def out_poll(a, branch):
    a("s_barrier")
    lw = a.newlabel("op_nopoll")
    a(f"s_cmp_lg_u32 s{S_WAVE}, 0")
    a(f"s_cbranch_scc1 {lw}")
    if branch == 1:
        a(f"s_lshr_b32 s{S_T}, s{S_RB}, 1")
        a(f"s_lshl_b32 s{S_T}, s{S_T}, 7")
        a(f"s_add_u32 s{S_T}, s{S_T}, {WS_FLAGB}")
        mask = "0xffffffff"; n = 32
    else:
        a(f"s_lshl_b32 s{S_T}, s{S_RB}, 7")
        a(f"s_add_u32 s{S_T}, s{S_T}, {WS_FLAGA}")
        mask = "0xffff"; n = 16
    a(f"s_mov_b32 exec_lo, {mask}")
    a(f"s_mov_b32 exec_hi, 0")
    a(f"v_lshlrev_b32 v3, 2, v0")
    a(f"s_mov_b32 s{S_T+1}, 0")
    lp = a.newlabel("op_poll"); lpd = a.newlabel("op_poll_done")
    a.label(lp)
    a(f"buffer_load_dword v4, v3, s[{S_X}:{S_X+3}], s{S_T} offen sc1")
    a("s_waitcnt vmcnt(0)")
    a(f"v_cmp_eq_u32 vcc, 1, v4")
    a(f"s_add_u32 s{S_T+1}, s{S_T+1}, 1")
    a("s_nop 1")
    a(f"s_cmp_eq_u32 vcc_lo, {mask}")
    a(f"s_cbranch_scc1 {lpd}")
    a("s_sleep 4")
    a(f"s_cmp_lt_u32 s{S_T+1}, 0x40000")
    a(f"s_cbranch_scc1 {lp}")
    a.label(lpd)
    a("s_mov_b64 exec, -1")
    a.label(lw)
    a("s_barrier")

def out_loader(a, branch):
    OF.stoff = 0x100000 + branch*0x100000
    out_scalars(a, branch)
    if GOPT['ststamp']:
        a('s_memtime s[94:95]')
    out_poll(a, branch)
    if GOPT['ststamp']:
        a('s_memtime s[96:97]')
        a('s_waitcnt lgkmcnt(0)')
        a('v_writelane_b32 v10, s94, 20')
        a('v_writelane_b32 v11, s96, 20')
        a('v_writelane_b32 v12, s70, 20')
    loader(a, OF, 'lin')

def out_compute(a, dbg=False):
    g = OF
    VT = 64
    a("s_barrier")
    compute_addrs(a, g, VT)
    compute_loop(a, g, ['FT']*3, False)
    if dbg: a("s_memtime s[68:69]")
    so = f"s[{S_O}:{S_O+3}]"
    VA = VT
    a(f"v_and_b32 {v(VA)}, 31, v0")
    a(f"s_lshl_b32 s{S_T}, s{S_RB}, 7")
    a(f"s_lshl_b32 s{S_T+1}, s{S_WAVE}, 5")
    a(f"s_add_u32 s{S_T}, s{S_T}, s{S_T+1}")
    a(f"v_add_u32 {v(VA)}, s{S_T}, {v(VA)}")
    a(f"v_mul_u32_u24 {v(VA)}, 2560, {v(VA)}")
    a(f"v_lshrrev_b32 {v(VA+1)}, 5, v0")
    a(f"v_lshlrev_b32 {v(VA+1)}, 4, {v(VA+1)}")
    a(f"v_add_u32 {v(VA)}, {v(VA)}, {v(VA+1)}")
    a(f"s_mul_i32 s{S_T+2}, s42, 1280")
    a(f"s_mul_i32 s{S_T+3}, s{S_CB}, 160")
    a(f"s_add_u32 s{S_T+2}, s{S_T+2}, s{S_T+3}")
    a("s_nop 7")
    a("s_nop 3")
    for pr in range(5):
        G0 = 2*pr
        R0 = g.acc + 16*(G0//4) + 4*(G0 % 4)
        R1 = R0 + 4
        P_ = VT + 4 + 4*(pr % 2)
        a(f"v_cvt_pk_bf16_f32 {v(P_)}, {v(R0)}, {v(R0+1)}")
        a(f"v_cvt_pk_bf16_f32 {v(P_+1)}, {v(R0+2)}, {v(R0+3)}")
        a(f"v_cvt_pk_bf16_f32 {v(P_+2)}, {v(R1)}, {v(R1+1)}")
        a(f"v_cvt_pk_bf16_f32 {v(P_+3)}, {v(R1+2)}, {v(R1+3)}")
        a("s_nop 1")
        a(f"v_permlane32_swap_b32 {v(P_)}, {v(P_+2)}")
        a(f"v_permlane32_swap_b32 {v(P_+1)}, {v(P_+3)}")
        a("s_nop 1")
        a(f"buffer_store_dwordx4 {v(P_,4)}, {v(VA)}, {so}, s{S_T+2} offen offset:{32*pr}")
```

```python
import sys, os
from asmlib import *
from layout import *
import attn
import roles
import arole

HEADER = open('concat_heads__linear_kernel_hedgehog__mha_block__prompt.s.ref').read().split('; Override launch geometry')[0] if False else None

HDR = """; Kernarg layout for this problem (80 bytes, ptrs only, base s[0:1]):
;   offset  56: d_out     shape=(1, 2048, 1280) dtype=bfloat16 (2 bytes/elem)
"""

def build(launches, kernels):
    out = HDR
    for (n, g, b, lds) in launches:
        out += f"; @launch kernel={n} grid=({g},1,1) block=({b},1,1) lds={lds}\n"
    out += '.amdgcn_target "amdgcn-amd-amdhsa--gfx950"\n.text\n'
    for (n, fn, nv) in kernels:
        a = Asm()
        a.uid = 1000 * (1 + [k[0] for k in kernels].index(n))
        import asmlib
        asmlib.DBGK[0] = {"qkv_kernel":0, "attn_kernel":1, "proj_kernel":2}[n] if len(kernels) >= 2 else 0
        kernel_header(a, n)
        fn(a)
        txt_k = a.text()
        fl = os.environ.get('STF_' + n.split('_')[0].upper(), '')
        if fl:
            lines = []
            for ln in txt_k.split("\n"):
                if ln.strip().startswith("buffer_store") and " sc1" not in ln and "s[88:91]" not in ln:
                    ln = ln + " " + fl
                lines.append(ln)
            txt_k = "\n".join(lines)
        out += txt_k
    out += '.section .rodata,"a"\n'
    for (n, fn, nv) in kernels:
        out += kernel_desc(n, nv)
    return out

def k2(a):
    done = a.newlabel("done")
    la = a.newlabel("arole")
    a("s_cmp_ge_u32 s2, 512")
    a(f"s_cbranch_scc1 {done}")
    a("s_cmp_ge_u32 s2, 256")
    a(f"s_cbranch_scc1 {la}")
    attn.gen_attn(a, dbg_time=DBG)
    a.label(la)
    a("s_mov_b32 s54, s2")
    a("s_sub_u32 s2, s2, 256")
    if AMODE == 'k1': arole.role_a2(a, dbg=DBG)
    else: arole.role_a(a, dbg=DBG, mode='k2')
    a.label(done)
    a("s_endpgm")
AMODE = os.environ.get('AMODE', 'k2')
WITH_A = False
WITH_B = True

def k1(a):
    done = a.newlabel("done")
    if AMODE == 'k1':
        lb = a.newlabel("brole")
        a("s_cmp_ge_u32 s2, 512")
        a(f"s_cbranch_scc1 {done}")
        a("s_cmp_ge_u32 s2, 256")
        a(f"s_cbranch_scc1 {lb}")
        arole.role_a(a, dbg=DBG, mode='k1')
        a.label(lb)
        a("s_sub_u32 s2, s2, 256")
    else:
        a("s_cmp_ge_u32 s2, 256")
        a(f"s_cbranch_scc1 {done}")
    roles.role_bqkv(a, dbg=DBG)
    a.label(done)
    a("s_endpgm")
def k3(a):
    done = a.newlabel("done")
    a("s_cmp_ge_u32 s2, 256")
    a(f"s_cbranch_scc1 {done}")
    roles.role_out(a, dbg=DBG)
    a.label(done)
    a("s_endpgm")
DBG = False
if __name__ == "__main__":
    DBG = len(sys.argv) > 3 and sys.argv[3] == "dbg"
    for kv in sys.argv[4:]:
        k_, v_ = kv.split("=")
        import gemm
        if k_ in attn.OPT: attn.OPT[k_] = (v_ == "1")
        elif k_ in gemm.GOPT: gemm.GOPT[k_] = (v_ == "1")
        elif k_ in gemm.PFOPT: gemm.PFOPT[k_] = int(v_)
        else: setattr(roles, k_, v_ == "1")
    mode = sys.argv[1]
    outp = sys.argv[2]
    if mode == "attn":
        txt = build([("attn_kernel", 256, 512, 2*attn.CH_BYTES)], [("attn_kernel", k2, attn.ATTN_NVGPR)])
    if mode == "bqkv":
        txt = build([("qkv_kernel", 256, 512, roles.BQ.lds)], [("qkv_kernel", k1, roles.BQ_NVGPR)])
    if mode == "out":
        txt = build([("proj_kernel", 256, 512, roles.OP.lds)], [("proj_kernel", k3, roles.OP_NVGPR)])
    if mode == "arole":
        WITH_A = True; WITH_B = False
        txt = build([("qkv_kernel", 256, 512, roles.BQ.lds), ("attn_kernel", 512, 512, arole.AG.lds)],
                    [("qkv_kernel", k1, roles.BQ_NVGPR), ("attn_kernel", k2, 128)])
    if mode == "full":
        attn.FUSE = False; arole.FUSE = False
        WITH_A = True; WITH_B = True
        arole.AG.lprio = int(os.environ.get('ALPRIO', '3'))
        if AMODE == 'k2': arole.AG.lprio = 0
        txt = build([("qkv_kernel", 512 if AMODE == 'k1' else 256, 512, roles.BQ.lds), ("attn_kernel", 512, 512, 2*attn.CH_BYTES if AMODE == 'k1' else arole.AG.lds), ("proj_kernel", 256, 512, roles.OP.lds)],
                    [("qkv_kernel", k1, roles.BQ_NVGPR), ("attn_kernel", k2, 128), ("proj_kernel", k3, roles.OP_NVGPR)])
    if mode == "fused":
        arole.AG.lprio = 0
        txt = build([("qkv_kernel", 256, 512, roles.BQ.lds), ("attn_kernel", 512, 512, 81920)],
                    [("qkv_kernel", k1, roles.BQ_NVGPR), ("attn_kernel", k2, 128)])
    open(outp, "w").write(txt)
```

```python
from asmlib import *
from layout import *
import roles, gemm, outp
FUSE = True
WOPF = True

CH = 8
CH_BYTES = CH * TILE_REC
NCH = 64 // CH
OPT = dict(nodma=False, nobar=False, nolds=False, prio=False, vmask=True)

V_A16 = 1
V_A8  = 2
V_G16 = 3
SA, SB = 4, 20
OA, OB = 36, 52
PA, PB = 68, 76
Q1A, Q1B = 84, 88
Q2A, Q2B = 92, 94
K1 = [96, 100]
VV0 = [104, 112]
VV1 = [108, 116]
K2 = [120, 122]
ATTN_NVGPR = 124
V_T0 = SA

S_WS = 8
S_HEAD = 12
S_QB = 13
S_WAVE = 14
S_DMAOFF = 15
S_LDSW = 16
S_BUFD = 17
S_CNT = 18
S_DMABUF = 19
S_T = 20

def mfma32(a, d, A, B, C, k16=True):
    op = "v_mfma_f32_32x32x16_bf16" if k16 else "v_mfma_f32_32x32x8_bf16"
    n = 4 if k16 else 2
    c = "0" if C is None else v(C, 16)
    a(f"{op} {v(d,16)}, {v(A,n)}, {v(B,n)}, {c}")

PENDING = []
def cvts(a, Sr, P, q):
    a(f"v_cvt_pk_bf16_f32 {v(P+2*q)}, {v(Sr+4*q)}, {v(Sr+4*q+1)}")
    a(f"v_cvt_pk_bf16_f32 {v(P+2*q+1)}, {v(Sr+4*q+2)}, {v(Sr+4*q+3)}")
def flush_cvts(a):
    while PENDING:
        cvts(a, *PENDING.pop(0))
def exps(a, Sr, P, q):
    for i in range(4):
        a(f"v_exp_f32 {v(Sr+4*q+i)}, {v(Sr+4*q+i)}")
    flush_cvts(a)
    PENDING.append((Sr, P, q))

def dma_chunk(a):
    srd = f"s[{S_WS}:{S_WS+3}]"
    a(f"s_add_u32 m0, s{S_DMABUF}, s{S_LDSW}")
    a("s_nop 0")
    for i in range(4):
        a(f"buffer_load_dwordx4 {v(V_G16)}, {srd}, s{S_DMAOFF} offen offset:{i*1024} lds")
    a(f"s_add_u32 m0, m0, 4096")
    a(f"s_add_u32 s{S_DMAOFF}, s{S_DMAOFF}, 4096")
    for i in range(3):
        a(f"buffer_load_dwordx4 {v(V_G16)}, {srd}, s{S_DMAOFF} offen offset:{i*1024} lds")
    a(f"s_add_u32 s{S_DMAOFF}, s{S_DMAOFF}, {CH_BYTES-4096}")

def gen_attn(a, dbg_time=False):
    srd = f"s[{S_WS}:{S_WS+3}]"
    if dbg_time: stamp(a, 0)
    a(f"s_load_dwordx2 s[{S_WS}:{S_WS+1}], s[0:1], {KA_WS}")
    a(f"s_and_b32 s{S_T}, s2, 7")
    a(f"s_lshr_b32 s{S_T+1}, s2, 3")
    a(f"s_and_b32 s{S_T+2}, s{S_T+1}, 3")
    a(f"s_lshl_b32 s{S_HEAD}, s{S_T}, 2")
    a(f"s_add_u32 s{S_HEAD}, s{S_HEAD}, s{S_T+2}")
    a(f"s_lshr_b32 s{S_QB}, s{S_T+1}, 2")
    a(f"v_lshrrev_b32 {v(SA)}, 6, v0")
    a(f"v_and_b32 v0, 63, v0")
    a(f"v_readfirstlane_b32 s{S_WAVE}, {v(SA)}")
    a(f"v_lshlrev_b32 {v(V_G16)}, 4, v0")
    a(f"s_mul_i32 s{S_T+6}, s{S_HEAD}, {KV_HEAD}")
    a("s_waitcnt lgkmcnt(0)")
    a(f"s_mov_b32 s{S_WS+2}, {WS_SIZE_SRD}")
    a(f"s_mov_b32 s{S_WS+3}, 0x00020000")
    a(f"s_mov_b32 s61, s{S_WAVE}")
    lcomp = a.newlabel("attn_compute")
    a(f"s_cmp_lt_u32 s{S_WAVE}, 4")
    a(f"s_cbranch_scc1 {lcomp}")
    if FUSE and WOPF:
        a(f"s_load_dwordx2 s[40:41], s[0:1], {KA_AWO}")
        a(f"s_load_dwordx2 s[42:43], s[0:1], {KA_BWO}")
        a(f"s_lshr_b32 s{S_T}, s2, 3")
        a(f"s_mul_i32 s{S_T}, s{S_T}, 200")
        a(f"s_sub_u32 s{S_T+1}, s{S_WAVE}, 4")
        a(f"s_lshl_b32 s{S_T+1}, s{S_T+1}, 6")
        a(f"s_add_u32 s{S_T}, s{S_T}, s{S_T+1}")
        a(f"v_add_u32 v4, s{S_T}, v0")
        a(f"v_lshlrev_b32 v4, 7, v4")
        a(f"s_mov_b32 s46, {640*1280}")
        a(f"s_mov_b32 s47, 0x00020000")
        a("s_waitcnt lgkmcnt(0)")
    a(f"s_sub_u32 s{S_T}, s{S_WAVE}, 4")
    a(f"s_mul_i32 s{S_LDSW}, s{S_T}, 7168")
    a(f"s_add_u32 s{S_DMAOFF}, s{S_T+6}, s{S_LDSW}")
    a(f"s_mov_b32 s{S_DMABUF}, 0")
    dma_chunk(a)
    a(f"s_mov_b32 s{S_DMABUF}, {CH_BYTES}")
    a(f"s_mov_b32 s{S_CNT}, 0")
    a("s_waitcnt vmcnt(0)")
    a("s_barrier")
    lloop = a.newlabel("ld_loop"); lskip = a.newlabel("ld_skip")
    a.label(lloop)
    a(f"s_cmp_ge_u32 s{S_CNT}, {NCH-1}")
    a(f"s_cbranch_scc1 {lskip}")
    if not OPT['nodma']:
        dma_chunk(a)
    if FUSE and WOPF:
        lsk = a.newlabel("wopf_skip")
        a(f"s_sub_u32 s{S_T+1}, s{S_CNT}, 1")
        a(f"s_cmp_gt_u32 s{S_T+1}, 1")
        a(f"s_cbranch_scc1 {lsk}")
        a(f"s_cmp_eq_u32 s{S_CNT}, 1")
        a(f"s_cselect_b32 s44, s40, s42")
        a(f"s_cselect_b32 s45, s41, s43")
        a(f"buffer_load_dword v5, v4, s[44:47], 0 offen")
        a.label(lsk)
    a(f"s_sub_u32 s{S_DMABUF}, {CH_BYTES}, s{S_DMABUF}")
    a("s_waitcnt vmcnt(0)")
    a.label(lskip)
    if not OPT['nobar']:
        a("s_barrier")
    a(f"s_add_u32 s{S_CNT}, s{S_CNT}, 1")
    a(f"s_cmp_lt_u32 s{S_CNT}, {NCH}")
    a(f"s_cbranch_scc1 {lloop}")
    if FUSE:
        lx = a.newlabel("ld_exit")
        a("s_bitcmp1_b32 s2, 3")
        a(f"s_cbranch_scc1 {lx}")
        a(f"s_and_b32 s{gemm.S_WAVE}, s{S_WAVE}, 3")
        outp.loader(a, 1)
        a.label(lx)
    a("s_endpgm")
    a.label(lcomp)
    if OPT['prio']: a("s_setprio 2")
    a(f"v_mov_b32 {v(V_A16)}, {v(V_G16)}")
    a(f"v_lshlrev_b32 {v(V_A8)}, 3, v0")
    a(f"s_lshl_b32 s{S_T}, s{S_QB}, 3")
    a(f"s_lshl_b32 s{S_T+1}, s{S_WAVE}, 1")
    a(f"s_add_u32 s{S_T}, s{S_T}, s{S_T+1}")
    a(f"s_lshl_b32 s{S_T+1}, s{S_HEAD}, 6")
    a(f"s_add_u32 s{S_T+1}, s{S_T+1}, s{S_T}")
    a(f"s_lshl_b32 s{S_T+1}, s{S_T+1}, 10")
    a(f"s_add_u32 s{S_T+1}, s{S_T+1}, {WS_Q1}")
    a(f"buffer_load_dwordx4 {v(Q1A,4)}, {v(V_G16)}, {srd}, s{S_T+1} offen")
    a(f"buffer_load_dwordx4 {v(Q1B,4)}, {v(V_G16)}, {srd}, s{S_T+1} offen offset:1024")
    a(f"s_lshr_b32 s{S_T+2}, s{S_HEAD}, 1")
    a(f"s_lshl_b32 s{S_T+2}, s{S_T+2}, 6")
    a(f"s_add_u32 s{S_T+2}, s{S_T+2}, s{S_T}")
    a(f"s_lshl_b32 s{S_T+2}, s{S_T+2}, 9")
    a(f"s_add_u32 s{S_T+2}, s{S_T+2}, {WS_Q2}")
    a(f"buffer_load_dwordx2 {v(Q2A,2)}, {v(V_A8)}, {srd}, s{S_T+2} offen")
    a(f"buffer_load_dwordx2 {v(Q2B,2)}, {v(V_A8)}, {srd}, s{S_T+2} offen offset:512")
    a(f"s_add_u32 s{S_T+3}, s{S_T+6}, {63*TILE_REC}")
    a(f"buffer_load_dwordx4 {v(K1[1],4)}, {v(V_G16)}, {srd}, s{S_T+3} offen")
    a(f"buffer_load_dwordx2 {v(K2[1],2)}, {v(V_A8)}, {srd}, s{S_T+3} offen offset:3072")
    for r in list(range(OA, OA+32)) + list(range(PB, PB+8)) + list(range(VV0[1], VV0[1]+4)) + list(range(VV1[1], VV1[1]+4)) + list(range(VV0[0], VV0[0]+4)) + list(range(VV1[0], VV1[0]+4)):
        a(f"v_mov_b32 {v(r)}, 0")
    a(f"s_and_b32 s{S_T+3}, s{S_HEAD}, 1")
    a(f"s_cmp_eq_u32 s{S_T+3}, 0")
    a(f"s_cselect_b32 s{S_T+4}, 0, -1")
    a(f"s_cselect_b32 s{S_T+5}, -1, 0")
    a(f"s_mov_b32 s{S_BUFD}, {CH_BYTES}")
    a("s_mov_b32 s34, 0x011fffff")
    a("s_mov_b32 s35, 0x011fffff")
    a("s_waitcnt vmcnt(0)")
    a(f"s_mov_b64 exec, s[{S_T+4}:{S_T+5}]")
    for r in (Q2A, Q2A+1, Q2B, Q2B+1):
        a(f"v_mov_b32 {v(r)}, 0")
    a("s_mov_b64 exec, -1")
    a("s_nop 1")
    mfma32(a, SA, K1[1], Q1A, None)
    mfma32(a, SA, K2[1], Q2A, SA, k16=False)
    a(f"s_mov_b32 s{S_CNT}, 0")
    a("s_barrier")
    def rd(txt):
        if not OPT['nolds']: a(txt)
    def reads(st, off):
        rd(f"ds_read_b128 {v(K1[st],4)}, {v(V_A16)} offset:{off}")
        rd(f"ds_read_b64 {v(K2[st],2)}, {v(V_A8)} offset:{off+3072}")
        if OPT['vmask']: a("s_mov_b64 exec, s[34:35]")
        rd(f"ds_read_b128 {v(VV0[st],4)}, {v(V_A16)} offset:{off+1024}")
        rd(f"ds_read_b128 {v(VV1[st],4)}, {v(V_A16)} offset:{off+2048}")
        if OPT['vmask']: a("s_mov_b64 exec, -1")
    reads(0, 0)
    a("s_nop 7")
    if dbg_time:
        stamp(a, 1)
        a("s_waitcnt lgkmcnt(0)")
    loop = a.newlabel("attn_loop")
    a.raw(".p2align 6")
    a.label(loop)
    def E(Sr, i): a(f"v_exp_f32 {v(Sr+i)}, {v(Sr+i)}")
    def C(Sr, P, k): a(f"v_cvt_pk_bf16_f32 {v(P+k)}, {v(Sr+2*k)}, {v(Sr+2*k+1)}")
    def phase(Sr, P, m, rds):
        m[0]()
        for r_ in rds[0:2]: rd(r_)
        for i in (0, 1, 2): E(Sr, i)
        m[1]()
        if rds and OPT['vmask']: a("s_mov_b64 exec, s[34:35]")
        for r_ in rds[2:4]: rd(r_)
        if rds and OPT['vmask']: a("s_mov_b64 exec, -1")
        for i in (3, 4, 5, 6, 7): E(Sr, i)
        for k in (0, 1, 2, 3): C(Sr, P, k)
        m[2]()
        for i in (8, 9, 10): E(Sr, i)
        m[3]()
        for i in (11, 12, 13, 14, 15): E(Sr, i)
        for k in (4, 5, 6, 7): C(Sr, P, k)
    for j in range(CH):
        p = j & 1; pn = p ^ 1
        phase(SA, PA, [lambda: mfma32(a, OB, VV0[pn], PB, OB), lambda: mfma32(a, SB, K1[pn], Q1B, None),
                       lambda: mfma32(a, SB, K2[pn], Q2B, SB, k16=False), lambda: mfma32(a, OB, VV1[pn], PB+4, OB)], [])
        if not OPT['nolds']: a("s_waitcnt lgkmcnt(0)")
        if j == CH-1:
            if not OPT['nobar']:
                a("s_barrier")
            a(f"v_add_u32 {v(V_A16)}, s{S_BUFD}, {v(V_A16)}")
            a(f"v_add_u32 {v(V_A8)}, s{S_BUFD}, {v(V_A8)}")
            a(f"s_sub_u32 s{S_BUFD}, 0, s{S_BUFD}")
            off = 0
        else:
            off = (j+1)*TILE_REC
        rds = [f"ds_read_b128 {v(K1[pn],4)}, {v(V_A16)} offset:{off}",
               f"ds_read_b64 {v(K2[pn],2)}, {v(V_A8)} offset:{off+3072}",
               f"ds_read_b128 {v(VV0[pn],4)}, {v(V_A16)} offset:{off+1024}",
               f"ds_read_b128 {v(VV1[pn],4)}, {v(V_A16)} offset:{off+2048}"]
        phase(SB, PB, [lambda: mfma32(a, OA, VV0[p], PA, OA), lambda: mfma32(a, SA, K1[p], Q1A, None),
                       lambda: mfma32(a, SA, K2[p], Q2A, SA, k16=False), lambda: mfma32(a, OA, VV1[p], PA+4, OA)], rds)
    a(f"s_add_u32 s{S_CNT}, s{S_CNT}, 1")
    a(f"s_cmp_lt_u32 s{S_CNT}, {NCH}")
    a(f"s_cbranch_scc1 {loop}")
    if dbg_time: stamp(a, 2)
    a("s_nop 1")
    mfma32(a, OB, VV0[1], PB, OB)
    mfma32(a, OB, VV1[1], PB+4, OB)
    T = 84
    a(f"v_and_b32 {v(T)}, 31, v0")
    a(f"v_lshrrev_b32 {v(T+1)}, 5, v0")
    a(f"v_cmp_eq_u32 vcc, 0, {v(T+1)}")
    if FUSE:
        a(f"s_mul_i32 s{S_T}, s{S_WAVE}, 2560")
        a(f"s_add_u32 s{S_T}, s{S_T}, 61440")
        a(f"v_mul_u32_u24 {v(T)}, 40, {v(T)}")
        a(f"v_lshl_add_u32 {v(T)}, {v(T+1)}, 3, {v(T)}")
        a(f"v_add_u32 {v(T)}, s{S_T}, {v(T)}")
        a(f"v_lshlrev_b32 {v(T+2)}, 4, v0")
        a(f"v_add_u32 {v(T+10)}, s{S_T}, {v(T+2)}")
        a(f"s_lshl_b32 s{S_T+1}, s{S_QB}, 1")
        a(f"s_lshr_b32 s{S_T+2}, s{S_WAVE}, 1")
        a(f"s_add_u32 s{S_T+1}, s{S_T+1}, s{S_T+2}")
        a(f"s_lshl_b32 s{S_T+1}, s{S_T+1}, 5")
        a(f"s_add_u32 s{S_T+1}, s{S_T+1}, s{S_HEAD}")
        a(f"s_mul_i32 s{S_T+1}, s{S_T+1}, 5120")
        a(f"s_and_b32 s{S_T+2}, s{S_WAVE}, 1")
        a(f"s_mul_i32 s{S_T+2}, s{S_T+2}, 2560")
        a(f"s_add_u32 s{S_T+2}, s{S_T+2}, s{S_T+1}")
        a(f"s_add_u32 s{S_T+2}, s{S_T+2}, {WS_OB}")
    else:
        a(f"s_lshl_b32 s{S_T}, s{S_QB}, 8")
        a(f"s_lshl_b32 s{S_T+1}, s{S_WAVE}, 6")
        a(f"s_add_u32 s{S_T}, s{S_T}, s{S_T+1}")
        a(f"v_add_u32 {v(T)}, s{S_T}, {v(T)}")
        a(f"v_mul_u32_u24 {v(T)}, 1280, {v(T)}")
        a(f"v_lshlrev_b32 {v(T+2)}, 3, {v(T+1)}")
        a(f"v_add_u32 {v(T)}, {v(T)}, {v(T+2)}")
        a(f"s_mul_i32 s{S_T+2}, s{S_HEAD}, 40")
        a(f"s_add_u32 s{S_T+2}, s{S_T+2}, {WS_OB}")
    a("s_nop 1")
    for n_, (O, extra) in enumerate(((OA, 0), (OB, 32*1280))):
        if n_ == 1:
            a("s_nop 7")
        a(f"v_cndmask_b32 {v(T+3)}, {v(O+8)}, {v(O+12)}, vcc")
        a(f"v_rcp_f32 {v(T+3)}, {v(T+3)}")
        a("s_nop 0")
        for i in range(12):
            a(f"v_mul_f32 {v(O+i)}, {v(O+i)}, {v(T+3)}")
        for i in range(6):
            a(f"v_cvt_pk_bf16_f32 {v(T+4+i)}, {v(O+2*i)}, {v(O+2*i+1)}")
        if FUSE:
            off = n_*1280
            a(f"ds_write_b64 {v(T)}, {v(T+4,2)} offset:{off}")
            a(f"ds_write_b64 {v(T)}, {v(T+6,2)} offset:{off+16}")
            a("s_mov_b32 exec_hi, 0")
            a(f"ds_write_b64 {v(T)}, {v(T+8,2)} offset:{off+32}")
            a(f"s_mov_b64 exec, -1")
        else:
            if extra:
                a(f"s_add_u32 s{S_T+2}, s{S_T+2}, {extra}")
            a(f"buffer_store_dwordx2 {v(T+4,2)}, {v(T)}, {srd}, s{S_T+2} offen")
            a(f"buffer_store_dwordx2 {v(T+6,2)}, {v(T)}, {srd}, s{S_T+2} offen offset:16")
            a("s_mov_b32 exec_hi, 0")
            a(f"buffer_store_dwordx2 {v(T+8,2)}, {v(T)}, {srd}, s{S_T+2} offen offset:32")
            a(f"s_mov_b64 exec, -1")
    if FUSE:
        a("s_waitcnt lgkmcnt(0)")
        a(f"ds_read_b128 {v(4,4)}, {v(T+10)}")
        a(f"ds_read_b128 {v(8,4)}, {v(T+10)} offset:1024")
        a(f"ds_read_b128 {v(12,4)}, {v(T+10)} offset:2048")
        a("s_waitcnt lgkmcnt(0)")
        a(f"buffer_store_dwordx4 {v(4,4)}, {v(T+2)}, {srd}, s{S_T+2} offen sc1")
        a(f"buffer_store_dwordx4 {v(8,4)}, {v(T+2)}, {srd}, s{S_T+2} offen offset:1024 sc1")
        a("s_mov_b32 exec_hi, 0")
        a(f"buffer_store_dwordx4 {v(12,4)}, {v(T+2)}, {srd}, s{S_T+2} offen offset:2048 sc1")
        a(f"s_mov_b64 exec, -1")
    if FUSE:
        if dbg_time: a("s_memtime s[76:77]")
        a("s_waitcnt vmcnt(0) lgkmcnt(0)")
        a("s_barrier")
        lnf = a.newlabel("att_noflag")
        a(f"s_cmp_lg_u32 s{S_WAVE}, 0")
        a(f"s_cbranch_scc1 {lnf}")
        a(f"s_lshl_b32 s{S_T}, s{S_QB}, 7")
        a(f"s_add_u32 s{S_T}, s{S_T}, {WS_FLAGB}")
        a(f"s_lshl_b32 s{S_T+1}, s{S_HEAD}, 2")
        a(f"v_mov_b32 {v(T)}, s{S_T+1}")
        a(f"v_mov_b32 {v(T+1)}, 1")
        a("s_mov_b64 exec, 1")
        a(f"buffer_store_dword {v(T+1)}, {v(T)}, {srd}, s{S_T} offen sc1")
        a("s_mov_b64 exec, -1")
        a.label(lnf)
        lx = a.newlabel("att_exit")
        a("s_bitcmp1_b32 s2, 3")
        a(f"s_cbranch_scc1 {lx}")
        a(f"s_mov_b32 s60, s{S_WAVE}")
        a(f"s_mov_b32 s{gemm.S_WAVE}, s60")
        a("s_setprio 0")
        outp.scalars(a, 1)
        if dbg_time: a("s_memtime s[78:79]")
        outp.compute(a, dbg_time)
        a.label(lx)
        if dbg_time: a(f"s_mov_b32 s{S_WAVE}, s60") if False else None
    if dbg_time:
        a("s_waitcnt vmcnt(0)")
        stamp_end(a, WS_DBG, KA_WS, 61)
    a("s_endpgm")
```

```python
from asmlib import *
from layout import *
from gemm import *
from roles import f32hex, srd, srd_fin, wave_lane, split_roles
import roles, outp
FUSE = True

APRIO = 2
import os
PACED = os.environ.get('PACED', '1') == '1'
AGP = int(os.environ.get('AGP', '0'))
APF = os.environ.get('APF', '0') == '1'
AG = G(NC=128, wstride=3840, acc0=64, vbase=1)
A_NVGPR = 128
LOG2E = 1.4426950408889634
S_PH = 44
S_DB = 48
S_L = 52
S_NL = 53
WPE1, WPO1, WPE2, WPO2 = 52, 56, 60, 62

def halves_reduce(a, x, t, op):
    a(f"v_mov_b32 {v(t)}, {v(x)}")
    a("s_nop 1")
    a(f"v_permlane32_swap_b32 {v(x)}, {v(t)}")
    a("s_nop 1")
    a(f"{op} {v(x)}, {v(x)}, {v(t)}")

def feature_task(a, B1, B2, WP1, WP2, D, E, T, POS, NEG):
    a(f"v_mfma_f32_32x32x16_bf16 {v(D,16)}, {v(WP1,4)}, {v(B1,4)}, 0")
    a(f"v_mfma_f32_32x32x8_bf16 {v(D,16)}, {v(WP2,2)}, {v(B2,2)}, {v(D,16)}")
    a("s_nop 7")
    a("s_nop 4")
    MX, MN, TT, TU, SP, SN = T, T+1, T+2, T+3, T+4, T+6
    x = [D+i for i in range(10)]
    a(f"v_max3_f32 {v(MX)}, {v(x[0])}, {v(x[1])}, {v(x[2])}")
    a(f"v_min3_f32 {v(MN)}, {v(x[0])}, {v(x[1])}, {v(x[2])}")
    for i in (3, 5, 7):
        a(f"v_max3_f32 {v(MX)}, {v(MX)}, {v(x[i])}, {v(x[i+1])}")
        a(f"v_min3_f32 {v(MN)}, {v(MN)}, {v(x[i])}, {v(x[i+1])}")
    a(f"v_max_f32 {v(MX)}, {v(MX)}, {v(x[9])}")
    a(f"v_min_f32 {v(MN)}, {v(MN)}, {v(x[9])}")
    a(f"v_mov_b32 {v(TT)}, {v(MX)}")
    a(f"v_mov_b32 {v(TU)}, {v(MN)}")
    a("s_nop 1")
    a(f"v_permlane32_swap_b32 {v(MX)}, {v(TT)}")
    a(f"v_permlane32_swap_b32 {v(MN)}, {v(TU)}")
    a("s_nop 1")
    a(f"v_max_f32 {v(MX)}, {v(MX)}, {v(TT)}")
    a(f"v_min_f32 {v(MN)}, {v(MN)}, {v(TU)}")
    a(f"v_mul_f32 {v(MX)}, s{S_NL}, {v(MX)}")
    a(f"v_mul_f32 {v(MN)}, s{S_L}, {v(MN)}")
    e = [E+i for i in range(10)]
    for i in range(0, 10, 2):
        a(f"v_pk_fma_f32 {v(e[i],2)}, {v(x[i],2)}, s[86:87], {v(MX,2)} op_sel:[0,0,1] op_sel_hi:[1,1,1]")
        a(f"v_pk_fma_f32 {v(x[i],2)}, {v(x[i],2)}, s[100:101], {v(MX,2)} op_sel:[0,0,0] op_sel_hi:[1,1,0]")
    for i in range(10):
        a(f"v_exp_f32 {v(x[i])}, {v(x[i])}")
        a(f"v_exp_f32 {v(e[i])}, {v(e[i])}")
    a("s_nop 0")
    a(f"v_pk_add_f32 {v(SP,2)}, {v(x[0],2)}, {v(x[2],2)}")
    a(f"v_pk_add_f32 {v(SN,2)}, {v(e[0],2)}, {v(e[2],2)}")
    for i in (4, 6, 8):
        a(f"v_pk_add_f32 {v(SP,2)}, {v(SP,2)}, {v(x[i],2)}")
        a(f"v_pk_add_f32 {v(SN,2)}, {v(SN,2)}, {v(e[i],2)}")
    a(f"v_add_f32 {v(SP)}, {v(SP)}, {v(SP+1)}")
    a(f"v_add_f32 {v(SN)}, {v(SN)}, {v(SN+1)}")
    a(f"v_mov_b32 {v(TT)}, {v(SP)}")
    a(f"v_mov_b32 {v(TU)}, {v(SN)}")
    a("s_nop 1")
    a(f"v_permlane32_swap_b32 {v(SP)}, {v(TT)}")
    a(f"v_permlane32_swap_b32 {v(SN)}, {v(TU)}")
    a("s_nop 1")
    a(f"v_add_f32 {v(SP)}, {v(SP)}, {v(TT)}")
    a(f"v_add_f32 {v(SN)}, {v(SN)}, {v(TU)}")
    a(f"v_rcp_f32 {v(SP)}, {v(SP)}")
    a(f"v_rcp_f32 {v(SN)}, {v(SN)}")
    a("s_nop 0")
    for i in range(0, 10, 2):
        a(f"v_pk_mul_f32 {v(x[i],2)}, {v(x[i],2)}, {v(SP,2)} op_sel:[0,0] op_sel_hi:[1,0]")
        a(f"v_pk_mul_f32 {v(e[i],2)}, {v(e[i],2)}, {v(SN,2)} op_sel:[0,0] op_sel_hi:[1,0]")
    for i in range(5):
        a(f"v_cvt_pk_bf16_f32 {v(POS+i)}, {v(x[2*i])}, {v(x[2*i+1])}")
        a(f"v_cvt_pk_bf16_f32 {v(NEG+i)}, {v(e[2*i])}, {v(e[2*i+1])}")

def role_a(a, dbg=False, mode='k1'):
    g = AG
    SC = ' sc1' if mode == 'k2' else ''
    VT = 44
    if dbg: stamp(a, 0)
    srd(a, S_X, KA_AX, 0); srd(a, S_W, KA_AWQKV, 0); srd(a, S_O, KA_WS, 0); srd(a, S_PH, KA_AWPHI, 0);
    wave_lane(a, 3)
    a(f"s_and_b32 s{S_T}, s2, 7")
    a(f"s_lshr_b32 s{S_T+1}, s2, 3")
    a(f"s_lshr_b32 s{S_T+2}, s{S_T}, 1")
    a(f"s_lshl_b32 s{S_RB}, s{S_T+2}, 2")
    a(f"s_lshr_b32 s{S_T+2}, s{S_T+1}, 3")
    a(f"s_add_u32 s{S_RB}, s{S_RB}, s{S_T+2}")
    a(f"s_and_b32 s{S_CB}, s{S_T}, 1")
    a(f"s_lshl_b32 s{S_CB}, s{S_CB}, 3")
    a(f"s_and_b32 s{S_T+2}, s{S_T+1}, 7")
    a(f"s_add_u32 s{S_CB}, s{S_CB}, s{S_T+2}")
    a(f"s_mul_i32 s{S_XOFF}, s{S_RB}, {128*1280}")
    a(f"s_mul_i32 s{S_WOFF}, s{S_CB}, 80")
    a(f"s_mov_b32 s{S_L}, {f32hex(LOG2E)}")
    a(f"s_mov_b32 s{S_NL}, {f32hex(-LOG2E)}")
    a(f"s_mov_b32 s100, {f32hex(LOG2E)}"); a(f"s_mov_b32 s101, {f32hex(LOG2E)}")
    a(f"s_mov_b32 s86, {f32hex(-LOG2E)}"); a(f"s_mov_b32 s87, {f32hex(-LOG2E)}")
    a("s_waitcnt lgkmcnt(0)")
    srd_fin(a, S_X, 2048*1280); srd_fin(a, S_W, 640*3840); srd_fin(a, S_O, WS_SIZE_SRD)
    srd_fin(a, S_PH, 25600)
    a(f"s_and_b32 s{S_T+8}, s{S_RB}, 3")
    a(f"s_mul_i32 s{S_T+8}, s{S_T+8}, 10")
    a(f"s_and_b32 s{S_T+9}, s{S_CB}, 7")
    a(f"s_mul_i32 s{S_T+9}, s{S_T+9}, 5")
    a(f"s_add_u32 s{S_T+8}, s{S_T+8}, s{S_T+9}")
    a(f"s_lshr_b32 s{S_T+8}, s{S_T+8}, 1")
    a(f"s_cmp_ge_u32 s{S_T+8}, 20")
    a(f"s_cselect_b32 s{S_T+9}, 20, 0")
    a(f"s_sub_u32 s59, s{S_T+8}, s{S_T+9}")
    if MEGA[0]:
        lc = a.newlabel("a0_comp"); lb = a.newlabel("a0_bar")
        a(f"s_cmp_eq_u32 s{S_T+14}, 0")
        a(f"s_cbranch_scc1 {lb}")
        a(f"s_cmp_lg_u32 s{S_WAVE}, 0")
        a(f"s_cbranch_scc1 {lb}")
        tag_fetch(a, KA_DBG, 3, 4)
        a(f"s_lshr_b32 s{S_T}, s2, 3")
        a(f"s_cmp_ge_u32 s{S_T}, 15")
        a(f"s_cselect_b32 s{S_T+1}, 15, 0")
        a(f"s_sub_u32 s{S_T}, s{S_T}, s{S_T+1}")
        a(f"s_cmp_ge_u32 s{S_T}, 15")
        a(f"s_cselect_b32 s{S_T+1}, 15, 0")
        a(f"s_sub_u32 s{S_T}, s{S_T}, s{S_T+1}")
        a(f"s_lshl_b32 s{S_T}, s{S_T}, 7")
        a(f"s_add_u32 s{S_T}, s{S_T}, {WS_FLAGQ}")
        a("s_mov_b64 exec, 0xffff")
        a(f"v_lshlrev_b32 v3, 2, v0")
        a(f"s_mov_b32 s{S_T+1}, 0")
        lp = a.newlabel("a0_poll"); lpd = a.newlabel("a0_done")
        a.label(lp)
        a(f"buffer_load_dword v4, v3, s[{S_O}:{S_O+3}], s{S_T} offen sc1")
        a("s_waitcnt vmcnt(0)")
        a(f"v_cmp_eq_u32 vcc, s98, v4")
        a(f"s_add_u32 s{S_T+1}, s{S_T+1}, 1")
        a("s_nop 1")
        a(f"s_cmp_eq_u32 vcc_lo, 0xffff")
        a(f"s_cbranch_scc1 {lpd}")
        a("s_sleep 16")
        a(f"s_cmp_lt_u32 s{S_T+1}, 0x10000")
        a(f"s_cbranch_scc1 {lp}")
        a.label(lpd)
        a("s_mov_b64 exec, -1")
        a(f"v_mov_b32 v3, 32768")
        a(f"v_mov_b32 v4, s98")
        a("ds_write_b32 v3, v4")
        a("s_waitcnt lgkmcnt(0)")
        a.label(lb)
        a("s_barrier")
        lnr = a.newlabel("a0_noread")
        a(f"s_cmp_lg_u32 s{S_T+14}, 0")
        a(f"s_cbranch_scc1 {lnr}")
        a(f"v_mov_b32 v3, 32768")
        a("ds_read_b32 v4, v3")
        a("s_waitcnt lgkmcnt(0)")
        a("v_readfirstlane_b32 s98, v4")
        a.label(lnr)
    else:
        a("s_mov_b32 s98, 1")
    def a_loader_tail():
        if mode != 'k2' or not FUSE: return
        lx = a.newlabel("ald_exit")
        a("s_bitcmp0_b32 s2, 3")
        a(f"s_cbranch_scc1 {lx}")
        for i in range(5): a("s_barrier")
        outp.loader(a, 0)
        a.label(lx)
    split_roles(a, g, 'qkv', tail=a_loader_tail)
    if mode == 'k1' and APRIO: a(f"s_setprio {APRIO}")
    if mode == 'k2' and AGP: a(f"s_setprio {AGP}")
    if APF and mode == 'k2':
        a(f"s_lshr_b32 s{S_T}, s2, 3")
        a(f"s_mul_i32 s{S_T+1}, s{S_T}, 300")
        a(f"s_lshl_b32 s{S_T+2}, s{S_WAVE}, 6")
        a(f"s_add_u32 s{S_T+1}, s{S_T+1}, s{S_T+2}")
        a(f"s_and_b32 s{S_T+3}, s2, 1")
        a(f"s_mul_i32 s{S_T+3}, s{S_T+3}, 640")
        def wline(extra):
            a(f"v_add_u32 v64, s{S_T+1}, v0")
            if extra: a(f"v_add_u32 v64, {extra}, v64")
            a(f"v_mul_u32_u24 v65, 34953, v64")
            a(f"v_lshrrev_b32 v65, 19, v65")
            a(f"v_mul_u32_u24 v66, 15, v65")
            a(f"v_sub_u32 v66, v64, v66")
            a(f"v_mul_u32_u24 v67, 52, v66")
            a(f"v_lshrrev_b32 v67, 8, v67")
            a(f"v_mul_u32_u24 v68, 5, v67")
            a(f"v_sub_u32 v66, v66, v68")
            a(f"v_mul_u32_u24 v65, 3840, v65")
            a(f"v_mul_u32_u24 v67, 1280, v67")
            a(f"v_lshlrev_b32 v66, 7, v66")
            a(f"v_add3_u32 v65, v65, v67, v66")
        wline(0)
        a(f"buffer_load_dword v69, v65, s[{S_W}:{S_W+3}], s{S_T+3} offen")
        l1 = a.newlabel("apf_x"); l2 = a.newlabel("apf_d")
        a(f"s_cmp_lg_u32 s{S_WAVE}, 0")
        a(f"s_cbranch_scc1 {l1}")
        wline(256)
        a(f"buffer_load_dword v70, v65, s[{S_W}:{S_W+3}], s{S_T+3} offen")
        a(f"s_branch {l2}")
        a.label(l1)
        a(f"s_mul_i32 s{S_T+1}, s{S_T}, 160")
        a(f"s_add_u32 s{S_T+1}, s{S_T+1}, s{S_T+2}")
        a(f"s_sub_u32 s{S_T+1}, s{S_T+1}, 64")
        a(f"v_add_u32 v64, s{S_T+1}, v0")
        a(f"v_lshlrev_b32 v64, 7, v64")
        a(f"s_and_b32 s{S_T+1}, s{S_RB}, 12")
        a(f"s_mul_i32 s{S_T+1}, s{S_T+1}, {128*1280}")
        a(f"buffer_load_dword v70, v64, s[{S_X}:{S_X+3}], s{S_T+1} offen")
        a.label(l2)
    t0, t1, t2, t3 = 12, 13, 14, 15
    sph = f"s[{S_PH}:{S_PH+3}]"
    a(f"v_and_b32 {v(t0)}, 31, v0")
    a(f"v_lshrrev_b32 {v(t1)}, 5, v0")
    a(f"v_subrev_u32 {v(t2)}, 2, {v(t0)}")
    a(f"v_cmp_le_u32 vcc, 20, {v(t0)}")
    a("s_nop 1")
    a(f"v_cndmask_b32 {v(t2)}, {v(t0)}, {v(t2)}, vcc")
    a(f"v_lshlrev_b32 {v(t2)}, 1, {v(t2)}")
    a(f"v_and_b32 {v(t3)}, 30, {v(t0)}")
    a(f"v_cmp_eq_u32 vcc, 18, {v(t3)}")
    a(f"v_cmp_le_u32 s[{S_T+2-1}:{S_T+2}], 22, {v(t0)}") if (S_T+1) % 2 == 0 else a(f"v_cmp_le_u32 s[{S_T+3}:{S_T+4}], 22, {v(t0)}")
    PAIR = (S_T+1) if (S_T+1) % 2 == 0 else (S_T+3)
    a("s_nop 1")
    a(f"s_or_b64 vcc, vcc, s[{PAIR}:{PAIR+1}]")
    a(f"v_mov_b32 {v(t3)}, 0x20000")
    a("s_nop 1")
    a(f"v_cndmask_b32 {v(t2)}, {v(t2)}, {v(t3)}, vcc")
    a(f"v_mul_u32_u24 {v(t3)}, 160, {v(t1)}")
    a(f"v_add_u32 {v(t0)}, {v(t2)}, {v(t3)}")
    a(f"s_mul_i32 s{S_T}, s{S_CB}, 1600")
    TMP = 64
    n_ = 0
    packs = []
    for (reg, hoff, dadd) in ((WPE1, 0, 0), (WPO1, 800, 4)):
        for j in range(8):
            d = dadd + (j if j < 4 else j + 4)
            a(f"buffer_load_ushort {v(TMP+n_)}, {v(t0)}, {sph}, s{S_T} offen offset:{hoff + d*40}")
            if j & 1: packs.append((reg + j//2, TMP+n_-1, TMP+n_))
            n_ += 1
    a(f"v_cmp_eq_u32 vcc, 0, {v(t1)}")
    a(f"v_mov_b32 {v(t3)}, 0x20000")
    a("s_nop 0")
    a(f"v_cndmask_b32 {v(t0)}, {v(t3)}, {v(t2)}, vcc")
    a(f"v_cndmask_b32 {v(t1)}, {v(t2)}, {v(t3)}, vcc")
    for (reg, va, base) in ((WPE2, t0, 16*40), (WPO2, t1, 800)):
        for j in range(4):
            a(f"buffer_load_ushort {v(TMP+n_)}, {v(va)}, {sph}, s{S_T} offen offset:{base + j*40}")
            if j & 1: packs.append((reg + j//2, TMP+n_-1, TMP+n_))
            n_ += 1
    a("s_waitcnt vmcnt(0)")
    for (dst, lo, hi) in packs:
        a(f"v_lshl_or_b32 {v(dst)}, {v(hi)}, 16, {v(lo)}")
    compute_addrs(a, g, 12)
    if os.environ.get('PACE2') and mode == 'k2': compute_loop_paced2(a, g, ['FT']*4, int(os.environ['PACE2']))
    elif PACED and mode == 'k2': compute_loop_paced(a, g, ['FT']*4)
    else: compute_loop(a, g, ['FT']*4)
    if dbg: a('s_memtime s[72:73]')
    if mode == 'k2': a(f"s_setprio {os.environ.get('AEP', '3')}")
    PG = 4
    a("s_nop 7")
    a("s_nop 3")
    for Gc in range(15):
        R = g.acc + 16*(Gc//4) + 4*(Gc % 4)
        a(f"v_cvt_pk_bf16_f32 {v(PG+2*Gc)}, {v(R)}, {v(R+1)}")
        a(f"v_cvt_pk_bf16_f32 {v(PG+2*Gc+1)}, {v(R+2)}, {v(R+3)}")
    a("s_barrier")
    D, E, T = 64, 80, 92
    POS, NEG = 100, 106
    VA_, VS_, VH_ = 34, 35, 36
    a(f"v_and_b32 {v(VA_)}, 31, v0")
    a(f"s_lshl_b32 s{S_T}, s{S_WAVE}, 5")
    a(f"v_add_u32 {v(VA_)}, s{S_T}, {v(VA_)}")
    a(f"v_bfe_u32 {v(VS_)}, {v(VA_)}, 1, 3")
    a(f"v_lshlrev_b32 {v(VA_)}, 6, {v(VA_)}")
    a(f"v_lshrrev_b32 {v(VH_)}, 5, v0")
    def piece_addr(dst, pc_lo, pc_hi, extra_lo=0, extra_hi=0):
        if pc_hi - pc_lo == 1 and extra_hi == extra_lo:
            a(f"v_add_u32 {v(dst)}, {pc_lo}, {v(VH_)}")
            a(f"v_xor_b32 {v(dst)}, {v(dst)}, {v(VS_)}")
            a(f"v_lshl_add_u32 {v(dst)}, {v(dst)}, 3, {v(VA_)}")
            if extra_lo: a(f"v_add_u32 {v(dst)}, {extra_lo}, {v(dst)}")
        else:
            a(f"v_mul_i32_i24 {v(dst)}, {pc_hi-pc_lo}, {v(VH_)}")
            a(f"v_add_u32 {v(dst)}, {pc_lo}, {v(dst)}")
            a(f"v_xor_b32 {v(dst)}, {v(dst)}, {v(VS_)}")
            a(f"v_lshl_add_u32 {v(dst)}, {v(dst)}, 3, {v(VA_)}")
            a(f"v_mul_i32_i24 {v(37)}, {extra_hi-extra_lo}, {v(VH_)}")
            a(f"v_add_u32 {v(dst)}, {v(dst)}, {v(37)}")
            if extra_lo: a(f"v_add_u32 {v(dst)}, {extra_lo}, {v(dst)}")
    PHI_OFF = 0
    VP_OFF = 32768
    A01, A23, A4 = 38, 39, 40
    piece_addr(A01, 0, 1)
    piece_addr(A23, 2, 3)
    piece_addr(A4, 4, 4, 0, 4)
    for hd, (B1, B2, W1, W2) in enumerate(((PG+10, PG+14, WPE1, WPE2), (PG+16, PG+14, WPO1, WPO2))):
        feature_task(a, B1, B2, W1, W2, D, E, T, POS, NEG)
        for pn, P_ in enumerate((POS, NEG)):
            off = PHI_OFF + (hd*2 + pn)*8192
            a(f"ds_write_b64 {v(A01)}, {v(P_,2)} offset:{off}")
            a(f"ds_write_b64 {v(A23)}, {v(P_+2,2)} offset:{off}")
            a(f"ds_write_b32 {v(A4)}, {v(P_+4)} offset:{off}")
    AV = 41
    vmap = [((0, 0), (0, 1)), ((0, 2), (0, 3)), ((0, 4), (1, 0)), ((1, 1), (1, 2)), ((1, 3), (1, 4))]
    for Gv in range(5):
        (h0, p0), (h1, p1) = vmap[Gv]
        piece_addr(AV, p0, p1, h0*8192, h1*8192)
        a(f"ds_write_b64 {v(AV)}, {v(PG+2*(10+Gv),2)} offset:{VP_OFF}")
    piece_addr(AV, 5, 5, 0, 8192)
    a(f"v_mov_b32 {v(T)}, 0x3f80")
    a(f"v_mov_b32 {v(T+1)}, 0")
    a(f"ds_write_b64 {v(AV)}, {v(T,2)} offset:{VP_OFF}")
    a("s_waitcnt lgkmcnt(0)")
    a("s_barrier")
    R0, R1 = 38, 39
    a(f"v_bfe_u32 {v(T)}, v0, 2, 2")
    a(f"v_lshrrev_b32 {v(T+1)}, 5, v0")
    a(f"v_lshlrev_b32 {v(T+2)}, 3, {v(T+1)}")
    a(f"v_add_u32 {v(T+2)}, {v(T+2)}, {v(T)}")
    a(f"v_lshlrev_b32 {v(T+2)}, 6, {v(T+2)}")
    a(f"v_bfe_u32 {v(T+3)}, v0, 4, 1")
    a(f"v_lshlrev_b32 {v(T+3)}, 2, {v(T+3)}")
    a(f"v_and_b32 {v(T+4)}, 3, v0")
    a(f"v_add_u32 {v(T+3)}, {v(T+3)}, {v(T+4)}")
    a(f"v_lshlrev_b32 {v(T+4)}, 2, {v(T+1)}")
    a(f"v_lshrrev_b32 {v(T+5)}, 1, {v(T)}")
    a(f"v_add_u32 {v(T+4)}, {v(T+4)}, {v(T+5)}")
    a(f"v_xor_b32 {v(T+5)}, {v(T+3)}, {v(T+4)}")
    a(f"v_lshl_add_u32 {v(R0)}, {v(T+5)}, 3, {v(T+2)}")
    a(f"v_add_u32 {v(T+4)}, 2, {v(T+4)}")
    a(f"v_xor_b32 {v(T+5)}, {v(T+3)}, {v(T+4)}")
    a(f"v_lshl_add_u32 {v(R1)}, {v(T+5)}, 3, {v(T+2)}")
    a(f"v_add_u32 {v(R1)}, 256, {v(R1)}")
    a(f"s_and_b32 s{S_T}, s{S_WAVE}, 1")
    a(f"s_lshr_b32 s{S_T+1}, s{S_WAVE}, 1")
    a(f"s_lshl_b32 s{S_T+2}, s{S_T}, 1")
    a(f"s_add_u32 s{S_T+2}, s{S_T+2}, s{S_T+1}")
    a(f"s_lshl_b32 s{S_T+2}, s{S_T+2}, 13")
    a(f"s_lshl_b32 s{S_T+3}, s{S_T}, 13")
    a(f"s_add_u32 s{S_T+3}, s{S_T+3}, {VP_OFF}")
    PA0, PA1, VB0, VB1 = 40, 41, 42, 43
    a(f"v_add_u32 {v(PA0)}, s{S_T+2}, {v(R0)}")
    a(f"v_add_u32 {v(PA1)}, s{S_T+2}, {v(R1)}")
    a(f"v_add_u32 {v(VB0)}, s{S_T+3}, {v(R0)}")
    a(f"v_add_u32 {v(VB1)}, s{S_T+3}, {v(R1)}")
    FA, FB = 80, 112
    for half in range(2):
        for ks in range(4):
            k_ = half*4 + ks
            a(f"ds_read_b64_tr_b16 {v(80+8*ks,2)}, {v(VB0)} offset:{k_*1024}")
            a(f"ds_read_b64_tr_b16 {v(80+8*ks+2,2)}, {v(VB1)} offset:{k_*1024}")
            a(f"ds_read_b64_tr_b16 {v(80+8*ks+4,2)}, {v(PA0)} offset:{k_*1024}")
            a(f"ds_read_b64_tr_b16 {v(80+8*ks+6,2)}, {v(PA1)} offset:{k_*1024}")
        for ks in range(4):
            a(f"s_waitcnt lgkmcnt({4*(3-ks)})")
            c = "0" if (half == 0 and ks == 0) else v(D,16)
            a(f"v_mfma_f32_32x32x16_bf16 {v(D,16)}, {v(80+8*ks+4,4)}, {v(80+8*ks,4)}, {c}")
    so = f"s[{S_O}:{S_O+3}]"
    a(f"v_and_b32 {v(T)}, 31, v0")
    a(f"v_lshrrev_b32 {v(T+1)}, 5, v0")
    a(f"v_mul_u32_u24 {v(T+2)}, 80, {v(T)}")
    a(f"v_lshl_add_u32 {v(T+2)}, {v(T+1)}, 4, {v(T+2)}")
    a(f"s_lshl_b32 s{S_T+2}, s{S_CB}, 1")
    a(f"s_add_u32 s{S_T+2}, s{S_T+2}, s{S_T}")
    a(f"s_lshl_b32 s{S_T+2}, s{S_T+2}, 1")
    a(f"s_add_u32 s{S_T+2}, s{S_T+2}, s{S_T+1}")
    a(f"s_lshl_b32 s{S_T+3}, s{S_RB}, 6")
    a(f"s_add_u32 s{S_T+2}, s{S_T+2}, s{S_T+3}")
    a(f"s_mul_i32 s{S_T+2}, s{S_T+2}, {KVS_REC}")
    a(f"s_add_u32 s{S_T+2}, s{S_T+2}, {WS_KVP}")
    a(f"v_cmp_ge_u32 vcc, 20, {v(T)}")
    a("s_nop 4")
    a("s_and_b64 exec, exec, vcc")
    a(f"buffer_store_dwordx4 {v(D,4)}, {v(T+2)}, {so}, s{S_T+2} offen{SC}")
    a(f"buffer_store_dwordx4 {v(D+4,4)}, {v(T+2)}, {so}, s{S_T+2} offen offset:32{SC}")
    a("s_mov_b32 exec_hi, 0")
    a(f"buffer_store_dwordx4 {v(D+8,4)}, {v(T+2)}, {so}, s{S_T+2} offen offset:64{SC}")
    a("s_mov_b64 exec, -1")
    D2 = 112
    QP = [[100, 106], [14, 20]]
    for hd, (B1, B2, W1, W2) in enumerate(((PG+0, PG+4, WPE1, WPE2), (PG+6, PG+4, WPO1, WPO2))):
        feature_task(a, B1, B2, W1, W2, D2, E, T, QP[hd][0], QP[hd][1])
        P_, N_ = QP[hd]
        if mode == 'k2':
            a(f"v_mov_b32 {v(P_+5)}, 0")
            a(f"v_mov_b32 {v(N_+5)}, 0")
            continue
        if hd == 0:
            a(f"s_lshl_b32 s{S_T}, s{S_RB}, 2")
            a(f"s_add_u32 s{S_T}, s{S_T}, s{S_WAVE}")
            a(f"s_lshl_b32 s{S_T}, s{S_T}, 5")
            a(f"s_lshl_b32 s{S_T+1}, s{S_CB}, 1")
            a(f"s_add_u32 s{S_T}, s{S_T}, s{S_T+1}")
            a(f"s_mul_i32 s{S_T}, s{S_T}, 2560")
            a(f"s_add_u32 s{S_T}, s{S_T}, {WS_PHQ}")
            a(f"v_lshlrev_b32 {v(44)}, 4, v0")
            a(f"v_lshlrev_b32 {v(45)}, 3, v0")
        else:
            a(f"s_add_u32 s{S_T}, s{S_T}, 2560")
        a(f"v_mov_b32 {v(P_+5)}, {v(N_+4)}")
        a(f"buffer_store_dwordx4 {v(P_,4)}, {v(44)}, {so}, s{S_T} offen")
        a(f"buffer_store_dwordx4 {v(N_,4)}, {v(44)}, {so}, s{S_T} offen offset:1024")
        a(f"buffer_store_dwordx2 {v(P_+4,2)}, {v(45)}, {so}, s{S_T} offen offset:2048")
    if mode == 'k2':
        if dbg: a('s_memtime s[74:75]')
        a("s_waitcnt vmcnt(0)")
        a("s_barrier")
        lw = a.newlabel("a_wait_done")
        a(f"s_cmp_lg_u32 s{S_WAVE}, 0")
        a(f"s_cbranch_scc1 {lw}")
        a(f"s_lshl_b32 s{S_T}, s{S_CB}, 7")
        a(f"s_add_u32 s{S_T}, s{S_T}, {WS_FLAG}")
        a(f"s_lshl_b32 s{S_T+3}, s{S_RB}, 2")
        a(f"v_mov_b32 {v(T)}, s{S_T+3}")
        a(f"v_mov_b32 {v(T+1)}, s98")
        a("s_mov_b64 exec, 1")
        a(f"buffer_store_dword {v(T+1)}, {v(T)}, {so}, s{S_T} offen sc1")
        a("s_mov_b64 exec, 0xffff")
        a(f"v_lshlrev_b32 {v(T)}, 2, v0")
        a(f"s_mov_b32 s{S_T+1}, 0")
        lp = a.newlabel("a_poll")
        a.label(lp)
        a(f"buffer_load_dword {v(T+2)}, {v(T)}, {so}, s{S_T} offen sc1")
        a("s_waitcnt vmcnt(0)")
        a(f"v_cmp_eq_u32 vcc, s98, {v(T+2)}")
        a(f"s_add_u32 s{S_T+1}, s{S_T+1}, 1")
        a("s_nop 1")
        a(f"s_cmp_eq_u32 vcc_lo, 0xffff")
        lpd = a.newlabel("a_poll_done")
        a(f"s_cbranch_scc1 {lpd}")
        a("s_sleep 8")
        a(f"s_cmp_lt_u32 s{S_T+1}, 0x40000")
        a(f"s_cbranch_scc1 {lp}")
        a.label(lpd)
        a("s_mov_b64 exec, -1")
        a.label(lw)
        a("s_barrier")
        if dbg: a('s_memtime s[76:77]')
        back_part(a, dbg, sc=' sc1', fix_p4=False)
        return
    if dbg:
        a('s_memtime s[74:75]')
        a("s_waitcnt vmcnt(0)")
        a('s_memtime s[76:77]')
        stamp_end(a, WS_DBG + 256*512, KA_WS, S_WAVE, idsgpr="s2")
    a("s_endpgm")

def role_a2(a, dbg=False):
    T = 92
    QP = [[100, 106], [14, 20]]
    if dbg: stamp(a, 0)
    srd(a, S_O, KA_WS, 0)
    wave_lane(a, 3)
    a(f"s_cmp_lg_u32 s{S_T+14}, 0")
    lq = a.newlabel("a2_go")
    a(f"s_cbranch_scc0 {lq}")
    a("s_endpgm")
    a.label(lq)
    a(f"s_and_b32 s{S_T}, s2, 7")
    a(f"s_lshr_b32 s{S_T+1}, s2, 3")
    a(f"s_lshr_b32 s{S_T+2}, s{S_T}, 1")
    a(f"s_lshl_b32 s{S_RB}, s{S_T+2}, 2")
    a(f"s_lshr_b32 s{S_T+2}, s{S_T+1}, 3")
    a(f"s_add_u32 s{S_RB}, s{S_RB}, s{S_T+2}")
    a(f"s_and_b32 s{S_CB}, s{S_T}, 1")
    a(f"s_lshl_b32 s{S_CB}, s{S_CB}, 3")
    a(f"s_and_b32 s{S_T+2}, s{S_T+1}, 7")
    a(f"s_add_u32 s{S_CB}, s{S_CB}, s{S_T+2}")
    a("s_waitcnt lgkmcnt(0)")
    srd_fin(a, S_O, WS_SIZE_SRD)
    so = f"s[{S_O}:{S_O+3}]"
    a(f"s_lshl_b32 s{S_T}, s{S_RB}, 2")
    a(f"s_add_u32 s{S_T}, s{S_T}, s{S_WAVE}")
    a(f"s_lshl_b32 s{S_T}, s{S_T}, 5")
    a(f"s_lshl_b32 s{S_T+1}, s{S_CB}, 1")
    a(f"s_add_u32 s{S_T}, s{S_T}, s{S_T+1}")
    a(f"s_mul_i32 s{S_T}, s{S_T}, 2560")
    a(f"s_add_u32 s{S_T}, s{S_T}, {WS_PHQ}")
    a(f"v_lshlrev_b32 {v(44)}, 4, v0")
    a(f"v_lshlrev_b32 {v(45)}, 3, v0")
    for hd in range(2):
        P_, N_ = QP[hd]
        a(f"buffer_load_dwordx4 {v(P_,4)}, {v(44)}, {so}, s{S_T} offen offset:{0}")
        a(f"buffer_load_dwordx4 {v(N_,4)}, {v(44)}, {so}, s{S_T} offen offset:{1024}")
        a(f"buffer_load_dwordx2 {v(48+2*hd,2)}, {v(45)}, {so}, s{S_T} offen offset:{2048}")
        if hd == 0: a(f"s_add_u32 s{S_T}, s{S_T}, 2560")
    if dbg:
        a('s_memtime s[72:73]'); a('s_memtime s[74:75]'); a('s_memtime s[76:77]')
    back_part(a, dbg, sc='', fix_p4=True)

def back_part(a, dbg, sc, fix_p4):
    T = 92
    QP = [[100, 106], [14, 20]]
    so = f"s[{S_O}:{S_O+3}]"
    a(f"s_and_b32 s{S_T}, s{S_WAVE}, 1")
    a(f"s_lshr_b32 s{S_T+1}, s{S_WAVE}, 1")
    a(f"s_lshl_b32 s{S_T}, s{S_T}, 1")
    a(f"s_add_u32 s{S_T}, s{S_T}, s{S_T+1}")
    a(f"s_lshl_b32 s{S_T+1}, s{S_CB}, 2")
    a(f"s_add_u32 s{S_T+1}, s{S_T+1}, s{S_T}")
    a(f"s_mul_i32 s{S_T+1}, s{S_T+1}, {KVS_REC}")
    a(f"s_add_u32 s{S_T+1}, s{S_T+1}, {WS_KVP}")
    a(f"v_lshlrev_b32 {v(44)}, 4, v0")
    a(f"v_add_u32 {v(45)}, 1024, {v(44)}")
    a(f"v_mov_b32 {v(46)}, 0x7000000")
    a(f"v_cmp_gt_u32 vcc, 41, v0")
    a("s_nop 1")
    a(f"v_cndmask_b32 {v(45)}, {v(46)}, {v(45)}, vcc")
    ACC = 26
    RB0 = 64
    for i in range(8):
        a(f"v_mov_b32 {v(ACC+i)}, 0")
    def issue(b, base):
        for r_ in range(4):
            rb_ = 4*b + r_
            a(f"s_add_u32 s{S_T+2}, s{S_T+1}, {rb_*64*KVS_REC}")
            a(f"buffer_load_dwordx4 {v(base+8*r_,4)}, {v(44)}, {so}, s{S_T+2} offen{sc}")
            a(f"buffer_load_dwordx4 {v(base+8*r_+4,4)}, {v(45)}, {so}, s{S_T+2} offen{sc}")
    def accum(base, nvm):
        a(f"s_waitcnt vmcnt({nvm})")
        for r_ in range(4):
            for i in range(0, 8, 2):
                a(f"v_pk_add_f32 {v(ACC+i,2)}, {v(ACC+i,2)}, {v(base+8*r_+i,2)}")
    BA, BB = 64, 112 - 0
    issue(0, 64)
    def issue2(rb0, base):
        for r_ in range(2):
            rb_ = rb0 + r_
            a(f"s_add_u32 s{S_T+2}, s{S_T+1}, {rb_*64*KVS_REC}")
            a(f"buffer_load_dwordx4 {v(base+8*r_,4)}, {v(44)}, {so}, s{S_T+2} offen{sc}")
            a(f"buffer_load_dwordx4 {v(base+8*r_+4,4)}, {v(45)}, {so}, s{S_T+2} offen{sc}")
    def accum2(base, nvm):
        a(f"s_waitcnt vmcnt({nvm})")
        for r_ in range(2):
            for i in range(0, 8, 2):
                a(f"v_pk_add_f32 {v(ACC+i,2)}, {v(ACC+i,2)}, {v(base+8*r_+i,2)}")
    issue2(4, 112)
    accum(64, 4)
    issue(0, 64) if False else None
    for r_ in range(4):
        rb_ = 6 + r_
        a(f"s_add_u32 s{S_T+2}, s{S_T+1}, {rb_*64*KVS_REC}")
        a(f"buffer_load_dwordx4 {v(64+8*r_,4)}, {v(44)}, {so}, s{S_T+2} offen{sc}")
        a(f"buffer_load_dwordx4 {v(64+8*r_+4,4)}, {v(45)}, {so}, s{S_T+2} offen{sc}")
    accum2(112, 8)
    issue2(10, 112)
    accum(64, 4)
    for r_ in range(4):
        rb_ = 12 + r_
        a(f"s_add_u32 s{S_T+2}, s{S_T+1}, {rb_*64*KVS_REC}")
        a(f"buffer_load_dwordx4 {v(64+8*r_,4)}, {v(44)}, {so}, s{S_T+2} offen{sc}")
        a(f"buffer_load_dwordx4 {v(64+8*r_+4,4)}, {v(45)}, {so}, s{S_T+2} offen{sc}")
    accum2(112, 8)
    accum(64, 0)
    a(f"s_lshl_b32 s{S_T}, s{S_T}, 11")
    a(f"v_add_u32 {v(46)}, s{S_T}, {v(44)}")
    a(f"ds_write_b128 {v(46)}, {v(ACC,4)}")
    a(f"s_mov_b64 s[{S_T+1}:{S_T+2}], exec")
    a(f"v_cmp_gt_u32 vcc, 41, v0")
    a("s_nop 1")
    a("s_and_b64 exec, exec, vcc")
    a(f"ds_write_b128 {v(46)}, {v(ACC+4,4)} offset:1024")
    a("s_mov_b64 exec, -1")
    a("s_waitcnt lgkmcnt(0)")
    a("s_barrier")
    a(f"v_and_b32 {v(T)}, 31, v0")
    a(f"v_lshrrev_b32 {v(T+1)}, 5, v0")
    a(f"v_mov_b32 {v(T+2)}, 20")
    a(f"v_cmp_eq_u32 vcc, 24, {v(T)}")
    a("s_nop 1")
    a(f"v_cndmask_b32 {v(T)}, {v(T)}, {v(T+2)}, vcc")
    a(f"v_min_u32 {v(T+3)}, 20, {v(T)}")
    a(f"v_mul_u32_u24 {v(T+2)}, 80, {v(T+3)}")
    a(f"v_lshl_add_u32 {v(44)}, {v(T+1)}, 4, {v(T+2)}")
    a(f"v_lshl_add_u32 {v(45)}, {v(T+1)}, 3, {v(T+2)}")
    a(f"v_cmp_lt_u32 vcc, 20, {v(T)}")
    RAW = [64, 74, 84, 116]
    for c in range(4):
        a(f"ds_read_b128 {v(RAW[c],4)}, {v(44)} offset:{c*2048}")
        a(f"ds_read_b128 {v(RAW[c]+4,4)}, {v(44)} offset:{c*2048+32}")
        a(f"ds_read_b64 {v(RAW[c]+8,2)}, {v(45)} offset:{c*2048+64}")
    KF = [26, 32, 38, 94]
    for c in range(4):
        a(f"s_waitcnt lgkmcnt({3*(3-c)})")
        for i in range(5):
            a(f"v_cvt_pk_bf16_f32 {v(KF[c]+i)}, {v(RAW[c]+2*i)}, {v(RAW[c]+2*i+1)}")
            a(f"v_cndmask_b32 {v(KF[c]+i)}, {v(KF[c]+i)}, 0, vcc") if False else None
        a(f"v_mov_b32 {v(KF[c]+5)}, 0")
    a("s_nop 1")
    for hd in range(2 if fix_p4 else 0):
        P_, N_ = QP[hd]
        a(f"v_mov_b32 {v(P_+4)}, {v(48+2*hd)}")
        a(f"v_mov_b32 {v(N_+4)}, {v(48+2*hd+1)}")
        a(f"v_mov_b32 {v(P_+5)}, 0")
        a(f"v_mov_b32 {v(N_+5)}, 0")
    a("s_nop 1")
    DO = [64, 112]
    for hd in range(2):
        P_, N_ = QP[hd]
        a(f"v_mfma_f32_32x32x16_bf16 {v(DO[hd],16)}, {v(KF[2*hd],4)}, {v(P_,4)}, 0")
        a(f"v_mfma_f32_32x32x8_bf16 {v(DO[hd],16)}, {v(KF[2*hd]+4,2)}, {v(P_+4,2)}, {v(DO[hd],16)}")
        a(f"v_mfma_f32_32x32x16_bf16 {v(DO[hd],16)}, {v(KF[2*hd+1],4)}, {v(N_,4)}, {v(DO[hd],16)}")
        a(f"v_mfma_f32_32x32x8_bf16 {v(DO[hd],16)}, {v(KF[2*hd+1]+4,2)}, {v(N_+4,2)}, {v(DO[hd],16)}")
    TT = 100
    a(f"v_and_b32 {v(TT)}, 31, v0")
    a(f"v_lshrrev_b32 {v(TT+1)}, 5, v0")
    a(f"v_cmp_eq_u32 vcc, 0, {v(TT+1)}")
    if FUSE:
        a(f"s_mul_i32 s{S_T}, s{S_WAVE}, {64*OREC}")
        a(f"s_add_u32 s{S_T}, s{S_T}, 16384")
        a(f"v_mul_u32_u24 {v(TT)}, {OREC}, {v(TT)}")
        a(f"v_lshl_add_u32 {v(TT)}, {v(TT+1)}, 3, {v(TT)}")
        a(f"v_add_u32 {v(TT)}, s{S_T}, {v(TT)}")
        a(f"v_lshlrev_b32 {v(TT+2)}, 4, v0")
        a(f"v_add_u32 {v(TT+10)}, s{S_T}, {v(TT+2)}")
        a(f"s_lshl_b32 s{S_T+1}, s{S_RB}, 5")
        a(f"s_lshl_b32 s{S_T+2}, s{S_CB}, 1")
        a(f"s_add_u32 s{S_T+1}, s{S_T+1}, s{S_T+2}")
        a(f"s_mul_i32 s{S_T+1}, s{S_T+1}, {OBLK}")
        a(f"s_mul_i32 s{S_T+2}, s{S_WAVE}, {32*OREC}")
        a(f"s_add_u32 s{S_T+2}, s{S_T+2}, s{S_T+1}")
        a(f"s_add_u32 s{S_T+2}, s{S_T+2}, {WS_OAF}")
    else:
        a(f"s_lshl_b32 s{S_T}, s{S_RB}, 7")
        a(f"s_lshl_b32 s{S_T+1}, s{S_WAVE}, 5")
        a(f"s_add_u32 s{S_T}, s{S_T}, s{S_T+1}")
        a(f"v_add_u32 {v(TT)}, s{S_T}, {v(TT)}")
        a(f"v_mul_u32_u24 {v(TT)}, 1280, {v(TT)}")
        a(f"v_lshlrev_b32 {v(TT+2)}, 3, {v(TT+1)}")
        a(f"v_add_u32 {v(TT)}, {v(TT)}, {v(TT+2)}")
        a(f"s_mul_i32 s{S_T+2}, s{S_CB}, 80")
        a(f"s_add_u32 s{S_T+2}, s{S_T+2}, {WS_OA}")
    a(f"s_mov_b32 s{S_T+3}, {f32hex(1e-6)}")
    a("s_nop 7")
    a("s_nop 7")
    for hd in range(2):
        O = DO[hd]
        a(f"v_cndmask_b32 {v(TT+3)}, {v(O+8)}, {v(O+12)}, vcc")
        a(f"v_add_f32 {v(TT+3)}, s{S_T+3}, {v(TT+3)}")
        a(f"v_rcp_f32 {v(TT+3)}, {v(TT+3)}")
        a("s_nop 0")
        for i in range(0, 12, 2):
            a(f"v_pk_mul_f32 {v(O+i,2)}, {v(O+i,2)}, {v(TT+2,2)} op_sel:[0,1] op_sel_hi:[1,1]")
        for i in range(6):
            a(f"v_cvt_pk_bf16_f32 {v(TT+4+i)}, {v(O+2*i)}, {v(O+2*i+1)}")
        if FUSE:
            off = hd*32*OREC
            a(f"v_cndmask_b32 {v(TT+8)}, 0, {v(TT+8)}, vcc")
            a(f"v_cndmask_b32 {v(TT+9)}, 0, {v(TT+9)}, vcc")
            a(f"ds_write_b64 {v(TT)}, {v(TT+4,2)} offset:{off}")
            a(f"ds_write_b64 {v(TT)}, {v(TT+6,2)} offset:{off+16}")
            a(f"ds_write_b64 {v(TT)}, {v(TT+8,2)} offset:{off+32}")
        else:
            a(f"buffer_store_dwordx2 {v(TT+4,2)}, {v(TT)}, {so}, s{S_T+2} offen offset:{40*hd}")
            a(f"buffer_store_dwordx2 {v(TT+6,2)}, {v(TT)}, {so}, s{S_T+2} offen offset:{40*hd+16}")
            a("s_mov_b32 exec_hi, 0")
            a(f"buffer_store_dwordx2 {v(TT+8,2)}, {v(TT)}, {so}, s{S_T+2} offen offset:{40*hd+32}")
            a("s_mov_b64 exec, -1")
    if FUSE:
        a("s_waitcnt lgkmcnt(0)")
        a(f"ds_read_b128 {v(4,4)}, {v(TT+10)}")
        a(f"ds_read_b128 {v(8,4)}, {v(TT+10)} offset:1536")
        a(f"ds_read_b128 {v(16,4)}, {v(TT+10)} offset:1024")
        a(f"ds_read_b128 {v(20,4)}, {v(TT+10)} offset:2560")
        a("s_waitcnt lgkmcnt(0)")
        a(f"buffer_store_dwordx4 {v(4,4)}, {v(TT+2)}, {so}, s{S_T+2} offen sc1")
        a(f"s_add_u32 s{S_T+3}, s{S_T+2}, {OBLK}")
        a(f"buffer_store_dwordx4 {v(8,4)}, {v(TT+2)}, {so}, s{S_T+3} offen sc1")
        a("s_mov_b32 exec_hi, 0")
        a(f"buffer_store_dwordx4 {v(16,4)}, {v(TT+2)}, {so}, s{S_T+2} offen offset:1024 sc1")
        a(f"buffer_store_dwordx4 {v(20,4)}, {v(TT+2)}, {so}, s{S_T+3} offen offset:1024 sc1")
        a("s_mov_b64 exec, -1")
    if FUSE:
        a("s_waitcnt vmcnt(0)")
        a("s_barrier")
        lnf = a.newlabel("a_noflag")
        a(f"s_cmp_lg_u32 s{S_WAVE}, 0")
        a(f"s_cbranch_scc1 {lnf}")
        a(f"s_lshl_b32 s{S_T}, s{S_RB}, 7")
        a(f"s_add_u32 s{S_T}, s{S_T}, {WS_FLAGA}")
        a(f"s_lshl_b32 s{S_T+1}, s{S_CB}, 2")
        a(f"v_mov_b32 {v(TT)}, s{S_T+1}")
        a(f"v_mov_b32 {v(TT+1)}, s98")
        a("s_mov_b64 exec, 1")
        a(f"buffer_store_dword {v(TT+1)}, {v(TT)}, {so}, s{S_T} offen sc1")
        a("s_mov_b64 exec, -1")
        a.label(lnf)
        lx = a.newlabel("a_exit")
        a("s_bitcmp0_b32 s2, 3")
        a(f"s_cbranch_scc1 {lx}")
        a("s_setprio 0")
        outp.scalars(a, 0)
        outp.compute(a, dbg)
        a.label(lx)
    if dbg:
        a("s_waitcnt vmcnt(0)")
        stamp_end(a, WS_DBG, KA_WS, S_WAVE, idsgpr="s54")
    a("s_endpgm")
```

```python
class Asm:
    def __init__(self):
        self.lines = []
        self.uid = 0
    def __call__(self, s):
        for l in s.split("\n"):
            l = l.strip()
            if l:
                self.lines.append("    " + l)
    def label(self, l):
        self.lines.append(l + ":")
    def raw(self, s):
        self.lines.append(s)
    def newlabel(self, base):
        self.uid += 1
        return f"L_{base}_{self.uid}"
    def text(self):
        return "\n".join(self.lines) + "\n"

def v(i, n=1):
    return f"v{i}" if n == 1 else f"v[{i}:{i+n-1}]"
def s(i, n=1):
    return f"s{i}" if n == 1 else f"s[{i}:{i+n-1}]"

def kernel_header(a, name):
    a.raw(f".globl {name}")
    a.raw(".p2align 8")
    a.raw(f".type {name},@function")
    a.label(name)

def kernel_desc(name, nvgpr, nsgpr=102):
    acc = (nvgpr + 3)//4*4
    return f""".p2align 6
.amdhsa_kernel {name}
  .amdhsa_next_free_vgpr {nvgpr}
  .amdhsa_next_free_sgpr {nsgpr}
  .amdhsa_accum_offset {acc}
  .amdhsa_group_segment_fixed_size 0
  .amdhsa_kernarg_size 80
  .amdhsa_user_sgpr_count 2
  .amdhsa_user_sgpr_kernarg_segment_ptr 1
  .amdhsa_system_sgpr_workgroup_id_x 1
.end_amdhsa_kernel
"""

MEGA = [False]
def stamp(a, k):
    a(f"s_memtime s[{70+2*k}:{71+2*k}]")
    if k == 0:
        a("s_memrealtime s[82:83]")
    if k == 1 and not MEGA[0]:
        a("s_memrealtime s[76:77]")
    if k == 2 and not MEGA[0]:
        a("s_memrealtime s[78:79]")
DBGK = [0]
def stamp_end(a, ws_dbg, ka_ws, wave_sgpr, idsgpr="s2"):
    ws_dbg = ws_dbg + DBGK[0]*512*512
    a("s_memtime s[80:81]")
    a("s_memrealtime s[84:85]")
    a(f"s_load_dwordx2 s[88:89], s[0:1], {ka_ws}")
    a("s_waitcnt lgkmcnt(0)")
    a("s_mov_b32 s90, 0x2000000")
    a("s_mov_b32 s91, 0x00020000")
    a("s_mov_b64 exec, 1")
    for i in range(16):
        a(f"v_mov_b32 v{2+i}, s{70+i}")
    a(f"s_lshl_b32 s92, {idsgpr}, 9")
    a(f"s_lshl_b32 s93, s{wave_sgpr}, 6")
    a("s_add_u32 s92, s92, s93")
    a(f"s_add_u32 s92, s92, {ws_dbg}")
    a("v_mov_b32 v20, 0")
    for i in range(4):
        a(f"buffer_store_dwordx4 v[{2+4*i}:{5+4*i}], v20, s[88:91], s92 offen offset:{16*i}")

def dbg_srd(a, ka_dbg):
    a(f"s_load_dwordx2 s[92:93], s[0:1], {ka_dbg}")
    a("s_waitcnt lgkmcnt(0)")
    a("s_mov_b32 s94, 256")
    a("s_mov_b32 s95, 0x00020000")
def tag_publish(a, ka_dbg):
    dbg_srd(a, ka_dbg)
    a("s_memrealtime s[96:97]")
    a("s_waitcnt lgkmcnt(0)")
    a("s_or_b32 s96, s96, 1")
    a("v_mov_b32 v4, s96")
    a("v_mov_b32 v5, 0")
    a("s_mov_b64 exec, 1")
    a("buffer_store_dword v4, v5, s[92:95], 0 offen sc1")
    a("s_mov_b64 exec, -1")
def tag_fetch(a, ka_dbg, va, vb):
    dbg_srd(a, ka_dbg)
    lp = a.newlabel("tag_poll"); ld = a.newlabel("tag_done")
    a(f"v_mov_b32 v{va}, 0")
    a("s_mov_b32 s97, 0")
    a.label(lp)
    a(f"buffer_load_dword v{vb}, v{va}, s[92:95], 0 offen sc1")
    a("s_waitcnt vmcnt(0)")
    a(f"v_readfirstlane_b32 s98, v{vb}")
    a("s_add_u32 s97, s97, 1")
    a("s_nop 1")
    a("s_cmp_lg_u32 s98, 0")
    a(f"s_cbranch_scc1 {ld}")
    a("s_sleep 4")
    a("s_cmp_lt_u32 s97, 0x40000")
    a(f"s_cbranch_scc1 {lp}")
    a.label(ld)
```

```python
from asmlib import *
from layout import *
import roles, gemm, outp
FUSE = True
WOPF = True

CH = 8
CH_BYTES = CH * TILE_REC
NCH = 64 // CH
OPT = dict(nodma=False, nobar=False, nolds=False, prio=True, vmask=False, forcefb=False, cl4=False, uni=True)

V_A16 = 1
V_A8  = 2
V_G16 = 3
SA, SB = 4, 20
OA, OB = 36, 52
PA, PB = 68, 76
Q1A, Q1B = 84, 88
Q2A, Q2B = 92, 94
K1 = [96, 100]
VV0 = [104, 112]
VV1 = [108, 116]
K2 = [120, 122]
ATTN_NVGPR = 124
V_T0 = SA

S_WS = 8
S_HEAD = 12
S_QB = 13
S_WAVE = 14
S_DMAOFF = 15
S_LDSW = 16
S_BUFD = 17
S_CNT = 18
S_DMABUF = 19
S_T = 20

def mfma32(a, d, A, B, C, k16=True):
    op = "v_mfma_f32_32x32x16_bf16" if k16 else "v_mfma_f32_32x32x8_bf16"
    n = 4 if k16 else 2
    c = "0" if C is None else v(C, 16)
    a(f"{op} {v(d,16)}, {v(A,n)}, {v(B,n)}, {c}")

PENDING = []
def cvts(a, Sr, P, q):
    a(f"v_cvt_pk_bf16_f32 {v(P+2*q)}, {v(Sr+4*q)}, {v(Sr+4*q+1)}")
    a(f"v_cvt_pk_bf16_f32 {v(P+2*q+1)}, {v(Sr+4*q+2)}, {v(Sr+4*q+3)}")
def flush_cvts(a):
    while PENDING:
        cvts(a, *PENDING.pop(0))
def exps(a, Sr, P, q):
    for i in range(4):
        a(f"v_exp_f32 {v(Sr+4*q+i)}, {v(Sr+4*q+i)}")
    flush_cvts(a)
    PENDING.append((Sr, P, q))

def dma_chunk(a):
    srd = f"s[{S_WS}:{S_WS+3}]"
    a(f"s_add_u32 m0, s{S_DMABUF}, s{S_LDSW}")
    a("s_nop 0")
    for i in range(4):
        a(f"buffer_load_dwordx4 {v(V_G16)}, {srd}, s{S_DMAOFF} offen offset:{i*1024} lds")
    a(f"s_add_u32 m0, m0, 4096")
    a(f"s_add_u32 s{S_DMAOFF}, s{S_DMAOFF}, 4096")
    for i in range(3):
        a(f"buffer_load_dwordx4 {v(V_G16)}, {srd}, s{S_DMAOFF} offen offset:{i*1024} lds")
    a(f"s_add_u32 s{S_DMAOFF}, s{S_DMAOFF}, {CH_BYTES-4096}")

def safety_check_and_fallback(a):
    srd = f"s[{S_WS}:{S_WS+3}]"
    T = SA
    lok = a.newlabel("att_ok")
    a("s_nop 7")
    a("s_nop 7")
    a(f"v_lshrrev_b32 {v(T)}, 5, v0")
    a(f"v_cmp_eq_u32 vcc, 0, {v(T)}")
    a(f"s_mov_b64 s[26:27], 0")
    a(f"s_mov_b32 s28, 0x1f800000")
    a(f"s_mov_b32 s29, 0x5f800000")
    a(f"s_movk_i32 s30, 0x207")
    for O in (OA, OB):
        a(f"v_cndmask_b32 {v(T+1)}, {v(O+8)}, {v(O+12)}, vcc")
        a(f"v_cmp_nle_f32 s[22:23], s28, {v(T+1)}")
        a(f"v_cmp_nge_f32 s[24:25], s29, {v(T+1)}")
        a("s_nop 1")
        a("s_or_b64 s[26:27], s[26:27], s[22:23]")
        a("s_or_b64 s[26:27], s[26:27], s[24:25]")
        for i in range(12):
            a(f"v_cmp_class_f32 s[22:23], {v(O+i)}, s30")
            a("s_nop 1")
            if i >= 8:
                a("s_and_b64 s[22:23], s[22:23], vcc")
            a("s_or_b64 s[26:27], s[26:27], s[22:23]")
    if OPT['forcefb']:
        a("s_mov_b64 s[26:27], -1")
    a("s_cmp_eq_u64 s[26:27], 0")
    a(f"s_cbranch_scc1 {lok}")
    G16 = V_G16; G8 = T+1; MA, MB, TM = T+2, T+3, 120
    X = [SA + 0]
    SX, SY = 20, 100
    KA1, KA2, VA0, VA1 = 116, 122, 68, 72
    PX, PY = 76, 8
    MA, MB, TM = 4, 6, 7
    G8 = 5
    a(f"v_lshlrev_b32 {v(G8)}, 3, v0")
    a(f"s_mul_i32 s22, s{S_HEAD}, {KV_HEAD}")
    a(f"s_and_b32 s23, s{S_HEAD}, 1")
    a(f"s_cmp_eq_u32 s23, 0")
    a(f"s_cselect_b32 s36, -1, 0")
    a(f"s_cselect_b32 s37, 0, -1")
    a(f"v_mov_b32 {v(KA2)}, 0"); a(f"v_mov_b32 {v(KA2+1)}, 0")
    a(f"v_mov_b32 {v(MA)}, 0xff800000"); a(f"v_mov_b32 {v(MB)}, 0xff800000")
    def load_k():
        a(f"s_add_u32 s24, s{S_CNT}, 63")
        a(f"s_and_b32 s24, s24, 63")
        a(f"s_mul_i32 s24, s24, {TILE_REC}")
        a(f"s_add_u32 s24, s24, s22")
        a(f"buffer_load_dwordx4 {v(KA1,4)}, {v(G16)}, {srd}, s24 offen")
        a(f"s_mov_b64 exec, s[36:37]")
        a(f"buffer_load_dwordx2 {v(KA2,2)}, {v(G8)}, {srd}, s24 offen offset:3072")
        a(f"s_mov_b64 exec, -1")
    def qk():
        mfma32(a, SX, KA1, Q1A, None); mfma32(a, SX, KA2, Q2A, SX, k16=False)
        mfma32(a, SY, KA1, Q1B, None); mfma32(a, SY, KA2, Q2B, SY, k16=False)
        a("s_nop 7"); a("s_nop 7")
    a(f"s_mov_b32 s{S_CNT}, 0")
    l1 = a.newlabel("fb_max")
    a.label(l1)
    load_k()
    a("s_waitcnt vmcnt(0)")
    qk()
    for (Sx, M) in ((SX, MA), (SY, MB)):
        for i in range(0, 16, 2):
            a(f"v_max3_f32 {v(M)}, {v(M)}, {v(Sx+i)}, {v(Sx+i+1)}")
    a(f"s_add_u32 s{S_CNT}, s{S_CNT}, 1")
    a(f"s_cmp_lt_u32 s{S_CNT}, 64")
    a(f"s_cbranch_scc1 {l1}")
    for M in (MA, MB):
        a(f"v_mov_b32 {v(TM)}, {v(M)}")
        a("s_nop 1")
        a(f"v_permlane32_swap_b32 {v(M)}, {v(TM)}")
        a("s_nop 1")
        a(f"v_max_f32 {v(M)}, {v(M)}, {v(TM)}")
    for r in list(range(OA, OA+32)) + list(range(VA0, VA0+8)):
        a(f"v_mov_b32 {v(r)}, 0")
    a(f"s_mov_b32 s{S_CNT}, 0")
    l2 = a.newlabel("fb_main")
    a.label(l2)
    load_k()
    a(f"s_mul_i32 s24, s{S_CNT}, {TILE_REC}")
    a(f"s_add_u32 s24, s24, s22")
    a(f"s_mov_b64 exec, s[34:35]")
    a(f"buffer_load_dwordx4 {v(VA0,4)}, {v(G16)}, {srd}, s24 offen offset:1024")
    a(f"buffer_load_dwordx4 {v(VA1,4)}, {v(G16)}, {srd}, s24 offen offset:2048")
    a(f"s_mov_b64 exec, -1")
    a("s_waitcnt vmcnt(0)")
    qk()
    for (Sx, M, P, O) in ((SX, MA, PX, OA), (SY, MB, PY, OB)):
        for i in range(16):
            a(f"v_sub_f32 {v(Sx+i)}, {v(Sx+i)}, {v(M)}")
        for i in range(16):
            a(f"v_exp_f32 {v(Sx+i)}, {v(Sx+i)}")
        a("s_nop 0")
        for k in range(8):
            a(f"v_cvt_pk_bf16_f32 {v(P+k)}, {v(Sx+2*k)}, {v(Sx+2*k+1)}")
        a("s_nop 1")
        mfma32(a, O, VA0, P, O)
        mfma32(a, O, VA1, P+4, O)
    a(f"s_add_u32 s{S_CNT}, s{S_CNT}, 1")
    a(f"s_cmp_lt_u32 s{S_CNT}, 64")
    a(f"s_cbranch_scc1 {l2}")
    a("s_nop 7")
    a("s_nop 7")
    a.label(lok)

def gen_attn(a, dbg_time=False):
    srd = f"s[{S_WS}:{S_WS+3}]"
    if dbg_time and not MEGA[0]: stamp(a, 0)
    a(f"s_load_dwordx2 s[{S_WS}:{S_WS+1}], s[0:1], {KA_WS}")
    a(f"s_and_b32 s{S_T}, s2, 7")
    a(f"s_lshr_b32 s{S_T+1}, s2, 3")
    a(f"s_and_b32 s{S_T+2}, s{S_T+1}, 3")
    a(f"s_lshl_b32 s{S_HEAD}, s{S_T}, 2")
    a(f"s_add_u32 s{S_HEAD}, s{S_HEAD}, s{S_T+2}")
    a(f"s_lshr_b32 s{S_QB}, s{S_T+1}, 2")
    if MEGA[0]:
        a(f"s_mov_b32 s{S_WAVE}, s61")
    else:
        a(f"v_lshrrev_b32 {v(SA)}, 6, v0")
        a(f"v_and_b32 v0, 63, v0")
        a(f"v_readfirstlane_b32 s{S_WAVE}, {v(SA)}")
        a("s_mov_b32 s98, 1")
    a(f"v_lshlrev_b32 {v(V_G16)}, 4, v0")
    a(f"s_mul_i32 s{S_T+6}, s{S_HEAD}, {KV_HEAD}")
    a("s_waitcnt lgkmcnt(0)")
    a(f"s_mov_b32 s{S_WS+2}, {WS_SIZE_SRD}")
    a(f"s_mov_b32 s{S_WS+3}, 0x00020000")
    a(f"s_mov_b32 s61, s{S_WAVE}")
    lcomp = a.newlabel("attn_compute")
    a(f"s_cmp_lt_u32 s{S_WAVE}, 4")
    a(f"s_cbranch_scc1 {lcomp}")
    if MEGA[0]:
        lnp = a.newlabel("q2_nopoll")
        a(f"s_cmp_lg_u32 s{S_WAVE}, 4")
        a(f"s_cbranch_scc1 {lnp}")
        a("v_mov_b32 v4, 0")
        a("ds_read_b32 v5, v4")
        a("s_waitcnt lgkmcnt(0)")
        a("v_readfirstlane_b32 s98, v5")
        a(f"s_lshr_b32 s{S_T}, s{S_HEAD}, 1")
        a(f"s_mul_i32 s{S_T}, s{S_T}, 40")
        a(f"s_add_u32 s{S_T+1}, s{S_T}, 39")
        a(f"s_lshr_b32 s{S_T}, s{S_T}, 7")
        a(f"s_lshr_b32 s{S_T+1}, s{S_T+1}, 7")
        a(f"v_lshrrev_b32 v4, 4, v0")
        a(f"v_and_b32 v5, 1, v4")
        a(f"s_sub_u32 s{S_T+2}, s{S_T+1}, s{S_T}")
        a(f"v_mul_u32_u24 v5, s{S_T+2}, v5")
        a(f"v_lshrrev_b32 v4, 1, v4")
        a(f"v_mul_u32_u24 v4, 5, v4")
        a(f"v_add3_u32 v4, v4, v5, s{S_T}")
        a(f"v_add_u32 v4, 5, v4")
        a(f"v_lshlrev_b32 v4, 7, v4")
        a(f"v_and_b32 v5, 15, v0")
        a(f"v_lshl_add_u32 v4, v5, 2, v4")
        a(f"v_and_b32 v6, 1, v0")
        a(f"v_mul_u32_u24 v6, s{S_T+2}, v6")
        a(f"v_add_u32 v6, s{S_T}, v6")
        a(f"v_lshlrev_b32 v6, 7, v6")
        a(f"v_bfe_u32 v7, v0, 1, 1")
        a(f"s_lshl_b32 s{S_T+3}, s{S_QB}, 1")
        a(f"v_add_u32 v7, s{S_T+3}, v7")
        a(f"v_lshl_add_u32 v6, v7, 2, v6")
        a(f"s_mov_b32 s{S_T+3}, {WS_FLAGQ}")
        a(f"s_mov_b32 s{S_T+4}, 0")
        lp = a.newlabel("q2_poll"); lpd = a.newlabel("q2_done")
        a.label(lp)
        a(f"buffer_load_dword v8, v4, {srd}, s{S_T+3} offen sc1")
        a(f"buffer_load_dword v9, v6, {srd}, s{S_T+3} offen sc1")
        a("s_waitcnt vmcnt(0)")
        a(f"v_cmp_eq_u32 vcc, s98, v8")
        a(f"v_cmp_eq_u32 s[28:29], s98, v9")
        a(f"s_add_u32 s{S_T+4}, s{S_T+4}, 1")
        a("s_nop 1")
        a("s_and_b64 vcc, vcc, s[28:29]")
        a("s_cmp_eq_u64 vcc, -1")
        a(f"s_cbranch_scc1 {lpd}")
        a("s_sleep 2")
        a(f"s_cmp_lt_u32 s{S_T+4}, 0x40000")
        a(f"s_cbranch_scc1 {lp}")
        a.label(lpd)
        a.label(lnp)
        a("s_barrier")
    if FUSE and WOPF:
        a(f"s_load_dwordx2 s[40:41], s[0:1], {KA_AWO}")
        a(f"s_load_dwordx2 s[42:43], s[0:1], {KA_BWO}")
        a(f"s_lshr_b32 s{S_T}, s2, 3")
        a(f"s_mul_i32 s{S_T}, s{S_T}, 200")
        a(f"s_sub_u32 s{S_T+1}, s{S_WAVE}, 4")
        a(f"s_lshl_b32 s{S_T+1}, s{S_T+1}, 6")
        a(f"s_add_u32 s{S_T}, s{S_T}, s{S_T+1}")
        a(f"v_add_u32 v4, s{S_T}, v0")
        a(f"v_lshlrev_b32 v4, 7, v4")
        a(f"s_mov_b32 s46, {640*1280}")
        a(f"s_mov_b32 s47, 0x00020000")
        a("s_waitcnt lgkmcnt(0)")
    a(f"s_sub_u32 s{S_T}, s{S_WAVE}, 4")
    a(f"s_mul_i32 s{S_LDSW}, s{S_T}, 7168")
    a(f"s_add_u32 s{S_DMAOFF}, s{S_T+6}, s{S_LDSW}")
    a(f"s_mov_b32 s{S_DMABUF}, 0")
    dma_chunk(a)
    a(f"s_mov_b32 s{S_DMABUF}, {CH_BYTES}")
    a(f"s_mov_b32 s{S_CNT}, 0")
    a("s_waitcnt vmcnt(0)")
    a("s_barrier")
    lloop = a.newlabel("ld_loop"); lskip = a.newlabel("ld_skip")
    a.label(lloop)
    a(f"s_cmp_ge_u32 s{S_CNT}, {NCH-1}")
    a(f"s_cbranch_scc1 {lskip}")
    if not OPT['nodma']:
        dma_chunk(a)
    if FUSE and WOPF:
        lsk = a.newlabel("wopf_skip")
        a(f"s_sub_u32 s{S_T+1}, s{S_CNT}, 1")
        a(f"s_cmp_gt_u32 s{S_T+1}, 1")
        a(f"s_cbranch_scc1 {lsk}")
        a(f"s_cmp_eq_u32 s{S_CNT}, 1")
        a(f"s_cselect_b32 s44, s40, s42")
        a(f"s_cselect_b32 s45, s41, s43")
        a(f"buffer_load_dword v5, v4, s[44:47], 0 offen")
        a.label(lsk)
    a(f"s_sub_u32 s{S_DMABUF}, {CH_BYTES}, s{S_DMABUF}")
    a("s_waitcnt vmcnt(0)")
    a.label(lskip)
    if not OPT['nobar']:
        a("s_barrier")
    if gemm.GOPT['ststamp']:
        a("s_memtime s[90:91]"); a("s_waitcnt lgkmcnt(0)")
        a(f"s_mov_b32 m0, s{S_CNT}")
        a("s_sub_u32 s90, s90, s70")
        a("v_writelane_b32 v14, s90, m0")
    a(f"s_add_u32 s{S_CNT}, s{S_CNT}, 1")
    a(f"s_cmp_lt_u32 s{S_CNT}, {NCH}")
    a(f"s_cbranch_scc1 {lloop}")
    if gemm.GOPT['ststamp']:
        a(f"s_lshl_b32 s92, s2, 7")
        a(f"s_add_u32 s92, s92, {0x1E00000}")
        a("v_lshlrev_b32 v13, 2, v0")
        a(f"s_cmp_lg_u32 s{S_WAVE}, 4")
        lss = a.newlabel("ss_skip")
        a(f"s_cbranch_scc1 {lss}")
        a("s_mov_b64 exec, 0xff")
        a(f"buffer_store_dword v14, v13, {srd}, s92 offen")
        a("s_mov_b64 exec, -1")
        a.label(lss)
    if FUSE:
        lx = a.newlabel("ld_exit")
        a("s_bitcmp1_b32 s2, 3")
        a(f"s_cbranch_scc1 {lx}")
        a(f"s_and_b32 s{gemm.S_WAVE}, s{S_WAVE}, 3")
        outp.loader(a, 1)
        a.label(lx)
    a("s_endpgm")
    a.label(lcomp)
    if MEGA[0]: a("s_barrier")
    if OPT['prio']: a("s_setprio 2")
    a(f"v_mov_b32 {v(V_A16)}, {v(V_G16)}")
    a(f"v_lshlrev_b32 {v(V_A8)}, 3, v0")
    a(f"s_lshl_b32 s{S_T}, s{S_QB}, 3")
    a(f"s_lshl_b32 s{S_T+1}, s{S_WAVE}, 1")
    a(f"s_add_u32 s{S_T}, s{S_T}, s{S_T+1}")
    a(f"s_lshl_b32 s{S_T+1}, s{S_HEAD}, 6")
    a(f"s_add_u32 s{S_T+1}, s{S_T+1}, s{S_T}")
    a(f"s_lshl_b32 s{S_T+1}, s{S_T+1}, 10")
    a(f"s_add_u32 s{S_T+1}, s{S_T+1}, {WS_Q1}")
    a(f"buffer_load_dwordx4 {v(Q1A,4)}, {v(V_G16)}, {srd}, s{S_T+1} offen")
    a(f"buffer_load_dwordx4 {v(Q1B,4)}, {v(V_G16)}, {srd}, s{S_T+1} offen offset:1024")
    a(f"s_lshr_b32 s{S_T+2}, s{S_HEAD}, 1")
    a(f"s_lshl_b32 s{S_T+2}, s{S_T+2}, 6")
    a(f"s_add_u32 s{S_T+2}, s{S_T+2}, s{S_T}")
    a(f"s_lshl_b32 s{S_T+2}, s{S_T+2}, 9")
    a(f"s_add_u32 s{S_T+2}, s{S_T+2}, {WS_Q2}")
    a(f"buffer_load_dwordx2 {v(Q2A,2)}, {v(V_A8)}, {srd}, s{S_T+2} offen")
    a(f"buffer_load_dwordx2 {v(Q2B,2)}, {v(V_A8)}, {srd}, s{S_T+2} offen offset:512")
    a(f"s_add_u32 s{S_T+3}, s{S_T+6}, {63*TILE_REC}")
    a(f"buffer_load_dwordx4 {v(K1[1],4)}, {v(V_G16)}, {srd}, s{S_T+3} offen")
    a(f"buffer_load_dwordx2 {v(K2[1],2)}, {v(V_A8)}, {srd}, s{S_T+3} offen offset:3072")
    for r in list(range(OA, OA+32)) + list(range(PB, PB+8)) + list(range(SB+12, SB+16)) + list(range(VV0[1], VV0[1]+4)) + list(range(VV1[1], VV1[1]+4)) + list(range(VV0[0], VV0[0]+4)) + list(range(VV1[0], VV1[0]+4)):
        a(f"v_mov_b32 {v(r)}, 0")
    a(f"s_and_b32 s{S_T+3}, s{S_HEAD}, 1")
    a(f"s_cmp_eq_u32 s{S_T+3}, 0")
    a(f"s_cselect_b32 s{S_T+4}, 0, -1")
    a(f"s_cselect_b32 s{S_T+5}, -1, 0")
    a(f"s_mov_b32 s{S_BUFD}, {CH_BYTES}")
    a("s_mov_b32 s34, 0x011fffff")
    a("s_mov_b32 s35, 0x011fffff")
    a("s_waitcnt vmcnt(0)")
    a(f"s_mov_b64 exec, s[{S_T+4}:{S_T+5}]")
    for r in (Q2A, Q2A+1, Q2B, Q2B+1):
        a(f"v_mov_b32 {v(r)}, 0")
    a("s_mov_b64 exec, -1")
    a("s_nop 1")
    mfma32(a, SA, K1[1], Q1A, None)
    mfma32(a, SA, K2[1], Q2A, SA, k16=False)
    a(f"s_mov_b32 s{S_CNT}, 0")
    a("s_barrier")
    def rd(txt):
        if not OPT['nolds']: a(txt)
    def reads(st, off):
        rd(f"ds_read_b128 {v(K1[st],4)}, {v(V_A16)} offset:{off}")
        rd(f"ds_read_b64 {v(K2[st],2)}, {v(V_A8)} offset:{off+3072}")
        if OPT['vmask']: a("s_mov_b64 exec, s[34:35]")
        rd(f"ds_read_b128 {v(VV0[st],4)}, {v(V_A16)} offset:{off+1024}")
        rd(f"ds_read_b128 {v(VV1[st],4)}, {v(V_A16)} offset:{off+2048}")
        if OPT['vmask']: a("s_mov_b64 exec, -1")
    reads(0, 0)
    a("s_nop 7")
    if dbg_time:
        stamp(a, 1)
        a("s_waitcnt lgkmcnt(0)")
    loop = a.newlabel("attn_loop")
    a.raw(".p2align 6")
    a.label(loop)
    def E(Sr, i): a(f"v_exp_f32 {v(Sr+i)}, {v(Sr+i)}")
    def C(Sr, P, k): a(f"v_cvt_pk_bf16_f32 {v(P+k)}, {v(Sr+2*k)}, {v(Sr+2*k+1)}")
    PEND = []
    def phase(Sr, P, m, rds):
        if OPT['uni']:
            for q in range(4):
                m[q]()
                if q == 0:
                    for r_ in rds[0:2]: rd(r_)
                if q == 1 and rds:
                    if OPT['vmask']: a("s_mov_b64 exec, s[34:35]")
                    for r_ in rds[2:4]: rd(r_)
                    if OPT['vmask']: a("s_mov_b64 exec, -1")
                for i in range(4): E(Sr, 4*q+i)
                while PEND:
                    (s_, p_, k_) = PEND.pop(0); C(s_, p_, k_)
                PEND.append((Sr, P, 2*q)); PEND.append((Sr, P, 2*q+1))
            return
        if OPT['cl4']:
            m[0]()
            for r_ in rds[0:2]: rd(r_)
            for i in (0, 1, 2): E(Sr, i)
            m[1]()
            if rds and OPT['vmask']: a("s_mov_b64 exec, s[34:35]")
            for r_ in rds[2:4]: rd(r_)
            if rds and OPT['vmask']: a("s_mov_b64 exec, -1")
            for i in (3, 4, 5): E(Sr, i)
            m[2]()
            for i in (6, 7, 8): E(Sr, i)
            m[3]()
            for i in range(9, 16): E(Sr, i)
            for k in range(8): C(Sr, P, k)
            return
        m[0]()
        for r_ in rds[0:2]: rd(r_)
        for i in (0, 1, 2): E(Sr, i)
        m[1]()
        if rds and OPT['vmask']: a("s_mov_b64 exec, s[34:35]")
        for r_ in rds[2:4]: rd(r_)
        if rds and OPT['vmask']: a("s_mov_b64 exec, -1")
        for i in (3, 4, 5, 6, 7): E(Sr, i)
        for k in (0, 1, 2, 3): C(Sr, P, k)
        m[2]()
        for i in (8, 9, 10): E(Sr, i)
        m[3]()
        for i in (11, 12, 13, 14, 15): E(Sr, i)
        for k in (4, 5, 6, 7): C(Sr, P, k)
    if OPT['uni']:
        PEND.append((SB, PB, 6)); PEND.append((SB, PB, 7))
    for j in range(CH):
        p = j & 1; pn = p ^ 1
        phase(SA, PA, [lambda: mfma32(a, OB, VV0[pn], PB, OB), lambda: mfma32(a, SB, K1[pn], Q1B, None),
                       lambda: mfma32(a, SB, K2[pn], Q2B, SB, k16=False), lambda: mfma32(a, OB, VV1[pn], PB+4, OB)], [])
        if not OPT['nolds']: a("s_waitcnt lgkmcnt(0)")
        if j == CH-1:
            if not OPT['nobar']:
                a("s_barrier")
            a(f"v_add_u32 {v(V_A16)}, s{S_BUFD}, {v(V_A16)}")
            a(f"v_add_u32 {v(V_A8)}, s{S_BUFD}, {v(V_A8)}")
            a(f"s_sub_u32 s{S_BUFD}, 0, s{S_BUFD}")
            off = 0
        else:
            off = (j+1)*TILE_REC
        rds = [f"ds_read_b128 {v(K1[pn],4)}, {v(V_A16)} offset:{off}",
               f"ds_read_b64 {v(K2[pn],2)}, {v(V_A8)} offset:{off+3072}",
               f"ds_read_b128 {v(VV0[pn],4)}, {v(V_A16)} offset:{off+1024}",
               f"ds_read_b128 {v(VV1[pn],4)}, {v(V_A16)} offset:{off+2048}"]
        phase(SB, PB, [lambda: mfma32(a, OA, VV0[p], PA, OA), lambda: mfma32(a, SA, K1[p], Q1A, None),
                       lambda: mfma32(a, SA, K2[p], Q2A, SA, k16=False), lambda: mfma32(a, OA, VV1[p], PA+4, OA)], rds)
    a(f"s_add_u32 s{S_CNT}, s{S_CNT}, 1")
    a(f"s_cmp_lt_u32 s{S_CNT}, {NCH}")
    a(f"s_cbranch_scc1 {loop}")
    if dbg_time: stamp(a, 2)
    if OPT['uni']:
        while PEND:
            (s_, p_, k_) = PEND.pop(0); C(s_, p_, k_)
    a("s_nop 1")
    mfma32(a, OB, VV0[1], PB, OB)
    mfma32(a, OB, VV1[1], PB+4, OB)
    safety_check_and_fallback(a)
    T = 84
    a(f"v_and_b32 {v(T)}, 31, v0")
    a(f"v_lshrrev_b32 {v(T+1)}, 5, v0")
    a(f"v_cmp_eq_u32 vcc, 0, {v(T+1)}")
    if FUSE:
        a(f"s_mul_i32 s{S_T}, s{S_WAVE}, {64*OREC}")
        a(f"s_add_u32 s{S_T}, s{S_T}, 61440")
        a(f"v_mul_u32_u24 {v(T)}, {OREC}, {v(T)}")
        a(f"v_lshl_add_u32 {v(T)}, {v(T+1)}, 3, {v(T)}")
        a(f"v_add_u32 {v(T)}, s{S_T}, {v(T)}")
        a(f"v_lshlrev_b32 {v(T+2)}, 4, v0")
        a(f"v_add_u32 {v(T+10)}, s{S_T}, {v(T+2)}")
        a(f"s_lshl_b32 s{S_T+1}, s{S_QB}, 1")
        a(f"s_lshr_b32 s{S_T+2}, s{S_WAVE}, 1")
        a(f"s_add_u32 s{S_T+1}, s{S_T+1}, s{S_T+2}")
        a(f"s_lshl_b32 s{S_T+1}, s{S_T+1}, 5")
        a(f"s_add_u32 s{S_T+1}, s{S_T+1}, s{S_HEAD}")
        a(f"s_mul_i32 s{S_T+1}, s{S_T+1}, {OBLK}")
        a(f"s_and_b32 s{S_T+2}, s{S_WAVE}, 1")
        a(f"s_mul_i32 s{S_T+2}, s{S_T+2}, {64*OREC}")
        a(f"s_add_u32 s{S_T+2}, s{S_T+2}, s{S_T+1}")
        a(f"s_add_u32 s{S_T+2}, s{S_T+2}, {WS_OBF}")
    else:
        a(f"s_lshl_b32 s{S_T}, s{S_QB}, 8")
        a(f"s_lshl_b32 s{S_T+1}, s{S_WAVE}, 6")
        a(f"s_add_u32 s{S_T}, s{S_T}, s{S_T+1}")
        a(f"v_add_u32 {v(T)}, s{S_T}, {v(T)}")
        a(f"v_mul_u32_u24 {v(T)}, 1280, {v(T)}")
        a(f"v_lshlrev_b32 {v(T+2)}, 3, {v(T+1)}")
        a(f"v_add_u32 {v(T)}, {v(T)}, {v(T+2)}")
        a(f"s_mul_i32 s{S_T+2}, s{S_HEAD}, 40")
        a(f"s_add_u32 s{S_T+2}, s{S_T+2}, {WS_OB}")
    a("s_nop 1")
    for n_, (O, extra) in enumerate(((OA, 0), (OB, 32*1280))):
        if n_ == 1:
            a("s_nop 7")
        a(f"v_cndmask_b32 {v(T+3)}, {v(O+8)}, {v(O+12)}, vcc")
        a(f"v_rcp_f32 {v(T+3)}, {v(T+3)}")
        a("s_nop 0")
        for i in range(12):
            a(f"v_mul_f32 {v(O+i)}, {v(O+i)}, {v(T+3)}")
        for i in range(6):
            a(f"v_cvt_pk_bf16_f32 {v(T+4+i)}, {v(O+2*i)}, {v(O+2*i+1)}")
        if FUSE:
            off = n_*32*OREC
            a(f"v_cndmask_b32 {v(T+8)}, 0, {v(T+8)}, vcc")
            a(f"v_cndmask_b32 {v(T+9)}, 0, {v(T+9)}, vcc")
            a(f"ds_write_b64 {v(T)}, {v(T+4,2)} offset:{off}")
            a(f"ds_write_b64 {v(T)}, {v(T+6,2)} offset:{off+16}")
            a(f"ds_write_b64 {v(T)}, {v(T+8,2)} offset:{off+32}")
        else:
            if extra:
                a(f"s_add_u32 s{S_T+2}, s{S_T+2}, {extra}")
            a(f"buffer_store_dwordx2 {v(T+4,2)}, {v(T)}, {srd}, s{S_T+2} offen")
            a(f"buffer_store_dwordx2 {v(T+6,2)}, {v(T)}, {srd}, s{S_T+2} offen offset:16")
            a("s_mov_b32 exec_hi, 0")
            a(f"buffer_store_dwordx2 {v(T+8,2)}, {v(T)}, {srd}, s{S_T+2} offen offset:32")
            a(f"s_mov_b64 exec, -1")
    if FUSE:
        a("s_waitcnt lgkmcnt(0)")
        a(f"ds_read_b128 {v(4,4)}, {v(T+10)}")
        a(f"ds_read_b128 {v(8,4)}, {v(T+10)} offset:1024")
        a(f"ds_read_b128 {v(12,4)}, {v(T+10)} offset:2048")
        a("s_waitcnt lgkmcnt(0)")
        a(f"buffer_store_dwordx4 {v(4,4)}, {v(T+2)}, {srd}, s{S_T+2} offen sc1")
        a(f"buffer_store_dwordx4 {v(8,4)}, {v(T+2)}, {srd}, s{S_T+2} offen offset:1024 sc1")
        a(f"buffer_store_dwordx4 {v(12,4)}, {v(T+2)}, {srd}, s{S_T+2} offen offset:2048 sc1")
    if FUSE:
        a("s_waitcnt vmcnt(0) lgkmcnt(0)")
        a("s_barrier")
        lnf = a.newlabel("att_noflag")
        a(f"s_cmp_lg_u32 s{S_WAVE}, 0")
        a(f"s_cbranch_scc1 {lnf}")
        a(f"s_lshl_b32 s{S_T}, s{S_QB}, 7")
        a(f"s_add_u32 s{S_T}, s{S_T}, {WS_FLAGB}")
        a(f"s_lshl_b32 s{S_T+1}, s{S_HEAD}, 2")
        a(f"v_mov_b32 {v(T)}, s{S_T+1}")
        a(f"v_mov_b32 {v(T+1)}, s98")
        a("s_mov_b64 exec, 1")
        a(f"buffer_store_dword {v(T+1)}, {v(T)}, {srd}, s{S_T} offen sc1")
        a("s_mov_b64 exec, -1")
        a.label(lnf)
        lx = a.newlabel("att_exit")
        a("s_bitcmp1_b32 s2, 3")
        a(f"s_cbranch_scc1 {lx}")
        a(f"s_mov_b32 s60, s{S_WAVE}")
        a(f"s_mov_b32 s{gemm.S_WAVE}, s60")
        a("s_setprio 0")
        outp.scalars(a, 1)
        outp.compute(a, dbg_time)
        a.label(lx)
        if dbg_time: a(f"s_mov_b32 s{S_WAVE}, s60") if False else None
    if dbg_time:
        a("s_waitcnt vmcnt(0)")
        stamp_end(a, WS_DBG, KA_WS, 61)
    a("s_endpgm")
```

```python
from asmlib import *
from layout import *
from gemm import *
from roles import f32hex, srd, srd_fin, wave_lane
import os

BQ = G(NC=128, wstride=3840, acc0=64, vbase=1, NB=5, INIT=3)
BQ.pfw = 2

def role_b(a, L_attn, dbg=False):
    g = BQ
    VT = 52
    SC = " sc1"
    if dbg: stamp(a, 0)
    srd(a, S_X, KA_BX, 0); srd(a, S_W, KA_BWQKV, 0); srd(a, S_O, KA_WS, 0)
    wave_lane(a, VT)
    a(f"s_lshl_b32 s61, s{S_T+14}, 2")
    a(f"s_add_u32 s61, s61, s{S_WAVE}")
    a(f"s_and_b32 s{S_T}, s2, 7")
    a(f"s_lshr_b32 s{S_T+1}, s2, 3")
    a(f"s_lshr_b32 s{S_T+2}, s{S_T}, 1")
    a(f"s_lshl_b32 s{S_T+2}, s{S_T+2}, 2")
    a(f"s_and_b32 s{S_T+3}, s{S_T}, 1")
    a(f"s_lshr_b32 s{S_T+4}, s{S_T+1}, 3")
    a(f"s_and_b32 s{S_T+5}, s{S_T+1}, 7")
    a(f"s_mul_i32 s{S_T+6}, s{S_T+1}, 37")
    a(f"s_lshr_b32 s{S_T+6}, s{S_T+6}, 8")
    a(f"s_mul_i32 s{S_T+7}, s{S_T+6}, 7")
    a(f"s_sub_u32 s{S_T+7}, s{S_T+1}, s{S_T+7}")
    a(f"s_add_u32 s{S_T+7}, s{S_T+7}, 8")
    a(f"s_cmp_eq_u32 s{S_T+3}, 0")
    a(f"s_cselect_b32 s{S_RB}, s{S_T+4}, s{S_T+6}")
    a(f"s_cselect_b32 s{S_CB}, s{S_T+5}, s{S_T+7}")
    a(f"s_add_u32 s{S_RB}, s{S_RB}, s{S_T+2}")
    a(f"s_mul_i32 s{S_XOFF}, s{S_RB}, {128*1280}")
    a(f"s_lshl_b32 s{S_WOFF}, s{S_CB}, 8")
    a(f"s_mov_b32 s62, s{S_CB}")
    a(f"s_cmp_ge_u32 s{S_T+1}, 28")
    a(f"s_cselect_b32 s99, s{S_T+3}, 0")
    a(f"s_and_b32 s{S_T+8}, s{S_RB}, 3")
    a(f"s_mul_i32 s{S_T+8}, s{S_T+8}, 10")
    a(f"s_and_b32 s{S_T+9}, s{S_CB}, 7")
    a(f"s_mul_i32 s{S_T+9}, s{S_T+9}, 5")
    a(f"s_add_u32 s{S_T+8}, s{S_T+8}, s{S_T+9}")
    a(f"s_lshr_b32 s{S_T+8}, s{S_T+8}, 1")
    a(f"s_cmp_ge_u32 s{S_T+8}, 20")
    a(f"s_cselect_b32 s{S_T+9}, 20, 0")
    a(f"s_sub_u32 s59, s{S_T+8}, s{S_T+9}")
    a(f"s_mov_b32 s67, s{S_WOFF}")
    a("s_waitcnt lgkmcnt(0)")
    srd_fin(a, S_X, 2048*1280); srd_fin(a, S_W, 640*3840); srd_fin(a, S_O, WS_SIZE_SRD)
    lc = a.newlabel("b_compute"); ltail = a.newlabel("b_ltail"); lpub = a.newlabel("b_pub")
    a(f"s_cmp_eq_u32 s{S_T+14}, 0")
    a(f"s_cbranch_scc1 {lc}")
    a("s_cmp_lg_u32 s99, 0")
    a(f"s_cbranch_scc1 {ltail}")
    def tail():
        a.label(ltail)
        a("s_barrier")
        a(f"s_branch {L_attn}")
    loader(a, g, 'lin', tail)
    a.label(lc)
    lnt = a.newlabel("b_notag"); lnp = a.newlabel("b_nopubtag")
    a(f"s_cmp_lg_u32 s{S_WAVE}, 0")
    a(f"s_cbranch_scc1 {lnt}")
    a("s_cmp_lg_u32 s2, 0")
    a(f"s_cbranch_scc1 {lnp}")
    tag_publish(a, KA_DBG)
    a.label(lnp)
    tag_fetch(a, KA_DBG, VT, VT+1)
    a.label(lnt)
    a("s_cmp_lg_u32 s99, 0")
    a(f"s_cbranch_scc1 {lpub}")
    compute_addrs(a, g, VT)
    so = f"s[{S_O}:{S_O+3}]"
    lv = a.newlabel("bq_v")
    a(f"s_cmp_ge_u32 s{S_CB}, 10")
    a(f"s_cbranch_scc1 {lv}")
    compute_loop(a, g, ['FT']*4, False)
    if dbg: a('s_memtime s[76:77]')
    VL16, VL8 = VT, VT+1
    a(f"v_lshlrev_b32 {v(VL16)}, 4, v0")
    a(f"v_lshlrev_b32 {v(VL8)}, 3, v0")
    a(f"s_lshl_b32 s{S_T}, s{S_RB}, 2")
    a(f"s_add_u32 s{S_T}, s{S_T}, s{S_WAVE}")
    lk = a.newlabel("bq_k")
    a(f"s_cmp_ge_u32 s{S_CB}, 5")
    a(f"s_cbranch_scc1 {lk}")
    for typ in ('Q', 'K'):
        if typ == 'K':
            a.label(lk)
            a(f"s_sub_u32 s{S_CB}, s{S_CB}, 5")
            a(f"s_add_u32 s{S_T}, s{S_T}, 63")
            a(f"s_and_b32 s{S_T}, s{S_T}, 63")
            a(f"s_mul_i32 s{S_T+1}, s{S_T}, {TILE_REC}")
            a(f"s_add_u32 s{S_T+2}, s{S_T+1}, 3072")
            h1 = KV_HEAD
        else:
            a(f"s_lshl_b32 s{S_T+1}, s{S_T}, 10")
            a(f"s_add_u32 s{S_T+1}, s{S_T+1}, {WS_Q1}")
            a(f"s_lshl_b32 s{S_T+2}, s{S_T}, 9")
            a(f"s_add_u32 s{S_T+2}, s{S_T+2}, {WS_Q2}")
            h1 = 65536
            a(f"s_mov_b32 s{S_T+4}, {f32hex(QSCALE)}")
        labs = [a.newlabel(f"bq_{typ}{s_}") for s_ in range(5)]
        for s_ in range(1, 5):
            a(f"s_cmp_eq_u32 s{S_CB}, {s_}")
            a(f"s_cbranch_scc1 {labs[s_]}")
        for s_ in range(5):
            a.label(labs[s_])
            a("s_nop 7")
            a("s_nop 3")
            rot = 0
            def pack(Gl, dst):
                R = g.acc + 16*(Gl//4) + 4*(Gl % 4)
                if typ == 'Q':
                    for i in range(4):
                        a(f"v_mul_f32 {v(R+i)}, s{S_T+4}, {v(R+i)}")
                a(f"v_cvt_pk_bf16_f32 {v(dst)}, {v(R)}, {v(R+1)}")
                a(f"v_cvt_pk_bf16_f32 {v(dst+1)}, {v(R+2)}, {v(R+3)}")
            Gl = 0
            while Gl < 16:
                Gi = 16*s_ + Gl
                p, r = divmod(Gi, 5)
                tp = VT + 4 + 4*(rot % 2); rot += 1
                if r in (0, 3) and Gl < 15:
                    pack(Gl, tp); pack(Gl+1, tp+2)
                    head = 2*p + (1 if r == 3 else 0)
                    a(f"s_add_u32 s{S_T+3}, s{S_T+1}, {head*h1}")
                    a(f"buffer_store_dwordx4 {v(tp,4)}, {v(VL16)}, {so}, s{S_T+3} offen{SC}")
                    Gl += 2
                    continue
                pack(Gl, tp)
                if r != 2:
                    head = 2*p + (1 if r >= 3 else 0)
                    off8 = 8*(r if r < 2 else r-3)
                    a(f"s_add_u32 s{S_T+3}, s{S_T+1}, {head*h1}")
                    a(f"buffer_store_dwordx2 {v(tp,2)}, {v(VL16)}, {so}, s{S_T+3} offen offset:{off8}{SC}")
                elif typ == 'Q':
                    a(f"s_add_u32 s{S_T+3}, s{S_T+2}, {p*32768}")
                    a(f"buffer_store_dwordx2 {v(tp,2)}, {v(VL8)}, {so}, s{S_T+3} offen{SC}")
                else:
                    a(f"s_add_u32 s{S_T+3}, s{S_T+2}, {2*p*KV_HEAD}")
                    a(f"buffer_store_dwordx2 {v(tp,2)}, {v(VL8)}, {so}, s{S_T+3} offen{SC}")
                    a(f"s_add_u32 s{S_T+3}, s{S_T+3}, {KV_HEAD}")
                    a(f"buffer_store_dwordx2 {v(tp,2)}, {v(VL8)}, {so}, s{S_T+3} offen{SC}")
                Gl += 1
            a(f"s_branch {lpub}")
    a.label(lv)
    compute_loop(a, g, ['TF']*4, False)
    if dbg: a('s_memtime s[76:77]')
    a(f"s_sub_u32 s{S_CB}, s{S_CB}, 10")
    a(f"s_lshl_b32 s{S_T}, s{S_RB}, 2")
    a(f"s_add_u32 s{S_T}, s{S_T}, s{S_WAVE}")
    a(f"s_mul_i32 s{S_T+1}, s{S_T}, {TILE_REC}")
    a(f"s_add_u32 s{S_T+1}, s{S_T+1}, 1024")
    a(f"s_lshl_b32 s{S_T+2}, s{S_CB}, 7")
    ONE = VT + 8
    for i in range(4):
        a(f"v_mov_b32 {v(ONE+i)}, 0x3f803f80")
    VA, VD, VH, VB = VT, VT+1, VT+2, VT+3
    PK = g.xf[0]
    a(f"v_lshrrev_b32 {v(VH)}, 5, v0")
    a(f"v_lshlrev_b32 {v(VH)}, 9, {v(VH)}")
    a(f"s_mov_b32 s{S_T+3}, {KV_HEAD}")
    a("s_nop 7")
    for ct in range(4):
        a(f"v_and_b32 {v(VD)}, 31, v0")
        a(f"v_add_u32 {v(VD)}, s{S_T+2}, {v(VD)}")
        if ct: a(f"v_add_u32 {v(VD)}, {32*ct}, {v(VD)}")
        a(f"v_mul_u32_u24 {v(VA)}, 52429, {v(VD)}")
        a(f"v_lshrrev_b32 {v(VA)}, 20, {v(VA)}")
        a(f"v_mul_u32_u24 {v(VB)}, 20, {v(VA)}")
        a(f"v_sub_u32 {v(VD)}, {v(VD)}, {v(VB)}")
        a(f"v_mul_lo_u32 {v(VA)}, {v(VA)}, s{S_T+3}")
        a(f"v_lshlrev_b32 {v(VB)}, 4, {v(VD)}")
        a(f"v_add3_u32 {v(VA)}, {v(VA)}, {v(VB)}, {v(VH)}")
        for mf in range(2):
            R = g.acc + 16*ct + 8*mf
            P_ = PK + 4*mf
            for i in range(4):
                a(f"v_cvt_pk_bf16_f32 {v(P_+i)}, {v(R+2*i)}, {v(R+2*i+1)}")
            a(f"buffer_store_dwordx4 {v(P_,4)}, {v(VA)}, {so}, s{S_T+1} offen offset:{1024*mf}{SC}")
        a(f"v_cmp_eq_u32 vcc, 19, {v(VD)}")
        a(f"v_mov_b32 {v(VB)}, 80")
        a("s_nop 0")
        a(f"v_cndmask_b32 {v(VB)}, 32, {v(VB)}, vcc")
        a(f"v_add_u32 {v(VA)}, {v(VA)}, {v(VB)}")
        a(f"v_cmp_le_u32 vcc, 18, {v(VD)}")
        a(f"s_and_saveexec_b64 s[30:31], vcc")
        lsk = a.newlabel("bq_noones")
        a(f"s_cbranch_execz {lsk}")
        for mf in range(2):
            a(f"buffer_store_dwordx4 {v(ONE,4)}, {v(VA)}, {so}, s{S_T+1} offen offset:{1024*mf}{SC}")
        a.label(lsk)
        a("s_mov_b64 exec, -1")
        a("s_nop 1")
    a.label(lpub)
    lw = a.newlabel("b_notagw")
    a(f"s_cmp_lg_u32 s{S_WAVE}, 0")
    a(f"s_cbranch_scc1 {lw}")
    a(f"v_mov_b32 {v(VT)}, 0")
    a(f"v_mov_b32 {v(VT+1)}, s98")
    a(f"ds_write_b32 {v(VT)}, {v(VT+1)}")
    a.label(lw)
    a("s_waitcnt vmcnt(0) lgkmcnt(0)")
    a("s_barrier")
    lnf = a.newlabel("b_noflag")
    a(f"s_cmp_lg_u32 s{S_WAVE}, 0")
    a(f"s_cbranch_scc1 {lnf}")
    a("s_cmp_lg_u32 s99, 0")
    a(f"s_cbranch_scc1 {lnf}")
    a(f"s_lshl_b32 s{S_T}, s62, 7")
    a(f"s_add_u32 s{S_T}, s{S_T}, {WS_FLAGQ}")
    a(f"s_lshl_b32 s{S_T+1}, s{S_RB}, 2")
    a(f"v_mov_b32 {v(VT)}, s{S_T+1}")
    a(f"v_mov_b32 {v(VT+1)}, s98")
    a("s_mov_b64 exec, 1")
    a(f"buffer_store_dword {v(VT+1)}, {v(VT)}, {so}, s{S_T} offen sc1")
    a("s_mov_b64 exec, -1")
    a.label(lnf)
    if dbg: a('s_memtime s[78:79]')
    a(f"s_branch {L_attn}")
```

```python
from asmlib import *
from layout import *

S_X = 8
S_W = 12
S_O = 16
S_WAVE = 20
S_XOFF = 21
S_WOFF = 22
S_LB = 23
S_ST = 24
S_T = 25
S_LBW = 43
S_RB = 40
S_CB = 41
BK = 32
NST = 640 // BK
SPS = 5
XBYTES = 128 * 64

PFOPT = dict(allpre=1, delay0=0, delay1=0, ldelay=0)
GOPT = dict(noload=False, nocomp=False, nomfma=False, ntx=False, ntw=False, ntpf=False, ststamp=False)
class G:
    def __init__(self, NC, wstride, acc0, vbase, NB=5, INIT=None):
        self.NC = NC; self.wstride = wstride
        self.INIT = INIT if INIT is not None else NB - 2
        self.NB = NB; self.DEPTH = NB - 2; self.NSET = NB // SPS
        assert NB % SPS == 0 and NST % NB == 0
        self.NT = NC // 32
        self.rowb = NC * 2
        self.wbytes = BK * self.rowb
        self.wbase = NB * XBYTES
        self.lds = NB * (XBYTES + self.wbytes)
        self.acc = acc0
        r = vbase
        self.nwr = {128: 4, 96: 1, 64: 2}[NC]
        self.vxr = r; r += 2 * self.NSET
        self.vwr = r; r += self.nwr * self.NSET
        r = (r + 3) // 4 * 4
        self.xf = [r, r + 4]; r += 8
        self.wf = [[r + 4 * i + 4 * self.NT * b for i in range(self.NT)] for b in range(2)]; r += 8 * self.NT
        self.vend = r

def loader_addrs(a, g, colmode):
    t0, t1, t2, t3 = 3, 4, 5, 6
    a(f"v_lshrrev_b32 {v(t0)}, 2, v0")
    a(f"v_lshrrev_b32 {v(t1)}, 4, v0")
    a(f"v_and_b32 {v(t2)}, 3, v0")
    a(f"v_xor_b32 {v(t2)}, {v(t2)}, {v(t1)}")
    a(f"v_lshlrev_b32 {v(t2)}, 4, {v(t2)}")
    a(f"s_lshl_b32 s{S_T}, s{S_WAVE}, 4")
    a(f"v_add_u32 {v(t0)}, s{S_T}, {v(t0)}")
    a(f"v_mul_u32_u24 v1, 1280, {v(t0)}")
    a(f"v_add_u32 v1, v1, {v(t2)}")
    if g.NC == 128:
        a(f"v_lshrrev_b32 {v(t0)}, 4, v0")
        a(f"v_and_b32 {v(t1)}, 15, v0")
        a(f"v_lshlrev_b32 {v(t2)}, 2, {v(t0)}")
        a(f"v_xor_b32 {v(t1)}, {v(t1)}, {v(t2)}")
        if colmode == 'qkv':
            a(f"v_mov_b32 {v(t2)}, 0")
            for lim, add in ((5, 1200), (10, 2400), (15, -240)):
                a(f"v_cmp_le_u32 vcc, {lim}, {v(t1)}")
                a(f"v_mov_b32 {v(t3)}, {add}")
                a("s_nop 0")
                a(f"v_cndmask_b32 {v(t2)}, {v(t2)}, {v(t3)}, vcc")
            a(f"v_lshlrev_b32 {v(t1)}, 4, {v(t1)}")
            a(f"v_add_u32 {v(t1)}, {v(t1)}, {v(t2)}")
        else:
            a(f"v_lshlrev_b32 {v(t1)}, 4, {v(t1)}")
        a(f"s_lshl_b32 s{S_T}, s{S_WAVE}, 3")
        a(f"v_add_u32 {v(t0)}, s{S_T}, {v(t0)}")
        a(f"v_mul_u32_u24 v2, {g.wstride}, {v(t0)}")
        a(f"v_add_u32 v2, v2, {v(t1)}")
    elif g.NC == 64:
        a(f"v_lshrrev_b32 {v(t0)}, 3, v0")
        a(f"v_and_b32 {v(t1)}, 7, v0")
        a(f"v_bfe_u32 {v(t2)}, {v(t0)}, 1, 1")
        a(f"v_lshlrev_b32 {v(t2)}, 2, {v(t2)}")
        a(f"v_xor_b32 {v(t1)}, {v(t1)}, {v(t2)}")
        a(f"v_lshlrev_b32 {v(t1)}, 4, {v(t1)}")
        a(f"s_lshl_b32 s{S_T}, s{S_WAVE}, 3")
        a(f"v_add_u32 {v(t0)}, s{S_T}, {v(t0)}")
        a(f"v_mul_u32_u24 v2, {g.wstride}, {v(t0)}")
        a(f"v_add_u32 v2, v2, {v(t1)}")
    else:
        a(f"s_lshl_b32 s{S_T}, s{S_WAVE}, 6")
        a(f"v_add_u32 {v(t0)}, s{S_T}, v0")
        a(f"v_mul_u32_u24 {v(t1)}, 43691, {v(t0)}")
        a(f"v_lshrrev_b32 {v(t1)}, 19, {v(t1)}")
        a(f"v_mul_u32_u24 {v(t2)}, 12, {v(t1)}")
        a(f"v_sub_u32 {v(t2)}, {v(t0)}, {v(t2)}")
        a(f"v_lshlrev_b32 {v(t3)}, 4, {v(t2)}")
        if colmode == 'kv':
            a(f"v_cmp_le_u32 vcc, 5, {v(t2)}")
            a(f"v_mov_b32 {v(t0)}, 1200")
            a("s_nop 0")
            a(f"v_cndmask_b32 {v(t0)}, 0, {v(t0)}, vcc")
            a(f"v_cmp_le_u32 vcc, 10, {v(t2)}")
            a(f"v_mov_b32 {v(t2)}, -160")
            a("s_nop 0")
            a(f"v_cndmask_b32 {v(t0)}, {v(t0)}, {v(t2)}, vcc")
            a(f"v_add_u32 {v(t3)}, {v(t3)}, {v(t0)}")
        a(f"v_mul_u32_u24 v2, {g.wstride}, {v(t1)}")
        a(f"v_add_u32 v2, v2, {v(t3)}")

S_KS = 58
def loader_issue(a, g, with_w=True, slot=0):
    sx = f"s[{S_X}:{S_X+3}]"; sw = f"s[{S_W}:{S_W+3}]"
    fx = " nt" if GOPT['ntx'] else ""; fw = " nt" if GOPT['ntw'] else ""
    fx += getattr(g, 'xflags', '')
    a(f"s_add_u32 m0, s{S_T+2}, {slot*XBYTES}")
    a(f"s_add_u32 s{S_KS}, s{S_KS}, 1")
    a(f"buffer_load_dwordx4 v1, {sx}, s{S_XOFF} offen{fx} lds")
    a(f"s_add_u32 m0, s{S_T+2}, {slot*XBYTES + 4096}")
    a(f"s_cmp_eq_u32 s{S_KS}, {NST}")
    a(f"buffer_load_dwordx4 v8, {sx}, s{S_XOFF} offen{fx} lds")
    n = 2
    a(f"s_cselect_b32 s{S_T+4}, {BK*2 - 1280}, {BK*2}")
    if with_w:
        a(f"s_add_u32 m0, s{S_T+3}, {g.wbase + slot*g.wbytes}")
    a(f"s_add_u32 s{S_XOFF}, s{S_XOFF}, s{S_T+4}")
    if with_w:
        a(f"buffer_load_dwordx4 v2, {sw}, s{S_WOFF} offen{fw} lds")
        n += 1
        if g.NC == 128:
            a(f"buffer_load_dwordx4 v9, {sw}, s{S_WOFF} offen offset:1024{fw} lds")
            n += 1
        elif g.NC == 96:
            a(f"buffer_load_dwordx4 v9, {sw}, s{S_WOFF} offen offset:3072{fw} lds")
            n += 1
    a(f"s_cmp_eq_u32 s{S_KS}, {NST}")
    a(f"s_cselect_b32 s{S_T+4}, s69, s68")
    a(f"s_add_u32 s{S_WOFF}, s{S_WOFF}, s{S_T+4}")
    return n

def loader_body(a, g, with_w, tail=None):
    issued = 0
    n = None
    def issue():
        nonlocal issued, n
        n = loader_issue(a, g, with_w, issued % g.NB)
        issued += 1
    for i in range(g.INIT): issue()
    extra = 0
    if getattr(g, 'pfw', 0):
        LPR = 2 if g.NC == 128 else 2
        nslots = g.pfw * 32 * LPR
        a(f"s_lshl_b32 s{S_T+4}, s{S_WAVE}, 6")
        a(f"v_add_u32 v3, s{S_T+4}, v0")
        a(f"v_lshrrev_b32 v4, 1, v3")
        a(f"v_and_b32 v5, 1, v3")
        a(f"v_lshlrev_b32 v5, 7, v5")
        a(f"s_lshl_b32 s{S_T+4}, s{S_KS}, 5")
        a(f"v_add_u32 v4, s{S_T+4}, v4")
        a(f"v_subrev_u32 v6, 640, v4")
        a(f"v_cmp_le_u32 vcc, 640, v4")
        a("s_nop 1")
        a(f"v_cndmask_b32 v4, v4, v6, vcc")
        a(f"v_mul_u32_u24 v4, {g.wstride}, v4")
        a(f"v_add_u32 v4, v4, v5")
        a(f"v_cmp_gt_u32 vcc, {nslots}, v3")
        a(f"v_mov_b32 v5, 0x7ffffff0")
        a("s_nop 0")
        a(f"v_cndmask_b32 v4, v5, v4, vcc")
        a(f"buffer_load_dword v7, v4, s[{S_W}:{S_W+3}], s67 offen")
        extra = 1
    for s_ in range(NST):
        out = (issued - s_ - 1) * n + (extra if s_ < g.INIT else 0)
        assert out <= 63
        if GOPT['ststamp']:
            a("s_memtime s[90:91]")
            a("s_waitcnt lgkmcnt(0)")
            a(f"v_writelane_b32 v11, s90, {s_}")
        a(f"s_waitcnt vmcnt({out})")
        if GOPT['ststamp']:
            a("s_memtime s[90:91]")
            a("s_waitcnt lgkmcnt(0)")
            a(f"v_writelane_b32 v12, s90, {s_}")
        a("s_barrier")
        if GOPT['ststamp']:
            a("s_memtime s[90:91]")
            a("s_waitcnt lgkmcnt(0)")
            a(f"v_writelane_b32 v10, s90, {s_}")
        if GOPT['noload']: continue
        k = 0
        while issued < NST and issued <= s_ + g.NB - 2 and k < 2:
            issue(); k += 1
    if GOPT['ststamp']:
        a(f"s_load_dwordx2 s[88:89], s[0:1], {KA_WS}")
        a("s_waitcnt lgkmcnt(0)")
        a("s_mov_b32 s90, 0x2000000")
        a("s_mov_b32 s91, 0x00020000")
        a(f"s_lshl_b32 s92, s2, 11")
        a(f"s_lshl_b32 s93, s{S_WAVE}, 9")
        a("s_add_u32 s92, s92, s93")
        import asmlib
        a(f"s_add_u32 s92, s92, {0x1A00000 + asmlib.DBGK[0]*0x100000 + getattr(g, 'stoff', 0)}")
        a("v_lshlrev_b32 v13, 2, v0")
        a("s_mov_b64 exec, 0x1fffff")
        a("buffer_store_dword v10, v13, s[88:91], s92 offen")
        a("buffer_store_dword v11, v13, s[88:91], s92 offen offset:128")
        a("buffer_store_dword v12, v13, s[88:91], s92 offen offset:256")
        a("s_mov_b64 exec, -1")
    if tail: tail()
    a("s_endpgm")

def loader(a, g, colmode, tail=None):
    if PFOPT['ldelay']: a(f"s_sleep {PFOPT['ldelay']}")
    if getattr(g, 'lprio', 0): a(f"s_setprio {g.lprio}")
    loader_addrs(a, g, colmode)
    a(f"v_add_u32 v8, {64*1280}, v1")
    if g.NC == 128: a(f"v_add_u32 v9, {4*g.wstride-1024}, v2")
    if g.NC == 96: a(f"v_add_u32 v9, {16*g.wstride-3072}, v2")
    a(f"s_mov_b32 s68, {BK*g.wstride}")
    a(f"s_mov_b32 s69, {BK*g.wstride - 640*g.wstride}")
    a(f"s_mov_b32 s{S_KS}, s59")
    a(f"s_mul_i32 s{S_T+4}, s59, {BK*2}")
    a(f"s_add_u32 s{S_XOFF}, s{S_XOFF}, s{S_T+4}")
    a(f"s_mul_i32 s{S_T+4}, s59, {BK*g.wstride}")
    a(f"s_add_u32 s{S_WOFF}, s{S_WOFF}, s{S_T+4}")
    a(f"s_lshl_b32 s{S_T+2}, s{S_WAVE}, 10")
    if g.NC == 128:
        a(f"s_lshl_b32 s{S_T+3}, s{S_WAVE}, 11")
    else:
        a(f"s_lshl_b32 s{S_T+3}, s{S_WAVE}, 10")
    if g.NC == 96:
        l3 = a.newlabel("gl_w3")
        a(f"s_cmp_eq_u32 s{S_WAVE}, 3")
        a(f"s_cbranch_scc1 {l3}")
        loader_body(a, g, True, tail)
        a.label(l3)
        loader_body(a, g, False, tail)
    else:
        loader_body(a, g, True, tail)

def compute_addrs(a, g, vt):
    t0, t1, t2 = vt, vt + 1, vt + 2
    a(f"v_and_b32 {v(t0)}, 31, v0")
    a(f"s_lshl_b32 s{S_T}, s{S_WAVE}, 5")
    a(f"v_add_u32 {v(t0)}, s{S_T}, {v(t0)}")
    a(f"v_bfe_u32 {v(t1)}, {v(t0)}, 2, 2")
    a(f"v_lshrrev_b32 {v(t2)}, 5, v0")
    a(f"v_xor_b32 {v(t1)}, {v(t1)}, {v(t2)}")
    a(f"v_lshlrev_b32 {v(t1)}, 4, {v(t1)}")
    a(f"v_lshlrev_b32 {v(t0)}, 6, {v(t0)}")
    a(f"v_add_u32 {v(g.vxr)}, {v(t0)}, {v(t1)}")
    a(f"v_xor_b32 {v(g.vxr+1)}, 32, {v(g.vxr)}")
    a(f"v_bfe_u32 {v(t0)}, v0, 2, 2")
    a(f"v_lshrrev_b32 {v(t1)}, 5, v0")
    a(f"v_lshlrev_b32 {v(t1)}, 3, {v(t1)}")
    a(f"v_add_u32 {v(t1)}, {v(t1)}, {v(t0)}")
    a(f"v_mul_u32_u24 {v(t1)}, {g.rowb}, {v(t1)}")
    a(f"v_bfe_u32 {v(t2)}, v0, 4, 1")
    a(f"v_lshlrev_b32 {v(t2)}, 5, {v(t2)}")
    a(f"v_add_u32 {v(t1)}, {v(t1)}, {v(t2)}")
    a(f"v_and_b32 {v(t2)}, 3, v0")
    a(f"v_lshlrev_b32 {v(t2)}, 3, {v(t2)}")
    a(f"v_add_u32 {v(t1)}, {v(t1)}, {v(t2)}")
    a(f"v_add_u32 {v(t1)}, {g.wbase}, {v(t1)}")
    if g.NC == 128:
        for ct in range(4):
            a(f"v_xor_b32 {v(t2)}, {ct}, {v(t0)}")
            a(f"v_lshlrev_b32 {v(t2)}, 6, {v(t2)}")
            a(f"v_add_u32 {v(g.vwr+ct)}, {v(t1)}, {v(t2)}")
    elif g.NC == 96:
        a(f"v_mov_b32 {v(g.vwr)}, {v(t1)}")
    else:
        a(f"v_lshrrev_b32 {v(t0)}, 1, {v(t0)}")
        for ct in range(2):
            a(f"v_xor_b32 {v(t2)}, {ct}, {v(t0)}")
            a(f"v_lshlrev_b32 {v(t2)}, 6, {v(t2)}")
            a(f"v_add_u32 {v(g.vwr+ct)}, {v(t1)}, {v(t2)}")
    for st in range(1, g.NSET):
        for i in range(2):
            a(f"v_add_u32 {v(g.vxr+2*st+i)}, {st*SPS*XBYTES}, {v(g.vxr+i)}")
        for i in range(g.nwr):
            a(f"v_add_u32 {v(g.vwr+g.nwr*st+i)}, {st*SPS*g.wbytes}, {v(g.vwr+i)}")

def rd_list(g, buf, ks, b):
    st, sl = divmod(buf, SPS)
    L = [f"ds_read_b128 {v(g.xf[b],4)}, {v(g.vxr+2*st+ks)} offset:{sl*XBYTES}"]
    base = sl * g.wbytes
    for i in range(g.NT):
        if g.NC == 96:
            addr = g.vwr + g.nwr*st; off = base + i*64 + ks*16*g.rowb
        else:
            addr = g.vwr + g.nwr*st + i; off = base + ks*16*g.rowb
        L.append(f"ds_read_b64_tr_b16 {v(g.wf[b][i],2)}, {v(addr)} offset:{off}")
        L.append(f"ds_read_b64_tr_b16 {v(g.wf[b][i]+2,2)}, {v(addr)} offset:{off+4*g.rowb}")
    if GOPT['nocomp'] or getattr(g, 'nord', False): L = []
    return L

def mf_list(g, b, orient):
    L = []
    for i in range(g.NT):
        d = g.acc + 16*i
        if orient[i] == 'FT':
            L.append(f"v_mfma_f32_32x32x16_bf16 {v(d,16)}, {v(g.wf[b][i],4)}, {v(g.xf[b],4)}, {v(d,16)}")
        else:
            L.append(f"v_mfma_f32_32x32x16_bf16 {v(d,16)}, {v(g.xf[b],4)}, {v(g.wf[b][i],4)}, {v(d,16)}")
    if GOPT['nocomp'] or GOPT['nomfma'] or getattr(g, 'nomf', False): L = []
    return L

def mfmas(a, g, b, orient):
    for m in mf_list(g, b, orient): a(m)

def interleave(a, g, mf, rd):
    nrd = 1 + 2*g.NT
    if not rd:
        for m in mf: a(m)
        return
    if not mf: mf = None
    per = [3] + [2]*(g.NT-1)
    k = 0
    for i in range(g.NT):
        old_younger = nrd - 3 - 2*i
        a(f"s_waitcnt lgkmcnt({old_younger + k})")
        if mf: a(mf[i])
        for j in range(per[i]):
            a(rd[k]); k += 1

def compute_loop(a, g, orient, dbg=False, pre_loop=None, per_iter=None):
    for r in range(g.acc, g.acc + 16*g.NT):
        a(f"v_mov_b32 {v(r)}, 0")
    for r in list(range(g.xf[1], g.xf[1]+4)) + [g.wf[1][i]+k for i in range(g.NT) for k in range(4)]:
        a(f"v_mov_b32 {v(r)}, 0")
    if pre_loop: pre_loop()
    a(f"s_mov_b32 s{S_ST}, 0")
    if dbg:
        a("s_memtime s[78:79]")
        a("s_waitcnt lgkmcnt(0)")
    loop = a.newlabel("gc_loop")
    a.label(loop)
    for b in range(g.NB):
        a("s_barrier")
        if dbg and b == 0:
            sk = a.newlabel("st")
            a(f"s_cmp_lg_u32 s{S_ST}, 0")
            a(f"s_cbranch_scc1 {sk}")
            a("s_memtime s[76:77]")
            a("s_waitcnt lgkmcnt(0)")
            a.label(sk)
        if b == 0 and per_iter: per_iter()
        interleave(a, g, mf_list(g, 1, orient), rd_list(g, b, 0, 0))
        interleave(a, g, mf_list(g, 0, orient), rd_list(g, b, 1, 1))
    a(f"s_add_u32 s{S_ST}, s{S_ST}, {g.NB}")
    a(f"s_cmp_lt_u32 s{S_ST}, {NST}")
    a(f"s_cbranch_scc1 {loop}")
    a("s_waitcnt lgkmcnt(0)")
    mfmas(a, g, 1, orient)
    if per_iter: a("s_waitcnt vmcnt(0)")

S_PFO = 44+12
S_PFS = 57
class PF:
    SRD = 60
    def __init__(self, vaddr, vdummy):
        self.va = vaddr; self.vd = vdummy
    def issue(self, a):
        a(f"buffer_load_dword {v(self.vd)}, {v(self.va)}, s[{self.SRD}:{self.SRD+3}], s{S_PFO} offen" + (" nt" if GOPT['ntpf'] else ""))
        a(f"s_add_u32 s{S_PFO}, s{S_PFO}, s{S_PFS}")
    def pre(self, a):
        lab = a.newlabel("pf_skip")
        a(f"s_cmp_eq_u32 s{S_WAVE}, 3")
        a(f"s_cbranch_scc1 {lab}")
        if PFOPT['delay0']: a(f"s_sleep {PFOPT['delay0']}")
        self.issue(a)
        if PFOPT['allpre']:
            if PFOPT['delay1']: a(f"s_sleep {PFOPT['delay1']}")
            self.issue(a)
            if PFOPT['delay1']: a(f"s_sleep {PFOPT['delay1']}")
            self.issue(a)
        a.label(lab)
    def iter(self, a):
        if PFOPT['allpre']: return
        lab = a.newlabel("pf_skip")
        a(f"s_cmp_eq_u32 s{S_WAVE}, 3")
        a(f"s_cbranch_scc1 {lab}")
        a(f"s_cmp_ge_u32 s{S_ST}, 10")
        a(f"s_cbranch_scc1 {lab}")
        self.issue(a)
        a.label(lab)
    def select_srd(self, a):
        a(f"s_cmp_eq_u32 s{S_WAVE}, 1")
        for i in range(4):
            a(f"s_cselect_b32 s{self.SRD+i}, s{S_X+i}, s{S_W+i}")

def compute_loop_paced(a, g, orient):
    for r in range(g.acc, g.acc + 16*g.NT):
        a(f"v_mov_b32 {v(r)}, 0")
    a(f"s_mov_b32 s{S_ST}, 0")
    loop = a.newlabel("gp_loop")
    a.label(loop)
    for b in range(g.NB):
        a("s_barrier")
        for ks in range(2):
            rd = rd_list(g, b, ks, ks)
            mf = mf_list(g, ks, orient)
            a(rd[0]); a(rd[1]); a(rd[2])
            for i in range(g.NT):
                a("s_waitcnt lgkmcnt(0)")
                if i + 1 < g.NT:
                    a(rd[3+2*i]); a(rd[4+2*i])
                    a(mf[i])
                else:
                    a(mf[i])
    a(f"s_add_u32 s{S_ST}, s{S_ST}, {g.NB}")
    a(f"s_cmp_lt_u32 s{S_ST}, {NST}")
    a(f"s_cbranch_scc1 {loop}")
```

```python
S = 2048; D = 640; H = 32; DH = 20
TILE_REC = 3584
KV_HEAD = 64 * TILE_REC
WS_KV  = 0
WS_Q1  = 0x700000
WS_Q2  = 0x900000
WS_OB  = 0x980000
WS_OA  = 0xC00000
WS_KVS = 0xE80000
KVS_REC = 21*20*4
KVS_BYTES = 64*KVS_REC
WS_SIZE_SRD = 0x2000000
KA_AX, KA_AWQKV, KA_AWPHI, KA_AWO, KA_BX, KA_BWQKV, KA_BWO, KA_OUT, KA_DBG, KA_WS = [8*i for i in range(10)]
QSCALE = (20 ** -0.5) * 1.4426950408889634
WS_DBG = 0x1800000
WS_KVP = 0xF00000
WS_FLAG = 0xE80000
WS_PHQ = 0x1100000
WS_FLAGB = WS_FLAG + 2048
WS_FLAGA = WS_FLAG + 4096
WS_FLAGQ = WS_FLAG + 8192
WS_OBF = 0x1100000
WS_OAF = 0x1400000
OREC = 48
OBLK = 128*OREC
```

```python
from asmlib import *
from layout import *
import gemm
from gemm import G, XBYTES, S_X, S_W, S_O, S_WAVE, S_T, S_RB, S_CB, GOPT, compute_addrs, rd_list, mf_list, interleave, mfmas
from roles import srd, srd_fin

NB = 5
NS = 24
OF = G(NC=96, wstride=1280, acc0=80, vbase=1, NB=5, INIT=3)
RBB = 32 * OBLK
S_XO = 21; S_WO = 22; S_TT = 58

def scalars(a, branch):
    srd(a, S_X, KA_WS, 0); srd(a, S_O, KA_OUT, 0); srd(a, S_W, KA_AWO if branch == 0 else KA_BWO, 0)
    a(f"s_load_dwordx2 s[62:63], s[0:1], {KA_WS}")
    a(f"s_and_b32 s{S_T}, s2, 7")
    a(f"s_lshr_b32 s{S_T+1}, s2, 4")
    a(f"s_lshl_b32 s{S_RB}, s{S_T}, 1")
    a(f"s_lshr_b32 s{S_T+2}, s{S_T+1}, 3")
    a(f"s_add_u32 s{S_RB}, s{S_RB}, s{S_T+2}")
    a(f"s_and_b32 s{S_CB}, s{S_T+1}, 7")
    a(f"s_mov_b32 s42, {branch}")
    a(f"s_mul_i32 s{S_T+3}, s{S_RB}, {RBB}")
    a(f"s_add_u32 s{S_T+3}, s{S_T+3}, {WS_OAF if branch == 0 else WS_OBF}")
    a("s_waitcnt lgkmcnt(0)")
    a(f"s_add_u32 s{S_X}, s{S_X}, s{S_T+3}")
    a(f"s_addc_u32 s{S_X+1}, s{S_X+1}, 0")
    srd_fin(a, S_X, RBB); srd_fin(a, S_W, 640*1280); srd_fin(a, S_O, 2048*2560)
    a("s_mov_b32 s64, s62"); a("s_mov_b32 s65, s63")
    a(f"s_mov_b32 s66, {WS_SIZE_SRD}"); a("s_mov_b32 s67, 0x00020000")

def poll(a, branch):
    lw = a.newlabel("op_nopoll")
    a(f"s_cmp_lg_u32 s{S_WAVE}, 0")
    a(f"s_cbranch_scc1 {lw}")
    if branch == 1:
        a(f"s_lshr_b32 s{S_T}, s{S_RB}, 1")
        a(f"s_lshl_b32 s{S_T}, s{S_T}, 7")
        a(f"s_add_u32 s{S_T}, s{S_T}, {WS_FLAGB}")
        mask = "0xffffffff"
    else:
        a(f"s_lshl_b32 s{S_T}, s{S_RB}, 7")
        a(f"s_add_u32 s{S_T}, s{S_T}, {WS_FLAGA}")
        mask = "0xffff"
    a(f"s_mov_b32 exec_lo, {mask}")
    a(f"s_mov_b32 exec_hi, 0")
    a(f"v_lshlrev_b32 v3, 2, v0")
    a(f"s_mov_b32 s{S_T+1}, 0")
    lp = a.newlabel("op_poll"); lpd = a.newlabel("op_poll_done")
    a.label(lp)
    a(f"buffer_load_dword v4, v3, s[64:67], s{S_T} offen sc1")
    a("s_waitcnt vmcnt(0)")
    a(f"v_cmp_eq_u32 vcc, s98, v4")
    a(f"s_add_u32 s{S_T+1}, s{S_T+1}, 1")
    a("s_nop 1")
    a(f"s_cmp_eq_u32 vcc_lo, {mask}")
    a(f"s_cbranch_scc1 {lpd}")
    a("s_sleep 4")
    a(f"s_cmp_lt_u32 s{S_T+1}, 0x40000")
    a(f"s_cbranch_scc1 {lp}")
    a.label(lpd)
    if ACQ:
        a("buffer_inv sc1")
        a("s_waitcnt vmcnt(0)")
    a("s_mov_b64 exec, -1")
    a.label(lw)
    a("s_barrier")
ACQ = False
XPF = False

NS = 16
NBR = 4
XST = 2*OBLK
WST = 8192
WBASE = NBR*XST
VW0, VW1, VL16 = 16, 17, 18
def loader_setup(a):
    t0, t1, t2, t3 = 3, 4, 5, 6
    a(f"v_lshlrev_b32 {v(VL16)}, 4, v0")
    for i, dst in enumerate((VW0, VW1)):
        a(f"s_lshl_b32 s{S_T}, s{S_WAVE}, 7")
        if i: a(f"s_add_u32 s{S_T}, s{S_T}, 64")
        a(f"v_add_u32 {v(t0)}, s{S_T}, v0")
        a(f"v_mul_u32_u24 {v(t1)}, 43691, {v(t0)}")
        a(f"v_lshrrev_b32 {v(t1)}, 19, {v(t1)}")
        a(f"v_mul_u32_u24 {v(t2)}, 12, {v(t1)}")
        a(f"v_sub_u32 {v(t2)}, {v(t0)}, {v(t2)}")
        a(f"v_lshlrev_b32 {v(t2)}, 4, {v(t2)}")
        a(f"v_mul_u32_u24 {v(t3)}, 1280, {v(t1)}")
        a(f"v_add_u32 {v(t3)}, {v(t3)}, {v(t2)}")
        a(f"v_cmp_le_u32 vcc, 40, {v(t1)}")
        a(f"v_mov_b32 {v(t2)}, 0x7ff00000")
        a("s_nop 0")
        a(f"v_cndmask_b32 {v(dst)}, {v(t3)}, {v(t2)}, vcc")
    a(f"s_lshl_b32 s{S_TT}, s{S_CB}, 1")
    a(f"s_mul_i32 s{S_XO}, s{S_TT}, {XST}")
    a(f"s_mul_i32 s{S_T}, s{S_WAVE}, 3072")
    a(f"s_add_u32 s{S_XO}, s{S_XO}, s{S_T}")
    a(f"s_mov_b32 s{S_T+2}, s{S_T}")
    a(f"s_lshl_b32 s{S_T+3}, s{S_WAVE}, 11")
    a(f"s_mov_b32 s60, s{S_TT}")
    a(f"s_mul_i32 s{S_WO}, s{S_TT}, {40*1280}")
    a(f"s_mul_i32 s{S_T}, s{S_CB}, 160")
    a(f"s_and_b32 s{S_T}, s{S_T}, -64")
    a(f"s_add_u32 s{S_WO}, s{S_WO}, s{S_T}")
    a(f"s_mov_b32 s68, {XST - 16*XST}")
    a(f"s_mov_b32 s69, {40*1280 - 16*40*1280}")
    a(f"s_mov_b32 s63, {40*1280}")

def issue_w(a, s_):
    slot = s_ % NBR
    sw = f"s[{S_W}:{S_W+3}]"
    a(f"s_add_u32 m0, s{S_T+3}, {WBASE + slot*WST}")
    a(f"s_add_u32 s60, s60, 1")
    a(f"buffer_load_dwordx4 {v(VW0)}, {sw}, s{S_WO} offen lds")
    a(f"s_add_u32 m0, s{S_T+3}, {WBASE + slot*WST + 1024}")
    a(f"s_cmp_eq_u32 s60, 16")
    a(f"buffer_load_dwordx4 {v(VW1)}, {sw}, s{S_WO} offen lds")
    a(f"s_cselect_b32 s{S_T+4}, s69, s63")
    a(f"s_add_u32 s{S_WO}, s{S_WO}, s{S_T+4}")
    return 2
def issue_x(a, s_):
    slot = s_ % NBR
    sx = f"s[{S_X}:{S_X+3}]"
    a(f"s_add_u32 m0, s{S_T+2}, {slot*XST}")
    a(f"s_add_u32 s{S_TT}, s{S_TT}, 1")
    for i in range(3):
        a(f"buffer_load_dwordx4 {v(VL16)}, {sx}, s{S_XO} offen offset:{1024*i} lds")
    a(f"s_cmp_eq_u32 s{S_TT}, 16")
    a(f"s_cselect_b32 s{S_T+4}, s68, {XST}")
    a(f"s_add_u32 s{S_XO}, s{S_XO}, s{S_T+4}")
    return 3

def loader(a, branch):
    scalars(a, branch)
    loader_setup(a)
    a("s_barrier")
    INIT = NBR - 1
    seq = []
    for i in range(INIT):
        issue_w(a, i); seq += [i]*2
    poll(a, branch)
    for i in range(INIT):
        issue_x(a, i); seq += [i]*3
    issued = INIT
    for s_ in range(NS):
        last = max(i for i, st in enumerate(seq) if st == s_)
        if GOPT['ststamp']:
            a("s_memtime s[90:91]"); a("s_waitcnt lgkmcnt(0)"); a(f"v_writelane_b32 v11, s90, {s_}")
        a(f"s_waitcnt vmcnt({len(seq) - 1 - last})")
        if GOPT['ststamp']:
            a("s_memtime s[90:91]"); a("s_waitcnt lgkmcnt(0)"); a(f"v_writelane_b32 v12, s90, {s_}")
        a("s_barrier")
        if GOPT['ststamp']:
            a("s_memtime s[90:91]"); a("s_waitcnt lgkmcnt(0)"); a(f"v_writelane_b32 v10, s90, {s_}")
        while issued < NS and issued <= s_ + NBR - 1:
            issue_w(a, issued); issue_x(a, issued)
            seq += [issued]*5
            issued += 1
    if GOPT['ststamp']:
        a(f"s_lshl_b32 s92, s2, 11")
        a(f"s_lshl_b32 s93, s{S_WAVE}, 9")
        a("s_add_u32 s92, s92, s93")
        a(f"s_lshl_b32 s93, s42, 20")
        a(f"s_add_u32 s92, s92, s93")
        a(f"s_add_u32 s92, s92, {0x1C00000}")
        a("v_lshlrev_b32 v13, 2, v0")
        a("s_mov_b64 exec, 0x3ffffff")
        a("buffer_store_dword v10, v13, s[64:67], s92 offen")
        a("buffer_store_dword v11, v13, s[64:67], s92 offen offset:128")
        a("buffer_store_dword v12, v13, s[64:67], s92 offen offset:256")
        a("s_mov_b64 exec, -1")
    a("s_endpgm")

ACC = 80
XF = [8, 12]
WF = [[16, 20, 24], [28, 32, 36]]
VXA, VXC, VWA, VWC = 1, 2, 3, 4
def compute(a, dbg=False):
    VT = 64
    t0, t1, t2 = VT, VT+1, VT+2
    a(f"v_and_b32 {v(t0)}, 31, v0")
    a(f"s_lshl_b32 s{S_T}, s{S_WAVE}, 5")
    a(f"v_add_u32 {v(t0)}, s{S_T}, {v(t0)}")
    a(f"v_mul_u32_u24 {v(t0)}, {OREC}, {v(t0)}")
    a(f"v_lshrrev_b32 {v(t1)}, 5, v0")
    a(f"v_lshl_add_u32 {v(VXA)}, {v(t1)}, 4, {v(t0)}")
    a(f"v_mul_u32_u24 {v(t2)}, {OBLK}, {v(t1)}")
    a(f"v_add3_u32 {v(VXC)}, {v(t0)}, {v(t2)}, 32")
    a(f"v_bfe_u32 {v(t0)}, v0, 2, 2")
    a(f"v_bfe_u32 {v(t2)}, v0, 4, 1")
    a(f"v_lshlrev_b32 {v(t2)}, 5, {v(t2)}")
    a(f"v_and_b32 {v(VWC)}, 3, v0")
    a(f"v_lshl_add_u32 {v(t2)}, {v(VWC)}, 3, {v(t2)}")
    a(f"v_add_u32 {v(t2)}, {WBASE}, {v(t2)}")
    a(f"s_and_b32 s{S_T}, s{S_CB}, 1")
    a(f"s_lshl_b32 s{S_T}, s{S_T}, 5")
    a(f"v_add_u32 {v(t2)}, s{S_T}, {v(t2)}")
    a(f"v_lshl_add_u32 {v(VWA)}, {v(t1)}, 3, {v(t0)}")
    a(f"v_mul_u32_u24 {v(VWA)}, 192, {v(VWA)}")
    a(f"v_add_u32 {v(VWA)}, {v(VWA)}, {v(t2)}")
    a(f"v_mul_u32_u24 {v(VWC)}, 20, {v(t1)}")
    a(f"v_add3_u32 {v(VWC)}, {v(VWC)}, {v(t0)}, 16")
    a(f"v_mul_u32_u24 {v(VWC)}, 192, {v(VWC)}")
    a(f"v_add_u32 {v(VWC)}, {v(VWC)}, {v(t2)}")
    for r in range(ACC, ACC+48):
        a(f"v_mov_b32 {v(r)}, 0")
    a("s_barrier")
    if dbg: a("s_memtime s[76:77]")
    if XPF:
        lsk = a.newlabel("xpf_skip")
        a(f"s_cmp_eq_u32 s{S_WAVE}, 3")
        a(f"s_cbranch_scc1 {lsk}")
        a(f"s_mul_i32 s{S_T}, s{S_CB}, 192")
        a(f"s_lshl_b32 s{S_T+1}, s{S_WAVE}, 6")
        a(f"s_add_u32 s{S_T}, s{S_T}, s{S_T+1}")
        a(f"v_add_u32 {v(VT)}, s{S_T}, v0")
        a(f"v_lshlrev_b32 {v(VT)}, 7, {v(VT)}")
        a(f"buffer_load_dword {v(VT+1)}, {v(VT)}, s[{S_X}:{S_X+3}], 0 offen")
        a.label(lsk)
    def reads(stage, kind, b):
        slot = stage % NBR
        xo = slot*XST; wo = slot*WST
        L = []
        if kind == 'C':
            L.append((f"ds_read_b64 {v(XF[b],2)}, {v(VXC)} offset:{xo}", 'x'))
            for i in range(3):
                L.append((f"ds_read_b64_tr_b16 {v(WF[b][i],2)}, {v(VWC)} offset:{wo + i*64}", i))
        else:
            hb = 0 if kind == 'A' else 1
            L.append((f"ds_read_b128 {v(XF[b],4)}, {v(VXA)} offset:{xo + hb*OBLK}", 'x'))
            for i in range(3):
                off = wo + i*64 + hb*20*192
                L.append((f"ds_read_b64_tr_b16 {v(WF[b][i],2)}, {v(VWA)} offset:{off}", i))
                L.append((f"ds_read_b64_tr_b16 {v(WF[b][i]+2,2)}, {v(VWA)} offset:{off + 4*192}", i))
        return L
    def mf(kind, b, i):
        d = ACC + 16*i
        if kind == 'C':
            return f"v_mfma_f32_32x32x8_bf16 {v(d,16)}, {v(WF[b][i],2)}, {v(XF[b],2)}, {v(d,16)}"
        return f"v_mfma_f32_32x32x16_bf16 {v(d,16)}, {v(WF[b][i],4)}, {v(XF[b],4)}, {v(d,16)}"
    steps = [(st, k) for st in range(NS) for k in 'ABC']
    queue = []
    def wait_for(step, tag):
        need = [n for n, (s_, t_) in enumerate(queue) if s_ == step and (t_ == tag or t_ == 'x')]
        if not need: return
        last = max(need)
        a(f"s_waitcnt lgkmcnt({min(15, len(queue) - 1 - last)})")
        del queue[:last+1]
    a("s_barrier")
    for (txt, tag) in reads(0, 'A', 0):
        a(txt); queue.append((0, tag))
    for n, (st, k) in enumerate(steps):
        b = n & 1
        nxt = steps[n+1] if n+1 < len(steps) else None
        R = []
        if nxt:
            if nxt[1] == 'A':
                a("s_waitcnt lgkmcnt(0)"); queue.clear()
                a("s_barrier")
            R = reads(nxt[0], nxt[1], b ^ 1)
        per = [3, 2, 2] if len(R) == 7 else ([2, 1, 1] if len(R) == 4 else [0, 0, 0])
        kk = 0
        for i in range(3):
            wait_for(n, i)
            a(mf(k, b, i))
            for j in range(per[i]):
                a(R[kk][0]); queue.append((n+1, R[kk][1])); kk += 1
    a("s_waitcnt vmcnt(0)")
    if dbg: a("s_memtime s[78:79]")
    so = f"s[{S_O}:{S_O+3}]"
    VA = VT
    a(f"v_and_b32 {v(VA)}, 31, v0")
    a(f"s_lshl_b32 s{S_T}, s{S_RB}, 7")
    a(f"s_lshl_b32 s{S_T+1}, s{S_WAVE}, 5")
    a(f"s_add_u32 s{S_T}, s{S_T}, s{S_T+1}")
    a(f"v_add_u32 {v(VA)}, s{S_T}, {v(VA)}")
    a(f"v_mul_u32_u24 {v(VA)}, 2560, {v(VA)}")
    a(f"v_lshrrev_b32 {v(VA+1)}, 5, v0")
    a(f"v_lshlrev_b32 {v(VA+1)}, 4, {v(VA+1)}")
    a(f"v_add_u32 {v(VA)}, {v(VA)}, {v(VA+1)}")
    a(f"s_mul_i32 s{S_T+2}, s42, 1280")
    a(f"s_mul_i32 s{S_T+3}, s{S_CB}, 160")
    a(f"s_add_u32 s{S_T+2}, s{S_T+2}, s{S_T+3}")
    a("s_nop 7")
    a("s_nop 3")
    for pr in range(5):
        G0 = 2*pr
        R0 = ACC + 16*(G0//4) + 4*(G0 % 4)
        R1 = R0 + 4
        P_ = VT + 4 + 4*(pr % 2)
        a(f"v_cvt_pk_bf16_f32 {v(P_)}, {v(R0)}, {v(R0+1)}")
        a(f"v_cvt_pk_bf16_f32 {v(P_+1)}, {v(R0+2)}, {v(R0+3)}")
        a(f"v_cvt_pk_bf16_f32 {v(P_+2)}, {v(R1)}, {v(R1+1)}")
        a(f"v_cvt_pk_bf16_f32 {v(P_+3)}, {v(R1+2)}, {v(R1+3)}")
        a("s_nop 1")
        a(f"v_permlane32_swap_b32 {v(P_)}, {v(P_+2)}")
        a(f"v_permlane32_swap_b32 {v(P_+1)}, {v(P_+3)}")
        a("s_nop 1")
        a(f"buffer_store_dwordx4 {v(P_,4)}, {v(VA)}, {so}, s{S_T+2} offen offset:{32*pr}")

def publish_block(a, PK, vt, lds_base_sgpr, ntok, srd_txt, soff_sgpr):
    pass
```

```python
import sys, os
from asmlib import *
from layout import *
import attn
import roles
import arole
import bq
import asmlib

HEADER = open('concat_heads__linear_kernel_hedgehog__mha_block__prompt.s.ref').read().split('; Override launch geometry')[0] if False else None

HDR = """; Kernarg layout for this problem (80 bytes, ptrs only, base s[0:1]):
;   offset  56: d_out     shape=(1, 2048, 1280) dtype=bfloat16 (2 bytes/elem)
"""

def build(launches, kernels):
    out = HDR
    for (n, g, b, lds) in launches:
        out += f"; @launch kernel={n} grid=({g},1,1) block=({b},1,1) lds={lds}\n"
    out += '.amdgcn_target "amdgcn-amd-amdhsa--gfx950"\n.text\n'
    for (n, fn, nv) in kernels:
        a = Asm()
        a.uid = 1000 * (1 + [k[0] for k in kernels].index(n))
        import asmlib
        asmlib.DBGK[0] = {"qkv_kernel":0, "attn_kernel":1, "proj_kernel":2, "mega_kernel":1}[n] if (len(kernels) >= 2 or n == "mega_kernel") else 0
        kernel_header(a, n)
        fn(a)
        txt_k = a.text()
        fl = os.environ.get('STF_' + n.split('_')[0].upper(), '')
        if fl:
            lines = []
            for ln in txt_k.split("\n"):
                if ln.strip().startswith("buffer_store") and " sc1" not in ln and "s[88:91]" not in ln:
                    ln = ln + " " + fl
                lines.append(ln)
            txt_k = "\n".join(lines)
        out += txt_k
    out += '.section .rodata,"a"\n'
    for (n, fn, nv) in kernels:
        out += kernel_desc(n, nv)
    return out

def k2(a):
    done = a.newlabel("done")
    la = a.newlabel("arole")
    a("s_cmp_ge_u32 s2, 512")
    a(f"s_cbranch_scc1 {done}")
    a("s_cmp_ge_u32 s2, 256")
    a(f"s_cbranch_scc1 {la}")
    attn.gen_attn(a, dbg_time=DBG)
    import outp
    if attn.FUSE: outp.emit_shared(a)
    for _ in range(int(os.environ.get('APAD', '0'))//4): a("s_nop 0")
    a.label(la)
    if os.environ.get('A_OFF') == '1': a("s_endpgm")
    a("s_mov_b32 s54, s2")
    a("s_sub_u32 s2, s2, 256")
    if AMODE == 'k1': arole.role_a2(a, dbg=DBG)
    else: arole.role_a(a, dbg=DBG, mode='k2')
    a.label(done)
    a("s_endpgm")
    attn.emit_slow_paths(a)
    a.label("L_k2_code_end")
AMODE = os.environ.get('AMODE', 'k2')
WITH_A = False
WITH_B = True

def k1(a):
    done = a.newlabel("done")
    if AMODE == 'k1':
        lb = a.newlabel("brole")
        a("s_cmp_ge_u32 s2, 512")
        a(f"s_cbranch_scc1 {done}")
        a("s_cmp_ge_u32 s2, 256")
        a(f"s_cbranch_scc1 {lb}")
        arole.role_a(a, dbg=DBG, mode='k1')
        a.label(lb)
        a("s_sub_u32 s2, s2, 256")
    else:
        a("s_cmp_ge_u32 s2, 256")
        a(f"s_cbranch_scc1 {done}")
    roles.role_bqkv(a, dbg=DBG)
    a.label(done)
    a("s_endpgm")
def k3(a):
    done = a.newlabel("done")
    a("s_cmp_ge_u32 s2, 256")
    a(f"s_cbranch_scc1 {done}")
    roles.role_out(a, dbg=DBG)
    a.label(done)
    a("s_endpgm")
def kmega(a):
    done = a.newlabel("done")
    la = a.newlabel("arole")
    latt = a.newlabel("attn_entry")
    a("s_cmp_ge_u32 s2, 512")
    a(f"s_cbranch_scc1 {done}")
    a("s_cmp_ge_u32 s2, 256")
    a(f"s_cbranch_scc1 {la}")
    bq.role_b(a, latt, dbg=DBG)
    a.label(latt)
    attn.gen_attn(a, dbg_time=DBG)
    a.label(la)
    a("s_mov_b32 s54, s2")
    a("s_sub_u32 s2, s2, 256")
    arole.role_a(a, dbg=DBG, mode='k2')
    a.label(done)
    a("s_endpgm")
    attn.emit_slow_paths(a)
DBG = False
if __name__ == "__main__":
    DBG = len(sys.argv) > 3 and sys.argv[3] == "dbg"
    for kv in sys.argv[4:]:
        k_, v_ = kv.split("=")
        import gemm
        if k_ in attn.OPT: attn.OPT[k_] = (v_ == "1")
        elif k_ in gemm.GOPT: gemm.GOPT[k_] = (v_ == "1")
        elif k_ in gemm.PFOPT: gemm.PFOPT[k_] = int(v_)
        elif k_ in ('XPF', 'ACQ'):
            import outp; setattr(outp, k_, v_ == "1")
        else: setattr(roles, k_, v_ == "1")
    asmlib.OFFDBG[0] = os.environ.get('OFFDBG') == '1'
    mode = sys.argv[1]
    outp = sys.argv[2]
    if mode == "attn":
        attn.FUSE = False; arole.FUSE = False
        txt = build([("attn_kernel", 256, 512, 2*attn.CH_BYTES)], [("attn_kernel", k2, 128)])
    if mode == "bqkv":
        txt = build([("qkv_kernel", 256, 512, roles.BQ.lds)], [("qkv_kernel", k1, roles.BQ_NVGPR)])
    if mode == "out":
        txt = build([("proj_kernel", 256, 512, roles.OP.lds)], [("proj_kernel", k3, roles.OP_NVGPR)])
    if mode == "arole":
        WITH_A = True; WITH_B = False
        txt = build([("qkv_kernel", 256, 512, roles.BQ.lds), ("attn_kernel", 512, 512, arole.AG.lds)],
                    [("qkv_kernel", k1, roles.BQ_NVGPR), ("attn_kernel", k2, 128)])
    if mode == "full":
        attn.FUSE = False; arole.FUSE = False
        WITH_A = True; WITH_B = True
        arole.AG.lprio = int(os.environ.get('ALPRIO', '3'))
        if AMODE == 'k2': arole.AG.lprio = 0
        txt = build([("qkv_kernel", 512 if AMODE == 'k1' else 256, 512, roles.BQ.lds), ("attn_kernel", 512, 512, 2*attn.CH_BYTES if AMODE == 'k1' else arole.AG.lds), ("proj_kernel", 256, 512, roles.OP.lds)],
                    [("qkv_kernel", k1, roles.BQ_NVGPR), ("attn_kernel", k2, 128), ("proj_kernel", k3, roles.OP_NVGPR)])
    if mode == "mega":
        asmlib.MEGA[0] = True
        arole.AG.lprio = 0
        txt = build([("mega_kernel", 512, 512, 81920)], [("mega_kernel", kmega, 128)])
    if mode == "fused":
        arole.AG.lprio = int(os.environ.get('ALP', '0'))
        arole.AG.nomf = os.environ.get('A_NOMF') == '1'
        arole.AG.nord = os.environ.get('A_NORD') == '1'
        txt = build([("qkv_kernel", 256, 512, roles.BQ.lds), ("attn_kernel", 512, 512, 81920)],
                    [("qkv_kernel", k1, roles.BQ_NVGPR), ("attn_kernel", k2, 128)])
    open(outp, "w").write(txt)
```

```python
from asmlib import *
from layout import *
import roles, gemm, outp
FUSE = True
WOPF = True
import os
CODEPF = int(os.environ.get('CODEPF', '0'))

CH = 8
CH_BYTES = CH * TILE_REC
NCH = 64 // CH
OPT = dict(nodma=False, nobar=False, nolds=False, prio=True, vmask=False, forcefb=False, cl4=False, uni=True)

V_A16 = 1
V_A8  = 2
V_G16 = 3
SA, SB = 4, 20
OA, OB = 36, 52
PA, PB = 68, 76
Q1A, Q1B = 84, 88
Q2A, Q2B = 92, 94
K1 = [96, 100]
VV0 = [104, 112]
VV1 = [108, 116]
K2 = [120, 122]
ATTN_NVGPR = 124
V_T0 = SA

S_WS = 8
S_HEAD = 12
S_QB = 13
S_WAVE = 14
S_DMAOFF = 15
S_LDSW = 16
S_BUFD = 17
S_CNT = 18
S_DMABUF = 19
S_T = 20

def mfma32(a, d, A, B, C, k16=True):
    op = "v_mfma_f32_32x32x16_bf16" if k16 else "v_mfma_f32_32x32x8_bf16"
    n = 4 if k16 else 2
    c = "0" if C is None else v(C, 16)
    a(f"{op} {v(d,16)}, {v(A,n)}, {v(B,n)}, {c}")

PENDING = []
def cvts(a, Sr, P, q):
    a(f"v_cvt_pk_bf16_f32 {v(P+2*q)}, {v(Sr+4*q)}, {v(Sr+4*q+1)}")
    a(f"v_cvt_pk_bf16_f32 {v(P+2*q+1)}, {v(Sr+4*q+2)}, {v(Sr+4*q+3)}")
def flush_cvts(a):
    while PENDING:
        cvts(a, *PENDING.pop(0))
def exps(a, Sr, P, q):
    for i in range(4):
        a(f"v_exp_f32 {v(Sr+4*q+i)}, {v(Sr+4*q+i)}")
    flush_cvts(a)
    PENDING.append((Sr, P, q))

def dma_chunk(a):
    srd = f"s[{S_WS}:{S_WS+3}]"
    a(f"s_add_u32 m0, s{S_DMABUF}, s{S_LDSW}")
    a("s_nop 0")
    for i in range(4):
        a(f"buffer_load_dwordx4 {v(V_G16)}, {srd}, s{S_DMAOFF} offen offset:{i*1024} lds")
    a(f"s_add_u32 m0, m0, 4096")
    a(f"s_add_u32 s{S_DMAOFF}, s{S_DMAOFF}, 4096")
    for i in range(3):
        a(f"buffer_load_dwordx4 {v(V_G16)}, {srd}, s{S_DMAOFF} offen offset:{i*1024} lds")
    a(f"s_add_u32 s{S_DMAOFF}, s{S_DMAOFF}, {CH_BYTES-4096}")

def safety_check_and_fallback(a):
    srd = f"s[{S_WS}:{S_WS+3}]"
    T = SA
    lok = a.newlabel("att_ok")
    a("s_nop 7")
    a("s_nop 3")
    a(f"v_lshrrev_b32 {v(T)}, 5, v0")
    a(f"v_cmp_eq_u32 vcc, 0, {v(T)}")
    a(f"s_mov_b64 s[26:27], 0")
    a(f"s_mov_b32 s28, 0x1f800000")
    a(f"s_mov_b32 s29, 0x5f800000")
    for O in (OA, OB):
        a(f"v_cndmask_b32 {v(T+1)}, {v(O+8)}, {v(O+12)}, vcc")
        a(f"v_pk_mul_f32 {v(T+2,2)}, {v(O,2)}, 0 op_sel_hi:[1,0]")
        for i in (2, 4, 6):
            a(f"v_pk_fma_f32 {v(T+2,2)}, {v(O+i,2)}, 0, {v(T+2,2)} op_sel_hi:[1,0,1]")
        a(f"v_pk_mul_f32 {v(T+4,2)}, {v(O+8,2)}, 0 op_sel_hi:[1,0]")
        a(f"v_pk_fma_f32 {v(T+4,2)}, {v(O+10,2)}, 0, {v(T+4,2)} op_sel_hi:[1,0,1]")
        a(f"v_cmp_nle_f32 s[22:23], s28, {v(T+1)}")
        a(f"v_cmp_nge_f32 s[24:25], s29, {v(T+1)}")
        a(f"v_cmp_u_f32 s[30:31], {v(T+2)}, {v(T+3)}")
        a(f"v_cmp_u_f32 s[36:37], {v(T+4)}, {v(T+5)}")
        a("s_nop 1")
        a("s_or_b64 s[26:27], s[26:27], s[22:23]")
        a("s_or_b64 s[26:27], s[26:27], s[24:25]")
        a("s_or_b64 s[26:27], s[26:27], s[30:31]")
        a("s_and_b64 s[36:37], s[36:37], vcc")
        a("s_or_b64 s[26:27], s[26:27], s[36:37]")
    if OPT['forcefb']:
        a("s_mov_b64 s[26:27], -1")
    a("s_cmp_eq_u64 s[26:27], 0")
    a(f"s_cbranch_scc1 {lok}")
    G16 = V_G16; G8 = T+1; MA, MB, TM = T+2, T+3, 120
    X = [SA + 0]
    SX, SY = 20, 100
    KA1, KA2, VA0, VA1 = 116, 122, 68, 72
    PX, PY = 76, 8
    MA, MB, TM = 4, 6, 7
    G8 = 5
    a(f"v_lshlrev_b32 {v(G8)}, 3, v0")
    a(f"s_mul_i32 s22, s{S_HEAD}, {KV_HEAD}")
    a(f"s_and_b32 s23, s{S_HEAD}, 1")
    a(f"s_cmp_eq_u32 s23, 0")
    a(f"s_cselect_b32 s36, -1, 0")
    a(f"s_cselect_b32 s37, 0, -1")
    a(f"v_mov_b32 {v(KA2)}, 0"); a(f"v_mov_b32 {v(KA2+1)}, 0")
    a(f"v_mov_b32 {v(MA)}, 0xff800000"); a(f"v_mov_b32 {v(MB)}, 0xff800000")
    def load_k():
        a(f"s_add_u32 s24, s{S_CNT}, 63")
        a(f"s_and_b32 s24, s24, 63")
        a(f"s_mul_i32 s24, s24, {TILE_REC}")
        a(f"s_add_u32 s24, s24, s22")
        a(f"buffer_load_dwordx4 {v(KA1,4)}, {v(G16)}, {srd}, s24 offen")
        a(f"s_mov_b64 exec, s[36:37]")
        a(f"buffer_load_dwordx2 {v(KA2,2)}, {v(G8)}, {srd}, s24 offen offset:3072")
        a(f"s_mov_b64 exec, -1")
    def qk():
        mfma32(a, SX, KA1, Q1A, None); mfma32(a, SX, KA2, Q2A, SX, k16=False)
        mfma32(a, SY, KA1, Q1B, None); mfma32(a, SY, KA2, Q2B, SY, k16=False)
        a("s_nop 7"); a("s_nop 7")
    a(f"s_mov_b32 s{S_CNT}, 0")
    l1 = a.newlabel("fb_max")
    a.label(l1)
    load_k()
    a("s_waitcnt vmcnt(0)")
    qk()
    for (Sx, M) in ((SX, MA), (SY, MB)):
        for i in range(0, 16, 2):
            a(f"v_max3_f32 {v(M)}, {v(M)}, {v(Sx+i)}, {v(Sx+i+1)}")
    a(f"s_add_u32 s{S_CNT}, s{S_CNT}, 1")
    a(f"s_cmp_lt_u32 s{S_CNT}, 64")
    a(f"s_cbranch_scc1 {l1}")
    for M in (MA, MB):
        a(f"v_mov_b32 {v(TM)}, {v(M)}")
        a("s_nop 1")
        a(f"v_permlane32_swap_b32 {v(M)}, {v(TM)}")
        a("s_nop 1")
        a(f"v_max_f32 {v(M)}, {v(M)}, {v(TM)}")
    for r in list(range(OA, OA+32)) + list(range(VA0, VA0+8)):
        a(f"v_mov_b32 {v(r)}, 0")
    a(f"s_mov_b32 s{S_CNT}, 0")
    l2 = a.newlabel("fb_main")
    a.label(l2)
    load_k()
    a(f"s_mul_i32 s24, s{S_CNT}, {TILE_REC}")
    a(f"s_add_u32 s24, s24, s22")
    a(f"s_mov_b64 exec, s[34:35]")
    a(f"buffer_load_dwordx4 {v(VA0,4)}, {v(G16)}, {srd}, s24 offen offset:1024")
    a(f"buffer_load_dwordx4 {v(VA1,4)}, {v(G16)}, {srd}, s24 offen offset:2048")
    a(f"s_mov_b64 exec, -1")
    a("s_waitcnt vmcnt(0)")
    qk()
    for (Sx, M, P, O) in ((SX, MA, PX, OA), (SY, MB, PY, OB)):
        for i in range(16):
            a(f"v_sub_f32 {v(Sx+i)}, {v(Sx+i)}, {v(M)}")
        for i in range(16):
            a(f"v_exp_f32 {v(Sx+i)}, {v(Sx+i)}")
        a("s_nop 0")
        for k in range(8):
            a(f"v_cvt_pk_bf16_f32 {v(P+k)}, {v(Sx+2*k)}, {v(Sx+2*k+1)}")
        a("s_nop 1")
        mfma32(a, O, VA0, P, O)
        mfma32(a, O, VA1, P+4, O)
    a(f"s_add_u32 s{S_CNT}, s{S_CNT}, 1")
    a(f"s_cmp_lt_u32 s{S_CNT}, 64")
    a(f"s_cbranch_scc1 {l2}")
    a("s_nop 7")
    a("s_nop 7")
    a.label(lok)

def gen_attn(a, dbg_time=False):
    srd = f"s[{S_WS}:{S_WS+3}]"
    if dbg_time and not MEGA[0]: stamp(a, 0)
    a(f"s_load_dwordx2 s[{S_WS}:{S_WS+1}], s[0:1], {KA_WS}")
    if FUSE and WOPF:
        a(f"s_load_dwordx2 s[40:41], s[0:1], {KA_AWO}")
        a(f"s_load_dwordx2 s[42:43], s[0:1], {KA_BWO}")
    a(f"s_and_b32 s{S_T}, s2, 7")
    a(f"s_lshr_b32 s{S_T+1}, s2, 3")
    a(f"s_and_b32 s{S_T+2}, s{S_T+1}, 3")
    a(f"s_lshl_b32 s{S_HEAD}, s{S_T}, 2")
    a(f"s_add_u32 s{S_HEAD}, s{S_HEAD}, s{S_T+2}")
    a(f"s_lshr_b32 s{S_QB}, s{S_T+1}, 2")
    if MEGA[0]:
        a(f"s_mov_b32 s{S_WAVE}, s61")
    else:
        a(f"v_lshrrev_b32 {v(SA)}, 6, v0")
        a(f"v_and_b32 v0, 63, v0")
        a(f"v_readfirstlane_b32 s{S_WAVE}, {v(SA)}")
        a("s_mov_b32 s98, 1")
    a(f"v_lshlrev_b32 {v(V_G16)}, 4, v0")
    a(f"s_mul_i32 s{S_T+6}, s{S_HEAD}, {KV_HEAD}")
    a("s_waitcnt lgkmcnt(0)")
    a(f"s_mov_b32 s{S_WS+2}, {WS_SIZE_SRD}")
    a(f"s_mov_b32 s{S_WS+3}, 0x00020000")
    a(f"s_mov_b32 s61, s{S_WAVE}")
    lcomp = a.newlabel("attn_compute")
    a(f"s_cmp_lt_u32 s{S_WAVE}, 4")
    a(f"s_cbranch_scc1 {lcomp}")
    if MEGA[0]:
        lnp = a.newlabel("q2_nopoll")
        a(f"s_cmp_lg_u32 s{S_WAVE}, 4")
        a(f"s_cbranch_scc1 {lnp}")
        a("v_mov_b32 v4, 0")
        a("ds_read_b32 v5, v4")
        a("s_waitcnt lgkmcnt(0)")
        a("v_readfirstlane_b32 s98, v5")
        a(f"s_lshr_b32 s{S_T}, s{S_HEAD}, 1")
        a(f"s_mul_i32 s{S_T}, s{S_T}, 40")
        a(f"s_add_u32 s{S_T+1}, s{S_T}, 39")
        a(f"s_lshr_b32 s{S_T}, s{S_T}, 7")
        a(f"s_lshr_b32 s{S_T+1}, s{S_T+1}, 7")
        a(f"v_lshrrev_b32 v4, 4, v0")
        a(f"v_and_b32 v5, 1, v4")
        a(f"s_sub_u32 s{S_T+2}, s{S_T+1}, s{S_T}")
        a(f"v_mul_u32_u24 v5, s{S_T+2}, v5")
        a(f"v_lshrrev_b32 v4, 1, v4")
        a(f"v_mul_u32_u24 v4, 5, v4")
        a(f"v_add3_u32 v4, v4, v5, s{S_T}")
        a(f"v_add_u32 v4, 5, v4")
        a(f"v_lshlrev_b32 v4, 7, v4")
        a(f"v_and_b32 v5, 15, v0")
        a(f"v_lshl_add_u32 v4, v5, 2, v4")
        a(f"v_and_b32 v6, 1, v0")
        a(f"v_mul_u32_u24 v6, s{S_T+2}, v6")
        a(f"v_add_u32 v6, s{S_T}, v6")
        a(f"v_lshlrev_b32 v6, 7, v6")
        a(f"v_bfe_u32 v7, v0, 1, 1")
        a(f"s_lshl_b32 s{S_T+3}, s{S_QB}, 1")
        a(f"v_add_u32 v7, s{S_T+3}, v7")
        a(f"v_lshl_add_u32 v6, v7, 2, v6")
        a(f"s_mov_b32 s{S_T+3}, {WS_FLAGQ}")
        a(f"s_mov_b32 s{S_T+4}, 0")
        lp = a.newlabel("q2_poll"); lpd = a.newlabel("q2_done")
        a.label(lp)
        a(f"buffer_load_dword v8, v4, {srd}, s{S_T+3} offen sc1")
        a(f"buffer_load_dword v9, v6, {srd}, s{S_T+3} offen sc1")
        a("s_waitcnt vmcnt(0)")
        a(f"v_cmp_eq_u32 vcc, s98, v8")
        a(f"v_cmp_eq_u32 s[28:29], s98, v9")
        a(f"s_add_u32 s{S_T+4}, s{S_T+4}, 1")
        a("s_nop 1")
        a("s_and_b64 vcc, vcc, s[28:29]")
        a("s_cmp_eq_u64 vcc, -1")
        a(f"s_cbranch_scc1 {lpd}")
        a("s_sleep 2")
        a(f"s_cmp_lt_u32 s{S_T+4}, 0x40000")
        a(f"s_cbranch_scc1 {lp}")
        a.label(lpd)
        a.label(lnp)
        a("s_barrier")
    a(f"s_sub_u32 s{S_T}, s{S_WAVE}, 4")
    a(f"s_mul_i32 s{S_LDSW}, s{S_T}, 7168")
    a(f"s_add_u32 s{S_DMAOFF}, s{S_T+6}, s{S_LDSW}")
    a(f"s_mov_b32 s{S_DMABUF}, 0")
    dma_chunk(a)
    if CODEPF:
        lcp = a.newlabel("codepf_skip"); lpc = a.newlabel("codepf_pc")
        a(f"s_lshr_b32 s{S_T}, s2, 3")
        a(f"s_cmp_ge_u32 s{S_T}, {CODEPF}")
        a(f"s_cbranch_scc1 {lcp}")
        a(f"s_cmp_lg_u32 s{S_WAVE}, 7")
        a(f"s_cbranch_scc1 {lcp}")
        a("s_getpc_b64 s[36:37]")
        a.label(lpc)
        a(f"s_lshl_b32 s{S_T}, s{S_T}, 13")
        a(f"v_lshlrev_b32 v6, 7, v0")
        a(f"v_add_u32 v6, s{S_T}, v6")
        a(f"v_mov_b32 v7, s37")
        a(f"v_subrev_u32 v8, ({lpc} - attn_kernel), v6") if False else None
        a(f"s_sub_u32 s36, s36, ({lpc} - attn_kernel)")
        a(f"s_subb_u32 s37, s37, 0")
        a(f"v_mov_b32 v7, s37")
        a(f"v_add_co_u32 v6, vcc, s36, v6")
        a("s_nop 1")
        a(f"v_addc_co_u32 v7, vcc, 0, v7, vcc")
        a(f"v_lshlrev_b32 v9, 7, v0")
        a(f"v_add_u32 v9, s{S_T}, v9")
        a(f"v_cmp_gt_u32 vcc, (L_k2_code_end - attn_kernel), v9")
        a("s_and_saveexec_b64 s[38:39], vcc")
        a(f"s_cbranch_execz {lcp}_r")
        a(f"global_load_dword v8, v[6:7], off")
        a.label(f"{lcp}_r")
        a("s_mov_b64 exec, -1")
        a.label(lcp)
    if FUSE and WOPF:
        a(f"s_lshr_b32 s{S_T}, s2, 3")
        a(f"s_mul_i32 s{S_T}, s{S_T}, 200")
        a(f"s_sub_u32 s{S_T+1}, s{S_WAVE}, 4")
        a(f"s_lshl_b32 s{S_T+1}, s{S_T+1}, 6")
        a(f"s_add_u32 s{S_T}, s{S_T}, s{S_T+1}")
        a(f"v_add_u32 v4, s{S_T}, v0")
        a(f"v_lshlrev_b32 v4, 7, v4")
        a(f"s_mov_b32 s46, {640*1280}")
        a(f"s_mov_b32 s47, 0x00020000")
    a(f"s_mov_b32 s{S_DMABUF}, {CH_BYTES}")
    a(f"s_mov_b32 s{S_CNT}, 0")
    a("s_waitcnt vmcnt(0)")
    a("s_barrier")
    lloop = a.newlabel("ld_loop"); lskip = a.newlabel("ld_skip")
    a.label(lloop)
    a(f"s_cmp_ge_u32 s{S_CNT}, {NCH-1}")
    a(f"s_cbranch_scc1 {lskip}")
    if not OPT['nodma']:
        dma_chunk(a)
    if FUSE and WOPF:
        lsk = a.newlabel("wopf_skip")
        a(f"s_sub_u32 s{S_T+1}, s{S_CNT}, 1")
        a(f"s_cmp_gt_u32 s{S_T+1}, 1")
        a(f"s_cbranch_scc1 {lsk}")
        a(f"s_cmp_eq_u32 s{S_CNT}, 1")
        a(f"s_cselect_b32 s44, s40, s42")
        a(f"s_cselect_b32 s45, s41, s43")
        a(f"buffer_load_dword v5, v4, s[44:47], 0 offen")
        a.label(lsk)
    a(f"s_sub_u32 s{S_DMABUF}, {CH_BYTES}, s{S_DMABUF}")
    a("s_waitcnt vmcnt(0)")
    a.label(lskip)
    if not OPT['nobar']:
        a("s_barrier")
    if gemm.GOPT['ststamp']:
        a("s_memtime s[90:91]"); a("s_waitcnt lgkmcnt(0)")
        a(f"s_mov_b32 m0, s{S_CNT}")
        a("s_sub_u32 s90, s90, s70")
        a("v_writelane_b32 v14, s90, m0")
    a(f"s_add_u32 s{S_CNT}, s{S_CNT}, 1")
    a(f"s_cmp_lt_u32 s{S_CNT}, {NCH}")
    a(f"s_cbranch_scc1 {lloop}")
    if gemm.GOPT['ststamp']:
        a(f"s_lshl_b32 s92, s2, 7")
        a(f"s_add_u32 s92, s92, {0x1E00000}")
        a("v_lshlrev_b32 v13, 2, v0")
        a(f"s_cmp_lg_u32 s{S_WAVE}, 4")
        lss = a.newlabel("ss_skip")
        a(f"s_cbranch_scc1 {lss}")
        a("s_mov_b64 exec, 0xff")
        a(f"buffer_store_dword v14, v13, {srd}, s92 offen")
        a("s_mov_b64 exec, -1")
        a.label(lss)
    if FUSE:
        lx = a.newlabel("ld_exit")
        a("s_bitcmp1_b32 s2, 3")
        a(f"s_cbranch_scc1 {lx}")
        a(f"s_and_b32 s{gemm.S_WAVE}, s{S_WAVE}, 3")
        outp.loader(a, 1)
        a.label(lx)
    a("s_endpgm")
    a.label(lcomp)
    if MEGA[0]: a("s_barrier")
    if OPT['prio']: a("s_setprio 2")
    a(f"v_mov_b32 {v(V_A16)}, {v(V_G16)}")
    a(f"v_lshlrev_b32 {v(V_A8)}, 3, v0")
    a(f"s_lshl_b32 s{S_T}, s{S_QB}, 3")
    a(f"s_lshl_b32 s{S_T+1}, s{S_WAVE}, 1")
    a(f"s_add_u32 s{S_T}, s{S_T}, s{S_T+1}")
    a(f"s_lshl_b32 s{S_T+1}, s{S_HEAD}, 6")
    a(f"s_add_u32 s{S_T+1}, s{S_T+1}, s{S_T}")
    a(f"s_lshl_b32 s{S_T+1}, s{S_T+1}, 10")
    a(f"s_add_u32 s{S_T+1}, s{S_T+1}, {WS_Q1}")
    a(f"buffer_load_dwordx4 {v(Q1A,4)}, {v(V_G16)}, {srd}, s{S_T+1} offen")
    a(f"buffer_load_dwordx4 {v(Q1B,4)}, {v(V_G16)}, {srd}, s{S_T+1} offen offset:1024")
    a(f"s_lshr_b32 s{S_T+2}, s{S_HEAD}, 1")
    a(f"s_lshl_b32 s{S_T+2}, s{S_T+2}, 6")
    a(f"s_add_u32 s{S_T+2}, s{S_T+2}, s{S_T}")
    a(f"s_lshl_b32 s{S_T+2}, s{S_T+2}, 9")
    a(f"s_add_u32 s{S_T+2}, s{S_T+2}, {WS_Q2}")
    a(f"buffer_load_dwordx2 {v(Q2A,2)}, {v(V_A8)}, {srd}, s{S_T+2} offen")
    a(f"buffer_load_dwordx2 {v(Q2B,2)}, {v(V_A8)}, {srd}, s{S_T+2} offen offset:512")
    a(f"s_add_u32 s{S_T+3}, s{S_T+6}, {63*TILE_REC}")
    a(f"buffer_load_dwordx4 {v(K1[1],4)}, {v(V_G16)}, {srd}, s{S_T+3} offen")
    a(f"buffer_load_dwordx2 {v(K2[1],2)}, {v(V_A8)}, {srd}, s{S_T+3} offen offset:3072")
    for r in list(range(OA, OA+32)) + list(range(PB, PB+8)) + list(range(SB+12, SB+16)) + list(range(VV0[1], VV0[1]+4)) + list(range(VV1[1], VV1[1]+4)) + list(range(VV0[0], VV0[0]+4)) + list(range(VV1[0], VV1[0]+4)):
        a(f"v_mov_b32 {v(r)}, 0")
    a(f"s_and_b32 s{S_T+3}, s{S_HEAD}, 1")
    a(f"s_cmp_eq_u32 s{S_T+3}, 0")
    a(f"s_cselect_b32 s{S_T+4}, 0, -1")
    a(f"s_cselect_b32 s{S_T+5}, -1, 0")
    a(f"s_mov_b32 s{S_BUFD}, {CH_BYTES}")
    a("s_mov_b32 s34, 0x011fffff")
    a("s_mov_b32 s35, 0x011fffff")
    a("s_waitcnt vmcnt(0)")
    a(f"s_mov_b64 exec, s[{S_T+4}:{S_T+5}]")
    for r in (Q2A, Q2A+1, Q2B, Q2B+1):
        a(f"v_mov_b32 {v(r)}, 0")
    a("s_mov_b64 exec, -1")
    a("s_nop 1")
    mfma32(a, SA, K1[1], Q1A, None)
    mfma32(a, SA, K2[1], Q2A, SA, k16=False)
    a(f"s_mov_b32 s{S_CNT}, 0")
    a("s_barrier")
    def rd(txt):
        if not OPT['nolds']: a(txt)
    def reads(st, off):
        rd(f"ds_read_b128 {v(K1[st],4)}, {v(V_A16)} offset:{off}")
        rd(f"ds_read_b64 {v(K2[st],2)}, {v(V_A8)} offset:{off+3072}")
        if OPT['vmask']: a("s_mov_b64 exec, s[34:35]")
        rd(f"ds_read_b128 {v(VV0[st],4)}, {v(V_A16)} offset:{off+1024}")
        rd(f"ds_read_b128 {v(VV1[st],4)}, {v(V_A16)} offset:{off+2048}")
        if OPT['vmask']: a("s_mov_b64 exec, -1")
    reads(0, 0)
    a("s_nop 7")
    if dbg_time:
        stamp(a, 1)
        a("s_waitcnt lgkmcnt(0)")
    loop = a.newlabel("attn_loop")
    a.raw(".p2align 6")
    a.label(loop)
    def E(Sr, i): a(f"v_exp_f32 {v(Sr+i)}, {v(Sr+i)}")
    def C(Sr, P, k): a(f"v_cvt_pk_bf16_f32 {v(P+k)}, {v(Sr+2*k)}, {v(Sr+2*k+1)}")
    PEND = []
    def phase(Sr, P, m, rds):
        if OPT['uni']:
            for q in range(4):
                m[q]()
                if q == 0:
                    for r_ in rds[0:2]: rd(r_)
                if q == 1 and rds:
                    if OPT['vmask']: a("s_mov_b64 exec, s[34:35]")
                    for r_ in rds[2:4]: rd(r_)
                    if OPT['vmask']: a("s_mov_b64 exec, -1")
                for i in range(4): E(Sr, 4*q+i)
                while PEND:
                    (s_, p_, k_) = PEND.pop(0); C(s_, p_, k_)
                PEND.append((Sr, P, 2*q)); PEND.append((Sr, P, 2*q+1))
            return
        if OPT['cl4']:
            m[0]()
            for r_ in rds[0:2]: rd(r_)
            for i in (0, 1, 2): E(Sr, i)
            m[1]()
            if rds and OPT['vmask']: a("s_mov_b64 exec, s[34:35]")
            for r_ in rds[2:4]: rd(r_)
            if rds and OPT['vmask']: a("s_mov_b64 exec, -1")
            for i in (3, 4, 5): E(Sr, i)
            m[2]()
            for i in (6, 7, 8): E(Sr, i)
            m[3]()
            for i in range(9, 16): E(Sr, i)
            for k in range(8): C(Sr, P, k)
            return
        m[0]()
        for r_ in rds[0:2]: rd(r_)
        for i in (0, 1, 2): E(Sr, i)
        m[1]()
        if rds and OPT['vmask']: a("s_mov_b64 exec, s[34:35]")
        for r_ in rds[2:4]: rd(r_)
        if rds and OPT['vmask']: a("s_mov_b64 exec, -1")
        for i in (3, 4, 5, 6, 7): E(Sr, i)
        for k in (0, 1, 2, 3): C(Sr, P, k)
        m[2]()
        for i in (8, 9, 10): E(Sr, i)
        m[3]()
        for i in (11, 12, 13, 14, 15): E(Sr, i)
        for k in (4, 5, 6, 7): C(Sr, P, k)
    if OPT['uni']:
        PEND.append((SB, PB, 6)); PEND.append((SB, PB, 7))
    for j in range(CH):
        p = j & 1; pn = p ^ 1
        phase(SA, PA, [lambda: mfma32(a, OB, VV0[pn], PB, OB), lambda: mfma32(a, SB, K1[pn], Q1B, None),
                       lambda: mfma32(a, SB, K2[pn], Q2B, SB, k16=False), lambda: mfma32(a, OB, VV1[pn], PB+4, OB)], [])
        if not OPT['nolds']: a("s_waitcnt lgkmcnt(0)")
        if j == CH-1:
            if not OPT['nobar']:
                a("s_barrier")
            a(f"v_add_u32 {v(V_A16)}, s{S_BUFD}, {v(V_A16)}")
            a(f"v_add_u32 {v(V_A8)}, s{S_BUFD}, {v(V_A8)}")
            a(f"s_sub_u32 s{S_BUFD}, 0, s{S_BUFD}")
            off = 0
        else:
            off = (j+1)*TILE_REC
        rds = [f"ds_read_b128 {v(K1[pn],4)}, {v(V_A16)} offset:{off}",
               f"ds_read_b64 {v(K2[pn],2)}, {v(V_A8)} offset:{off+3072}",
               f"ds_read_b128 {v(VV0[pn],4)}, {v(V_A16)} offset:{off+1024}",
               f"ds_read_b128 {v(VV1[pn],4)}, {v(V_A16)} offset:{off+2048}"]
        phase(SB, PB, [lambda: mfma32(a, OA, VV0[p], PA, OA), lambda: mfma32(a, SA, K1[p], Q1A, None),
                       lambda: mfma32(a, SA, K2[p], Q2A, SA, k16=False), lambda: mfma32(a, OA, VV1[p], PA+4, OA)], rds)
    a(f"s_add_u32 s{S_CNT}, s{S_CNT}, 1")
    a(f"s_cmp_lt_u32 s{S_CNT}, {NCH}")
    a(f"s_cbranch_scc1 {loop}")
    if dbg_time: stamp(a, 2)
    if OPT['uni']:
        while PEND:
            (s_, p_, k_) = PEND.pop(0); C(s_, p_, k_)
    a("s_nop 1")
    mfma32(a, OB, VV0[1], PB, OB)
    mfma32(a, OB, VV1[1], PB+4, OB)
    safety_check_and_fallback(a)
    T = 84
    a(f"v_and_b32 {v(T)}, 31, v0")
    a(f"v_lshrrev_b32 {v(T+1)}, 5, v0")
    a(f"v_cmp_eq_u32 vcc, 0, {v(T+1)}")
    if FUSE:
        a(f"s_mul_i32 s{S_T}, s{S_WAVE}, {64*OREC}")
        a(f"s_add_u32 s{S_T}, s{S_T}, 61440")
        a(f"v_mul_u32_u24 {v(T)}, {OREC}, {v(T)}")
        a(f"v_lshl_add_u32 {v(T)}, {v(T+1)}, 3, {v(T)}")
        a(f"v_add_u32 {v(T)}, s{S_T}, {v(T)}")
        a(f"v_lshlrev_b32 {v(T+2)}, 4, v0")
        a(f"v_add_u32 {v(T+10)}, s{S_T}, {v(T+2)}")
        a(f"s_lshl_b32 s{S_T+1}, s{S_QB}, 1")
        a(f"s_lshr_b32 s{S_T+2}, s{S_WAVE}, 1")
        a(f"s_add_u32 s{S_T+1}, s{S_T+1}, s{S_T+2}")
        a(f"s_lshl_b32 s{S_T+1}, s{S_T+1}, 5")
        a(f"s_add_u32 s{S_T+1}, s{S_T+1}, s{S_HEAD}")
        a(f"s_mul_i32 s{S_T+1}, s{S_T+1}, {OBLK}")
        a(f"s_and_b32 s{S_T+2}, s{S_WAVE}, 1")
        a(f"s_mul_i32 s{S_T+2}, s{S_T+2}, {64*OREC}")
        a(f"s_add_u32 s{S_T+2}, s{S_T+2}, s{S_T+1}")
        a(f"s_add_u32 s{S_T+2}, s{S_T+2}, {WS_OBF}")
    else:
        a(f"s_lshl_b32 s{S_T}, s{S_QB}, 8")
        a(f"s_lshl_b32 s{S_T+1}, s{S_WAVE}, 6")
        a(f"s_add_u32 s{S_T}, s{S_T}, s{S_T+1}")
        a(f"v_add_u32 {v(T)}, s{S_T}, {v(T)}")
        a(f"v_mul_u32_u24 {v(T)}, 1280, {v(T)}")
        a(f"v_lshlrev_b32 {v(T+2)}, 3, {v(T+1)}")
        a(f"v_add_u32 {v(T)}, {v(T)}, {v(T+2)}")
        a(f"s_mul_i32 s{S_T+2}, s{S_HEAD}, 40")
        a(f"s_add_u32 s{S_T+2}, s{S_T+2}, {WS_OB}")
    a("s_nop 1")
    for n_, (O, extra) in enumerate(((OA, 0), (OB, 32*1280))):
        if n_ == 1:
            a("s_nop 7")
        a(f"v_cndmask_b32 {v(T+3)}, {v(O+8)}, {v(O+12)}, vcc")
        a(f"v_rcp_f32 {v(T+3)}, {v(T+3)}")
        a("s_nop 0")
        for i in range(12):
            a(f"v_mul_f32 {v(O+i)}, {v(O+i)}, {v(T+3)}")
        for i in range(6):
            a(f"v_cvt_pk_bf16_f32 {v(T+4+i)}, {v(O+2*i)}, {v(O+2*i+1)}")
        if FUSE:
            off = n_*32*OREC
            a(f"v_cndmask_b32 {v(T+8)}, 0, {v(T+8)}, vcc")
            a(f"v_cndmask_b32 {v(T+9)}, 0, {v(T+9)}, vcc")
            a(f"ds_write_b64 {v(T)}, {v(T+4,2)} offset:{off}")
            a(f"ds_write_b64 {v(T)}, {v(T+6,2)} offset:{off+16}")
            a(f"ds_write_b64 {v(T)}, {v(T+8,2)} offset:{off+32}")
        else:
            if extra:
                a(f"s_add_u32 s{S_T+2}, s{S_T+2}, {extra}")
            a(f"buffer_store_dwordx2 {v(T+4,2)}, {v(T)}, {srd}, s{S_T+2} offen")
            a(f"buffer_store_dwordx2 {v(T+6,2)}, {v(T)}, {srd}, s{S_T+2} offen offset:16")
            a("s_mov_b32 exec_hi, 0")
            a(f"buffer_store_dwordx2 {v(T+8,2)}, {v(T)}, {srd}, s{S_T+2} offen offset:32")
            a(f"s_mov_b64 exec, -1")
    if FUSE:
        a("s_waitcnt lgkmcnt(0)")
        a(f"ds_read_b128 {v(4,4)}, {v(T+10)}")
        a(f"ds_read_b128 {v(8,4)}, {v(T+10)} offset:1024")
        a(f"ds_read_b128 {v(12,4)}, {v(T+10)} offset:2048")
        a("s_waitcnt lgkmcnt(0)")
        a(f"buffer_store_dwordx4 {v(4,4)}, {v(T+2)}, {srd}, s{S_T+2} offen sc1")
        a(f"buffer_store_dwordx4 {v(8,4)}, {v(T+2)}, {srd}, s{S_T+2} offen offset:1024 sc1")
        a(f"buffer_store_dwordx4 {v(12,4)}, {v(T+2)}, {srd}, s{S_T+2} offen offset:2048 sc1")
    if FUSE:
        a("s_waitcnt vmcnt(0) lgkmcnt(0)")
        a("s_barrier")
        lnf = a.newlabel("att_noflag")
        a(f"s_cmp_lg_u32 s{S_WAVE}, 0")
        a(f"s_cbranch_scc1 {lnf}")
        a(f"s_lshl_b32 s{S_T}, s{S_QB}, 7")
        a(f"s_add_u32 s{S_T}, s{S_T}, {WS_FLAGB}")
        a(f"s_lshl_b32 s{S_T+1}, s{S_HEAD}, 2")
        a(f"v_mov_b32 {v(T)}, s{S_T+1}")
        a(f"v_mov_b32 {v(T+1)}, s98")
        a("s_mov_b64 exec, 1")
        a(f"buffer_store_dword {v(T+1)}, {v(T)}, {srd}, s{S_T} offen sc1")
        a("s_mov_b64 exec, -1")
        a.label(lnf)
        lx = a.newlabel("att_exit")
        a("s_bitcmp1_b32 s2, 3")
        a(f"s_cbranch_scc1 {lx}")
        a(f"s_mov_b32 s60, s{S_WAVE}")
        a(f"s_mov_b32 s{gemm.S_WAVE}, s60")
        a("s_setprio 0")
        outp.scalars(a, 1)
        outp.compute(a, dbg_time)
        a.label(lx)
        if dbg_time: a(f"s_mov_b32 s{S_WAVE}, s60") if False else None
    if dbg_time:
        a("s_waitcnt vmcnt(0)")
        stamp_end(a, WS_DBG, KA_WS, 61)
    a("s_endpgm")
```

```python
from asmlib import *
from layout import *
import gemm
from gemm import G, XBYTES, S_X, S_W, S_O, S_WAVE, S_T, S_RB, S_CB, GOPT, compute_addrs, rd_list, mf_list, interleave, mfmas
from roles import srd, srd_fin
import os

NB = 5
NS = 24
OF = G(NC=96, wstride=1280, acc0=80, vbase=1, NB=5, INIT=3)
RBB = 32 * OBLK
S_XO = 21; S_WO = 22; S_TT = 58

def scalars(a, branch):
    srd(a, S_X, KA_WS, 0); srd(a, S_O, KA_OUT, 0); srd(a, S_W, KA_AWO if branch == 0 else KA_BWO, 0)
    a(f"s_load_dwordx2 s[62:63], s[0:1], {KA_WS}")
    a(f"s_and_b32 s{S_T}, s2, 7")
    a(f"s_lshr_b32 s{S_T+1}, s2, 4")
    a(f"s_lshl_b32 s{S_RB}, s{S_T}, 1")
    a(f"s_lshr_b32 s{S_T+2}, s{S_T+1}, 3")
    a(f"s_add_u32 s{S_RB}, s{S_RB}, s{S_T+2}")
    a(f"s_and_b32 s{S_CB}, s{S_T+1}, 7")
    a(f"s_mov_b32 s42, {branch}")
    a(f"s_mul_i32 s{S_T+3}, s{S_RB}, {RBB}")
    a(f"s_add_u32 s{S_T+3}, s{S_T+3}, {WS_OAF if branch == 0 else WS_OBF}")
    a("s_waitcnt lgkmcnt(0)")
    a(f"s_add_u32 s{S_X}, s{S_X}, s{S_T+3}")
    a(f"s_addc_u32 s{S_X+1}, s{S_X+1}, 0")
    srd_fin(a, S_X, RBB); srd_fin(a, S_W, 640*1280); srd_fin(a, S_O, 2048*2560)
    a("s_mov_b32 s64, s62"); a("s_mov_b32 s65, s63")
    a(f"s_mov_b32 s66, {WS_SIZE_SRD}"); a("s_mov_b32 s67, 0x00020000")

def poll(a, branch):
    lw = a.newlabel("op_nopoll")
    a(f"s_cmp_lg_u32 s{S_WAVE}, 0")
    a(f"s_cbranch_scc1 {lw}")
    if branch == 1:
        a(f"s_lshr_b32 s{S_T}, s{S_RB}, 1")
        a(f"s_lshl_b32 s{S_T}, s{S_T}, 7")
        a(f"s_add_u32 s{S_T}, s{S_T}, {WS_FLAGB}")
        mask = "0xffffffff"
    else:
        a(f"s_lshl_b32 s{S_T}, s{S_RB}, 7")
        a(f"s_add_u32 s{S_T}, s{S_T}, {WS_FLAGA}")
        mask = "0xffff"
    a(f"s_mov_b32 exec_lo, {mask}")
    a(f"s_mov_b32 exec_hi, 0")
    a(f"v_lshlrev_b32 v3, 2, v0")
    a(f"s_mov_b32 s{S_T+1}, 0")
    lp = a.newlabel("op_poll"); lpd = a.newlabel("op_poll_done")
    a(f"buffer_load_dword v4, v3, s[64:67], s{S_T} offen sc1")
    a("s_sleep 6")
    a(f"buffer_load_dword v5, v3, s[64:67], s{S_T} offen sc1")
    a("s_sleep 6")
    a.label(lp)
    for (cur, nxt) in ((4, 6), (5, 4), (6, 5)):
        a(f"buffer_load_dword v{nxt}, v3, s[64:67], s{S_T} offen sc1")
        a("s_waitcnt vmcnt(2)")
        a(f"v_cmp_eq_u32 vcc, s98, v{cur}")
        a("s_nop 1")
        a(f"s_cmp_eq_u32 vcc_lo, {mask}")
        a(f"s_cbranch_scc1 {lpd}")
        a("s_sleep 4")
    a(f"s_add_u32 s{S_T+1}, s{S_T+1}, 1")
    a(f"s_cmp_lt_u32 s{S_T+1}, 0x20000")
    a(f"s_cbranch_scc1 {lp}")
    a.label(lpd)
    a("s_waitcnt vmcnt(0)")
    if ACQ:
        a("buffer_inv sc1")
        a("s_waitcnt vmcnt(0)")
    a("s_mov_b64 exec, -1")
    a.label(lw)
    a("s_barrier")
ACQ = False
XPF = False

NS = 16
NBR = 4
XST = 2*OBLK
WST = 8192
WBASE = NBR*XST
VW0, VW1, VL16 = 16, 17, 18
def loader_setup(a):
    t0, t1, t2, t3 = 3, 4, 5, 6
    a(f"v_lshlrev_b32 {v(VL16)}, 4, v0")
    for i, dst in enumerate((VW0, VW1)):
        a(f"s_lshl_b32 s{S_T}, s{S_WAVE}, 7")
        if i: a(f"s_add_u32 s{S_T}, s{S_T}, 64")
        a(f"v_add_u32 {v(t0)}, s{S_T}, v0")
        a(f"v_mul_u32_u24 {v(t1)}, 43691, {v(t0)}")
        a(f"v_lshrrev_b32 {v(t1)}, 19, {v(t1)}")
        a(f"v_mul_u32_u24 {v(t2)}, 12, {v(t1)}")
        a(f"v_sub_u32 {v(t2)}, {v(t0)}, {v(t2)}")
        a(f"v_lshlrev_b32 {v(t2)}, 4, {v(t2)}")
        a(f"v_mul_u32_u24 {v(t3)}, 1280, {v(t1)}")
        a(f"v_add_u32 {v(t3)}, {v(t3)}, {v(t2)}")
        a(f"v_cmp_le_u32 vcc, 40, {v(t1)}")
        a(f"v_mov_b32 {v(t2)}, 0x7ff00000")
        a("s_nop 0")
        a(f"v_cndmask_b32 {v(dst)}, {v(t3)}, {v(t2)}, vcc")
    a(f"s_lshl_b32 s{S_TT}, s{S_CB}, 1")
    a(f"s_mul_i32 s{S_XO}, s{S_TT}, {XST}")
    a(f"s_mul_i32 s{S_T}, s{S_WAVE}, 3072")
    a(f"s_add_u32 s{S_XO}, s{S_XO}, s{S_T}")
    a(f"s_mov_b32 s{S_T+2}, s{S_T}")
    a(f"s_lshl_b32 s{S_T+3}, s{S_WAVE}, 11")
    a(f"s_mov_b32 s60, s{S_TT}")
    a(f"s_mul_i32 s{S_WO}, s{S_TT}, {40*1280}")
    a(f"s_mul_i32 s{S_T}, s{S_CB}, 160")
    a(f"s_and_b32 s{S_T}, s{S_T}, -64")
    a(f"s_add_u32 s{S_WO}, s{S_WO}, s{S_T}")
    a(f"s_mov_b32 s68, {XST - 16*XST}")
    a(f"s_mov_b32 s69, {40*1280 - 16*40*1280}")
    a(f"s_mov_b32 s63, {40*1280}")

def issue_w(a, s_):
    slot = s_ % NBR
    sw = f"s[{S_W}:{S_W+3}]"
    a(f"s_add_u32 m0, s{S_T+3}, {WBASE + slot*WST}")
    a(f"s_add_u32 s60, s60, 1")
    a(f"buffer_load_dwordx4 {v(VW0)}, {sw}, s{S_WO} offen lds")
    a(f"s_add_u32 m0, s{S_T+3}, {WBASE + slot*WST + 1024}")
    a(f"s_cmp_eq_u32 s60, 16")
    a(f"buffer_load_dwordx4 {v(VW1)}, {sw}, s{S_WO} offen lds")
    a(f"s_cselect_b32 s{S_T+4}, s69, s63")
    a(f"s_add_u32 s{S_WO}, s{S_WO}, s{S_T+4}")
    return 2
def issue_x(a, s_):
    slot = s_ % NBR
    sx = f"s[{S_X}:{S_X+3}]"
    a(f"s_add_u32 m0, s{S_T+2}, {slot*XST}")
    a(f"s_add_u32 s{S_TT}, s{S_TT}, 1")
    for i in range(3):
        a(f"buffer_load_dwordx4 {v(VL16)}, {sx}, s{S_XO} offen offset:{1024*i} lds")
    a(f"s_cmp_eq_u32 s{S_TT}, 16")
    a(f"s_cselect_b32 s{S_T+4}, s68, {XST}")
    a(f"s_add_u32 s{S_XO}, s{S_XO}, s{S_T+4}")
    return 3

def loader(a, branch):
    scalars(a, branch)
    loader_setup(a)
    a("s_barrier")
    INIT = NBR - 1
    seq = []
    for i in range(INIT):
        issue_w(a, i); seq += [i]*2
    poll(a, branch)
    for i in range(INIT):
        issue_x(a, i); seq += [i]*3
    issued = INIT
    for s_ in range(NS):
        last = max(i for i, st in enumerate(seq) if st == s_)
        if GOPT['ststamp']:
            a("s_memtime s[90:91]"); a("s_waitcnt lgkmcnt(0)"); a(f"v_writelane_b32 v11, s90, {s_}")
        a(f"s_waitcnt vmcnt({len(seq) - 1 - last})")
        if GOPT['ststamp']:
            a("s_memtime s[90:91]"); a("s_waitcnt lgkmcnt(0)"); a(f"v_writelane_b32 v12, s90, {s_}")
        a("s_barrier")
        if GOPT['ststamp']:
            a("s_memtime s[90:91]"); a("s_waitcnt lgkmcnt(0)"); a(f"v_writelane_b32 v10, s90, {s_}")
        while issued < NS and issued <= s_ + NBR - 1:
            issue_w(a, issued); issue_x(a, issued)
            seq += [issued]*5
            issued += 1
    if GOPT['ststamp']:
        a(f"s_lshl_b32 s92, s2, 11")
        a(f"s_lshl_b32 s93, s{S_WAVE}, 9")
        a("s_add_u32 s92, s92, s93")
        a(f"s_lshl_b32 s93, s42, 20")
        a(f"s_add_u32 s92, s92, s93")
        a(f"s_add_u32 s92, s92, {0x1C00000}")
        a("v_lshlrev_b32 v13, 2, v0")
        a("s_mov_b64 exec, 0x3ffffff")
        a("buffer_store_dword v10, v13, s[64:67], s92 offen")
        a("buffer_store_dword v11, v13, s[64:67], s92 offen offset:128")
        a("buffer_store_dword v12, v13, s[64:67], s92 offen offset:256")
        a("s_mov_b64 exec, -1")
    a("s_endpgm")

ACC = 80
XF = [8, 12]
WF = [[16, 20, 24], [28, 32, 36]]
VXA, VXC, VWA, VWC = 1, 2, 3, 4
def compute(a, dbg=False):
    VT = 64
    t0, t1, t2 = VT, VT+1, VT+2
    a(f"v_and_b32 {v(t0)}, 31, v0")
    a(f"s_lshl_b32 s{S_T}, s{S_WAVE}, 5")
    a(f"v_add_u32 {v(t0)}, s{S_T}, {v(t0)}")
    a(f"v_mul_u32_u24 {v(t0)}, {OREC}, {v(t0)}")
    a(f"v_lshrrev_b32 {v(t1)}, 5, v0")
    a(f"v_lshl_add_u32 {v(VXA)}, {v(t1)}, 4, {v(t0)}")
    a(f"v_mul_u32_u24 {v(t2)}, {OBLK}, {v(t1)}")
    a(f"v_add3_u32 {v(VXC)}, {v(t0)}, {v(t2)}, 32")
    a(f"v_bfe_u32 {v(t0)}, v0, 2, 2")
    a(f"v_bfe_u32 {v(t2)}, v0, 4, 1")
    a(f"v_lshlrev_b32 {v(t2)}, 5, {v(t2)}")
    a(f"v_and_b32 {v(VWC)}, 3, v0")
    a(f"v_lshl_add_u32 {v(t2)}, {v(VWC)}, 3, {v(t2)}")
    a(f"v_add_u32 {v(t2)}, {WBASE}, {v(t2)}")
    a(f"s_and_b32 s{S_T}, s{S_CB}, 1")
    a(f"s_lshl_b32 s{S_T}, s{S_T}, 5")
    a(f"v_add_u32 {v(t2)}, s{S_T}, {v(t2)}")
    a(f"v_lshl_add_u32 {v(VWA)}, {v(t1)}, 3, {v(t0)}")
    a(f"v_mul_u32_u24 {v(VWA)}, 192, {v(VWA)}")
    a(f"v_add_u32 {v(VWA)}, {v(VWA)}, {v(t2)}")
    a(f"v_mul_u32_u24 {v(VWC)}, 20, {v(t1)}")
    a(f"v_add3_u32 {v(VWC)}, {v(VWC)}, {v(t0)}, 16")
    a(f"v_mul_u32_u24 {v(VWC)}, 192, {v(VWC)}")
    a(f"v_add_u32 {v(VWC)}, {v(VWC)}, {v(t2)}")
    for r in range(ACC, ACC+48):
        a(f"v_mov_b32 {v(r)}, 0")
    a("s_barrier")
    if dbg: a("s_memtime s[76:77]")
    if XPF:
        lsk = a.newlabel("xpf_skip")
        a(f"s_cmp_eq_u32 s{S_WAVE}, 3")
        a(f"s_cbranch_scc1 {lsk}")
        a(f"s_mul_i32 s{S_T}, s{S_CB}, 192")
        a(f"s_lshl_b32 s{S_T+1}, s{S_WAVE}, 6")
        a(f"s_add_u32 s{S_T}, s{S_T}, s{S_T+1}")
        a(f"v_add_u32 {v(VT)}, s{S_T}, v0")
        a(f"v_lshlrev_b32 {v(VT)}, 7, {v(VT)}")
        a(f"buffer_load_dword {v(VT+1)}, {v(VT)}, s[{S_X}:{S_X+3}], 0 offen")
        a.label(lsk)
    def reads(stage, kind, b):
        slot = stage % NBR
        xo = slot*XST; wo = slot*WST
        L = []
        if kind == 'C':
            L.append((f"ds_read_b64 {v(XF[b],2)}, {v(VXC)} offset:{xo}", 'x'))
            for i in range(3):
                L.append((f"ds_read_b64_tr_b16 {v(WF[b][i],2)}, {v(VWC)} offset:{wo + i*64}", i))
        else:
            hb = 0 if kind == 'A' else 1
            L.append((f"ds_read_b128 {v(XF[b],4)}, {v(VXA)} offset:{xo + hb*OBLK}", 'x'))
            for i in range(3):
                off = wo + i*64 + hb*20*192
                L.append((f"ds_read_b64_tr_b16 {v(WF[b][i],2)}, {v(VWA)} offset:{off}", i))
                L.append((f"ds_read_b64_tr_b16 {v(WF[b][i]+2,2)}, {v(VWA)} offset:{off + 4*192}", i))
        return L
    def mf(kind, b, i):
        d = ACC + 16*i
        if kind == 'C':
            return f"v_mfma_f32_32x32x8_bf16 {v(d,16)}, {v(WF[b][i],2)}, {v(XF[b],2)}, {v(d,16)}"
        return f"v_mfma_f32_32x32x16_bf16 {v(d,16)}, {v(WF[b][i],4)}, {v(XF[b],4)}, {v(d,16)}"
    steps = [(st, k) for st in range(NS) for k in 'ABC']
    queue = []
    def wait_for(step, tag):
        need = [n for n, (s_, t_) in enumerate(queue) if s_ == step and (t_ == tag or t_ == 'x')]
        if not need: return
        last = max(need)
        a(f"s_waitcnt lgkmcnt({min(15, len(queue) - 1 - last)})")
        del queue[:last+1]
    a("s_barrier")
    for (txt, tag) in reads(0, 'A', 0):
        a(txt); queue.append((0, tag))
    for n, (st, k) in enumerate(steps):
        b = n & 1
        nxt = steps[n+1] if n+1 < len(steps) else None
        R = []
        if nxt:
            if nxt[1] == 'A':
                a("s_waitcnt lgkmcnt(0)"); queue.clear()
                a("s_barrier")
            R = reads(nxt[0], nxt[1], b ^ 1)
        per = [3, 2, 2] if len(R) == 7 else ([2, 1, 1] if len(R) == 4 else [0, 0, 0])
        kk = 0
        for i in range(3):
            wait_for(n, i)
            a(mf(k, b, i))
            for j in range(per[i]):
                a(R[kk][0]); queue.append((n+1, R[kk][1])); kk += 1
    a("s_waitcnt vmcnt(0)")
    if dbg: a("s_memtime s[78:79]")
    so = f"s[{S_O}:{S_O+3}]"
    VA = VT
    a(f"v_and_b32 {v(VA)}, 31, v0")
    a(f"s_lshl_b32 s{S_T}, s{S_RB}, 7")
    a(f"s_lshl_b32 s{S_T+1}, s{S_WAVE}, 5")
    a(f"s_add_u32 s{S_T}, s{S_T}, s{S_T+1}")
    a(f"v_add_u32 {v(VA)}, s{S_T}, {v(VA)}")
    a(f"v_mul_u32_u24 {v(VA)}, 2560, {v(VA)}")
    a(f"v_lshrrev_b32 {v(VA+1)}, 5, v0")
    a(f"v_lshlrev_b32 {v(VA+1)}, 4, {v(VA+1)}")
    a(f"v_add_u32 {v(VA)}, {v(VA)}, {v(VA+1)}")
    a(f"s_mul_i32 s{S_T+2}, s42, 1280")
    a(f"s_mul_i32 s{S_T+3}, s{S_CB}, 160")
    a(f"s_add_u32 s{S_T+2}, s{S_T+2}, s{S_T+3}")
    a("s_nop 7")
    a("s_nop 3")
    for pr in range(5):
        G0 = 2*pr
        R0 = ACC + 16*(G0//4) + 4*(G0 % 4)
        R1 = R0 + 4
        P_ = VT + 4 + 4*(pr % 2)
        a(f"v_cvt_pk_bf16_f32 {v(P_)}, {v(R0)}, {v(R0+1)}")
        a(f"v_cvt_pk_bf16_f32 {v(P_+1)}, {v(R0+2)}, {v(R0+3)}")
        a(f"v_cvt_pk_bf16_f32 {v(P_+2)}, {v(R1)}, {v(R1+1)}")
        a(f"v_cvt_pk_bf16_f32 {v(P_+3)}, {v(R1+2)}, {v(R1+3)}")
        a("s_nop 1")
        a(f"v_permlane32_swap_b32 {v(P_)}, {v(P_+2)}")
        a(f"v_permlane32_swap_b32 {v(P_+1)}, {v(P_+3)}")
        a("s_nop 1")
        a(f"buffer_store_dwordx4 {v(P_,4)}, {v(VA)}, {so}, s{S_T+2} offen offset:{32*pr}" + os.environ.get('OUTF', ''))

def publish_block(a, PK, vt, lds_base_sgpr, ntok, srd_txt, soff_sgpr):
    pass
```

```python
from asmlib import *
from layout import *
from gemm import *
import struct, os
BNB = int(os.environ.get('BNB','10'))
BINIT = int(os.environ.get('BINIT','5'))
ROT = int(os.environ.get('ROT','1'))

def f32hex(x):
    return "0x%08x" % struct.unpack("<I", struct.pack("<f", x))[0]

def srd(a, s0, kaoff, nbytes):
    a(f"s_load_dwordx2 s[{s0}:{s0+1}], s[0:1], {kaoff}")
def srd_fin(a, s0, nbytes):
    a(f"s_mov_b32 s{s0+2}, {nbytes}")
    a(f"s_mov_b32 s{s0+3}, 0x00020000")

def wave_lane(a, vt):
    a(f"v_lshrrev_b32 {v(vt)}, 6, v0")
    a(f"v_and_b32 v0, 63, v0")
    a(f"v_readfirstlane_b32 s{S_WAVE}, {v(vt)}")
    a("s_nop 3")
    a(f"s_lshr_b32 s{S_T+14}, s{S_WAVE}, 2")
    a(f"s_and_b32 s{S_WAVE}, s{S_WAVE}, 3")

def split_roles(a, g, colmode, tail=None):
    lc = a.newlabel("compute")
    a(f"s_cmp_eq_u32 s{S_T+14}, 0")
    a(f"s_cbranch_scc1 {lc}")
    loader(a, g, colmode, tail)
    a.label(lc)

PREFETCH = False
WARM = False
TOUCH = False
def IDLE_PF(a, g, VT):
    t0 = VT; t1 = VT+1; va = VT+2
    a(f"v_lshrrev_b32 {v(t0)}, 5, v0")
    a(f"v_lshlrev_b32 {v(t0)}, 6, {v(t0)}")
    a(f"v_bfe_u32 {v(t1)}, v0, 4, 1")
    a(f"v_add_u32 {v(t0)}, {v(t0)}, {v(t1)}")
    a(f"s_lshl_b32 s{S_T}, s64, 1")
    a(f"v_add_u32 {v(t0)}, s{S_T}, {v(t0)}")
    a(f"v_mul_u32_u24 {v(va)}, 3840, {v(t0)}")
    a(f"v_and_b32 {v(t1)}, 15, v0")
    a(f"v_lshlrev_b32 {v(t1)}, 7, {v(t1)}")
    a(f"v_add_u32 {v(va)}, {v(va)}, {v(t1)}")
    a(f"s_lshl_b32 s{S_T}, s{S_WAVE}, 1")
    a(f"s_mul_i32 s{S_T}, s{S_T}, {64*3840}")
    a(f"s_lshl_b32 s{S_T+4}, s65, 11")
    a(f"s_add_u32 s{S_T}, s{S_T}, s{S_T+4}")
    a(f"buffer_load_dword {v(VT+3)}, {v(va)}, s[{S_W}:{S_W+3}], s{S_T} offen")
    a(f"s_add_u32 s{S_T}, s{S_T}, {8*64*3840}")
    a(f"buffer_load_dword {v(VT+4)}, {v(va)}, s[{S_W}:{S_W+3}], s{S_T} offen")
    a(f"v_and_b32 {v(t0)}, 15, v0")
    a(f"s_lshl_b32 s{S_T}, s64, 4")
    a(f"v_add_u32 {v(t0)}, s{S_T}, {v(t0)}")
    a(f"v_mul_u32_u24 {v(va)}, 1280, {v(t0)}")
    a(f"v_lshrrev_b32 {v(t1)}, 4, v0")
    a(f"v_lshlrev_b32 {v(t1)}, 7, {v(t1)}")
    a(f"v_add_u32 {v(va)}, {v(va)}, {v(t1)}")
    a(f"s_mul_i32 s{S_T}, s66, {128*1280}")
    a(f"s_lshl_b32 s{S_T+4}, s{S_WAVE}, 9")
    a(f"s_add_u32 s{S_T}, s{S_T}, s{S_T+4}")
    a(f"buffer_load_dword {v(VT+5)}, {v(va)}, s[{S_X}:{S_X+3}], s{S_T} offen")
K1NB = int(os.environ.get('K1NB','5')); K1INIT = int(os.environ.get('K1INIT','3'))
BQ = G(NC=128, wstride=3840, acc0=(64 if K1NB == 5 else 80), vbase=1, NB=K1NB, INIT=K1INIT)
BQ.pfw = int(os.environ.get('PFW','2'))
BQ_NVGPR = 128 if K1NB == 5 else 144
def role_bqkv(a, dbg=False):
    g = BQ
    VT = 52 if K1NB == 5 else 64
    assert g.vend <= VT, g.vend
    if dbg: stamp(a, 0)
    srd(a, S_X, KA_BX, 0); srd(a, S_W, KA_BWQKV, 0); srd(a, S_O, KA_WS, 0)
    wave_lane(a, VT)
    a(f"s_and_b32 s{S_T}, s2, 7")
    a(f"s_lshr_b32 s{S_T+1}, s2, 3")
    a(f"s_lshr_b32 s{S_T+2}, s{S_T}, 1")
    a(f"s_lshl_b32 s{S_T+2}, s{S_T+2}, 2")
    a(f"s_and_b32 s{S_T+3}, s{S_T}, 1")
    a(f"s_lshr_b32 s{S_T+4}, s{S_T+1}, 3")
    a(f"s_and_b32 s{S_T+5}, s{S_T+1}, 7")
    a(f"s_mul_i32 s{S_T+6}, s{S_T+1}, 37")
    a(f"s_lshr_b32 s{S_T+6}, s{S_T+6}, 8")
    a(f"s_mul_i32 s{S_T+7}, s{S_T+6}, 7")
    a(f"s_sub_u32 s{S_T+7}, s{S_T+1}, s{S_T+7}")
    a(f"s_add_u32 s{S_T+7}, s{S_T+7}, 8")
    a(f"s_cmp_eq_u32 s{S_T+3}, 0")
    a(f"s_cselect_b32 s{S_RB}, s{S_T+4}, s{S_T+6}")
    a(f"s_cselect_b32 s{S_CB}, s{S_T+5}, s{S_T+7}")
    a(f"s_add_u32 s{S_RB}, s{S_RB}, s{S_T+2}")
    a(f"s_mul_i32 s{S_XOFF}, s{S_RB}, {128*1280}")
    a(f"s_lshl_b32 s{S_WOFF}, s{S_CB}, 8")
    a("s_waitcnt lgkmcnt(0)")
    srd_fin(a, S_X, 2048*1280); srd_fin(a, S_W, 640*3840); srd_fin(a, S_O, WS_SIZE_SRD)
    lgo = a.newlabel("bq_go")
    a(f"s_cmp_eq_u32 s{S_T+3}, 0")
    a(f"s_cbranch_scc1 {lgo}")
    a(f"s_cmp_lt_u32 s{S_T+1}, 28")
    a(f"s_cbranch_scc1 {lgo}")
    if PREFETCH:
        lnp = a.newlabel("bq_idle_nopf")
        a(f"s_cmp_lg_u32 s{S_T+14}, 0")
        a(f"s_cbranch_scc1 {lnp}")
        a(f"s_mov_b32 s64, s{S_T+1}")
        a(f"s_mov_b32 s65, s{S_T+3}")
        a(f"s_mov_b32 s66, s{S_T+2}")
        IDLE_PF(a, g, VT)
        a.label(lnp)
    if WARM:
        a(f"s_load_dwordx2 s[68:69], s[0:1], {KA_AX}")
        a(f"s_load_dwordx2 s[72:73], s[0:1], {KA_AWQKV}")
        a(f"s_and_b32 s{S_T}, s2, 7")
        a(f"s_lshr_b32 s{S_T}, s{S_T}, 1")
        a(f"s_lshl_b32 s{S_T}, s{S_T}, 2")
        a(f"s_add_u32 s{S_T}, s{S_T}, s{S_T+1}")
        a(f"s_sub_u32 s{S_T}, s{S_T}, 28")
        a(f"s_lshl_b32 s{S_T+2}, s{S_T+14}, 2")
        a(f"s_add_u32 s{S_T+2}, s{S_T+2}, s{S_WAVE}")
        a(f"s_lshl_b32 s{S_T+2}, s{S_T+2}, 6")
        a(f"v_add_u32 {v(VT)}, s{S_T+2}, v0")
        a(f"v_lshlrev_b32 {v(VT)}, 7, {v(VT)}")
        a("s_waitcnt lgkmcnt(0)")
        a(f"s_mov_b32 s70, {2048*1280}"); a("s_mov_b32 s71, 0x00020000")
        a(f"s_mov_b32 s74, {640*3840}"); a("s_mov_b32 s75, 0x00020000")
        lw = a.newlabel("warm_w"); ld = a.newlabel("warm_done")
        a(f"s_cmp_ge_u32 s{S_T}, 8")
        a(f"s_cbranch_scc1 {lw}")
        a(f"s_mul_i32 s{S_T+3}, s{S_T}, {2560*128}")
        for r_ in range(5):
            a(f"buffer_load_dword {v(VT+2)}, {v(VT)}, s[68:71], s{S_T+3} offen")
            a(f"s_add_u32 s{S_T+3}, s{S_T+3}, {512*128}")
            a("s_waitcnt vmcnt(0)")
        a(f"s_branch {ld}")
        a.label(lw)
        a(f"s_sub_u32 s{S_T}, s{S_T}, 8")
        a(f"s_mul_i32 s{S_T+3}, s{S_T}, {2400*128}")
        for r_ in range(5):
            a(f"buffer_load_dword {v(VT+2)}, {v(VT)}, s[72:75], s{S_T+3} offen")
            a(f"s_add_u32 s{S_T+3}, s{S_T+3}, {512*128}")
            a("s_waitcnt vmcnt(0)")
        a.label(ld)
    a(f"s_cmp_lg_u32 s2, {28*8+1}")
    lz0 = a.newlabel("bq_z0")
    a(f"s_cbranch_scc1 {lz0}")
    a(f"s_mov_b32 s{S_T}, {WS_FLAG}")
    a(f"s_lshl_b32 s{S_T+2}, s{S_T+14}, 2")
    a(f"s_add_u32 s{S_T+2}, s{S_T+2}, s{S_WAVE}")
    a(f"s_lshl_b32 s{S_T+2}, s{S_T+2}, 6")
    a(f"v_add_u32 {v(VT)}, s{S_T+2}, v0")
    a(f"v_lshlrev_b32 {v(VT+1)}, 4, {v(VT)}")
    for i in range(4):
        a(f"v_mov_b32 {v(VT+4+i)}, 0")
    a(f"v_cmp_gt_u32 vcc, 512, {v(VT)}")
    a("s_nop 1")
    a("s_and_b64 exec, exec, vcc")
    lz = a.newlabel("bq_zskip")
    a(f"s_cbranch_execz {lz}")
    a(f"buffer_store_dwordx4 {v(VT+4,4)}, {v(VT+1)}, s[{S_O}:{S_O+3}], s{S_T} offen sc1")
    a.label(lz)
    a.label(lz0)
    a("s_endpgm")
    a.label(lgo)
    if ROT:
        a(f"s_and_b32 s{S_T+8}, s{S_RB}, 3")
        a(f"s_mul_i32 s{S_T+8}, s{S_T+8}, 10")
        a(f"s_and_b32 s{S_T+9}, s{S_CB}, 7")
        a(f"s_mul_i32 s{S_T+9}, s{S_T+9}, 5")
        a(f"s_add_u32 s{S_T+8}, s{S_T+8}, s{S_T+9}")
        a(f"s_lshr_b32 s{S_T+8}, s{S_T+8}, 1")
        a(f"s_cmp_ge_u32 s{S_T+8}, 20")
        a(f"s_cselect_b32 s{S_T+9}, 20, 0")
        a(f"s_sub_u32 s59, s{S_T+8}, s{S_T+9}")
    else:
        a("s_mov_b32 s59, 0")
    a(f"s_mov_b32 s67, s{S_WOFF}")
    a(f"s_mov_b32 s64, s{S_T+1}")
    a(f"s_mov_b32 s65, s{S_T+3}")
    a(f"s_mov_b32 s66, s{S_T+2}")
    pf = PF(VT+8, VT+9)
    def pf_setup():
        if not PREFETCH: return
        va = pf.va; t0 = VT; t1 = VT+1
        lx = a.newlabel("pf_x"); ld = a.newlabel("pf_d")
        pf.select_srd(a)
        a(f"s_cmp_eq_u32 s{S_WAVE}, 1")
        a(f"s_cbranch_scc1 {lx}")
        a(f"v_lshrrev_b32 {v(t0)}, 5, v0")
        a(f"v_lshlrev_b32 {v(t0)}, 6, {v(t0)}")
        a(f"v_bfe_u32 {v(t1)}, v0, 4, 1")
        a(f"v_add_u32 {v(t0)}, {v(t0)}, {v(t1)}")
        a(f"s_lshl_b32 s{S_T}, s64, 1")
        a(f"v_add_u32 {v(t0)}, s{S_T}, {v(t0)}")
        a(f"v_mul_u32_u24 {v(va)}, 3840, {v(t0)}")
        a(f"v_and_b32 {v(t1)}, 15, v0")
        a(f"v_lshlrev_b32 {v(t1)}, 7, {v(t1)}")
        a(f"v_add_u32 {v(va)}, {v(va)}, {v(t1)}")
        a(f"s_mul_i32 s{S_PFO}, s{S_WAVE}, {64*3840}")
        a(f"s_lshl_b32 s{S_T}, s65, 11")
        a(f"s_add_u32 s{S_PFO}, s{S_PFO}, s{S_T}")
        a(f"s_mov_b32 s{S_PFS}, {4*64*3840}")
        a(f"s_branch {ld}")
        a.label(lx)
        a(f"v_and_b32 {v(t0)}, 15, v0")
        a(f"s_lshl_b32 s{S_T}, s64, 4")
        a(f"v_add_u32 {v(t0)}, s{S_T}, {v(t0)}")
        a(f"v_mul_u32_u24 {v(va)}, 1280, {v(t0)}")
        a(f"v_lshrrev_b32 {v(t1)}, 4, v0")
        a(f"v_lshlrev_b32 {v(t1)}, 7, {v(t1)}")
        a(f"v_add_u32 {v(va)}, {v(va)}, {v(t1)}")
        a(f"s_mul_i32 s{S_PFO}, s66, {128*1280}")
        a(f"s_mov_b32 s{S_PFS}, 512")
        a.label(ld)
        pf.pre(a)
    pf_iter = (lambda: None) if PREFETCH else None
    lcomp = a.newlabel("bq_comp")
    if PREFETCH:
        lld = a.newlabel("bq_ld")
        a(f"s_cmp_lg_u32 s{S_T+14}, 0")
        a(f"s_cbranch_scc1 {lld}")
        pf_setup()
        a.label(lld)
    def touch_tail():
        if not TOUCH: return
        a(f"s_load_dwordx2 s[68:69], s[0:1], {KA_AX}")
        a(f"s_load_dwordx2 s[70:71], s[0:1], {KA_AWQKV}")
        a(f"s_load_dwordx2 s[72:73], s[0:1], {KA_AWO}")
        a(f"s_load_dwordx2 s[74:75], s[0:1], {KA_BWO}")
        a(f"s_and_b32 s{S_T}, s2, 7")
        a(f"s_lshr_b32 s{S_T+1}, s{S_T}, 1")
        a(f"s_mul_i32 s{S_T+1}, s{S_T+1}, 60")
        a(f"s_lshl_b32 s{S_T+4}, s65, 5")
        a(f"s_add_u32 s{S_T+1}, s{S_T+1}, s{S_T+4}")
        a(f"s_add_u32 s{S_T+1}, s{S_T+1}, s64")
        a(f"s_lshl_b32 s{S_T+1}, s{S_T+1}, 2")
        a(f"s_add_u32 s{S_T+1}, s{S_T+1}, s{S_WAVE}")
        a("s_waitcnt lgkmcnt(0)")
        a(f"s_mov_b32 s78, {2048*1280}")
        a(f"s_mov_b32 s80, 0")
        for lim, reg, nb in ((320, 70, 640*3840), (620, 72, 640*1280), (720, 74, 640*1280)):
            a(f"s_cmp_ge_u32 s{S_T+1}, {lim}")
            a(f"s_cselect_b32 s68, s{reg}, s68")
            a(f"s_cselect_b32 s69, s{reg+1}, s69")
            a(f"s_cselect_b32 s78, {nb}, s78")
            a(f"s_cselect_b32 s80, {lim}, s80")
        a(f"s_mov_b32 s76, s68")
        a(f"s_mov_b32 s77, s69")
        a(f"s_mov_b32 s79, 0x00020000")
        a(f"s_sub_u32 s{S_T+1}, s{S_T+1}, s80")
        a(f"s_lshl_b32 s{S_T+1}, s{S_T+1}, 13")
        a(f"v_lshlrev_b32 v3, 7, v0")
        a(f"buffer_load_dword v4, v3, s[76:79], s{S_T+1} offen")
    split_roles(a, g, 'lin', tail=touch_tail)
    compute_addrs(a, g, VT)
    lv = a.newlabel("bq_v")
    a(f"s_cmp_ge_u32 s{S_CB}, 10")
    a(f"s_cbranch_scc1 {lv}")
    compute_loop(a, g, ['FT']*4, dbg, per_iter=pf_iter)
    if dbg: a('s_memtime s[72:73]')
    so = f"s[{S_O}:{S_O+3}]"
    VL16, VL8 = VT, VT+1
    QS = 86
    a(f"v_lshlrev_b32 {v(VL16)}, 4, v0")
    a(f"v_lshlrev_b32 {v(VL8)}, 3, v0")
    a(f"s_lshl_b32 s{S_T}, s{S_RB}, 2")
    a(f"s_add_u32 s{S_T}, s{S_T}, s{S_WAVE}")
    lk = a.newlabel("bq_k")
    lend = a.newlabel("bq_end")
    a(f"s_cmp_ge_u32 s{S_CB}, 5")
    a(f"s_cbranch_scc1 {lk}")
    for typ in ('Q', 'K'):
        if typ == 'K':
            a.label(lk)
            a(f"s_sub_u32 s{S_CB}, s{S_CB}, 5")
            a(f"s_add_u32 s{S_T}, s{S_T}, 63")
            a(f"s_and_b32 s{S_T}, s{S_T}, 63")
            a(f"s_mul_i32 s{S_T+1}, s{S_T}, {TILE_REC}")
            a(f"s_add_u32 s{S_T+2}, s{S_T+1}, 3072")
            h1, h2 = KV_HEAD, None
        else:
            a(f"s_lshl_b32 s{S_T+1}, s{S_T}, 10")
            a(f"s_add_u32 s{S_T+1}, s{S_T+1}, {WS_Q1}")
            a(f"s_lshl_b32 s{S_T+2}, s{S_T}, 9")
            a(f"s_add_u32 s{S_T+2}, s{S_T+2}, {WS_Q2}")
            h1 = 65536
            a(f"s_mov_b32 s{QS}, {f32hex(QSCALE)}"); a(f"s_mov_b32 s{QS+1}, {f32hex(QSCALE)}")
        labs = [a.newlabel(f"bq_{typ}{s_}") for s_ in range(5)]
        for s_ in range(1, 5):
            a(f"s_cmp_eq_u32 s{S_CB}, {s_}")
            a(f"s_cbranch_scc1 {labs[s_]}")
        a("s_nop 7")
        for s_ in range(5):
            a.label(labs[s_])
            a("s_nop 7")
            a("s_nop 3")
            rot = 0
            def pack(Gl, dst):
                R = g.acc + 16*(Gl//4) + 4*(Gl % 4)
                if typ == 'Q':
                    a(f"v_pk_mul_f32 {v(R,2)}, {v(R,2)}, s[{QS}:{QS+1}]")
                    a(f"v_pk_mul_f32 {v(R+2,2)}, {v(R+2,2)}, s[{QS}:{QS+1}]")
                a(f"v_cvt_pk_bf16_f32 {v(dst)}, {v(R)}, {v(R+1)}")
                a(f"v_cvt_pk_bf16_f32 {v(dst+1)}, {v(R+2)}, {v(R+3)}")
            Gl = 0
            while Gl < 16:
                Gi = 16*s_ + Gl
                p, r = divmod(Gi, 5)
                tp = VT + 4 + 4*(rot % 2); rot += 1
                if r in (0, 3) and Gl < 15:
                    pack(Gl, tp); pack(Gl+1, tp+2)
                    head = 2*p + (1 if r == 3 else 0)
                    a(f"s_add_u32 s{S_T+3}, s{S_T+1}, {head*h1}")
                    a(f"buffer_store_dwordx4 {v(tp,4)}, {v(VL16)}, {so}, s{S_T+3} offen")
                    Gl += 2
                    continue
                pack(Gl, tp)
                if r != 2:
                    head = 2*p + (1 if r >= 3 else 0)
                    off8 = 8*(r if r < 2 else r-3)
                    a(f"s_add_u32 s{S_T+3}, s{S_T+1}, {head*h1}")
                    a(f"buffer_store_dwordx2 {v(tp,2)}, {v(VL16)}, {so}, s{S_T+3} offen offset:{off8}")
                elif typ == 'Q':
                    a(f"s_add_u32 s{S_T+3}, s{S_T+2}, {p*32768}")
                    a(f"buffer_store_dwordx2 {v(tp,2)}, {v(VL8)}, {so}, s{S_T+3} offen")
                else:
                    a(f"s_add_u32 s{S_T+3}, s{S_T+2}, {2*p*KV_HEAD}")
                    a(f"buffer_store_dwordx2 {v(tp,2)}, {v(VL8)}, {so}, s{S_T+3} offen")
                    a(f"s_add_u32 s{S_T+3}, s{S_T+3}, {KV_HEAD}")
                    a(f"buffer_store_dwordx2 {v(tp,2)}, {v(VL8)}, {so}, s{S_T+3} offen")
                Gl += 1
            a(f"s_branch {lend}")
    a.label(lv)
    compute_loop(a, g, ['TF']*4, dbg, per_iter=pf_iter)
    if dbg: a('s_memtime s[72:73]')
    a(f"s_sub_u32 s{S_CB}, s{S_CB}, 10")
    a(f"s_lshl_b32 s{S_T}, s{S_RB}, 2")
    a(f"s_add_u32 s{S_T}, s{S_T}, s{S_WAVE}")
    a(f"s_mul_i32 s{S_T+1}, s{S_T}, {TILE_REC}")
    a(f"s_add_u32 s{S_T+1}, s{S_T+1}, 1024")
    a(f"s_lshl_b32 s{S_T+2}, s{S_CB}, 7")
    ONE = VT + 8
    for i in range(4):
        a(f"v_mov_b32 {v(ONE+i)}, 0x3f803f80")
    VA, VD, VH, VB = VT, VT+1, VT+2, VT+3
    PK = g.xf[0]
    a(f"v_lshrrev_b32 {v(VH)}, 5, v0")
    a(f"v_lshlrev_b32 {v(VH)}, 9, {v(VH)}")
    a(f"s_mov_b32 s{S_T+3}, {KV_HEAD}")
    a("s_nop 7")
    for ct in range(4):
        a(f"v_and_b32 {v(VD)}, 31, v0")
        a(f"v_add_u32 {v(VD)}, s{S_T+2}, {v(VD)}")
        if ct: a(f"v_add_u32 {v(VD)}, {32*ct}, {v(VD)}")
        a(f"v_mul_u32_u24 {v(VA)}, 52429, {v(VD)}")
        a(f"v_lshrrev_b32 {v(VA)}, 20, {v(VA)}")
        a(f"v_mul_u32_u24 {v(VB)}, 20, {v(VA)}")
        a(f"v_sub_u32 {v(VD)}, {v(VD)}, {v(VB)}")
        a(f"v_mul_lo_u32 {v(VA)}, {v(VA)}, s{S_T+3}")
        a(f"v_lshlrev_b32 {v(VB)}, 4, {v(VD)}")
        a(f"v_add3_u32 {v(VA)}, {v(VA)}, {v(VB)}, {v(VH)}")
        for mf in range(2):
            R = g.acc + 16*ct + 8*mf
            P_ = PK + 4*mf
            for i in range(4):
                a(f"v_cvt_pk_bf16_f32 {v(P_+i)}, {v(R+2*i)}, {v(R+2*i+1)}")
            a(f"buffer_store_dwordx4 {v(P_,4)}, {v(VA)}, {so}, s{S_T+1} offen offset:{1024*mf}")
        a(f"v_and_b32 {v(VB)}, 27, {v(VD)}")
        a(f"v_cmp_eq_u32 vcc, 8, {v(VB)}")
        a(f"v_mov_b32 {v(VB)}, 0x3f803f80")
        a("s_nop 0")
        for i in range(4):
            a(f"v_cndmask_b32 {v(ONE+i)}, 0, {v(VB)}, vcc")
        a(f"v_add_u32 {v(VA)}, 192, {v(VA)}")
        a(f"v_cmp_le_u32 vcc, 8, {v(VD)}")
        a(f"s_and_saveexec_b64 s[30:31], vcc")
        lsk = a.newlabel("bq_noones")
        a(f"s_cbranch_execz {lsk}")
        for mf in range(2):
            a(f"buffer_store_dwordx4 {v(ONE,4)}, {v(VA)}, {so}, s{S_T+1} offen offset:{1024*mf}")
        a.label(lsk)
        a("s_mov_b64 exec, -1")
        a("s_nop 1")
    a.label(lend)
    if dbg:
        a('s_memtime s[74:75]')
        a("s_waitcnt vmcnt(0)")
        stamp_end(a, WS_DBG, KA_WS, S_WAVE)
    a("s_endpgm")

OP = G(NC=96, wstride=1280, acc0=80, vbase=1, NB=BNB, INIT=BINIT)
OP.pfw = int(os.environ.get('PFW','2'))
OP_NVGPR = 128
def role_out(a, dbg=False):
    g = OP
    VT = 64
    assert g.vend <= VT, g.vend
    if dbg: stamp(a, 0)
    srd(a, S_X, KA_WS, 0); srd(a, S_O, KA_OUT, 0)
    a(f"s_load_dwordx2 s[{S_W}:{S_W+1}], s[0:1], {KA_AWO}")
    a(f"s_load_dwordx2 s[{S_T+8}:{S_T+9}], s[0:1], {KA_BWO}") if (S_T+8) % 2 == 0 else a(f"s_load_dwordx2 s[{S_T+9}:{S_T+10}], s[0:1], {KA_BWO}")
    BW = S_T+8 if (S_T+8) % 2 == 0 else S_T+9
    wave_lane(a, VT)
    a(f"s_and_b32 s{S_T}, s2, 7")
    a(f"s_lshr_b32 s{S_T+1}, s2, 3")
    a(f"s_lshr_b32 s{S_T+2}, s{S_T}, 2")
    a(f"s_and_b32 s{S_T}, s{S_T}, 3")
    a(f"s_lshl_b32 s{S_RB}, s{S_T}, 2")
    a(f"s_lshr_b32 s{S_T+3}, s{S_T+1}, 3")
    a(f"s_add_u32 s{S_RB}, s{S_RB}, s{S_T+3}")
    a(f"s_and_b32 s{S_CB}, s{S_T+1}, 7")
    a(f"s_mov_b32 s{S_T+6}, s{S_T+2}")
    a(f"s_mul_i32 s{S_XOFF}, s{S_RB}, {128*1280}")
    a(f"s_mul_i32 s{S_T+4}, s{S_T+6}, {WS_OB-WS_OA}")
    a(f"s_add_u32 s{S_T+4}, s{S_T+4}, {WS_OA}")
    a(f"s_add_u32 s{S_XOFF}, s{S_XOFF}, s{S_T+4}")
    a(f"s_mul_i32 s{S_WOFF}, s{S_CB}, 160")
    a("s_waitcnt lgkmcnt(0)")
    a(f"s_cmp_eq_u32 s{S_T+6}, 0")
    a(f"s_cselect_b32 s{S_W}, s{S_W}, s{BW}")
    a(f"s_cselect_b32 s{S_W+1}, s{S_W+1}, s{BW+1}")
    srd_fin(a, S_X, WS_SIZE_SRD); srd_fin(a, S_W, 640*1280); srd_fin(a, S_O, 2048*2560)
    a(f"s_mov_b32 s42, s{S_T+6}")
    if ROT:
        a(f"s_and_b32 s{S_T+8}, s{S_RB}, 3")
        a(f"s_mul_i32 s{S_T+8}, s{S_T+8}, 10")
        a(f"s_mul_i32 s{S_T+9}, s{S_CB}, 5")
        a(f"s_add_u32 s{S_T+8}, s{S_T+8}, s{S_T+9}")
        a(f"s_lshr_b32 s{S_T+8}, s{S_T+8}, 1")
        a(f"s_cmp_ge_u32 s{S_T+8}, 20")
        a(f"s_cselect_b32 s{S_T+9}, 20, 0")
        a(f"s_sub_u32 s59, s{S_T+8}, s{S_T+9}")
    else:
        a("s_mov_b32 s59, 0")
    a(f"s_mov_b32 s67, s{S_WOFF}")
    a(f"s_mov_b32 s64, s{S_T+1}")
    a(f"s_mov_b32 s65, s{S_T+4}")
    pf = PF(VT+8, VT+9)
    def pf_setup():
        if not PREFETCH: return
        va = pf.va; t0 = VT; t1 = VT+1
        lx = a.newlabel("pf_x"); ld = a.newlabel("pf_d")
        pf.select_srd(a)
        a(f"s_cmp_eq_u32 s{S_WAVE}, 1")
        a(f"s_cbranch_scc1 {lx}")
        a(f"v_mul_u32_u24 {v(t0)}, 3277, v0")
        a(f"v_lshrrev_b32 {v(t0)}, 16, {v(t0)}")
        a(f"v_mul_u32_u24 {v(t1)}, 20, {v(t0)}")
        a(f"v_sub_u32 {v(t1)}, v0, {v(t1)}")
        a(f"s_mul_i32 s{S_T}, s64, 20")
        a(f"v_add_u32 {v(t1)}, s{S_T}, {v(t1)}")
        a(f"v_lshlrev_b32 {v(t1)}, 7, {v(t1)}")
        a(f"v_mul_u32_u24 {v(va)}, 81920, {v(t0)}")
        a(f"v_add_u32 {v(va)}, {v(va)}, {v(t1)}")
        a(f"s_mul_i32 s{S_PFO}, s{S_WAVE}, {81920*3//2}")
        a(f"s_mov_b32 s{S_PFS}, {6*81920}")
        a(f"s_branch {ld}")
        a.label(lx)
        a(f"v_and_b32 {v(t0)}, 15, v0")
        a(f"s_lshl_b32 s{S_T}, s64, 4")
        a(f"v_add_u32 {v(t0)}, s{S_T}, {v(t0)}")
        a(f"v_mul_u32_u24 {v(va)}, 1280, {v(t0)}")
        a(f"v_lshrrev_b32 {v(t1)}, 4, v0")
        a(f"v_lshlrev_b32 {v(t1)}, 7, {v(t1)}")
        a(f"v_add_u32 {v(va)}, {v(va)}, {v(t1)}")
        a(f"s_and_b32 s{S_T}, s{S_RB}, 12")
        a(f"s_mul_i32 s{S_PFO}, s{S_T}, {128*1280}")
        a(f"s_add_u32 s{S_PFO}, s{S_PFO}, s65")
        a(f"s_mov_b32 s{S_PFS}, 512")
        a.label(ld)
        pf.pre(a)
    if PREFETCH:
        lld = a.newlabel("op_ld")
        a(f"s_cmp_lg_u32 s{S_T+14}, 0")
        a(f"s_cbranch_scc1 {lld}")
        pf_setup()
        a.label(lld)
    split_roles(a, g, 'lin')
    compute_addrs(a, g, VT)
    compute_loop(a, g, ['FT']*3, dbg, per_iter=(lambda: None) if PREFETCH else None)
    if dbg: a('s_memtime s[72:73]')
    so = f"s[{S_O}:{S_O+3}]"
    VA = VT
    a(f"v_and_b32 {v(VA)}, 31, v0")
    a(f"s_lshl_b32 s{S_T}, s{S_RB}, 7")
    a(f"s_lshl_b32 s{S_T+1}, s{S_WAVE}, 5")
    a(f"s_add_u32 s{S_T}, s{S_T}, s{S_T+1}")
    a(f"v_add_u32 {v(VA)}, s{S_T}, {v(VA)}")
    a(f"v_mul_u32_u24 {v(VA)}, 2560, {v(VA)}")
    a(f"v_lshrrev_b32 {v(VA+1)}, 5, v0")
    a(f"v_lshlrev_b32 {v(VA+1)}, 4, {v(VA+1)}")
    a(f"v_add_u32 {v(VA)}, {v(VA)}, {v(VA+1)}")
    a(f"s_mul_i32 s{S_T+2}, s42, 1280")
    a(f"s_mul_i32 s{S_T+3}, s{S_CB}, 160")
    a(f"s_add_u32 s{S_T+2}, s{S_T+2}, s{S_T+3}")
    a("s_nop 7")
    a("s_nop 3")
    for pr in range(5):
        G0 = 2*pr
        R0 = g.acc + 16*(G0//4) + 4*(G0 % 4)
        R1 = R0 + 4
        P_ = VT + 4 + 4*(pr % 2)
        a(f"v_cvt_pk_bf16_f32 {v(P_)}, {v(R0)}, {v(R0+1)}")
        a(f"v_cvt_pk_bf16_f32 {v(P_+1)}, {v(R0+2)}, {v(R0+3)}")
        a(f"v_cvt_pk_bf16_f32 {v(P_+2)}, {v(R1)}, {v(R1+1)}")
        a(f"v_cvt_pk_bf16_f32 {v(P_+3)}, {v(R1+2)}, {v(R1+3)}")
        a("s_nop 1")
        a(f"v_permlane32_swap_b32 {v(P_)}, {v(P_+2)}")
        a(f"v_permlane32_swap_b32 {v(P_+1)}, {v(P_+3)}")
        a("s_nop 1")
        a(f"buffer_store_dwordx4 {v(P_,4)}, {v(VA)}, {so}, s{S_T+2} offen offset:{32*pr}")
    if dbg:
        a('s_memtime s[74:75]')
        a("s_waitcnt vmcnt(0)")
        stamp_end(a, WS_DBG, KA_WS, S_WAVE)
    a("s_endpgm")


OF = G(NC=96, wstride=1280, acc0=80, vbase=1, NB=5, INIT=3)
OF.xflags = " sc1"
OF.pfw = 0
def out_scalars(a, branch):
    srd(a, S_X, KA_WS, 0); srd(a, S_O, KA_OUT, 0); srd(a, S_W, KA_AWO if branch == 0 else KA_BWO, 0)
    a(f"s_and_b32 s{S_T}, s2, 7")
    a(f"s_lshr_b32 s{S_T+1}, s2, 4")
    a(f"s_lshl_b32 s{S_RB}, s{S_T}, 1")
    a(f"s_lshr_b32 s{S_T+2}, s{S_T+1}, 3")
    a(f"s_add_u32 s{S_RB}, s{S_RB}, s{S_T+2}")
    a(f"s_and_b32 s{S_CB}, s{S_T+1}, 7")
    a(f"s_mul_i32 s{S_XOFF}, s{S_RB}, {128*1280}")
    a(f"s_add_u32 s{S_XOFF}, s{S_XOFF}, {WS_OA if branch == 0 else WS_OB}")
    a(f"s_mul_i32 s{S_WOFF}, s{S_CB}, 160")
    a(f"s_mul_i32 s{S_T+8}, s{S_CB}, 5")
    a(f"s_lshr_b32 s{S_T+8}, s{S_T+8}, 1")
    a(f"s_mov_b32 s59, s{S_T+8}")
    a(f"s_mov_b32 s42, {branch}")
    a("s_waitcnt lgkmcnt(0)")
    srd_fin(a, S_X, WS_SIZE_SRD); srd_fin(a, S_W, 640*1280); srd_fin(a, S_O, 2048*2560)

def out_poll(a, branch):
    a("s_barrier")
    lw = a.newlabel("op_nopoll")
    a(f"s_cmp_lg_u32 s{S_WAVE}, 0")
    a(f"s_cbranch_scc1 {lw}")
    if branch == 1:
        a(f"s_lshr_b32 s{S_T}, s{S_RB}, 1")
        a(f"s_lshl_b32 s{S_T}, s{S_T}, 7")
        a(f"s_add_u32 s{S_T}, s{S_T}, {WS_FLAGB}")
        mask = "0xffffffff"; n = 32
    else:
        a(f"s_lshl_b32 s{S_T}, s{S_RB}, 7")
        a(f"s_add_u32 s{S_T}, s{S_T}, {WS_FLAGA}")
        mask = "0xffff"; n = 16
    a(f"s_mov_b32 exec_lo, {mask}")
    a(f"s_mov_b32 exec_hi, 0")
    a(f"v_lshlrev_b32 v3, 2, v0")
    a(f"s_mov_b32 s{S_T+1}, 0")
    lp = a.newlabel("op_poll"); lpd = a.newlabel("op_poll_done")
    a.label(lp)
    a(f"buffer_load_dword v4, v3, s[{S_X}:{S_X+3}], s{S_T} offen sc1")
    a("s_waitcnt vmcnt(0)")
    a(f"v_cmp_eq_u32 vcc, 1, v4")
    a(f"s_add_u32 s{S_T+1}, s{S_T+1}, 1")
    a("s_nop 1")
    a(f"s_cmp_eq_u32 vcc_lo, {mask}")
    a(f"s_cbranch_scc1 {lpd}")
    a("s_sleep 4")
    a(f"s_cmp_lt_u32 s{S_T+1}, 0x40000")
    a(f"s_cbranch_scc1 {lp}")
    a.label(lpd)
    a("s_mov_b64 exec, -1")
    a.label(lw)
    a("s_barrier")

def out_loader(a, branch):
    OF.stoff = 0x100000 + branch*0x100000
    out_scalars(a, branch)
    if GOPT['ststamp']:
        a('s_memtime s[94:95]')
    out_poll(a, branch)
    if GOPT['ststamp']:
        a('s_memtime s[96:97]')
        a('s_waitcnt lgkmcnt(0)')
        a('v_writelane_b32 v10, s94, 20')
        a('v_writelane_b32 v11, s96, 20')
        a('v_writelane_b32 v12, s70, 20')
    loader(a, OF, 'lin')

def out_compute(a, dbg=False):
    g = OF
    VT = 64
    a("s_barrier")
    compute_addrs(a, g, VT)
    compute_loop(a, g, ['FT']*3, False)
    if dbg: a("s_memtime s[68:69]")
    so = f"s[{S_O}:{S_O+3}]"
    VA = VT
    a(f"v_and_b32 {v(VA)}, 31, v0")
    a(f"s_lshl_b32 s{S_T}, s{S_RB}, 7")
    a(f"s_lshl_b32 s{S_T+1}, s{S_WAVE}, 5")
    a(f"s_add_u32 s{S_T}, s{S_T}, s{S_T+1}")
    a(f"v_add_u32 {v(VA)}, s{S_T}, {v(VA)}")
    a(f"v_mul_u32_u24 {v(VA)}, 2560, {v(VA)}")
    a(f"v_lshrrev_b32 {v(VA+1)}, 5, v0")
    a(f"v_lshlrev_b32 {v(VA+1)}, 4, {v(VA+1)}")
    a(f"v_add_u32 {v(VA)}, {v(VA)}, {v(VA+1)}")
    a(f"s_mul_i32 s{S_T+2}, s42, 1280")
    a(f"s_mul_i32 s{S_T+3}, s{S_CB}, 160")
    a(f"s_add_u32 s{S_T+2}, s{S_T+2}, s{S_T+3}")
    a("s_nop 7")
    a("s_nop 3")
    for pr in range(5):
        G0 = 2*pr
        R0 = g.acc + 16*(G0//4) + 4*(G0 % 4)
        R1 = R0 + 4
        P_ = VT + 4 + 4*(pr % 2)
        a(f"v_cvt_pk_bf16_f32 {v(P_)}, {v(R0)}, {v(R0+1)}")
        a(f"v_cvt_pk_bf16_f32 {v(P_+1)}, {v(R0+2)}, {v(R0+3)}")
        a(f"v_cvt_pk_bf16_f32 {v(P_+2)}, {v(R1)}, {v(R1+1)}")
        a(f"v_cvt_pk_bf16_f32 {v(P_+3)}, {v(R1+2)}, {v(R1+3)}")
        a("s_nop 1")
        a(f"v_permlane32_swap_b32 {v(P_)}, {v(P_+2)}")
        a(f"v_permlane32_swap_b32 {v(P_+1)}, {v(P_+3)}")
        a("s_nop 1")
        a(f"buffer_store_dwordx4 {v(P_,4)}, {v(VA)}, {so}, s{S_T+2} offen offset:{32*pr}")
```

```python
class Asm:
    def __init__(self):
        self.lines = []
        self.uid = 0
    def __call__(self, s):
        for l in s.split("\n"):
            l = l.strip()
            if l:
                self.lines.append("    " + l)
    def label(self, l):
        self.lines.append(l + ":")
    def raw(self, s):
        self.lines.append(s)
    def newlabel(self, base):
        self.uid += 1
        return f"L_{base}_{self.uid}"
    def text(self):
        return "\n".join(self.lines) + "\n"

def v(i, n=1):
    return f"v{i}" if n == 1 else f"v[{i}:{i+n-1}]"
def s(i, n=1):
    return f"s{i}" if n == 1 else f"s[{i}:{i+n-1}]"

def kernel_header(a, name):
    a.raw(f".globl {name}")
    a.raw(".p2align 8")
    a.raw(f".type {name},@function")
    a.label(name)

def kernel_desc(name, nvgpr, nsgpr=102):
    acc = (nvgpr + 3)//4*4
    return f""".p2align 6
.amdhsa_kernel {name}
  .amdhsa_next_free_vgpr {nvgpr}
  .amdhsa_next_free_sgpr {nsgpr}
  .amdhsa_accum_offset {acc}
  .amdhsa_group_segment_fixed_size 0
  .amdhsa_kernarg_size 80
  .amdhsa_user_sgpr_count 2
  .amdhsa_user_sgpr_kernarg_segment_ptr 1
  .amdhsa_system_sgpr_workgroup_id_x 1
.end_amdhsa_kernel
"""

MEGA = [False]
def stamp(a, k):
    a(f"s_memtime s[{70+2*k}:{71+2*k}]")
    if k == 0:
        a("s_memrealtime s[82:83]")
    if k == 1 and not MEGA[0]:
        a("s_memrealtime s[76:77]")
    if k == 2 and not MEGA[0]:
        a("s_memrealtime s[78:79]")
DBGK = [0]
def stamp_end(a, ws_dbg, ka_ws, wave_sgpr, idsgpr="s2"):
    ws_dbg = ws_dbg + DBGK[0]*512*512
    a("s_memtime s[80:81]")
    a("s_memrealtime s[84:85]")
    a(f"s_load_dwordx2 s[88:89], s[0:1], {ka_ws}")
    a("s_waitcnt lgkmcnt(0)")
    a("s_mov_b32 s90, 0x2000000")
    a("s_mov_b32 s91, 0x00020000")
    a("s_mov_b64 exec, 1")
    for i in range(16):
        a(f"v_mov_b32 v{2+i}, s{70+i}")
    a(f"s_lshl_b32 s92, {idsgpr}, 9")
    a(f"s_lshl_b32 s93, s{wave_sgpr}, 6")
    a("s_add_u32 s92, s92, s93")
    a(f"s_add_u32 s92, s92, {ws_dbg}")
    a("v_mov_b32 v20, 0")
    for i in range(4):
        a(f"buffer_store_dwordx4 v[{2+4*i}:{5+4*i}], v20, s[88:91], s92 offen offset:{16*i}")

def dbg_srd(a, ka_dbg):
    a(f"s_load_dwordx2 s[92:93], s[0:1], {ka_dbg}")
    a("s_waitcnt lgkmcnt(0)")
    a("s_mov_b32 s94, 256")
    a("s_mov_b32 s95, 0x00020000")
def tag_publish(a, ka_dbg):
    dbg_srd(a, ka_dbg)
    a("s_memrealtime s[96:97]")
    a("s_waitcnt lgkmcnt(0)")
    a("s_or_b32 s96, s96, 1")
    a("v_mov_b32 v4, s96")
    a("v_mov_b32 v5, 0")
    a("s_mov_b64 exec, 1")
    a("buffer_store_dword v4, v5, s[92:95], 0 offen sc1")
    a("s_mov_b64 exec, -1")
def tag_fetch(a, ka_dbg, va, vb):
    dbg_srd(a, ka_dbg)
    lp = a.newlabel("tag_poll"); ld = a.newlabel("tag_done")
    a(f"v_mov_b32 v{va}, 0")
    a("s_mov_b32 s97, 0")
    a.label(lp)
    a(f"buffer_load_dword v{vb}, v{va}, s[92:95], 0 offen sc1")
    a("s_waitcnt vmcnt(0)")
    a(f"v_readfirstlane_b32 s98, v{vb}")
    a("s_add_u32 s97, s97, 1")
    a("s_nop 1")
    a("s_cmp_lg_u32 s98, 0")
    a(f"s_cbranch_scc1 {ld}")
    a("s_sleep 4")
    a("s_cmp_lt_u32 s97, 0x40000")
    a(f"s_cbranch_scc1 {lp}")
    a.label(ld)

OFFDBG = [False]
def off_stamp(a, slot, neg=False, back=0, ka_dbg=64, cond_wave=None, va=126):
    if not OFFDBG[0]: return
    sk = a.newlabel("ofs")
    if cond_wave is not None:
        a(f"s_cmp_lg_u32 s{cond_wave}, 0")
        a(f"s_cbranch_scc1 {sk}")
    a(f"s_load_dwordx2 s[88:89], s[0:1], {ka_dbg}")
    a("s_memrealtime s[92:93]")
    a("s_waitcnt lgkmcnt(0)")
    if back:
        a(f"s_sub_u32 s88, s88, {back}")
        a("s_subb_u32 s89, s89, 0")
    a("s_mov_b32 s90, 256")
    a("s_mov_b32 s91, 0x00020000")
    if neg: a("s_not_b32 s92, s92")
    a("s_mov_b64 s[94:95], exec")
    a("s_mov_b64 exec, 1")
    a(f"v_mov_b32 v{va}, s92")
    a(f"v_mov_b32 v{va+1}, {slot*4}")
    a(f"buffer_atomic_umax v{va}, v{va+1}, s[88:91], 0 offen sc1")
    a("s_mov_b64 exec, s[94:95]")
    a.label(sk)
```

```python
from asmlib import *
from layout import *
import roles, gemm, outp
FUSE = True
WOPF = True
import os
CODEPF = int(os.environ.get('CODEPF', '0'))

CH = 8
CH_BYTES = CH * TILE_REC
NCH = 64 // CH
OPT = dict(nodma=False, nobar=False, nolds=False, prio=True, vmask=False, forcefb=False, cl4=False, uni=True)

V_A16 = 1
V_A8  = 2
V_G16 = 3
SA, SB = 4, 20
OA, OB = 36, 52
PA, PB = 68, 76
Q1A, Q1B = 84, 88
Q2A, Q2B = 92, 94
K1 = [96, 100]
VV0 = [104, 112]
VV1 = [108, 116]
K2 = [120, 122]
ATTN_NVGPR = 124
V_T0 = SA

S_WS = 8
S_HEAD = 12
S_QB = 13
S_WAVE = 14
S_DMAOFF = 15
S_LDSW = 16
S_BUFD = 17
S_CNT = 18
S_DMABUF = 19
S_T = 20

def mfma32(a, d, A, B, C, k16=True):
    op = "v_mfma_f32_32x32x16_bf16" if k16 else "v_mfma_f32_32x32x8_bf16"
    n = 4 if k16 else 2
    c = "0" if C is None else v(C, 16)
    a(f"{op} {v(d,16)}, {v(A,n)}, {v(B,n)}, {c}")

PENDING = []
def cvts(a, Sr, P, q):
    a(f"v_cvt_pk_bf16_f32 {v(P+2*q)}, {v(Sr+4*q)}, {v(Sr+4*q+1)}")
    a(f"v_cvt_pk_bf16_f32 {v(P+2*q+1)}, {v(Sr+4*q+2)}, {v(Sr+4*q+3)}")
def flush_cvts(a):
    while PENDING:
        cvts(a, *PENDING.pop(0))
def exps(a, Sr, P, q):
    for i in range(4):
        a(f"v_exp_f32 {v(Sr+4*q+i)}, {v(Sr+4*q+i)}")
    flush_cvts(a)
    PENDING.append((Sr, P, q))

def dma_chunk(a):
    srd = f"s[{S_WS}:{S_WS+3}]"
    a(f"s_add_u32 m0, s{S_DMABUF}, s{S_LDSW}")
    a("s_nop 0")
    for i in range(4):
        a(f"buffer_load_dwordx4 {v(V_G16)}, {srd}, s{S_DMAOFF} offen offset:{i*1024} lds")
    a(f"s_add_u32 m0, m0, 4096")
    a(f"s_add_u32 s{S_DMAOFF}, s{S_DMAOFF}, 4096")
    for i in range(3):
        a(f"buffer_load_dwordx4 {v(V_G16)}, {srd}, s{S_DMAOFF} offen offset:{i*1024} lds")
    a(f"s_add_u32 s{S_DMAOFF}, s{S_DMAOFF}, {CH_BYTES-4096}")

def safety_check_and_fallback(a):
    srd = f"s[{S_WS}:{S_WS+3}]"
    T = SA
    lok = a.newlabel("att_ok")
    a("s_nop 7")
    a("s_nop 3")
    a(f"v_lshrrev_b32 {v(T)}, 5, v0")
    a(f"v_cmp_eq_u32 vcc, 0, {v(T)}")
    a(f"s_mov_b64 s[26:27], 0")
    a(f"s_mov_b32 s28, 0x1f800000")
    a(f"s_mov_b32 s29, 0x5f800000")
    for O in (OA, OB):
        a(f"v_cndmask_b32 {v(T+1)}, {v(O+8)}, {v(O+12)}, vcc")
        a(f"v_pk_mul_f32 {v(T+2,2)}, {v(O,2)}, 0 op_sel_hi:[1,0]")
        for i in (2, 4, 6):
            a(f"v_pk_fma_f32 {v(T+2,2)}, {v(O+i,2)}, 0, {v(T+2,2)} op_sel_hi:[1,0,1]")
        a(f"v_pk_mul_f32 {v(T+4,2)}, {v(O+8,2)}, 0 op_sel_hi:[1,0]")
        a(f"v_pk_fma_f32 {v(T+4,2)}, {v(O+10,2)}, 0, {v(T+4,2)} op_sel_hi:[1,0,1]")
        a(f"v_cmp_nle_f32 s[22:23], s28, {v(T+1)}")
        a(f"v_cmp_nge_f32 s[24:25], s29, {v(T+1)}")
        a(f"v_cmp_u_f32 s[30:31], {v(T+2)}, {v(T+3)}")
        a(f"v_cmp_u_f32 s[36:37], {v(T+4)}, {v(T+5)}")
        a("s_nop 1")
        a("s_or_b64 s[26:27], s[26:27], s[22:23]")
        a("s_or_b64 s[26:27], s[26:27], s[24:25]")
        a("s_or_b64 s[26:27], s[26:27], s[30:31]")
        a("s_and_b64 s[36:37], s[36:37], vcc")
        a("s_or_b64 s[26:27], s[26:27], s[36:37]")
    if OPT['forcefb']:
        a("s_mov_b64 s[26:27], -1")
    a("s_cmp_eq_u64 s[26:27], 0")
    a(f"s_cbranch_scc1 {lok}")
    G16 = V_G16; G8 = T+1; MA, MB, TM = T+2, T+3, 120
    X = [SA + 0]
    SX, SY = 20, 100
    KA1, KA2, VA0, VA1 = 116, 122, 68, 72
    PX, PY = 76, 8
    MA, MB, TM = 4, 6, 7
    G8 = 5
    a(f"v_lshlrev_b32 {v(G8)}, 3, v0")
    a(f"s_mul_i32 s22, s{S_HEAD}, {KV_HEAD}")
    a(f"s_and_b32 s23, s{S_HEAD}, 1")
    a(f"s_cmp_eq_u32 s23, 0")
    a(f"s_cselect_b32 s36, -1, 0")
    a(f"s_cselect_b32 s37, 0, -1")
    a(f"v_mov_b32 {v(KA2)}, 0"); a(f"v_mov_b32 {v(KA2+1)}, 0")
    a(f"v_mov_b32 {v(MA)}, 0xff800000"); a(f"v_mov_b32 {v(MB)}, 0xff800000")
    def load_k():
        a(f"s_add_u32 s24, s{S_CNT}, 63")
        a(f"s_and_b32 s24, s24, 63")
        a(f"s_mul_i32 s24, s24, {TILE_REC}")
        a(f"s_add_u32 s24, s24, s22")
        a(f"buffer_load_dwordx4 {v(KA1,4)}, {v(G16)}, {srd}, s24 offen")
        a(f"s_mov_b64 exec, s[36:37]")
        a(f"buffer_load_dwordx2 {v(KA2,2)}, {v(G8)}, {srd}, s24 offen offset:3072")
        a(f"s_mov_b64 exec, -1")
    def qk():
        mfma32(a, SX, KA1, Q1A, None); mfma32(a, SX, KA2, Q2A, SX, k16=False)
        mfma32(a, SY, KA1, Q1B, None); mfma32(a, SY, KA2, Q2B, SY, k16=False)
        a("s_nop 7"); a("s_nop 7")
    a(f"s_mov_b32 s{S_CNT}, 0")
    l1 = a.newlabel("fb_max")
    a.label(l1)
    load_k()
    a("s_waitcnt vmcnt(0)")
    qk()
    for (Sx, M) in ((SX, MA), (SY, MB)):
        for i in range(0, 16, 2):
            a(f"v_max3_f32 {v(M)}, {v(M)}, {v(Sx+i)}, {v(Sx+i+1)}")
    a(f"s_add_u32 s{S_CNT}, s{S_CNT}, 1")
    a(f"s_cmp_lt_u32 s{S_CNT}, 64")
    a(f"s_cbranch_scc1 {l1}")
    for M in (MA, MB):
        a(f"v_mov_b32 {v(TM)}, {v(M)}")
        a("s_nop 1")
        a(f"v_permlane32_swap_b32 {v(M)}, {v(TM)}")
        a("s_nop 1")
        a(f"v_max_f32 {v(M)}, {v(M)}, {v(TM)}")
    for r in list(range(OA, OA+32)) + list(range(VA0, VA0+8)):
        a(f"v_mov_b32 {v(r)}, 0")
    a(f"s_mov_b32 s{S_CNT}, 0")
    l2 = a.newlabel("fb_main")
    a.label(l2)
    load_k()
    a(f"s_mul_i32 s24, s{S_CNT}, {TILE_REC}")
    a(f"s_add_u32 s24, s24, s22")
    a(f"s_mov_b64 exec, s[34:35]")
    a(f"buffer_load_dwordx4 {v(VA0,4)}, {v(G16)}, {srd}, s24 offen offset:1024")
    a(f"buffer_load_dwordx4 {v(VA1,4)}, {v(G16)}, {srd}, s24 offen offset:2048")
    a(f"s_mov_b64 exec, -1")
    a("s_waitcnt vmcnt(0)")
    qk()
    for (Sx, M, P, O) in ((SX, MA, PX, OA), (SY, MB, PY, OB)):
        for i in range(16):
            a(f"v_sub_f32 {v(Sx+i)}, {v(Sx+i)}, {v(M)}")
        for i in range(16):
            a(f"v_exp_f32 {v(Sx+i)}, {v(Sx+i)}")
        a("s_nop 0")
        for k in range(8):
            a(f"v_cvt_pk_bf16_f32 {v(P+k)}, {v(Sx+2*k)}, {v(Sx+2*k+1)}")
        a("s_nop 1")
        mfma32(a, O, VA0, P, O)
        mfma32(a, O, VA1, P+4, O)
    a(f"s_add_u32 s{S_CNT}, s{S_CNT}, 1")
    a(f"s_cmp_lt_u32 s{S_CNT}, 64")
    a(f"s_cbranch_scc1 {l2}")
    a("s_nop 7")
    a("s_nop 7")
    a.label(lok)

def gen_attn(a, dbg_time=False):
    srd = f"s[{S_WS}:{S_WS+3}]"
    if dbg_time and not MEGA[0]: stamp(a, 0)
    a(f"s_load_dwordx2 s[{S_WS}:{S_WS+1}], s[0:1], {KA_WS}")
    if FUSE and WOPF:
        a(f"s_load_dwordx2 s[40:41], s[0:1], {KA_AWO}")
        a(f"s_load_dwordx2 s[42:43], s[0:1], {KA_BWO}")
    a(f"s_and_b32 s{S_T}, s2, 7")
    a(f"s_lshr_b32 s{S_T+1}, s2, 3")
    a(f"s_and_b32 s{S_T+2}, s{S_T+1}, 3")
    a(f"s_lshl_b32 s{S_HEAD}, s{S_T}, 2")
    a(f"s_add_u32 s{S_HEAD}, s{S_HEAD}, s{S_T+2}")
    a(f"s_lshr_b32 s{S_QB}, s{S_T+1}, 2")
    if MEGA[0]:
        a(f"s_mov_b32 s{S_WAVE}, s61")
    else:
        a(f"v_lshrrev_b32 {v(SA)}, 6, v0")
        a(f"v_and_b32 v0, 63, v0")
        a(f"v_readfirstlane_b32 s{S_WAVE}, {v(SA)}")
        a("s_mov_b32 s98, 1")
    a(f"v_lshlrev_b32 {v(V_G16)}, 4, v0")
    a(f"s_mul_i32 s{S_T+6}, s{S_HEAD}, {KV_HEAD}")
    a("s_waitcnt lgkmcnt(0)")
    a(f"s_mov_b32 s{S_WS+2}, {WS_SIZE_SRD}")
    a(f"s_mov_b32 s{S_WS+3}, 0x00020000")
    a(f"s_mov_b32 s61, s{S_WAVE}")
    off_stamp(a, 2, neg=True, back=512, cond_wave=S_WAVE)
    off_stamp(a, 3, back=512, cond_wave=S_WAVE)
    lcomp = a.newlabel("attn_compute")
    a(f"s_cmp_lt_u32 s{S_WAVE}, 4")
    a(f"s_cbranch_scc1 {lcomp}")
    if MEGA[0]:
        lnp = a.newlabel("q2_nopoll")
        a(f"s_cmp_lg_u32 s{S_WAVE}, 4")
        a(f"s_cbranch_scc1 {lnp}")
        a("v_mov_b32 v4, 0")
        a("ds_read_b32 v5, v4")
        a("s_waitcnt lgkmcnt(0)")
        a("v_readfirstlane_b32 s98, v5")
        a(f"s_lshr_b32 s{S_T}, s{S_HEAD}, 1")
        a(f"s_mul_i32 s{S_T}, s{S_T}, 40")
        a(f"s_add_u32 s{S_T+1}, s{S_T}, 39")
        a(f"s_lshr_b32 s{S_T}, s{S_T}, 7")
        a(f"s_lshr_b32 s{S_T+1}, s{S_T+1}, 7")
        a(f"v_lshrrev_b32 v4, 4, v0")
        a(f"v_and_b32 v5, 1, v4")
        a(f"s_sub_u32 s{S_T+2}, s{S_T+1}, s{S_T}")
        a(f"v_mul_u32_u24 v5, s{S_T+2}, v5")
        a(f"v_lshrrev_b32 v4, 1, v4")
        a(f"v_mul_u32_u24 v4, 5, v4")
        a(f"v_add3_u32 v4, v4, v5, s{S_T}")
        a(f"v_add_u32 v4, 5, v4")
        a(f"v_lshlrev_b32 v4, 7, v4")
        a(f"v_and_b32 v5, 15, v0")
        a(f"v_lshl_add_u32 v4, v5, 2, v4")
        a(f"v_and_b32 v6, 1, v0")
        a(f"v_mul_u32_u24 v6, s{S_T+2}, v6")
        a(f"v_add_u32 v6, s{S_T}, v6")
        a(f"v_lshlrev_b32 v6, 7, v6")
        a(f"v_bfe_u32 v7, v0, 1, 1")
        a(f"s_lshl_b32 s{S_T+3}, s{S_QB}, 1")
        a(f"v_add_u32 v7, s{S_T+3}, v7")
        a(f"v_lshl_add_u32 v6, v7, 2, v6")
        a(f"s_mov_b32 s{S_T+3}, {WS_FLAGQ}")
        a(f"s_mov_b32 s{S_T+4}, 0")
        lp = a.newlabel("q2_poll"); lpd = a.newlabel("q2_done")
        a.label(lp)
        a(f"buffer_load_dword v8, v4, {srd}, s{S_T+3} offen sc1")
        a(f"buffer_load_dword v9, v6, {srd}, s{S_T+3} offen sc1")
        a("s_waitcnt vmcnt(0)")
        a(f"v_cmp_eq_u32 vcc, s98, v8")
        a(f"v_cmp_eq_u32 s[28:29], s98, v9")
        a(f"s_add_u32 s{S_T+4}, s{S_T+4}, 1")
        a("s_nop 1")
        a("s_and_b64 vcc, vcc, s[28:29]")
        a("s_cmp_eq_u64 vcc, -1")
        a(f"s_cbranch_scc1 {lpd}")
        a("s_sleep 2")
        a(f"s_cmp_lt_u32 s{S_T+4}, 0x40000")
        a(f"s_cbranch_scc1 {lp}")
        a.label(lpd)
        a.label(lnp)
        a("s_barrier")
    a(f"s_sub_u32 s{S_T}, s{S_WAVE}, 4")
    a(f"s_mul_i32 s{S_LDSW}, s{S_T}, 7168")
    a(f"s_add_u32 s{S_DMAOFF}, s{S_T+6}, s{S_LDSW}")
    a(f"s_mov_b32 s{S_DMABUF}, 0")
    dma_chunk(a)
    if CODEPF:
        lcp = a.newlabel("codepf_skip"); lpc = a.newlabel("codepf_pc")
        a(f"s_lshr_b32 s{S_T}, s2, 3")
        a(f"s_cmp_ge_u32 s{S_T}, {CODEPF}")
        a(f"s_cbranch_scc1 {lcp}")
        a(f"s_cmp_lg_u32 s{S_WAVE}, 7")
        a(f"s_cbranch_scc1 {lcp}")
        a("s_getpc_b64 s[36:37]")
        a.label(lpc)
        a(f"s_lshl_b32 s{S_T}, s{S_T}, 13")
        a(f"v_lshlrev_b32 v6, 7, v0")
        a(f"v_add_u32 v6, s{S_T}, v6")
        a(f"v_mov_b32 v7, s37")
        a(f"v_subrev_u32 v8, ({lpc} - attn_kernel), v6") if False else None
        a(f"s_sub_u32 s36, s36, ({lpc} - attn_kernel)")
        a(f"s_subb_u32 s37, s37, 0")
        a(f"v_mov_b32 v7, s37")
        a(f"v_add_co_u32 v6, vcc, s36, v6")
        a("s_nop 1")
        a(f"v_addc_co_u32 v7, vcc, 0, v7, vcc")
        a(f"v_lshlrev_b32 v9, 7, v0")
        a(f"v_add_u32 v9, s{S_T}, v9")
        a(f"v_cmp_gt_u32 vcc, (L_k2_code_end - attn_kernel), v9")
        a("s_and_saveexec_b64 s[38:39], vcc")
        a(f"s_cbranch_execz {lcp}_r")
        a(f"global_load_dword v8, v[6:7], off")
        a.label(f"{lcp}_r")
        a("s_mov_b64 exec, -1")
        a.label(lcp)
    if FUSE and WOPF:
        a(f"s_lshr_b32 s{S_T}, s2, 3")
        a(f"s_mul_i32 s{S_T}, s{S_T}, 200")
        a(f"s_sub_u32 s{S_T+1}, s{S_WAVE}, 4")
        a(f"s_lshl_b32 s{S_T+1}, s{S_T+1}, 6")
        a(f"s_add_u32 s{S_T}, s{S_T}, s{S_T+1}")
        a(f"v_add_u32 v4, s{S_T}, v0")
        a(f"v_lshlrev_b32 v4, 7, v4")
        a(f"s_mov_b32 s46, {640*1280}")
        a(f"s_mov_b32 s47, 0x00020000")
    a(f"s_mov_b32 s{S_DMABUF}, {CH_BYTES}")
    a(f"s_mov_b32 s{S_CNT}, 0")
    a("s_waitcnt vmcnt(0)")
    a("s_barrier")
    lloop = a.newlabel("ld_loop"); lskip = a.newlabel("ld_skip")
    a.label(lloop)
    a(f"s_cmp_ge_u32 s{S_CNT}, {NCH-1}")
    a(f"s_cbranch_scc1 {lskip}")
    if not OPT['nodma']:
        dma_chunk(a)
    if FUSE and WOPF:
        lsk = a.newlabel("wopf_skip")
        a(f"s_sub_u32 s{S_T+1}, s{S_CNT}, 1")
        a(f"s_cmp_gt_u32 s{S_T+1}, 1")
        a(f"s_cbranch_scc1 {lsk}")
        a(f"s_cmp_eq_u32 s{S_CNT}, 1")
        a(f"s_cselect_b32 s44, s40, s42")
        a(f"s_cselect_b32 s45, s41, s43")
        a(f"buffer_load_dword v5, v4, s[44:47], 0 offen")
        a.label(lsk)
    a(f"s_sub_u32 s{S_DMABUF}, {CH_BYTES}, s{S_DMABUF}")
    a("s_waitcnt vmcnt(0)")
    a.label(lskip)
    if not OPT['nobar']:
        a("s_barrier")
    if gemm.GOPT['ststamp']:
        a("s_memtime s[90:91]"); a("s_waitcnt lgkmcnt(0)")
        a(f"s_mov_b32 m0, s{S_CNT}")
        a("s_sub_u32 s90, s90, s70")
        a("v_writelane_b32 v14, s90, m0")
    a(f"s_add_u32 s{S_CNT}, s{S_CNT}, 1")
    a(f"s_cmp_lt_u32 s{S_CNT}, {NCH}")
    a(f"s_cbranch_scc1 {lloop}")
    if gemm.GOPT['ststamp']:
        a(f"s_lshl_b32 s92, s2, 7")
        a(f"s_add_u32 s92, s92, {0x1E00000}")
        a("v_lshlrev_b32 v13, 2, v0")
        a(f"s_cmp_lg_u32 s{S_WAVE}, 4")
        lss = a.newlabel("ss_skip")
        a(f"s_cbranch_scc1 {lss}")
        a("s_mov_b64 exec, 0xff")
        a(f"buffer_store_dword v14, v13, {srd}, s92 offen")
        a("s_mov_b64 exec, -1")
        a.label(lss)
    if FUSE:
        lx = a.newlabel("ld_exit")
        a("s_bitcmp1_b32 s2, 3")
        a(f"s_cbranch_scc1 {lx}")
        a(f"s_and_b32 s{gemm.S_WAVE}, s{S_WAVE}, 3")
        outp.loader(a, 1)
        a.label(lx)
    a("s_endpgm")
    a.label(lcomp)
    if MEGA[0]: a("s_barrier")
    if OPT['prio']: a("s_setprio 2")
    a(f"v_mov_b32 {v(V_A16)}, {v(V_G16)}")
    a(f"v_lshlrev_b32 {v(V_A8)}, 3, v0")
    a(f"s_lshl_b32 s{S_T}, s{S_QB}, 3")
    a(f"s_lshl_b32 s{S_T+1}, s{S_WAVE}, 1")
    a(f"s_add_u32 s{S_T}, s{S_T}, s{S_T+1}")
    a(f"s_lshl_b32 s{S_T+1}, s{S_HEAD}, 6")
    a(f"s_add_u32 s{S_T+1}, s{S_T+1}, s{S_T}")
    a(f"s_lshl_b32 s{S_T+1}, s{S_T+1}, 10")
    a(f"s_add_u32 s{S_T+1}, s{S_T+1}, {WS_Q1}")
    a(f"buffer_load_dwordx4 {v(Q1A,4)}, {v(V_G16)}, {srd}, s{S_T+1} offen")
    a(f"buffer_load_dwordx4 {v(Q1B,4)}, {v(V_G16)}, {srd}, s{S_T+1} offen offset:1024")
    a(f"s_lshr_b32 s{S_T+2}, s{S_HEAD}, 1")
    a(f"s_lshl_b32 s{S_T+2}, s{S_T+2}, 6")
    a(f"s_add_u32 s{S_T+2}, s{S_T+2}, s{S_T}")
    a(f"s_lshl_b32 s{S_T+2}, s{S_T+2}, 9")
    a(f"s_add_u32 s{S_T+2}, s{S_T+2}, {WS_Q2}")
    a(f"buffer_load_dwordx2 {v(Q2A,2)}, {v(V_A8)}, {srd}, s{S_T+2} offen")
    a(f"buffer_load_dwordx2 {v(Q2B,2)}, {v(V_A8)}, {srd}, s{S_T+2} offen offset:512")
    a(f"s_add_u32 s{S_T+3}, s{S_T+6}, {63*TILE_REC}")
    a(f"buffer_load_dwordx4 {v(K1[1],4)}, {v(V_G16)}, {srd}, s{S_T+3} offen")
    a(f"buffer_load_dwordx2 {v(K2[1],2)}, {v(V_A8)}, {srd}, s{S_T+3} offen offset:3072")
    for r in list(range(OA, OA+32)) + list(range(PB, PB+8)) + list(range(SB+12, SB+16)) + list(range(VV0[1], VV0[1]+4)) + list(range(VV1[1], VV1[1]+4)) + list(range(VV0[0], VV0[0]+4)) + list(range(VV1[0], VV1[0]+4)):
        a(f"v_mov_b32 {v(r)}, 0")
    a(f"s_and_b32 s{S_T+3}, s{S_HEAD}, 1")
    a(f"s_cmp_eq_u32 s{S_T+3}, 0")
    a(f"s_cselect_b32 s{S_T+4}, 0, -1")
    a(f"s_cselect_b32 s{S_T+5}, -1, 0")
    a(f"s_mov_b32 s{S_BUFD}, {CH_BYTES}")
    a("s_mov_b32 s34, 0x011fffff")
    a("s_mov_b32 s35, 0x011fffff")
    a("s_waitcnt vmcnt(0)")
    a(f"s_mov_b64 exec, s[{S_T+4}:{S_T+5}]")
    for r in (Q2A, Q2A+1, Q2B, Q2B+1):
        a(f"v_mov_b32 {v(r)}, 0")
    a("s_mov_b64 exec, -1")
    a("s_nop 1")
    mfma32(a, SA, K1[1], Q1A, None)
    mfma32(a, SA, K2[1], Q2A, SA, k16=False)
    a(f"s_mov_b32 s{S_CNT}, 0")
    a("s_barrier")
    def rd(txt):
        if not OPT['nolds']: a(txt)
    def reads(st, off):
        rd(f"ds_read_b128 {v(K1[st],4)}, {v(V_A16)} offset:{off}")
        rd(f"ds_read_b64 {v(K2[st],2)}, {v(V_A8)} offset:{off+3072}")
        if OPT['vmask']: a("s_mov_b64 exec, s[34:35]")
        rd(f"ds_read_b128 {v(VV0[st],4)}, {v(V_A16)} offset:{off+1024}")
        rd(f"ds_read_b128 {v(VV1[st],4)}, {v(V_A16)} offset:{off+2048}")
        if OPT['vmask']: a("s_mov_b64 exec, -1")
    reads(0, 0)
    a("s_nop 7")
    if dbg_time:
        stamp(a, 1)
        a("s_waitcnt lgkmcnt(0)")
    off_stamp(a, 4, back=512, cond_wave=S_WAVE)
    loop = a.newlabel("attn_loop")
    a.raw(".p2align 6")
    a.label(loop)
    def E(Sr, i): a(f"v_exp_f32 {v(Sr+i)}, {v(Sr+i)}")
    def C(Sr, P, k): a(f"v_cvt_pk_bf16_f32 {v(P+k)}, {v(Sr+2*k)}, {v(Sr+2*k+1)}")
    PEND = []
    def phase(Sr, P, m, rds):
        if OPT['uni']:
            for q in range(4):
                m[q]()
                if q == 0:
                    for r_ in rds[0:2]: rd(r_)
                if q == 1 and rds:
                    if OPT['vmask']: a("s_mov_b64 exec, s[34:35]")
                    for r_ in rds[2:4]: rd(r_)
                    if OPT['vmask']: a("s_mov_b64 exec, -1")
                for i in range(4): E(Sr, 4*q+i)
                while PEND:
                    (s_, p_, k_) = PEND.pop(0); C(s_, p_, k_)
                PEND.append((Sr, P, 2*q)); PEND.append((Sr, P, 2*q+1))
            return
        if OPT['cl4']:
            m[0]()
            for r_ in rds[0:2]: rd(r_)
            for i in (0, 1, 2): E(Sr, i)
            m[1]()
            if rds and OPT['vmask']: a("s_mov_b64 exec, s[34:35]")
            for r_ in rds[2:4]: rd(r_)
            if rds and OPT['vmask']: a("s_mov_b64 exec, -1")
            for i in (3, 4, 5): E(Sr, i)
            m[2]()
            for i in (6, 7, 8): E(Sr, i)
            m[3]()
            for i in range(9, 16): E(Sr, i)
            for k in range(8): C(Sr, P, k)
            return
        m[0]()
        for r_ in rds[0:2]: rd(r_)
        for i in (0, 1, 2): E(Sr, i)
        m[1]()
        if rds and OPT['vmask']: a("s_mov_b64 exec, s[34:35]")
        for r_ in rds[2:4]: rd(r_)
        if rds and OPT['vmask']: a("s_mov_b64 exec, -1")
        for i in (3, 4, 5, 6, 7): E(Sr, i)
        for k in (0, 1, 2, 3): C(Sr, P, k)
        m[2]()
        for i in (8, 9, 10): E(Sr, i)
        m[3]()
        for i in (11, 12, 13, 14, 15): E(Sr, i)
        for k in (4, 5, 6, 7): C(Sr, P, k)
    if OPT['uni']:
        PEND.append((SB, PB, 6)); PEND.append((SB, PB, 7))
    for j in range(CH):
        p = j & 1; pn = p ^ 1
        phase(SA, PA, [lambda: mfma32(a, OB, VV0[pn], PB, OB), lambda: mfma32(a, SB, K1[pn], Q1B, None),
                       lambda: mfma32(a, SB, K2[pn], Q2B, SB, k16=False), lambda: mfma32(a, OB, VV1[pn], PB+4, OB)], [])
        if not OPT['nolds']: a("s_waitcnt lgkmcnt(0)")
        if j == CH-1:
            if not OPT['nobar']:
                a("s_barrier")
            a(f"v_add_u32 {v(V_A16)}, s{S_BUFD}, {v(V_A16)}")
            a(f"v_add_u32 {v(V_A8)}, s{S_BUFD}, {v(V_A8)}")
            a(f"s_sub_u32 s{S_BUFD}, 0, s{S_BUFD}")
            off = 0
        else:
            off = (j+1)*TILE_REC
        rds = [f"ds_read_b128 {v(K1[pn],4)}, {v(V_A16)} offset:{off}",
               f"ds_read_b64 {v(K2[pn],2)}, {v(V_A8)} offset:{off+3072}",
               f"ds_read_b128 {v(VV0[pn],4)}, {v(V_A16)} offset:{off+1024}",
               f"ds_read_b128 {v(VV1[pn],4)}, {v(V_A16)} offset:{off+2048}"]
        phase(SB, PB, [lambda: mfma32(a, OA, VV0[p], PA, OA), lambda: mfma32(a, SA, K1[p], Q1A, None),
                       lambda: mfma32(a, SA, K2[p], Q2A, SA, k16=False), lambda: mfma32(a, OA, VV1[p], PA+4, OA)], rds)
    a(f"s_add_u32 s{S_CNT}, s{S_CNT}, 1")
    a(f"s_cmp_lt_u32 s{S_CNT}, {NCH}")
    a(f"s_cbranch_scc1 {loop}")
    if dbg_time: stamp(a, 2)
    if OPT['uni']:
        while PEND:
            (s_, p_, k_) = PEND.pop(0); C(s_, p_, k_)
    a("s_nop 1")
    mfma32(a, OB, VV0[1], PB, OB)
    mfma32(a, OB, VV1[1], PB+4, OB)
    off_stamp(a, 5, back=512, cond_wave=S_WAVE)
    off_stamp(a, 6, neg=True, back=512, cond_wave=S_WAVE)
    safety_check_and_fallback(a)
    T = 84
    a(f"v_and_b32 {v(T)}, 31, v0")
    a(f"v_lshrrev_b32 {v(T+1)}, 5, v0")
    a(f"v_cmp_eq_u32 vcc, 0, {v(T+1)}")
    if FUSE:
        a(f"s_mul_i32 s{S_T}, s{S_WAVE}, {64*OREC}")
        a(f"s_add_u32 s{S_T}, s{S_T}, 61440")
        a(f"v_mul_u32_u24 {v(T)}, {OREC}, {v(T)}")
        a(f"v_lshl_add_u32 {v(T)}, {v(T+1)}, 3, {v(T)}")
        a(f"v_add_u32 {v(T)}, s{S_T}, {v(T)}")
        a(f"v_lshlrev_b32 {v(T+2)}, 4, v0")
        a(f"v_add_u32 {v(T+10)}, s{S_T}, {v(T+2)}")
        a(f"s_lshl_b32 s{S_T+1}, s{S_QB}, 1")
        a(f"s_lshr_b32 s{S_T+2}, s{S_WAVE}, 1")
        a(f"s_add_u32 s{S_T+1}, s{S_T+1}, s{S_T+2}")
        a(f"s_lshl_b32 s{S_T+1}, s{S_T+1}, 5")
        a(f"s_add_u32 s{S_T+1}, s{S_T+1}, s{S_HEAD}")
        a(f"s_mul_i32 s{S_T+1}, s{S_T+1}, {OBLK}")
        a(f"s_and_b32 s{S_T+2}, s{S_WAVE}, 1")
        a(f"s_mul_i32 s{S_T+2}, s{S_T+2}, {64*OREC}")
        a(f"s_add_u32 s{S_T+2}, s{S_T+2}, s{S_T+1}")
        a(f"s_add_u32 s{S_T+2}, s{S_T+2}, {WS_OBF}")
    else:
        a(f"s_lshl_b32 s{S_T}, s{S_QB}, 8")
        a(f"s_lshl_b32 s{S_T+1}, s{S_WAVE}, 6")
        a(f"s_add_u32 s{S_T}, s{S_T}, s{S_T+1}")
        a(f"v_add_u32 {v(T)}, s{S_T}, {v(T)}")
        a(f"v_mul_u32_u24 {v(T)}, 1280, {v(T)}")
        a(f"v_lshlrev_b32 {v(T+2)}, 3, {v(T+1)}")
        a(f"v_add_u32 {v(T)}, {v(T)}, {v(T+2)}")
        a(f"s_mul_i32 s{S_T+2}, s{S_HEAD}, 40")
        a(f"s_add_u32 s{S_T+2}, s{S_T+2}, {WS_OB}")
    a("s_nop 1")
    for n_, (O, extra) in enumerate(((OA, 0), (OB, 32*1280))):
        if n_ == 1:
            a("s_nop 7")
        a(f"v_cndmask_b32 {v(T+3)}, {v(O+8)}, {v(O+12)}, vcc")
        a(f"v_rcp_f32 {v(T+3)}, {v(T+3)}")
        a("s_nop 0")
        for i in range(12):
            a(f"v_mul_f32 {v(O+i)}, {v(O+i)}, {v(T+3)}")
        for i in range(6):
            a(f"v_cvt_pk_bf16_f32 {v(T+4+i)}, {v(O+2*i)}, {v(O+2*i+1)}")
        if FUSE:
            off = n_*32*OREC
            a(f"v_cndmask_b32 {v(T+8)}, 0, {v(T+8)}, vcc")
            a(f"v_cndmask_b32 {v(T+9)}, 0, {v(T+9)}, vcc")
            a(f"ds_write_b64 {v(T)}, {v(T+4,2)} offset:{off}")
            a(f"ds_write_b64 {v(T)}, {v(T+6,2)} offset:{off+16}")
            a(f"ds_write_b64 {v(T)}, {v(T+8,2)} offset:{off+32}")
        else:
            if extra:
                a(f"s_add_u32 s{S_T+2}, s{S_T+2}, {extra}")
            a(f"buffer_store_dwordx2 {v(T+4,2)}, {v(T)}, {srd}, s{S_T+2} offen")
            a(f"buffer_store_dwordx2 {v(T+6,2)}, {v(T)}, {srd}, s{S_T+2} offen offset:16")
            a("s_mov_b32 exec_hi, 0")
            a(f"buffer_store_dwordx2 {v(T+8,2)}, {v(T)}, {srd}, s{S_T+2} offen offset:32")
            a(f"s_mov_b64 exec, -1")
    if FUSE:
        a("s_waitcnt lgkmcnt(0)")
        a(f"ds_read_b128 {v(4,4)}, {v(T+10)}")
        a(f"ds_read_b128 {v(8,4)}, {v(T+10)} offset:1024")
        a(f"ds_read_b128 {v(12,4)}, {v(T+10)} offset:2048")
        a("s_waitcnt lgkmcnt(0)")
        a(f"buffer_store_dwordx4 {v(4,4)}, {v(T+2)}, {srd}, s{S_T+2} offen sc1")
        a(f"buffer_store_dwordx4 {v(8,4)}, {v(T+2)}, {srd}, s{S_T+2} offen offset:1024 sc1")
        a(f"buffer_store_dwordx4 {v(12,4)}, {v(T+2)}, {srd}, s{S_T+2} offen offset:2048 sc1")
    if FUSE:
        a("s_waitcnt vmcnt(0) lgkmcnt(0)")
        a("s_barrier")
        lnf = a.newlabel("att_noflag")
        a(f"s_cmp_lg_u32 s{S_WAVE}, 0")
        a(f"s_cbranch_scc1 {lnf}")
        a(f"s_lshl_b32 s{S_T}, s{S_QB}, 7")
        a(f"s_add_u32 s{S_T}, s{S_T}, {WS_FLAGB}")
        a(f"s_lshl_b32 s{S_T+1}, s{S_HEAD}, 2")
        a(f"v_mov_b32 {v(T)}, s{S_T+1}")
        a(f"v_mov_b32 {v(T+1)}, s98")
        a("s_mov_b64 exec, 1")
        a(f"buffer_store_dword {v(T+1)}, {v(T)}, {srd}, s{S_T} offen sc1")
        a("s_mov_b64 exec, -1")
        a.label(lnf)
        lx = a.newlabel("att_exit")
        a("s_bitcmp1_b32 s2, 3")
        a(f"s_cbranch_scc1 {lx}")
        a(f"s_mov_b32 s60, s{S_WAVE}")
        a(f"s_mov_b32 s{gemm.S_WAVE}, s60")
        a("s_setprio 0")
        outp.scalars(a, 1)
        outp.compute(a, dbg_time)
        a.label(lx)
        if dbg_time: a(f"s_mov_b32 s{S_WAVE}, s60") if False else None
    if dbg_time:
        a("s_waitcnt vmcnt(0)")
        stamp_end(a, WS_DBG, KA_WS, 61)
    a("s_endpgm")
```

```python
from asmlib import *
from layout import *
import gemm
from gemm import G, XBYTES, S_X, S_W, S_O, S_WAVE, S_T, S_RB, S_CB, GOPT, compute_addrs, rd_list, mf_list, interleave, mfmas
from roles import srd, srd_fin
import os

NB = 5
NS = 24
OF = G(NC=96, wstride=1280, acc0=80, vbase=1, NB=5, INIT=3)
RBB = 32 * OBLK
S_XO = 21; S_WO = 22; S_TT = 58

def scalars(a, branch):
    srd(a, S_X, KA_WS, 0); srd(a, S_O, KA_OUT, 0); srd(a, S_W, KA_AWO if branch == 0 else KA_BWO, 0)
    a(f"s_load_dwordx2 s[62:63], s[0:1], {KA_WS}")
    a(f"s_and_b32 s{S_T}, s2, 7")
    a(f"s_lshr_b32 s{S_T+1}, s2, 4")
    a(f"s_lshl_b32 s{S_RB}, s{S_T}, 1")
    a(f"s_lshr_b32 s{S_T+2}, s{S_T+1}, 3")
    a(f"s_add_u32 s{S_RB}, s{S_RB}, s{S_T+2}")
    a(f"s_and_b32 s{S_CB}, s{S_T+1}, 7")
    a(f"s_mov_b32 s42, {branch}")
    a(f"s_mul_i32 s{S_T+3}, s{S_RB}, {RBB}")
    a(f"s_add_u32 s{S_T+3}, s{S_T+3}, {WS_OAF if branch == 0 else WS_OBF}")
    a("s_waitcnt lgkmcnt(0)")
    a(f"s_add_u32 s{S_X}, s{S_X}, s{S_T+3}")
    a(f"s_addc_u32 s{S_X+1}, s{S_X+1}, 0")
    srd_fin(a, S_X, RBB); srd_fin(a, S_W, 640*1280); srd_fin(a, S_O, 2048*2560)
    a("s_mov_b32 s64, s62"); a("s_mov_b32 s65, s63")
    a(f"s_mov_b32 s66, {WS_SIZE_SRD}"); a("s_mov_b32 s67, 0x00020000")

def poll(a, branch):
    lw = a.newlabel("op_nopoll")
    a(f"s_cmp_lg_u32 s{S_WAVE}, 0")
    a(f"s_cbranch_scc1 {lw}")
    if branch == 1:
        a(f"s_lshr_b32 s{S_T}, s{S_RB}, 1")
        a(f"s_lshl_b32 s{S_T}, s{S_T}, 7")
        a(f"s_add_u32 s{S_T}, s{S_T}, {WS_FLAGB}")
        mask = "0xffffffff"
    else:
        a(f"s_lshl_b32 s{S_T}, s{S_RB}, 7")
        a(f"s_add_u32 s{S_T}, s{S_T}, {WS_FLAGA}")
        mask = "0xffff"
    a(f"s_mov_b32 exec_lo, {mask}")
    a(f"s_mov_b32 exec_hi, 0")
    a(f"v_lshlrev_b32 v3, 2, v0")
    a(f"s_mov_b32 s{S_T+1}, 0")
    lp = a.newlabel("op_poll"); lpd = a.newlabel("op_poll_done")
    a(f"buffer_load_dword v4, v3, s[64:67], s{S_T} offen sc1")
    a("s_sleep 6")
    a(f"buffer_load_dword v5, v3, s[64:67], s{S_T} offen sc1")
    a("s_sleep 6")
    a.label(lp)
    for (cur, nxt) in ((4, 6), (5, 4), (6, 5)):
        a(f"buffer_load_dword v{nxt}, v3, s[64:67], s{S_T} offen sc1")
        a("s_waitcnt vmcnt(2)")
        a(f"v_cmp_eq_u32 vcc, s98, v{cur}")
        a("s_nop 1")
        a(f"s_cmp_eq_u32 vcc_lo, {mask}")
        a(f"s_cbranch_scc1 {lpd}")
        a("s_sleep 4")
    a(f"s_add_u32 s{S_T+1}, s{S_T+1}, 1")
    a(f"s_cmp_lt_u32 s{S_T+1}, 0x20000")
    a(f"s_cbranch_scc1 {lp}")
    a.label(lpd)
    a("s_waitcnt vmcnt(0)")
    if ACQ:
        a("buffer_inv sc1")
        a("s_waitcnt vmcnt(0)")
    a("s_mov_b64 exec, -1")
    a.label(lw)
    a("s_barrier")
ACQ = False
XPF = False

NS = 16
NBR = 4
XST = 2*OBLK
WST = 8192
WBASE = NBR*XST
VW0, VW1, VL16 = 16, 17, 18
def loader_setup(a):
    t0, t1, t2, t3 = 3, 4, 5, 6
    a(f"v_lshlrev_b32 {v(VL16)}, 4, v0")
    for i, dst in enumerate((VW0, VW1)):
        a(f"s_lshl_b32 s{S_T}, s{S_WAVE}, 7")
        if i: a(f"s_add_u32 s{S_T}, s{S_T}, 64")
        a(f"v_add_u32 {v(t0)}, s{S_T}, v0")
        a(f"v_mul_u32_u24 {v(t1)}, 43691, {v(t0)}")
        a(f"v_lshrrev_b32 {v(t1)}, 19, {v(t1)}")
        a(f"v_mul_u32_u24 {v(t2)}, 12, {v(t1)}")
        a(f"v_sub_u32 {v(t2)}, {v(t0)}, {v(t2)}")
        a(f"v_lshlrev_b32 {v(t2)}, 4, {v(t2)}")
        a(f"v_mul_u32_u24 {v(t3)}, 1280, {v(t1)}")
        a(f"v_add_u32 {v(t3)}, {v(t3)}, {v(t2)}")
        a(f"v_cmp_le_u32 vcc, 40, {v(t1)}")
        a(f"v_mov_b32 {v(t2)}, 0x7ff00000")
        a("s_nop 0")
        a(f"v_cndmask_b32 {v(dst)}, {v(t3)}, {v(t2)}, vcc")
    a(f"s_lshl_b32 s{S_TT}, s{S_CB}, 1")
    a(f"s_mul_i32 s{S_XO}, s{S_TT}, {XST}")
    a(f"s_mul_i32 s{S_T}, s{S_WAVE}, 3072")
    a(f"s_add_u32 s{S_XO}, s{S_XO}, s{S_T}")
    a(f"s_mov_b32 s{S_T+2}, s{S_T}")
    a(f"s_lshl_b32 s{S_T+3}, s{S_WAVE}, 11")
    a(f"s_mov_b32 s60, s{S_TT}")
    a(f"s_mul_i32 s{S_WO}, s{S_TT}, {40*1280}")
    a(f"s_mul_i32 s{S_T}, s{S_CB}, 160")
    a(f"s_and_b32 s{S_T}, s{S_T}, -64")
    a(f"s_add_u32 s{S_WO}, s{S_WO}, s{S_T}")
    a(f"s_mov_b32 s68, {XST - 16*XST}")
    a(f"s_mov_b32 s69, {40*1280 - 16*40*1280}")
    a(f"s_mov_b32 s63, {40*1280}")

def issue_w(a, s_):
    slot = s_ % NBR
    sw = f"s[{S_W}:{S_W+3}]"
    a(f"s_add_u32 m0, s{S_T+3}, {WBASE + slot*WST}")
    a(f"s_add_u32 s60, s60, 1")
    a(f"buffer_load_dwordx4 {v(VW0)}, {sw}, s{S_WO} offen lds")
    a(f"s_add_u32 m0, s{S_T+3}, {WBASE + slot*WST + 1024}")
    a(f"s_cmp_eq_u32 s60, 16")
    a(f"buffer_load_dwordx4 {v(VW1)}, {sw}, s{S_WO} offen lds")
    a(f"s_cselect_b32 s{S_T+4}, s69, s63")
    a(f"s_add_u32 s{S_WO}, s{S_WO}, s{S_T+4}")
    return 2
def issue_x(a, s_):
    slot = s_ % NBR
    sx = f"s[{S_X}:{S_X+3}]"
    a(f"s_add_u32 m0, s{S_T+2}, {slot*XST}")
    a(f"s_add_u32 s{S_TT}, s{S_TT}, 1")
    for i in range(3):
        a(f"buffer_load_dwordx4 {v(VL16)}, {sx}, s{S_XO} offen offset:{1024*i} lds")
    a(f"s_cmp_eq_u32 s{S_TT}, 16")
    a(f"s_cselect_b32 s{S_T+4}, s68, {XST}")
    a(f"s_add_u32 s{S_XO}, s{S_XO}, s{S_T+4}")
    return 3

def loader(a, branch):
    scalars(a, branch)
    loader_setup(a)
    a("s_barrier")
    INIT = NBR - 1
    seq = []
    for i in range(INIT):
        issue_w(a, i); seq += [i]*2
    poll(a, branch)
    for i in range(INIT):
        issue_x(a, i); seq += [i]*3
    issued = INIT
    for s_ in range(NS):
        last = max(i for i, st in enumerate(seq) if st == s_)
        if GOPT['ststamp']:
            a("s_memtime s[90:91]"); a("s_waitcnt lgkmcnt(0)"); a(f"v_writelane_b32 v11, s90, {s_}")
        a(f"s_waitcnt vmcnt({len(seq) - 1 - last})")
        if GOPT['ststamp']:
            a("s_memtime s[90:91]"); a("s_waitcnt lgkmcnt(0)"); a(f"v_writelane_b32 v12, s90, {s_}")
        a("s_barrier")
        if GOPT['ststamp']:
            a("s_memtime s[90:91]"); a("s_waitcnt lgkmcnt(0)"); a(f"v_writelane_b32 v10, s90, {s_}")
        while issued < NS and issued <= s_ + NBR - 1:
            issue_w(a, issued); issue_x(a, issued)
            seq += [issued]*5
            issued += 1
    if GOPT['ststamp']:
        a(f"s_lshl_b32 s92, s2, 11")
        a(f"s_lshl_b32 s93, s{S_WAVE}, 9")
        a("s_add_u32 s92, s92, s93")
        a(f"s_lshl_b32 s93, s42, 20")
        a(f"s_add_u32 s92, s92, s93")
        a(f"s_add_u32 s92, s92, {0x1C00000}")
        a("v_lshlrev_b32 v13, 2, v0")
        a("s_mov_b64 exec, 0x3ffffff")
        a("buffer_store_dword v10, v13, s[64:67], s92 offen")
        a("buffer_store_dword v11, v13, s[64:67], s92 offen offset:128")
        a("buffer_store_dword v12, v13, s[64:67], s92 offen offset:256")
        a("s_mov_b64 exec, -1")
    a("s_endpgm")

ACC = 80
XF = [8, 12]
WF = [[16, 20, 24], [28, 32, 36]]
VXA, VXC, VWA, VWC = 1, 2, 3, 4
def compute(a, dbg=False):
    VT = 64
    t0, t1, t2 = VT, VT+1, VT+2
    a(f"v_and_b32 {v(t0)}, 31, v0")
    a(f"s_lshl_b32 s{S_T}, s{S_WAVE}, 5")
    a(f"v_add_u32 {v(t0)}, s{S_T}, {v(t0)}")
    a(f"v_mul_u32_u24 {v(t0)}, {OREC}, {v(t0)}")
    a(f"v_lshrrev_b32 {v(t1)}, 5, v0")
    a(f"v_lshl_add_u32 {v(VXA)}, {v(t1)}, 4, {v(t0)}")
    a(f"v_mul_u32_u24 {v(t2)}, {OBLK}, {v(t1)}")
    a(f"v_add3_u32 {v(VXC)}, {v(t0)}, {v(t2)}, 32")
    a(f"v_bfe_u32 {v(t0)}, v0, 2, 2")
    a(f"v_bfe_u32 {v(t2)}, v0, 4, 1")
    a(f"v_lshlrev_b32 {v(t2)}, 5, {v(t2)}")
    a(f"v_and_b32 {v(VWC)}, 3, v0")
    a(f"v_lshl_add_u32 {v(t2)}, {v(VWC)}, 3, {v(t2)}")
    a(f"v_add_u32 {v(t2)}, {WBASE}, {v(t2)}")
    a(f"s_and_b32 s{S_T}, s{S_CB}, 1")
    a(f"s_lshl_b32 s{S_T}, s{S_T}, 5")
    a(f"v_add_u32 {v(t2)}, s{S_T}, {v(t2)}")
    a(f"v_lshl_add_u32 {v(VWA)}, {v(t1)}, 3, {v(t0)}")
    a(f"v_mul_u32_u24 {v(VWA)}, 192, {v(VWA)}")
    a(f"v_add_u32 {v(VWA)}, {v(VWA)}, {v(t2)}")
    a(f"v_mul_u32_u24 {v(VWC)}, 20, {v(t1)}")
    a(f"v_add3_u32 {v(VWC)}, {v(VWC)}, {v(t0)}, 16")
    a(f"v_mul_u32_u24 {v(VWC)}, 192, {v(VWC)}")
    a(f"v_add_u32 {v(VWC)}, {v(VWC)}, {v(t2)}")
    for r in range(ACC, ACC+48):
        a(f"v_mov_b32 {v(r)}, 0")
    a("s_barrier")
    off_stamp(a, 7, back=0, cond_wave=S_WAVE, va=70)
    if dbg: a("s_memtime s[76:77]")
    if XPF:
        lsk = a.newlabel("xpf_skip")
        a(f"s_cmp_eq_u32 s{S_WAVE}, 3")
        a(f"s_cbranch_scc1 {lsk}")
        a(f"s_mul_i32 s{S_T}, s{S_CB}, 192")
        a(f"s_lshl_b32 s{S_T+1}, s{S_WAVE}, 6")
        a(f"s_add_u32 s{S_T}, s{S_T}, s{S_T+1}")
        a(f"v_add_u32 {v(VT)}, s{S_T}, v0")
        a(f"v_lshlrev_b32 {v(VT)}, 7, {v(VT)}")
        a(f"buffer_load_dword {v(VT+1)}, {v(VT)}, s[{S_X}:{S_X+3}], 0 offen")
        a.label(lsk)
    def reads(stage, kind, b):
        slot = stage % NBR
        xo = slot*XST; wo = slot*WST
        L = []
        if kind == 'C':
            L.append((f"ds_read_b64 {v(XF[b],2)}, {v(VXC)} offset:{xo}", 'x'))
            for i in range(3):
                L.append((f"ds_read_b64_tr_b16 {v(WF[b][i],2)}, {v(VWC)} offset:{wo + i*64}", i))
        else:
            hb = 0 if kind == 'A' else 1
            L.append((f"ds_read_b128 {v(XF[b],4)}, {v(VXA)} offset:{xo + hb*OBLK}", 'x'))
            for i in range(3):
                off = wo + i*64 + hb*20*192
                L.append((f"ds_read_b64_tr_b16 {v(WF[b][i],2)}, {v(VWA)} offset:{off}", i))
                L.append((f"ds_read_b64_tr_b16 {v(WF[b][i]+2,2)}, {v(VWA)} offset:{off + 4*192}", i))
        return L
    def mf(kind, b, i):
        d = ACC + 16*i
        if kind == 'C':
            return f"v_mfma_f32_32x32x8_bf16 {v(d,16)}, {v(WF[b][i],2)}, {v(XF[b],2)}, {v(d,16)}"
        return f"v_mfma_f32_32x32x16_bf16 {v(d,16)}, {v(WF[b][i],4)}, {v(XF[b],4)}, {v(d,16)}"
    steps = [(st, k) for st in range(NS) for k in 'ABC']
    queue = []
    def wait_for(step, tag):
        need = [n for n, (s_, t_) in enumerate(queue) if s_ == step and (t_ == tag or t_ == 'x')]
        if not need: return
        last = max(need)
        a(f"s_waitcnt lgkmcnt({min(15, len(queue) - 1 - last)})")
        del queue[:last+1]
    a("s_barrier")
    for (txt, tag) in reads(0, 'A', 0):
        a(txt); queue.append((0, tag))
    for n, (st, k) in enumerate(steps):
        b = n & 1
        nxt = steps[n+1] if n+1 < len(steps) else None
        R = []
        if nxt:
            if nxt[1] == 'A':
                a("s_waitcnt lgkmcnt(0)"); queue.clear()
                a("s_barrier")
            R = reads(nxt[0], nxt[1], b ^ 1)
        per = [3, 2, 2] if len(R) == 7 else ([2, 1, 1] if len(R) == 4 else [0, 0, 0])
        kk = 0
        for i in range(3):
            wait_for(n, i)
            a(mf(k, b, i))
            for j in range(per[i]):
                a(R[kk][0]); queue.append((n+1, R[kk][1])); kk += 1
    a("s_waitcnt vmcnt(0)")
    if dbg: a("s_memtime s[78:79]")
    so = f"s[{S_O}:{S_O+3}]"
    VA = VT
    a(f"v_and_b32 {v(VA)}, 31, v0")
    a(f"s_lshl_b32 s{S_T}, s{S_RB}, 7")
    a(f"s_lshl_b32 s{S_T+1}, s{S_WAVE}, 5")
    a(f"s_add_u32 s{S_T}, s{S_T}, s{S_T+1}")
    a(f"v_add_u32 {v(VA)}, s{S_T}, {v(VA)}")
    a(f"v_mul_u32_u24 {v(VA)}, 2560, {v(VA)}")
    a(f"v_lshrrev_b32 {v(VA+1)}, 5, v0")
    a(f"v_lshlrev_b32 {v(VA+1)}, 4, {v(VA+1)}")
    a(f"v_add_u32 {v(VA)}, {v(VA)}, {v(VA+1)}")
    a(f"s_mul_i32 s{S_T+2}, s42, 1280")
    a(f"s_mul_i32 s{S_T+3}, s{S_CB}, 160")
    a(f"s_add_u32 s{S_T+2}, s{S_T+2}, s{S_T+3}")
    a("s_nop 7")
    a("s_nop 3")
    for pr in range(5):
        G0 = 2*pr
        R0 = ACC + 16*(G0//4) + 4*(G0 % 4)
        R1 = R0 + 4
        P_ = VT + 4 + 4*(pr % 2)
        a(f"v_cvt_pk_bf16_f32 {v(P_)}, {v(R0)}, {v(R0+1)}")
        a(f"v_cvt_pk_bf16_f32 {v(P_+1)}, {v(R0+2)}, {v(R0+3)}")
        a(f"v_cvt_pk_bf16_f32 {v(P_+2)}, {v(R1)}, {v(R1+1)}")
        a(f"v_cvt_pk_bf16_f32 {v(P_+3)}, {v(R1+2)}, {v(R1+3)}")
        a("s_nop 1")
        a(f"v_permlane32_swap_b32 {v(P_)}, {v(P_+2)}")
        a(f"v_permlane32_swap_b32 {v(P_+1)}, {v(P_+3)}")
        a("s_nop 1")
        a(f"buffer_store_dwordx4 {v(P_,4)}, {v(VA)}, {so}, s{S_T+2} offen offset:{32*pr}" + os.environ.get('OUTF', ''))
    if OFFDBG[0]:
        a("s_waitcnt vmcnt(0)")
        off_stamp(a, 8, back=0, cond_wave=S_WAVE, va=78)

def publish_block(a, PK, vt, lds_base_sgpr, ntok, srd_txt, soff_sgpr):
    pass
```

```python
from asmlib import *
from layout import *
from gemm import *
import struct, os
BNB = int(os.environ.get('BNB','10'))
BINIT = int(os.environ.get('BINIT','5'))
ROT = int(os.environ.get('ROT','1'))

def f32hex(x):
    return "0x%08x" % struct.unpack("<I", struct.pack("<f", x))[0]

def srd(a, s0, kaoff, nbytes):
    a(f"s_load_dwordx2 s[{s0}:{s0+1}], s[0:1], {kaoff}")
def srd_fin(a, s0, nbytes):
    a(f"s_mov_b32 s{s0+2}, {nbytes}")
    a(f"s_mov_b32 s{s0+3}, 0x00020000")

def wave_lane(a, vt):
    a(f"v_lshrrev_b32 {v(vt)}, 6, v0")
    a(f"v_and_b32 v0, 63, v0")
    a(f"v_readfirstlane_b32 s{S_WAVE}, {v(vt)}")
    a("s_nop 3")
    a(f"s_lshr_b32 s{S_T+14}, s{S_WAVE}, 2")
    a(f"s_and_b32 s{S_WAVE}, s{S_WAVE}, 3")

def split_roles(a, g, colmode, tail=None):
    lc = a.newlabel("compute")
    a(f"s_cmp_eq_u32 s{S_T+14}, 0")
    a(f"s_cbranch_scc1 {lc}")
    loader(a, g, colmode, tail)
    a.label(lc)

PREFETCH = False
WARM = False
TOUCH = False
def IDLE_PF(a, g, VT):
    t0 = VT; t1 = VT+1; va = VT+2
    a(f"v_lshrrev_b32 {v(t0)}, 5, v0")
    a(f"v_lshlrev_b32 {v(t0)}, 6, {v(t0)}")
    a(f"v_bfe_u32 {v(t1)}, v0, 4, 1")
    a(f"v_add_u32 {v(t0)}, {v(t0)}, {v(t1)}")
    a(f"s_lshl_b32 s{S_T}, s64, 1")
    a(f"v_add_u32 {v(t0)}, s{S_T}, {v(t0)}")
    a(f"v_mul_u32_u24 {v(va)}, 3840, {v(t0)}")
    a(f"v_and_b32 {v(t1)}, 15, v0")
    a(f"v_lshlrev_b32 {v(t1)}, 7, {v(t1)}")
    a(f"v_add_u32 {v(va)}, {v(va)}, {v(t1)}")
    a(f"s_lshl_b32 s{S_T}, s{S_WAVE}, 1")
    a(f"s_mul_i32 s{S_T}, s{S_T}, {64*3840}")
    a(f"s_lshl_b32 s{S_T+4}, s65, 11")
    a(f"s_add_u32 s{S_T}, s{S_T}, s{S_T+4}")
    a(f"buffer_load_dword {v(VT+3)}, {v(va)}, s[{S_W}:{S_W+3}], s{S_T} offen")
    a(f"s_add_u32 s{S_T}, s{S_T}, {8*64*3840}")
    a(f"buffer_load_dword {v(VT+4)}, {v(va)}, s[{S_W}:{S_W+3}], s{S_T} offen")
    a(f"v_and_b32 {v(t0)}, 15, v0")
    a(f"s_lshl_b32 s{S_T}, s64, 4")
    a(f"v_add_u32 {v(t0)}, s{S_T}, {v(t0)}")
    a(f"v_mul_u32_u24 {v(va)}, 1280, {v(t0)}")
    a(f"v_lshrrev_b32 {v(t1)}, 4, v0")
    a(f"v_lshlrev_b32 {v(t1)}, 7, {v(t1)}")
    a(f"v_add_u32 {v(va)}, {v(va)}, {v(t1)}")
    a(f"s_mul_i32 s{S_T}, s66, {128*1280}")
    a(f"s_lshl_b32 s{S_T+4}, s{S_WAVE}, 9")
    a(f"s_add_u32 s{S_T}, s{S_T}, s{S_T+4}")
    a(f"buffer_load_dword {v(VT+5)}, {v(va)}, s[{S_X}:{S_X+3}], s{S_T} offen")
K1NB = int(os.environ.get('K1NB','5')); K1INIT = int(os.environ.get('K1INIT','3'))
BQ = G(NC=128, wstride=3840, acc0=(64 if K1NB == 5 else 80), vbase=1, NB=K1NB, INIT=K1INIT)
BQ.pfw = int(os.environ.get('PFW','2'))
BQ_NVGPR = 128 if K1NB == 5 else 144
def role_bqkv(a, dbg=False):
    g = BQ
    VT = 52 if K1NB == 5 else 64
    assert g.vend <= VT, g.vend
    if dbg: stamp(a, 0)
    srd(a, S_X, KA_BX, 0); srd(a, S_W, KA_BWQKV, 0); srd(a, S_O, KA_WS, 0)
    wave_lane(a, VT)
    if OFFDBG[0]:
        a(f"s_or_b32 s85, s{S_WAVE}, s{S_T+14}")
        off_stamp(a, 0, neg=True, back=-512, cond_wave=85)
    a(f"s_and_b32 s{S_T}, s2, 7")
    a(f"s_lshr_b32 s{S_T+1}, s2, 3")
    a(f"s_lshr_b32 s{S_T+2}, s{S_T}, 1")
    a(f"s_lshl_b32 s{S_T+2}, s{S_T+2}, 2")
    a(f"s_and_b32 s{S_T+3}, s{S_T}, 1")
    a(f"s_lshr_b32 s{S_T+4}, s{S_T+1}, 3")
    a(f"s_and_b32 s{S_T+5}, s{S_T+1}, 7")
    a(f"s_mul_i32 s{S_T+6}, s{S_T+1}, 37")
    a(f"s_lshr_b32 s{S_T+6}, s{S_T+6}, 8")
    a(f"s_mul_i32 s{S_T+7}, s{S_T+6}, 7")
    a(f"s_sub_u32 s{S_T+7}, s{S_T+1}, s{S_T+7}")
    a(f"s_add_u32 s{S_T+7}, s{S_T+7}, 8")
    a(f"s_cmp_eq_u32 s{S_T+3}, 0")
    a(f"s_cselect_b32 s{S_RB}, s{S_T+4}, s{S_T+6}")
    a(f"s_cselect_b32 s{S_CB}, s{S_T+5}, s{S_T+7}")
    a(f"s_add_u32 s{S_RB}, s{S_RB}, s{S_T+2}")
    a(f"s_mul_i32 s{S_XOFF}, s{S_RB}, {128*1280}")
    a(f"s_lshl_b32 s{S_WOFF}, s{S_CB}, 8")
    a("s_waitcnt lgkmcnt(0)")
    srd_fin(a, S_X, 2048*1280); srd_fin(a, S_W, 640*3840); srd_fin(a, S_O, WS_SIZE_SRD)
    lgo = a.newlabel("bq_go")
    a(f"s_cmp_eq_u32 s{S_T+3}, 0")
    a(f"s_cbranch_scc1 {lgo}")
    a(f"s_cmp_lt_u32 s{S_T+1}, 28")
    a(f"s_cbranch_scc1 {lgo}")
    if PREFETCH:
        lnp = a.newlabel("bq_idle_nopf")
        a(f"s_cmp_lg_u32 s{S_T+14}, 0")
        a(f"s_cbranch_scc1 {lnp}")
        a(f"s_mov_b32 s64, s{S_T+1}")
        a(f"s_mov_b32 s65, s{S_T+3}")
        a(f"s_mov_b32 s66, s{S_T+2}")
        IDLE_PF(a, g, VT)
        a.label(lnp)
    if WARM:
        a(f"s_load_dwordx2 s[68:69], s[0:1], {KA_AX}")
        a(f"s_load_dwordx2 s[72:73], s[0:1], {KA_AWQKV}")
        a(f"s_and_b32 s{S_T}, s2, 7")
        a(f"s_lshr_b32 s{S_T}, s{S_T}, 1")
        a(f"s_lshl_b32 s{S_T}, s{S_T}, 2")
        a(f"s_add_u32 s{S_T}, s{S_T}, s{S_T+1}")
        a(f"s_sub_u32 s{S_T}, s{S_T}, 28")
        a(f"s_lshl_b32 s{S_T+2}, s{S_T+14}, 2")
        a(f"s_add_u32 s{S_T+2}, s{S_T+2}, s{S_WAVE}")
        a(f"s_lshl_b32 s{S_T+2}, s{S_T+2}, 6")
        a(f"v_add_u32 {v(VT)}, s{S_T+2}, v0")
        a(f"v_lshlrev_b32 {v(VT)}, 7, {v(VT)}")
        a("s_waitcnt lgkmcnt(0)")
        a(f"s_mov_b32 s70, {2048*1280}"); a("s_mov_b32 s71, 0x00020000")
        a(f"s_mov_b32 s74, {640*3840}"); a("s_mov_b32 s75, 0x00020000")
        lw = a.newlabel("warm_w"); ld = a.newlabel("warm_done")
        a(f"s_cmp_ge_u32 s{S_T}, 8")
        a(f"s_cbranch_scc1 {lw}")
        a(f"s_mul_i32 s{S_T+3}, s{S_T}, {2560*128}")
        for r_ in range(5):
            a(f"buffer_load_dword {v(VT+2)}, {v(VT)}, s[68:71], s{S_T+3} offen")
            a(f"s_add_u32 s{S_T+3}, s{S_T+3}, {512*128}")
            a("s_waitcnt vmcnt(0)")
        a(f"s_branch {ld}")
        a.label(lw)
        a(f"s_sub_u32 s{S_T}, s{S_T}, 8")
        a(f"s_mul_i32 s{S_T+3}, s{S_T}, {2400*128}")
        for r_ in range(5):
            a(f"buffer_load_dword {v(VT+2)}, {v(VT)}, s[72:75], s{S_T+3} offen")
            a(f"s_add_u32 s{S_T+3}, s{S_T+3}, {512*128}")
            a("s_waitcnt vmcnt(0)")
        a.label(ld)
    a(f"s_cmp_lg_u32 s2, {28*8+1}")
    lz0 = a.newlabel("bq_z0")
    a(f"s_cbranch_scc1 {lz0}")
    a(f"s_mov_b32 s{S_T}, {WS_FLAG}")
    a(f"s_lshl_b32 s{S_T+2}, s{S_T+14}, 2")
    a(f"s_add_u32 s{S_T+2}, s{S_T+2}, s{S_WAVE}")
    a(f"s_lshl_b32 s{S_T+2}, s{S_T+2}, 6")
    a(f"v_add_u32 {v(VT)}, s{S_T+2}, v0")
    a(f"v_lshlrev_b32 {v(VT+1)}, 4, {v(VT)}")
    for i in range(4):
        a(f"v_mov_b32 {v(VT+4+i)}, 0")
    a(f"v_cmp_gt_u32 vcc, 512, {v(VT)}")
    a("s_nop 1")
    a("s_and_b64 exec, exec, vcc")
    lz = a.newlabel("bq_zskip")
    a(f"s_cbranch_execz {lz}")
    a(f"buffer_store_dwordx4 {v(VT+4,4)}, {v(VT+1)}, s[{S_O}:{S_O+3}], s{S_T} offen sc1")
    a.label(lz)
    a.label(lz0)
    a("s_endpgm")
    a.label(lgo)
    if ROT:
        a(f"s_and_b32 s{S_T+8}, s{S_RB}, 3")
        a(f"s_mul_i32 s{S_T+8}, s{S_T+8}, 10")
        a(f"s_and_b32 s{S_T+9}, s{S_CB}, 7")
        a(f"s_mul_i32 s{S_T+9}, s{S_T+9}, 5")
        a(f"s_add_u32 s{S_T+8}, s{S_T+8}, s{S_T+9}")
        a(f"s_lshr_b32 s{S_T+8}, s{S_T+8}, 1")
        a(f"s_cmp_ge_u32 s{S_T+8}, 20")
        a(f"s_cselect_b32 s{S_T+9}, 20, 0")
        a(f"s_sub_u32 s59, s{S_T+8}, s{S_T+9}")
    else:
        a("s_mov_b32 s59, 0")
    a(f"s_mov_b32 s67, s{S_WOFF}")
    a(f"s_mov_b32 s64, s{S_T+1}")
    a(f"s_mov_b32 s65, s{S_T+3}")
    a(f"s_mov_b32 s66, s{S_T+2}")
    pf = PF(VT+8, VT+9)
    def pf_setup():
        if not PREFETCH: return
        va = pf.va; t0 = VT; t1 = VT+1
        lx = a.newlabel("pf_x"); ld = a.newlabel("pf_d")
        pf.select_srd(a)
        a(f"s_cmp_eq_u32 s{S_WAVE}, 1")
        a(f"s_cbranch_scc1 {lx}")
        a(f"v_lshrrev_b32 {v(t0)}, 5, v0")
        a(f"v_lshlrev_b32 {v(t0)}, 6, {v(t0)}")
        a(f"v_bfe_u32 {v(t1)}, v0, 4, 1")
        a(f"v_add_u32 {v(t0)}, {v(t0)}, {v(t1)}")
        a(f"s_lshl_b32 s{S_T}, s64, 1")
        a(f"v_add_u32 {v(t0)}, s{S_T}, {v(t0)}")
        a(f"v_mul_u32_u24 {v(va)}, 3840, {v(t0)}")
        a(f"v_and_b32 {v(t1)}, 15, v0")
        a(f"v_lshlrev_b32 {v(t1)}, 7, {v(t1)}")
        a(f"v_add_u32 {v(va)}, {v(va)}, {v(t1)}")
        a(f"s_mul_i32 s{S_PFO}, s{S_WAVE}, {64*3840}")
        a(f"s_lshl_b32 s{S_T}, s65, 11")
        a(f"s_add_u32 s{S_PFO}, s{S_PFO}, s{S_T}")
        a(f"s_mov_b32 s{S_PFS}, {4*64*3840}")
        a(f"s_branch {ld}")
        a.label(lx)
        a(f"v_and_b32 {v(t0)}, 15, v0")
        a(f"s_lshl_b32 s{S_T}, s64, 4")
        a(f"v_add_u32 {v(t0)}, s{S_T}, {v(t0)}")
        a(f"v_mul_u32_u24 {v(va)}, 1280, {v(t0)}")
        a(f"v_lshrrev_b32 {v(t1)}, 4, v0")
        a(f"v_lshlrev_b32 {v(t1)}, 7, {v(t1)}")
        a(f"v_add_u32 {v(va)}, {v(va)}, {v(t1)}")
        a(f"s_mul_i32 s{S_PFO}, s66, {128*1280}")
        a(f"s_mov_b32 s{S_PFS}, 512")
        a.label(ld)
        pf.pre(a)
    pf_iter = (lambda: None) if PREFETCH else None
    lcomp = a.newlabel("bq_comp")
    if PREFETCH:
        lld = a.newlabel("bq_ld")
        a(f"s_cmp_lg_u32 s{S_T+14}, 0")
        a(f"s_cbranch_scc1 {lld}")
        pf_setup()
        a.label(lld)
    def touch_tail():
        if not TOUCH: return
        a(f"s_load_dwordx2 s[68:69], s[0:1], {KA_AX}")
        a(f"s_load_dwordx2 s[70:71], s[0:1], {KA_AWQKV}")
        a(f"s_load_dwordx2 s[72:73], s[0:1], {KA_AWO}")
        a(f"s_load_dwordx2 s[74:75], s[0:1], {KA_BWO}")
        a(f"s_and_b32 s{S_T}, s2, 7")
        a(f"s_lshr_b32 s{S_T+1}, s{S_T}, 1")
        a(f"s_mul_i32 s{S_T+1}, s{S_T+1}, 60")
        a(f"s_lshl_b32 s{S_T+4}, s65, 5")
        a(f"s_add_u32 s{S_T+1}, s{S_T+1}, s{S_T+4}")
        a(f"s_add_u32 s{S_T+1}, s{S_T+1}, s64")
        a(f"s_lshl_b32 s{S_T+1}, s{S_T+1}, 2")
        a(f"s_add_u32 s{S_T+1}, s{S_T+1}, s{S_WAVE}")
        a("s_waitcnt lgkmcnt(0)")
        a(f"s_mov_b32 s78, {2048*1280}")
        a(f"s_mov_b32 s80, 0")
        for lim, reg, nb in ((320, 70, 640*3840), (620, 72, 640*1280), (720, 74, 640*1280)):
            a(f"s_cmp_ge_u32 s{S_T+1}, {lim}")
            a(f"s_cselect_b32 s68, s{reg}, s68")
            a(f"s_cselect_b32 s69, s{reg+1}, s69")
            a(f"s_cselect_b32 s78, {nb}, s78")
            a(f"s_cselect_b32 s80, {lim}, s80")
        a(f"s_mov_b32 s76, s68")
        a(f"s_mov_b32 s77, s69")
        a(f"s_mov_b32 s79, 0x00020000")
        a(f"s_sub_u32 s{S_T+1}, s{S_T+1}, s80")
        a(f"s_lshl_b32 s{S_T+1}, s{S_T+1}, 13")
        a(f"v_lshlrev_b32 v3, 7, v0")
        a(f"buffer_load_dword v4, v3, s[76:79], s{S_T+1} offen")
    split_roles(a, g, 'lin', tail=touch_tail)
    compute_addrs(a, g, VT)
    lv = a.newlabel("bq_v")
    a(f"s_cmp_ge_u32 s{S_CB}, 10")
    a(f"s_cbranch_scc1 {lv}")
    compute_loop(a, g, ['FT']*4, dbg, per_iter=pf_iter)
    if dbg: a('s_memtime s[72:73]')
    so = f"s[{S_O}:{S_O+3}]"
    VL16, VL8 = VT, VT+1
    QS = 86
    a(f"v_lshlrev_b32 {v(VL16)}, 4, v0")
    a(f"v_lshlrev_b32 {v(VL8)}, 3, v0")
    a(f"s_lshl_b32 s{S_T}, s{S_RB}, 2")
    a(f"s_add_u32 s{S_T}, s{S_T}, s{S_WAVE}")
    lk = a.newlabel("bq_k")
    lend = a.newlabel("bq_end")
    a(f"s_cmp_ge_u32 s{S_CB}, 5")
    a(f"s_cbranch_scc1 {lk}")
    for typ in ('Q', 'K'):
        if typ == 'K':
            a.label(lk)
            a(f"s_sub_u32 s{S_CB}, s{S_CB}, 5")
            a(f"s_add_u32 s{S_T}, s{S_T}, 63")
            a(f"s_and_b32 s{S_T}, s{S_T}, 63")
            a(f"s_mul_i32 s{S_T+1}, s{S_T}, {TILE_REC}")
            a(f"s_add_u32 s{S_T+2}, s{S_T+1}, 3072")
            h1, h2 = KV_HEAD, None
        else:
            a(f"s_lshl_b32 s{S_T+1}, s{S_T}, 10")
            a(f"s_add_u32 s{S_T+1}, s{S_T+1}, {WS_Q1}")
            a(f"s_lshl_b32 s{S_T+2}, s{S_T}, 9")
            a(f"s_add_u32 s{S_T+2}, s{S_T+2}, {WS_Q2}")
            h1 = 65536
            a(f"s_mov_b32 s{QS}, {f32hex(QSCALE)}"); a(f"s_mov_b32 s{QS+1}, {f32hex(QSCALE)}")
        labs = [a.newlabel(f"bq_{typ}{s_}") for s_ in range(5)]
        for s_ in range(1, 5):
            a(f"s_cmp_eq_u32 s{S_CB}, {s_}")
            a(f"s_cbranch_scc1 {labs[s_]}")
        a("s_nop 7")
        for s_ in range(5):
            a.label(labs[s_])
            a("s_nop 7")
            a("s_nop 3")
            rot = 0
            def pack(Gl, dst):
                R = g.acc + 16*(Gl//4) + 4*(Gl % 4)
                if typ == 'Q':
                    a(f"v_pk_mul_f32 {v(R,2)}, {v(R,2)}, s[{QS}:{QS+1}]")
                    a(f"v_pk_mul_f32 {v(R+2,2)}, {v(R+2,2)}, s[{QS}:{QS+1}]")
                a(f"v_cvt_pk_bf16_f32 {v(dst)}, {v(R)}, {v(R+1)}")
                a(f"v_cvt_pk_bf16_f32 {v(dst+1)}, {v(R+2)}, {v(R+3)}")
            Gl = 0
            while Gl < 16:
                Gi = 16*s_ + Gl
                p, r = divmod(Gi, 5)
                tp = VT + 4 + 4*(rot % 2); rot += 1
                if r in (0, 3) and Gl < 15:
                    pack(Gl, tp); pack(Gl+1, tp+2)
                    head = 2*p + (1 if r == 3 else 0)
                    a(f"s_add_u32 s{S_T+3}, s{S_T+1}, {head*h1}")
                    a(f"buffer_store_dwordx4 {v(tp,4)}, {v(VL16)}, {so}, s{S_T+3} offen")
                    Gl += 2
                    continue
                pack(Gl, tp)
                if r != 2:
                    head = 2*p + (1 if r >= 3 else 0)
                    off8 = 8*(r if r < 2 else r-3)
                    a(f"s_add_u32 s{S_T+3}, s{S_T+1}, {head*h1}")
                    a(f"buffer_store_dwordx2 {v(tp,2)}, {v(VL16)}, {so}, s{S_T+3} offen offset:{off8}")
                elif typ == 'Q':
                    a(f"s_add_u32 s{S_T+3}, s{S_T+2}, {p*32768}")
                    a(f"buffer_store_dwordx2 {v(tp,2)}, {v(VL8)}, {so}, s{S_T+3} offen")
                else:
                    a(f"s_add_u32 s{S_T+3}, s{S_T+2}, {2*p*KV_HEAD}")
                    a(f"buffer_store_dwordx2 {v(tp,2)}, {v(VL8)}, {so}, s{S_T+3} offen")
                    a(f"s_add_u32 s{S_T+3}, s{S_T+3}, {KV_HEAD}")
                    a(f"buffer_store_dwordx2 {v(tp,2)}, {v(VL8)}, {so}, s{S_T+3} offen")
                Gl += 1
            a(f"s_branch {lend}")
    a.label(lv)
    compute_loop(a, g, ['TF']*4, dbg, per_iter=pf_iter)
    if dbg: a('s_memtime s[72:73]')
    a(f"s_sub_u32 s{S_CB}, s{S_CB}, 10")
    a(f"s_lshl_b32 s{S_T}, s{S_RB}, 2")
    a(f"s_add_u32 s{S_T}, s{S_T}, s{S_WAVE}")
    a(f"s_mul_i32 s{S_T+1}, s{S_T}, {TILE_REC}")
    a(f"s_add_u32 s{S_T+1}, s{S_T+1}, 1024")
    a(f"s_lshl_b32 s{S_T+2}, s{S_CB}, 7")
    ONE = VT + 8
    for i in range(4):
        a(f"v_mov_b32 {v(ONE+i)}, 0x3f803f80")
    VA, VD, VH, VB = VT, VT+1, VT+2, VT+3
    PK = g.xf[0]
    a(f"v_lshrrev_b32 {v(VH)}, 5, v0")
    a(f"v_lshlrev_b32 {v(VH)}, 9, {v(VH)}")
    a(f"s_mov_b32 s{S_T+3}, {KV_HEAD}")
    a("s_nop 7")
    for ct in range(4):
        a(f"v_and_b32 {v(VD)}, 31, v0")
        a(f"v_add_u32 {v(VD)}, s{S_T+2}, {v(VD)}")
        if ct: a(f"v_add_u32 {v(VD)}, {32*ct}, {v(VD)}")
        a(f"v_mul_u32_u24 {v(VA)}, 52429, {v(VD)}")
        a(f"v_lshrrev_b32 {v(VA)}, 20, {v(VA)}")
        a(f"v_mul_u32_u24 {v(VB)}, 20, {v(VA)}")
        a(f"v_sub_u32 {v(VD)}, {v(VD)}, {v(VB)}")
        a(f"v_mul_lo_u32 {v(VA)}, {v(VA)}, s{S_T+3}")
        a(f"v_lshlrev_b32 {v(VB)}, 4, {v(VD)}")
        a(f"v_add3_u32 {v(VA)}, {v(VA)}, {v(VB)}, {v(VH)}")
        for mf in range(2):
            R = g.acc + 16*ct + 8*mf
            P_ = PK + 4*mf
            for i in range(4):
                a(f"v_cvt_pk_bf16_f32 {v(P_+i)}, {v(R+2*i)}, {v(R+2*i+1)}")
            a(f"buffer_store_dwordx4 {v(P_,4)}, {v(VA)}, {so}, s{S_T+1} offen offset:{1024*mf}")
        a(f"v_and_b32 {v(VB)}, 27, {v(VD)}")
        a(f"v_cmp_eq_u32 vcc, 8, {v(VB)}")
        a(f"v_mov_b32 {v(VB)}, 0x3f803f80")
        a("s_nop 0")
        for i in range(4):
            a(f"v_cndmask_b32 {v(ONE+i)}, 0, {v(VB)}, vcc")
        a(f"v_add_u32 {v(VA)}, 192, {v(VA)}")
        a(f"v_cmp_le_u32 vcc, 8, {v(VD)}")
        a(f"s_and_saveexec_b64 s[30:31], vcc")
        lsk = a.newlabel("bq_noones")
        a(f"s_cbranch_execz {lsk}")
        for mf in range(2):
            a(f"buffer_store_dwordx4 {v(ONE,4)}, {v(VA)}, {so}, s{S_T+1} offen offset:{1024*mf}")
        a.label(lsk)
        a("s_mov_b64 exec, -1")
        a("s_nop 1")
    a.label(lend)
    if OFFDBG[0]:
        a("s_waitcnt vmcnt(0)")
        off_stamp(a, 1, back=-512, cond_wave=S_WAVE)
    if dbg:
        a('s_memtime s[74:75]')
        a("s_waitcnt vmcnt(0)")
        stamp_end(a, WS_DBG, KA_WS, S_WAVE)
    a("s_endpgm")

OP = G(NC=96, wstride=1280, acc0=80, vbase=1, NB=BNB, INIT=BINIT)
OP.pfw = int(os.environ.get('PFW','2'))
OP_NVGPR = 128
def role_out(a, dbg=False):
    g = OP
    VT = 64
    assert g.vend <= VT, g.vend
    if dbg: stamp(a, 0)
    srd(a, S_X, KA_WS, 0); srd(a, S_O, KA_OUT, 0)
    a(f"s_load_dwordx2 s[{S_W}:{S_W+1}], s[0:1], {KA_AWO}")
    a(f"s_load_dwordx2 s[{S_T+8}:{S_T+9}], s[0:1], {KA_BWO}") if (S_T+8) % 2 == 0 else a(f"s_load_dwordx2 s[{S_T+9}:{S_T+10}], s[0:1], {KA_BWO}")
    BW = S_T+8 if (S_T+8) % 2 == 0 else S_T+9
    wave_lane(a, VT)
    a(f"s_and_b32 s{S_T}, s2, 7")
    a(f"s_lshr_b32 s{S_T+1}, s2, 3")
    a(f"s_lshr_b32 s{S_T+2}, s{S_T}, 2")
    a(f"s_and_b32 s{S_T}, s{S_T}, 3")
    a(f"s_lshl_b32 s{S_RB}, s{S_T}, 2")
    a(f"s_lshr_b32 s{S_T+3}, s{S_T+1}, 3")
    a(f"s_add_u32 s{S_RB}, s{S_RB}, s{S_T+3}")
    a(f"s_and_b32 s{S_CB}, s{S_T+1}, 7")
    a(f"s_mov_b32 s{S_T+6}, s{S_T+2}")
    a(f"s_mul_i32 s{S_XOFF}, s{S_RB}, {128*1280}")
    a(f"s_mul_i32 s{S_T+4}, s{S_T+6}, {WS_OB-WS_OA}")
    a(f"s_add_u32 s{S_T+4}, s{S_T+4}, {WS_OA}")
    a(f"s_add_u32 s{S_XOFF}, s{S_XOFF}, s{S_T+4}")
    a(f"s_mul_i32 s{S_WOFF}, s{S_CB}, 160")
    a("s_waitcnt lgkmcnt(0)")
    a(f"s_cmp_eq_u32 s{S_T+6}, 0")
    a(f"s_cselect_b32 s{S_W}, s{S_W}, s{BW}")
    a(f"s_cselect_b32 s{S_W+1}, s{S_W+1}, s{BW+1}")
    srd_fin(a, S_X, WS_SIZE_SRD); srd_fin(a, S_W, 640*1280); srd_fin(a, S_O, 2048*2560)
    a(f"s_mov_b32 s42, s{S_T+6}")
    if ROT:
        a(f"s_and_b32 s{S_T+8}, s{S_RB}, 3")
        a(f"s_mul_i32 s{S_T+8}, s{S_T+8}, 10")
        a(f"s_mul_i32 s{S_T+9}, s{S_CB}, 5")
        a(f"s_add_u32 s{S_T+8}, s{S_T+8}, s{S_T+9}")
        a(f"s_lshr_b32 s{S_T+8}, s{S_T+8}, 1")
        a(f"s_cmp_ge_u32 s{S_T+8}, 20")
        a(f"s_cselect_b32 s{S_T+9}, 20, 0")
        a(f"s_sub_u32 s59, s{S_T+8}, s{S_T+9}")
    else:
        a("s_mov_b32 s59, 0")
    a(f"s_mov_b32 s67, s{S_WOFF}")
    a(f"s_mov_b32 s64, s{S_T+1}")
    a(f"s_mov_b32 s65, s{S_T+4}")
    pf = PF(VT+8, VT+9)
    def pf_setup():
        if not PREFETCH: return
        va = pf.va; t0 = VT; t1 = VT+1
        lx = a.newlabel("pf_x"); ld = a.newlabel("pf_d")
        pf.select_srd(a)
        a(f"s_cmp_eq_u32 s{S_WAVE}, 1")
        a(f"s_cbranch_scc1 {lx}")
        a(f"v_mul_u32_u24 {v(t0)}, 3277, v0")
        a(f"v_lshrrev_b32 {v(t0)}, 16, {v(t0)}")
        a(f"v_mul_u32_u24 {v(t1)}, 20, {v(t0)}")
        a(f"v_sub_u32 {v(t1)}, v0, {v(t1)}")
        a(f"s_mul_i32 s{S_T}, s64, 20")
        a(f"v_add_u32 {v(t1)}, s{S_T}, {v(t1)}")
        a(f"v_lshlrev_b32 {v(t1)}, 7, {v(t1)}")
        a(f"v_mul_u32_u24 {v(va)}, 81920, {v(t0)}")
        a(f"v_add_u32 {v(va)}, {v(va)}, {v(t1)}")
        a(f"s_mul_i32 s{S_PFO}, s{S_WAVE}, {81920*3//2}")
        a(f"s_mov_b32 s{S_PFS}, {6*81920}")
        a(f"s_branch {ld}")
        a.label(lx)
        a(f"v_and_b32 {v(t0)}, 15, v0")
        a(f"s_lshl_b32 s{S_T}, s64, 4")
        a(f"v_add_u32 {v(t0)}, s{S_T}, {v(t0)}")
        a(f"v_mul_u32_u24 {v(va)}, 1280, {v(t0)}")
        a(f"v_lshrrev_b32 {v(t1)}, 4, v0")
        a(f"v_lshlrev_b32 {v(t1)}, 7, {v(t1)}")
        a(f"v_add_u32 {v(va)}, {v(va)}, {v(t1)}")
        a(f"s_and_b32 s{S_T}, s{S_RB}, 12")
        a(f"s_mul_i32 s{S_PFO}, s{S_T}, {128*1280}")
        a(f"s_add_u32 s{S_PFO}, s{S_PFO}, s65")
        a(f"s_mov_b32 s{S_PFS}, 512")
        a.label(ld)
        pf.pre(a)
    if PREFETCH:
        lld = a.newlabel("op_ld")
        a(f"s_cmp_lg_u32 s{S_T+14}, 0")
        a(f"s_cbranch_scc1 {lld}")
        pf_setup()
        a.label(lld)
    split_roles(a, g, 'lin')
    compute_addrs(a, g, VT)
    compute_loop(a, g, ['FT']*3, dbg, per_iter=(lambda: None) if PREFETCH else None)
    if dbg: a('s_memtime s[72:73]')
    so = f"s[{S_O}:{S_O+3}]"
    VA = VT
    a(f"v_and_b32 {v(VA)}, 31, v0")
    a(f"s_lshl_b32 s{S_T}, s{S_RB}, 7")
    a(f"s_lshl_b32 s{S_T+1}, s{S_WAVE}, 5")
    a(f"s_add_u32 s{S_T}, s{S_T}, s{S_T+1}")
    a(f"v_add_u32 {v(VA)}, s{S_T}, {v(VA)}")
    a(f"v_mul_u32_u24 {v(VA)}, 2560, {v(VA)}")
    a(f"v_lshrrev_b32 {v(VA+1)}, 5, v0")
    a(f"v_lshlrev_b32 {v(VA+1)}, 4, {v(VA+1)}")
    a(f"v_add_u32 {v(VA)}, {v(VA)}, {v(VA+1)}")
    a(f"s_mul_i32 s{S_T+2}, s42, 1280")
    a(f"s_mul_i32 s{S_T+3}, s{S_CB}, 160")
    a(f"s_add_u32 s{S_T+2}, s{S_T+2}, s{S_T+3}")
    a("s_nop 7")
    a("s_nop 3")
    for pr in range(5):
        G0 = 2*pr
        R0 = g.acc + 16*(G0//4) + 4*(G0 % 4)
        R1 = R0 + 4
        P_ = VT + 4 + 4*(pr % 2)
        a(f"v_cvt_pk_bf16_f32 {v(P_)}, {v(R0)}, {v(R0+1)}")
        a(f"v_cvt_pk_bf16_f32 {v(P_+1)}, {v(R0+2)}, {v(R0+3)}")
        a(f"v_cvt_pk_bf16_f32 {v(P_+2)}, {v(R1)}, {v(R1+1)}")
        a(f"v_cvt_pk_bf16_f32 {v(P_+3)}, {v(R1+2)}, {v(R1+3)}")
        a("s_nop 1")
        a(f"v_permlane32_swap_b32 {v(P_)}, {v(P_+2)}")
        a(f"v_permlane32_swap_b32 {v(P_+1)}, {v(P_+3)}")
        a("s_nop 1")
        a(f"buffer_store_dwordx4 {v(P_,4)}, {v(VA)}, {so}, s{S_T+2} offen offset:{32*pr}")
    if dbg:
        a('s_memtime s[74:75]')
        a("s_waitcnt vmcnt(0)")
        stamp_end(a, WS_DBG, KA_WS, S_WAVE)
    a("s_endpgm")


OF = G(NC=96, wstride=1280, acc0=80, vbase=1, NB=5, INIT=3)
OF.xflags = " sc1"
OF.pfw = 0
def out_scalars(a, branch):
    srd(a, S_X, KA_WS, 0); srd(a, S_O, KA_OUT, 0); srd(a, S_W, KA_AWO if branch == 0 else KA_BWO, 0)
    a(f"s_and_b32 s{S_T}, s2, 7")
    a(f"s_lshr_b32 s{S_T+1}, s2, 4")
    a(f"s_lshl_b32 s{S_RB}, s{S_T}, 1")
    a(f"s_lshr_b32 s{S_T+2}, s{S_T+1}, 3")
    a(f"s_add_u32 s{S_RB}, s{S_RB}, s{S_T+2}")
    a(f"s_and_b32 s{S_CB}, s{S_T+1}, 7")
    a(f"s_mul_i32 s{S_XOFF}, s{S_RB}, {128*1280}")
    a(f"s_add_u32 s{S_XOFF}, s{S_XOFF}, {WS_OA if branch == 0 else WS_OB}")
    a(f"s_mul_i32 s{S_WOFF}, s{S_CB}, 160")
    a(f"s_mul_i32 s{S_T+8}, s{S_CB}, 5")
    a(f"s_lshr_b32 s{S_T+8}, s{S_T+8}, 1")
    a(f"s_mov_b32 s59, s{S_T+8}")
    a(f"s_mov_b32 s42, {branch}")
    a("s_waitcnt lgkmcnt(0)")
    srd_fin(a, S_X, WS_SIZE_SRD); srd_fin(a, S_W, 640*1280); srd_fin(a, S_O, 2048*2560)

def out_poll(a, branch):
    a("s_barrier")
    lw = a.newlabel("op_nopoll")
    a(f"s_cmp_lg_u32 s{S_WAVE}, 0")
    a(f"s_cbranch_scc1 {lw}")
    if branch == 1:
        a(f"s_lshr_b32 s{S_T}, s{S_RB}, 1")
        a(f"s_lshl_b32 s{S_T}, s{S_T}, 7")
        a(f"s_add_u32 s{S_T}, s{S_T}, {WS_FLAGB}")
        mask = "0xffffffff"; n = 32
    else:
        a(f"s_lshl_b32 s{S_T}, s{S_RB}, 7")
        a(f"s_add_u32 s{S_T}, s{S_T}, {WS_FLAGA}")
        mask = "0xffff"; n = 16
    a(f"s_mov_b32 exec_lo, {mask}")
    a(f"s_mov_b32 exec_hi, 0")
    a(f"v_lshlrev_b32 v3, 2, v0")
    a(f"s_mov_b32 s{S_T+1}, 0")
    lp = a.newlabel("op_poll"); lpd = a.newlabel("op_poll_done")
    a.label(lp)
    a(f"buffer_load_dword v4, v3, s[{S_X}:{S_X+3}], s{S_T} offen sc1")
    a("s_waitcnt vmcnt(0)")
    a(f"v_cmp_eq_u32 vcc, 1, v4")
    a(f"s_add_u32 s{S_T+1}, s{S_T+1}, 1")
    a("s_nop 1")
    a(f"s_cmp_eq_u32 vcc_lo, {mask}")
    a(f"s_cbranch_scc1 {lpd}")
    a("s_sleep 4")
    a(f"s_cmp_lt_u32 s{S_T+1}, 0x40000")
    a(f"s_cbranch_scc1 {lp}")
    a.label(lpd)
    a("s_mov_b64 exec, -1")
    a.label(lw)
    a("s_barrier")

def out_loader(a, branch):
    OF.stoff = 0x100000 + branch*0x100000
    out_scalars(a, branch)
    if GOPT['ststamp']:
        a('s_memtime s[94:95]')
    out_poll(a, branch)
    if GOPT['ststamp']:
        a('s_memtime s[96:97]')
        a('s_waitcnt lgkmcnt(0)')
        a('v_writelane_b32 v10, s94, 20')
        a('v_writelane_b32 v11, s96, 20')
        a('v_writelane_b32 v12, s70, 20')
    loader(a, OF, 'lin')

def out_compute(a, dbg=False):
    g = OF
    VT = 64
    a("s_barrier")
    compute_addrs(a, g, VT)
    compute_loop(a, g, ['FT']*3, False)
    if dbg: a("s_memtime s[68:69]")
    so = f"s[{S_O}:{S_O+3}]"
    VA = VT
    a(f"v_and_b32 {v(VA)}, 31, v0")
    a(f"s_lshl_b32 s{S_T}, s{S_RB}, 7")
    a(f"s_lshl_b32 s{S_T+1}, s{S_WAVE}, 5")
    a(f"s_add_u32 s{S_T}, s{S_T}, s{S_T+1}")
    a(f"v_add_u32 {v(VA)}, s{S_T}, {v(VA)}")
    a(f"v_mul_u32_u24 {v(VA)}, 2560, {v(VA)}")
    a(f"v_lshrrev_b32 {v(VA+1)}, 5, v0")
    a(f"v_lshlrev_b32 {v(VA+1)}, 4, {v(VA+1)}")
    a(f"v_add_u32 {v(VA)}, {v(VA)}, {v(VA+1)}")
    a(f"s_mul_i32 s{S_T+2}, s42, 1280")
    a(f"s_mul_i32 s{S_T+3}, s{S_CB}, 160")
    a(f"s_add_u32 s{S_T+2}, s{S_T+2}, s{S_T+3}")
    a("s_nop 7")
    a("s_nop 3")
    for pr in range(5):
        G0 = 2*pr
        R0 = g.acc + 16*(G0//4) + 4*(G0 % 4)
        R1 = R0 + 4
        P_ = VT + 4 + 4*(pr % 2)
        a(f"v_cvt_pk_bf16_f32 {v(P_)}, {v(R0)}, {v(R0+1)}")
        a(f"v_cvt_pk_bf16_f32 {v(P_+1)}, {v(R0+2)}, {v(R0+3)}")
        a(f"v_cvt_pk_bf16_f32 {v(P_+2)}, {v(R1)}, {v(R1+1)}")
        a(f"v_cvt_pk_bf16_f32 {v(P_+3)}, {v(R1+2)}, {v(R1+3)}")
        a("s_nop 1")
        a(f"v_permlane32_swap_b32 {v(P_)}, {v(P_+2)}")
        a(f"v_permlane32_swap_b32 {v(P_+1)}, {v(P_+3)}")
        a("s_nop 1")
        a(f"buffer_store_dwordx4 {v(P_,4)}, {v(VA)}, {so}, s{S_T+2} offen offset:{32*pr}")
```

```python
class Asm:
    def __init__(self):
        self.lines = []
        self.uid = 0
    def __call__(self, s):
        for l in s.split("\n"):
            l = l.strip()
            if l:
                self.lines.append("    " + l)
    def label(self, l):
        self.lines.append(l + ":")
    def raw(self, s):
        self.lines.append(s)
    def newlabel(self, base):
        self.uid += 1
        return f"L_{base}_{self.uid}"
    def text(self):
        return "\n".join(self.lines) + "\n"

def v(i, n=1):
    return f"v{i}" if n == 1 else f"v[{i}:{i+n-1}]"
def s(i, n=1):
    return f"s{i}" if n == 1 else f"s[{i}:{i+n-1}]"

def kernel_header(a, name):
    a.raw(f".globl {name}")
    a.raw(".p2align 8")
    a.raw(f".type {name},@function")
    a.label(name)

def kernel_desc(name, nvgpr, nsgpr=102):
    acc = (nvgpr + 3)//4*4
    return f""".p2align 6
.amdhsa_kernel {name}
  .amdhsa_next_free_vgpr {nvgpr}
  .amdhsa_next_free_sgpr {nsgpr}
  .amdhsa_accum_offset {acc}
  .amdhsa_group_segment_fixed_size 0
  .amdhsa_kernarg_size 80
  .amdhsa_user_sgpr_count 2
  .amdhsa_user_sgpr_kernarg_segment_ptr 1
  .amdhsa_system_sgpr_workgroup_id_x 1
.end_amdhsa_kernel
"""

MEGA = [False]
def stamp(a, k):
    a(f"s_memtime s[{70+2*k}:{71+2*k}]")
    if k == 0:
        a("s_memrealtime s[82:83]")
    if k == 1 and not MEGA[0]:
        a("s_memrealtime s[76:77]")
    if k == 2 and not MEGA[0]:
        a("s_memrealtime s[78:79]")
DBGK = [0]
def stamp_end(a, ws_dbg, ka_ws, wave_sgpr, idsgpr="s2"):
    ws_dbg = ws_dbg + DBGK[0]*512*512
    a("s_memtime s[80:81]")
    a("s_memrealtime s[84:85]")
    a(f"s_load_dwordx2 s[88:89], s[0:1], {ka_ws}")
    a("s_waitcnt lgkmcnt(0)")
    a("s_mov_b32 s90, 0x2000000")
    a("s_mov_b32 s91, 0x00020000")
    a("s_mov_b64 exec, 1")
    for i in range(16):
        a(f"v_mov_b32 v{2+i}, s{70+i}")
    a(f"s_lshl_b32 s92, {idsgpr}, 9")
    a(f"s_lshl_b32 s93, s{wave_sgpr}, 6")
    a("s_add_u32 s92, s92, s93")
    a(f"s_add_u32 s92, s92, {ws_dbg}")
    a("v_mov_b32 v20, 0")
    for i in range(4):
        a(f"buffer_store_dwordx4 v[{2+4*i}:{5+4*i}], v20, s[88:91], s92 offen offset:{16*i}")

def dbg_srd(a, ka_dbg):
    a(f"s_load_dwordx2 s[92:93], s[0:1], {ka_dbg}")
    a("s_waitcnt lgkmcnt(0)")
    a("s_mov_b32 s94, 256")
    a("s_mov_b32 s95, 0x00020000")
def tag_publish(a, ka_dbg):
    dbg_srd(a, ka_dbg)
    a("s_memrealtime s[96:97]")
    a("s_waitcnt lgkmcnt(0)")
    a("s_or_b32 s96, s96, 1")
    a("v_mov_b32 v4, s96")
    a("v_mov_b32 v5, 0")
    a("s_mov_b64 exec, 1")
    a("buffer_store_dword v4, v5, s[92:95], 0 offen sc1")
    a("s_mov_b64 exec, -1")
def tag_fetch(a, ka_dbg, va, vb):
    dbg_srd(a, ka_dbg)
    lp = a.newlabel("tag_poll"); ld = a.newlabel("tag_done")
    a(f"v_mov_b32 v{va}, 0")
    a("s_mov_b32 s97, 0")
    a.label(lp)
    a(f"buffer_load_dword v{vb}, v{va}, s[92:95], 0 offen sc1")
    a("s_waitcnt vmcnt(0)")
    a(f"v_readfirstlane_b32 s98, v{vb}")
    a("s_add_u32 s97, s97, 1")
    a("s_nop 1")
    a("s_cmp_lg_u32 s98, 0")
    a(f"s_cbranch_scc1 {ld}")
    a("s_sleep 4")
    a("s_cmp_lt_u32 s97, 0x40000")
    a(f"s_cbranch_scc1 {lp}")
    a.label(ld)

OFFDBG = [False]
def off_stamp(a, slot, neg=False, back=0, ka_dbg=64, cond_wave=None, va=126):
    if not OFFDBG[0]: return
    sk = a.newlabel("ofs")
    if cond_wave is not None:
        a(f"s_cmp_lg_u32 s{cond_wave}, 0")
        a(f"s_cbranch_scc1 {sk}")
    a(f"s_load_dwordx2 s[88:89], s[0:1], {ka_dbg}")
    a("s_memrealtime s[92:93]")
    a("s_waitcnt lgkmcnt(0)")
    if back > 0:
        a(f"s_sub_u32 s88, s88, {back}")
        a("s_subb_u32 s89, s89, 0")
    if back < 0:
        a(f"s_add_u32 s88, s88, {-back}")
        a("s_addc_u32 s89, s89, 0")
    a("s_mov_b32 s90, 256")
    a("s_mov_b32 s91, 0x00020000")
    if neg: a("s_not_b32 s92, s92")
    a("s_mov_b64 s[94:95], exec")
    a("s_mov_b64 exec, 1")
    a(f"v_mov_b32 v{va}, s92")
    a(f"v_mov_b32 v{va+1}, {slot*4}")
    a(f"buffer_atomic_umax v{va}, v{va+1}, s[88:91], 0 offen sc1")
    a("s_mov_b64 exec, s[94:95]")
    a.label(sk)
```

```python
from asmlib import *
from layout import *
import roles, gemm, outp
FUSE = True
WOPF = True
import os
CODEPF = int(os.environ.get('CODEPF', '0'))

CH = 8
CH_BYTES = CH * TILE_REC
NCH = 64 // CH
OPT = dict(nodma=False, nobar=False, nolds=False, prio=True, vmask=False, forcefb=False, cl4=False, uni=True)

V_A16 = 1
V_A8  = 2
V_G16 = 3
SA, SB = 4, 20
OA, OB = 36, 52
PA, PB = 68, 76
Q1A, Q1B = 84, 88
Q2A, Q2B = 92, 94
K1 = [96, 100]
VV0 = [104, 112]
VV1 = [108, 116]
K2 = [120, 122]
ATTN_NVGPR = 124
V_T0 = SA

S_WS = 8
S_HEAD = 12
S_QB = 13
S_WAVE = 14
S_DMAOFF = 15
S_LDSW = 16
S_BUFD = 17
S_CNT = 18
S_DMABUF = 19
S_T = 20

def mfma32(a, d, A, B, C, k16=True):
    op = "v_mfma_f32_32x32x16_bf16" if k16 else "v_mfma_f32_32x32x8_bf16"
    n = 4 if k16 else 2
    c = "0" if C is None else v(C, 16)
    a(f"{op} {v(d,16)}, {v(A,n)}, {v(B,n)}, {c}")

PENDING = []
def cvts(a, Sr, P, q):
    a(f"v_cvt_pk_bf16_f32 {v(P+2*q)}, {v(Sr+4*q)}, {v(Sr+4*q+1)}")
    a(f"v_cvt_pk_bf16_f32 {v(P+2*q+1)}, {v(Sr+4*q+2)}, {v(Sr+4*q+3)}")
def flush_cvts(a):
    while PENDING:
        cvts(a, *PENDING.pop(0))
def exps(a, Sr, P, q):
    for i in range(4):
        a(f"v_exp_f32 {v(Sr+4*q+i)}, {v(Sr+4*q+i)}")
    flush_cvts(a)
    PENDING.append((Sr, P, q))

def dma_chunk(a):
    srd = f"s[{S_WS}:{S_WS+3}]"
    a(f"s_add_u32 m0, s{S_DMABUF}, s{S_LDSW}")
    a("s_nop 0")
    for i in range(4):
        a(f"buffer_load_dwordx4 {v(V_G16)}, {srd}, s{S_DMAOFF} offen offset:{i*1024} lds")
    a(f"s_add_u32 m0, m0, 4096")
    a(f"s_add_u32 s{S_DMAOFF}, s{S_DMAOFF}, 4096")
    for i in range(3):
        a(f"buffer_load_dwordx4 {v(V_G16)}, {srd}, s{S_DMAOFF} offen offset:{i*1024} lds")
    a(f"s_add_u32 s{S_DMAOFF}, s{S_DMAOFF}, {CH_BYTES-4096}")

def safety_check_and_fallback(a):
    srd = f"s[{S_WS}:{S_WS+3}]"
    T = SA
    lok = a.newlabel("att_ok")
    a("s_nop 7")
    a("s_nop 3")
    a(f"v_lshrrev_b32 {v(T)}, 5, v0")
    a(f"v_cmp_eq_u32 vcc, 0, {v(T)}")
    a(f"s_mov_b64 s[26:27], 0")
    a(f"s_mov_b32 s28, 0x1f800000")
    a(f"s_mov_b32 s29, 0x5f800000")
    for O in (OA, OB):
        a(f"v_cndmask_b32 {v(T+1)}, {v(O+8)}, {v(O+12)}, vcc")
        a(f"v_pk_mul_f32 {v(T+2,2)}, {v(O,2)}, 0 op_sel_hi:[1,0]")
        for i in (2, 4, 6):
            a(f"v_pk_fma_f32 {v(T+2,2)}, {v(O+i,2)}, 0, {v(T+2,2)} op_sel_hi:[1,0,1]")
        a(f"v_pk_mul_f32 {v(T+4,2)}, {v(O+8,2)}, 0 op_sel_hi:[1,0]")
        a(f"v_pk_fma_f32 {v(T+4,2)}, {v(O+10,2)}, 0, {v(T+4,2)} op_sel_hi:[1,0,1]")
        a(f"v_cmp_nle_f32 s[22:23], s28, {v(T+1)}")
        a(f"v_cmp_nge_f32 s[24:25], s29, {v(T+1)}")
        a(f"v_cmp_u_f32 s[30:31], {v(T+2)}, {v(T+3)}")
        a(f"v_cmp_u_f32 s[36:37], {v(T+4)}, {v(T+5)}")
        a("s_nop 1")
        a("s_or_b64 s[26:27], s[26:27], s[22:23]")
        a("s_or_b64 s[26:27], s[26:27], s[24:25]")
        a("s_or_b64 s[26:27], s[26:27], s[30:31]")
        a("s_and_b64 s[36:37], s[36:37], vcc")
        a("s_or_b64 s[26:27], s[26:27], s[36:37]")
    if os.environ.get('EXPC'): a("s_mov_b64 s[26:27], 0")
    if OPT['forcefb']:
        a("s_mov_b64 s[26:27], -1")
    a("s_cmp_eq_u64 s[26:27], 0")
    a(f"s_cbranch_scc1 {lok}")
    G16 = V_G16; G8 = T+1; MA, MB, TM = T+2, T+3, 120
    X = [SA + 0]
    SX, SY = 20, 100
    KA1, KA2, VA0, VA1 = 116, 122, 68, 72
    PX, PY = 76, 8
    MA, MB, TM = 4, 6, 7
    G8 = 5
    a(f"v_lshlrev_b32 {v(G8)}, 3, v0")
    a(f"s_mul_i32 s22, s{S_HEAD}, {KV_HEAD}")
    a(f"s_and_b32 s23, s{S_HEAD}, 1")
    a(f"s_cmp_eq_u32 s23, 0")
    a(f"s_cselect_b32 s36, -1, 0")
    a(f"s_cselect_b32 s37, 0, -1")
    a(f"v_mov_b32 {v(KA2)}, 0"); a(f"v_mov_b32 {v(KA2+1)}, 0")
    a(f"v_mov_b32 {v(MA)}, 0xff800000"); a(f"v_mov_b32 {v(MB)}, 0xff800000")
    def load_k():
        a(f"s_add_u32 s24, s{S_CNT}, 63")
        a(f"s_and_b32 s24, s24, 63")
        a(f"s_mul_i32 s24, s24, {TILE_REC}")
        a(f"s_add_u32 s24, s24, s22")
        a(f"buffer_load_dwordx4 {v(KA1,4)}, {v(G16)}, {srd}, s24 offen")
        a(f"s_mov_b64 exec, s[36:37]")
        a(f"buffer_load_dwordx2 {v(KA2,2)}, {v(G8)}, {srd}, s24 offen offset:3072")
        a(f"s_mov_b64 exec, -1")
    def qk():
        mfma32(a, SX, KA1, Q1A, None); mfma32(a, SX, KA2, Q2A, SX, k16=False)
        mfma32(a, SY, KA1, Q1B, None); mfma32(a, SY, KA2, Q2B, SY, k16=False)
        a("s_nop 7"); a("s_nop 7")
    a(f"s_mov_b32 s{S_CNT}, 0")
    l1 = a.newlabel("fb_max")
    a.label(l1)
    load_k()
    a("s_waitcnt vmcnt(0)")
    qk()
    for (Sx, M) in ((SX, MA), (SY, MB)):
        for i in range(0, 16, 2):
            a(f"v_max3_f32 {v(M)}, {v(M)}, {v(Sx+i)}, {v(Sx+i+1)}")
    a(f"s_add_u32 s{S_CNT}, s{S_CNT}, 1")
    a(f"s_cmp_lt_u32 s{S_CNT}, 64")
    a(f"s_cbranch_scc1 {l1}")
    for M in (MA, MB):
        a(f"v_mov_b32 {v(TM)}, {v(M)}")
        a("s_nop 1")
        a(f"v_permlane32_swap_b32 {v(M)}, {v(TM)}")
        a("s_nop 1")
        a(f"v_max_f32 {v(M)}, {v(M)}, {v(TM)}")
    for r in list(range(OA, OA+32)) + list(range(VA0, VA0+8)):
        a(f"v_mov_b32 {v(r)}, 0")
    a(f"s_mov_b32 s{S_CNT}, 0")
    l2 = a.newlabel("fb_main")
    a.label(l2)
    load_k()
    a(f"s_mul_i32 s24, s{S_CNT}, {TILE_REC}")
    a(f"s_add_u32 s24, s24, s22")
    a(f"s_mov_b64 exec, s[34:35]")
    a(f"buffer_load_dwordx4 {v(VA0,4)}, {v(G16)}, {srd}, s24 offen offset:1024")
    a(f"buffer_load_dwordx4 {v(VA1,4)}, {v(G16)}, {srd}, s24 offen offset:2048")
    a(f"s_mov_b64 exec, -1")
    a("s_waitcnt vmcnt(0)")
    qk()
    for (Sx, M, P, O) in ((SX, MA, PX, OA), (SY, MB, PY, OB)):
        for i in range(16):
            a(f"v_sub_f32 {v(Sx+i)}, {v(Sx+i)}, {v(M)}")
        for i in range(16):
            a(f"v_exp_f32 {v(Sx+i)}, {v(Sx+i)}")
        a("s_nop 0")
        for k in range(8):
            a(f"v_cvt_pk_bf16_f32 {v(P+k)}, {v(Sx+2*k)}, {v(Sx+2*k+1)}")
        a("s_nop 1")
        mfma32(a, O, VA0, P, O)
        mfma32(a, O, VA1, P+4, O)
    a(f"s_add_u32 s{S_CNT}, s{S_CNT}, 1")
    a(f"s_cmp_lt_u32 s{S_CNT}, 64")
    a(f"s_cbranch_scc1 {l2}")
    a("s_nop 7")
    a("s_nop 7")
    a.label(lok)

def gen_attn(a, dbg_time=False):
    srd = f"s[{S_WS}:{S_WS+3}]"
    if dbg_time and not MEGA[0]: stamp(a, 0)
    a(f"s_load_dwordx2 s[{S_WS}:{S_WS+1}], s[0:1], {KA_WS}")
    if FUSE and WOPF:
        a(f"s_load_dwordx2 s[40:41], s[0:1], {KA_AWO}")
        a(f"s_load_dwordx2 s[42:43], s[0:1], {KA_BWO}")
    a(f"s_and_b32 s{S_T}, s2, 7")
    a(f"s_lshr_b32 s{S_T+1}, s2, 3")
    a(f"s_and_b32 s{S_T+2}, s{S_T+1}, 3")
    a(f"s_lshl_b32 s{S_HEAD}, s{S_T}, 2")
    a(f"s_add_u32 s{S_HEAD}, s{S_HEAD}, s{S_T+2}")
    a(f"s_lshr_b32 s{S_QB}, s{S_T+1}, 2")
    if MEGA[0]:
        a(f"s_mov_b32 s{S_WAVE}, s61")
    else:
        a(f"v_lshrrev_b32 {v(SA)}, 6, v0")
        a(f"v_and_b32 v0, 63, v0")
        a(f"v_readfirstlane_b32 s{S_WAVE}, {v(SA)}")
        a("s_mov_b32 s98, 1")
    a(f"v_lshlrev_b32 {v(V_G16)}, 4, v0")
    a(f"s_mul_i32 s{S_T+6}, s{S_HEAD}, {KV_HEAD}")
    a("s_waitcnt lgkmcnt(0)")
    a(f"s_mov_b32 s{S_WS+2}, {WS_SIZE_SRD}")
    a(f"s_mov_b32 s{S_WS+3}, 0x00020000")
    a(f"s_mov_b32 s61, s{S_WAVE}")
    off_stamp(a, 2, neg=True, back=0, cond_wave=S_WAVE)
    off_stamp(a, 3, back=0, cond_wave=S_WAVE)
    lcomp = a.newlabel("attn_compute")
    a(f"s_cmp_lt_u32 s{S_WAVE}, 4")
    a(f"s_cbranch_scc1 {lcomp}")
    if MEGA[0]:
        lnp = a.newlabel("q2_nopoll")
        a(f"s_cmp_lg_u32 s{S_WAVE}, 4")
        a(f"s_cbranch_scc1 {lnp}")
        a("v_mov_b32 v4, 0")
        a("ds_read_b32 v5, v4")
        a("s_waitcnt lgkmcnt(0)")
        a("v_readfirstlane_b32 s98, v5")
        a(f"s_lshr_b32 s{S_T}, s{S_HEAD}, 1")
        a(f"s_mul_i32 s{S_T}, s{S_T}, 40")
        a(f"s_add_u32 s{S_T+1}, s{S_T}, 39")
        a(f"s_lshr_b32 s{S_T}, s{S_T}, 7")
        a(f"s_lshr_b32 s{S_T+1}, s{S_T+1}, 7")
        a(f"v_lshrrev_b32 v4, 4, v0")
        a(f"v_and_b32 v5, 1, v4")
        a(f"s_sub_u32 s{S_T+2}, s{S_T+1}, s{S_T}")
        a(f"v_mul_u32_u24 v5, s{S_T+2}, v5")
        a(f"v_lshrrev_b32 v4, 1, v4")
        a(f"v_mul_u32_u24 v4, 5, v4")
        a(f"v_add3_u32 v4, v4, v5, s{S_T}")
        a(f"v_add_u32 v4, 5, v4")
        a(f"v_lshlrev_b32 v4, 7, v4")
        a(f"v_and_b32 v5, 15, v0")
        a(f"v_lshl_add_u32 v4, v5, 2, v4")
        a(f"v_and_b32 v6, 1, v0")
        a(f"v_mul_u32_u24 v6, s{S_T+2}, v6")
        a(f"v_add_u32 v6, s{S_T}, v6")
        a(f"v_lshlrev_b32 v6, 7, v6")
        a(f"v_bfe_u32 v7, v0, 1, 1")
        a(f"s_lshl_b32 s{S_T+3}, s{S_QB}, 1")
        a(f"v_add_u32 v7, s{S_T+3}, v7")
        a(f"v_lshl_add_u32 v6, v7, 2, v6")
        a(f"s_mov_b32 s{S_T+3}, {WS_FLAGQ}")
        a(f"s_mov_b32 s{S_T+4}, 0")
        lp = a.newlabel("q2_poll"); lpd = a.newlabel("q2_done")
        a.label(lp)
        a(f"buffer_load_dword v8, v4, {srd}, s{S_T+3} offen sc1")
        a(f"buffer_load_dword v9, v6, {srd}, s{S_T+3} offen sc1")
        a("s_waitcnt vmcnt(0)")
        a(f"v_cmp_eq_u32 vcc, s98, v8")
        a(f"v_cmp_eq_u32 s[28:29], s98, v9")
        a(f"s_add_u32 s{S_T+4}, s{S_T+4}, 1")
        a("s_nop 1")
        a("s_and_b64 vcc, vcc, s[28:29]")
        a("s_cmp_eq_u64 vcc, -1")
        a(f"s_cbranch_scc1 {lpd}")
        a("s_sleep 2")
        a(f"s_cmp_lt_u32 s{S_T+4}, 0x40000")
        a(f"s_cbranch_scc1 {lp}")
        a.label(lpd)
        a.label(lnp)
        a("s_barrier")
    a(f"s_sub_u32 s{S_T}, s{S_WAVE}, 4")
    a(f"s_mul_i32 s{S_LDSW}, s{S_T}, 7168")
    a(f"s_add_u32 s{S_DMAOFF}, s{S_T+6}, s{S_LDSW}")
    a(f"s_mov_b32 s{S_DMABUF}, 0")
    dma_chunk(a)
    if CODEPF:
        lcp = a.newlabel("codepf_skip"); lpc = a.newlabel("codepf_pc")
        a(f"s_lshr_b32 s{S_T}, s2, 3")
        a(f"s_cmp_ge_u32 s{S_T}, {CODEPF}")
        a(f"s_cbranch_scc1 {lcp}")
        a(f"s_cmp_lg_u32 s{S_WAVE}, 7")
        a(f"s_cbranch_scc1 {lcp}")
        a("s_getpc_b64 s[36:37]")
        a.label(lpc)
        a(f"s_lshl_b32 s{S_T}, s{S_T}, 13")
        a(f"v_lshlrev_b32 v6, 7, v0")
        a(f"v_add_u32 v6, s{S_T}, v6")
        a(f"v_mov_b32 v7, s37")
        a(f"v_subrev_u32 v8, ({lpc} - attn_kernel), v6") if False else None
        a(f"s_sub_u32 s36, s36, ({lpc} - attn_kernel)")
        a(f"s_subb_u32 s37, s37, 0")
        a(f"v_mov_b32 v7, s37")
        a(f"v_add_co_u32 v6, vcc, s36, v6")
        a("s_nop 1")
        a(f"v_addc_co_u32 v7, vcc, 0, v7, vcc")
        a(f"v_lshlrev_b32 v9, 7, v0")
        a(f"v_add_u32 v9, s{S_T}, v9")
        a(f"v_cmp_gt_u32 vcc, (L_k2_code_end - attn_kernel), v9")
        a("s_and_saveexec_b64 s[38:39], vcc")
        a(f"s_cbranch_execz {lcp}_r")
        a(f"global_load_dword v8, v[6:7], off")
        a.label(f"{lcp}_r")
        a("s_mov_b64 exec, -1")
        a.label(lcp)
    if FUSE and WOPF:
        a(f"s_lshr_b32 s{S_T}, s2, 3")
        a(f"s_mul_i32 s{S_T}, s{S_T}, 200")
        a(f"s_sub_u32 s{S_T+1}, s{S_WAVE}, 4")
        a(f"s_lshl_b32 s{S_T+1}, s{S_T+1}, 6")
        a(f"s_add_u32 s{S_T}, s{S_T}, s{S_T+1}")
        a(f"v_add_u32 v4, s{S_T}, v0")
        a(f"v_lshlrev_b32 v4, 7, v4")
        a(f"s_mov_b32 s46, {640*1280}")
        a(f"s_mov_b32 s47, 0x00020000")
    a(f"s_mov_b32 s{S_DMABUF}, {CH_BYTES}")
    a(f"s_mov_b32 s{S_CNT}, 0")
    a("s_waitcnt vmcnt(0)")
    a("s_barrier")
    lloop = a.newlabel("ld_loop"); lskip = a.newlabel("ld_skip")
    a.label(lloop)
    a(f"s_cmp_ge_u32 s{S_CNT}, {NCH-1}")
    a(f"s_cbranch_scc1 {lskip}")
    if not OPT['nodma']:
        dma_chunk(a)
    if FUSE and WOPF:
        lsk = a.newlabel("wopf_skip")
        a(f"s_sub_u32 s{S_T+1}, s{S_CNT}, 1")
        a(f"s_cmp_gt_u32 s{S_T+1}, 1")
        a(f"s_cbranch_scc1 {lsk}")
        a(f"s_cmp_eq_u32 s{S_CNT}, 1")
        a(f"s_cselect_b32 s44, s40, s42")
        a(f"s_cselect_b32 s45, s41, s43")
        a(f"buffer_load_dword v5, v4, s[44:47], 0 offen")
        a.label(lsk)
    a(f"s_sub_u32 s{S_DMABUF}, {CH_BYTES}, s{S_DMABUF}")
    a("s_waitcnt vmcnt(0)")
    a.label(lskip)
    if not OPT['nobar']:
        a("s_barrier")
    if gemm.GOPT['ststamp']:
        a("s_memtime s[90:91]"); a("s_waitcnt lgkmcnt(0)")
        a(f"s_mov_b32 m0, s{S_CNT}")
        a("s_sub_u32 s90, s90, s70")
        a("v_writelane_b32 v14, s90, m0")
    a(f"s_add_u32 s{S_CNT}, s{S_CNT}, 1")
    a(f"s_cmp_lt_u32 s{S_CNT}, {NCH}")
    a(f"s_cbranch_scc1 {lloop}")
    if gemm.GOPT['ststamp']:
        a(f"s_lshl_b32 s92, s2, 7")
        a(f"s_add_u32 s92, s92, {0x1E00000}")
        a("v_lshlrev_b32 v13, 2, v0")
        a(f"s_cmp_lg_u32 s{S_WAVE}, 4")
        lss = a.newlabel("ss_skip")
        a(f"s_cbranch_scc1 {lss}")
        a("s_mov_b64 exec, 0xff")
        a(f"buffer_store_dword v14, v13, {srd}, s92 offen")
        a("s_mov_b64 exec, -1")
        a.label(lss)
    if FUSE:
        lx = a.newlabel("ld_exit")
        a("s_bitcmp1_b32 s2, 3")
        a(f"s_cbranch_scc1 {lx}")
        a(f"s_and_b32 s{gemm.S_WAVE}, s{S_WAVE}, 3")
        outp.loader(a, 1)
        a.label(lx)
    a("s_endpgm")
    a.label(lcomp)
    if MEGA[0]: a("s_barrier")
    if OPT['prio']: a("s_setprio 2")
    a(f"v_mov_b32 {v(V_A16)}, {v(V_G16)}")
    a(f"v_lshlrev_b32 {v(V_A8)}, 3, v0")
    a(f"s_lshl_b32 s{S_T}, s{S_QB}, 3")
    a(f"s_lshl_b32 s{S_T+1}, s{S_WAVE}, 1")
    a(f"s_add_u32 s{S_T}, s{S_T}, s{S_T+1}")
    a(f"s_lshl_b32 s{S_T+1}, s{S_HEAD}, 6")
    a(f"s_add_u32 s{S_T+1}, s{S_T+1}, s{S_T}")
    a(f"s_lshl_b32 s{S_T+1}, s{S_T+1}, 10")
    a(f"s_add_u32 s{S_T+1}, s{S_T+1}, {WS_Q1}")
    a(f"buffer_load_dwordx4 {v(Q1A,4)}, {v(V_G16)}, {srd}, s{S_T+1} offen")
    a(f"buffer_load_dwordx4 {v(Q1B,4)}, {v(V_G16)}, {srd}, s{S_T+1} offen offset:1024")
    a(f"s_lshr_b32 s{S_T+2}, s{S_HEAD}, 1")
    a(f"s_lshl_b32 s{S_T+2}, s{S_T+2}, 6")
    a(f"s_add_u32 s{S_T+2}, s{S_T+2}, s{S_T}")
    a(f"s_lshl_b32 s{S_T+2}, s{S_T+2}, 9")
    a(f"s_add_u32 s{S_T+2}, s{S_T+2}, {WS_Q2}")
    a(f"buffer_load_dwordx2 {v(Q2A,2)}, {v(V_A8)}, {srd}, s{S_T+2} offen")
    a(f"buffer_load_dwordx2 {v(Q2B,2)}, {v(V_A8)}, {srd}, s{S_T+2} offen offset:512")
    a(f"s_add_u32 s{S_T+3}, s{S_T+6}, {63*TILE_REC}")
    a(f"buffer_load_dwordx4 {v(K1[1],4)}, {v(V_G16)}, {srd}, s{S_T+3} offen")
    a(f"buffer_load_dwordx2 {v(K2[1],2)}, {v(V_A8)}, {srd}, s{S_T+3} offen offset:3072")
    for r in list(range(OA, OA+32)) + list(range(PB, PB+8)) + list(range(SB+12, SB+16)) + list(range(VV0[1], VV0[1]+4)) + list(range(VV1[1], VV1[1]+4)) + list(range(VV0[0], VV0[0]+4)) + list(range(VV1[0], VV1[0]+4)):
        a(f"v_mov_b32 {v(r)}, 0")
    a(f"s_and_b32 s{S_T+3}, s{S_HEAD}, 1")
    a(f"s_cmp_eq_u32 s{S_T+3}, 0")
    a(f"s_cselect_b32 s{S_T+4}, 0, -1")
    a(f"s_cselect_b32 s{S_T+5}, -1, 0")
    a(f"s_mov_b32 s{S_BUFD}, {CH_BYTES}")
    a("s_mov_b32 s34, 0x011fffff")
    a("s_mov_b32 s35, 0x011fffff")
    a("s_waitcnt vmcnt(0)")
    a(f"s_mov_b64 exec, s[{S_T+4}:{S_T+5}]")
    for r in (Q2A, Q2A+1, Q2B, Q2B+1):
        a(f"v_mov_b32 {v(r)}, 0")
    a("s_mov_b64 exec, -1")
    a("s_nop 1")
    mfma32(a, SA, K1[1], Q1A, None)
    mfma32(a, SA, K2[1], Q2A, SA, k16=False)
    a(f"s_mov_b32 s{S_CNT}, 0")
    a("s_barrier")
    def rd(txt):
        if not OPT['nolds']: a(txt)
    def reads(st, off):
        rd(f"ds_read_b128 {v(K1[st],4)}, {v(V_A16)} offset:{off}")
        rd(f"ds_read_b64 {v(K2[st],2)}, {v(V_A8)} offset:{off+3072}")
        if OPT['vmask']: a("s_mov_b64 exec, s[34:35]")
        rd(f"ds_read_b128 {v(VV0[st],4)}, {v(V_A16)} offset:{off+1024}")
        rd(f"ds_read_b128 {v(VV1[st],4)}, {v(V_A16)} offset:{off+2048}")
        if OPT['vmask']: a("s_mov_b64 exec, -1")
    reads(0, 0)
    a("s_nop 7")
    if dbg_time:
        stamp(a, 1)
        a("s_waitcnt lgkmcnt(0)")
    off_stamp(a, 4, back=0, cond_wave=S_WAVE)
    loop = a.newlabel("attn_loop")
    a.raw(".p2align 6")
    a.label(loop)
    def E(Sr, i): a(f"v_exp_f32 {v(Sr+i)}, {v(Sr+i)}")
    def C(Sr, P, k): a(f"v_cvt_pk_bf16_f32 {v(P+k)}, {v(Sr+2*k)}, {v(Sr+2*k+1)}")
    PEND = []
    def phase(Sr, P, m, rds):
        if OPT['uni']:
            for q in range(4):
                m[q]()
                if q == 0:
                    for r_ in rds[0:2]: rd(r_)
                if q == 1 and rds:
                    if OPT['vmask']: a("s_mov_b64 exec, s[34:35]")
                    for r_ in rds[2:4]: rd(r_)
                    if OPT['vmask']: a("s_mov_b64 exec, -1")
                for i in range(4): E(Sr, 4*q+i)
                while PEND:
                    (s_, p_, k_) = PEND.pop(0); C(s_, p_, k_)
                PEND.append((Sr, P, 2*q)); PEND.append((Sr, P, 2*q+1))
            return
        if OPT['cl4']:
            m[0]()
            for r_ in rds[0:2]: rd(r_)
            for i in (0, 1, 2): E(Sr, i)
            m[1]()
            if rds and OPT['vmask']: a("s_mov_b64 exec, s[34:35]")
            for r_ in rds[2:4]: rd(r_)
            if rds and OPT['vmask']: a("s_mov_b64 exec, -1")
            for i in (3, 4, 5): E(Sr, i)
            m[2]()
            for i in (6, 7, 8): E(Sr, i)
            m[3]()
            for i in range(9, 16): E(Sr, i)
            for k in range(8): C(Sr, P, k)
            return
        m[0]()
        for r_ in rds[0:2]: rd(r_)
        for i in (0, 1, 2): E(Sr, i)
        m[1]()
        if rds and OPT['vmask']: a("s_mov_b64 exec, s[34:35]")
        for r_ in rds[2:4]: rd(r_)
        if rds and OPT['vmask']: a("s_mov_b64 exec, -1")
        for i in (3, 4, 5, 6, 7): E(Sr, i)
        for k in (0, 1, 2, 3): C(Sr, P, k)
        m[2]()
        for i in (8, 9, 10): E(Sr, i)
        m[3]()
        for i in (11, 12, 13, 14, 15): E(Sr, i)
        for k in (4, 5, 6, 7): C(Sr, P, k)
    if OPT['uni']:
        PEND.append((SB, PB, 6)); PEND.append((SB, PB, 7))
    for j in range(CH):
        p = j & 1; pn = p ^ 1
        phase(SA, PA, [lambda: mfma32(a, OB, VV0[pn], PB, OB), lambda: mfma32(a, SB, K1[pn], Q1B, None),
                       lambda: mfma32(a, SB, K2[pn], Q2B, SB, k16=False), lambda: mfma32(a, OB, VV1[pn], PB+4, OB)], [])
        if not OPT['nolds']: a("s_waitcnt lgkmcnt(0)")
        if j == CH-1:
            if not OPT['nobar']:
                a("s_barrier")
            a(f"v_add_u32 {v(V_A16)}, s{S_BUFD}, {v(V_A16)}")
            a(f"v_add_u32 {v(V_A8)}, s{S_BUFD}, {v(V_A8)}")
            a(f"s_sub_u32 s{S_BUFD}, 0, s{S_BUFD}")
            off = 0
        else:
            off = (j+1)*TILE_REC
        rds = [f"ds_read_b128 {v(K1[pn],4)}, {v(V_A16)} offset:{off}",
               f"ds_read_b64 {v(K2[pn],2)}, {v(V_A8)} offset:{off+3072}",
               f"ds_read_b128 {v(VV0[pn],4)}, {v(V_A16)} offset:{off+1024}",
               f"ds_read_b128 {v(VV1[pn],4)}, {v(V_A16)} offset:{off+2048}"]
        phase(SB, PB, [lambda: mfma32(a, OA, VV0[p], PA, OA), lambda: mfma32(a, SA, K1[p], Q1A, None),
                       lambda: mfma32(a, SA, K2[p], Q2A, SA, k16=False), lambda: mfma32(a, OA, VV1[p], PA+4, OA)], rds)
    a(f"s_add_u32 s{S_CNT}, s{S_CNT}, 1")
    a(f"s_cmp_lt_u32 s{S_CNT}, {NCH}")
    a(f"s_cbranch_scc1 {loop}")
    if dbg_time: stamp(a, 2)
    if OPT['uni']:
        while PEND:
            (s_, p_, k_) = PEND.pop(0); C(s_, p_, k_)
    a("s_nop 1")
    mfma32(a, OB, VV0[1], PB, OB)
    mfma32(a, OB, VV1[1], PB+4, OB)
    off_stamp(a, 5, back=0, cond_wave=S_WAVE)
    off_stamp(a, 6, neg=True, back=0, cond_wave=S_WAVE)
    safety_check_and_fallback(a)
    T = 84
    a(f"v_and_b32 {v(T)}, 31, v0")
    a(f"v_lshrrev_b32 {v(T+1)}, 5, v0")
    a(f"v_cmp_eq_u32 vcc, 0, {v(T+1)}")
    if FUSE:
        a(f"s_mul_i32 s{S_T}, s{S_WAVE}, {64*OREC}")
        a(f"s_add_u32 s{S_T}, s{S_T}, 61440")
        a(f"v_mul_u32_u24 {v(T)}, {OREC}, {v(T)}")
        a(f"v_lshl_add_u32 {v(T)}, {v(T+1)}, 3, {v(T)}")
        a(f"v_add_u32 {v(T)}, s{S_T}, {v(T)}")
        a(f"v_lshlrev_b32 {v(T+2)}, 4, v0")
        a(f"v_add_u32 {v(T+10)}, s{S_T}, {v(T+2)}")
        a(f"s_lshl_b32 s{S_T+1}, s{S_QB}, 1")
        a(f"s_lshr_b32 s{S_T+2}, s{S_WAVE}, 1")
        a(f"s_add_u32 s{S_T+1}, s{S_T+1}, s{S_T+2}")
        a(f"s_lshl_b32 s{S_T+1}, s{S_T+1}, 5")
        a(f"s_add_u32 s{S_T+1}, s{S_T+1}, s{S_HEAD}")
        a(f"s_mul_i32 s{S_T+1}, s{S_T+1}, {OBLK}")
        a(f"s_and_b32 s{S_T+2}, s{S_WAVE}, 1")
        a(f"s_mul_i32 s{S_T+2}, s{S_T+2}, {64*OREC}")
        a(f"s_add_u32 s{S_T+2}, s{S_T+2}, s{S_T+1}")
        a(f"s_add_u32 s{S_T+2}, s{S_T+2}, {WS_OBF}")
    else:
        a(f"s_lshl_b32 s{S_T}, s{S_QB}, 8")
        a(f"s_lshl_b32 s{S_T+1}, s{S_WAVE}, 6")
        a(f"s_add_u32 s{S_T}, s{S_T}, s{S_T+1}")
        a(f"v_add_u32 {v(T)}, s{S_T}, {v(T)}")
        a(f"v_mul_u32_u24 {v(T)}, 1280, {v(T)}")
        a(f"v_lshlrev_b32 {v(T+2)}, 3, {v(T+1)}")
        a(f"v_add_u32 {v(T)}, {v(T)}, {v(T+2)}")
        a(f"s_mul_i32 s{S_T+2}, s{S_HEAD}, 40")
        a(f"s_add_u32 s{S_T+2}, s{S_T+2}, {WS_OB}")
    a("s_nop 1")
    for n_, (O, extra) in enumerate(((OA, 0), (OB, 32*1280))):
        if n_ == 1:
            a("s_nop 7")
        a(f"v_cndmask_b32 {v(T+3)}, {v(O+8)}, {v(O+12)}, vcc")
        a(f"v_rcp_f32 {v(T+3)}, {v(T+3)}")
        a("s_nop 0")
        for i in range(12):
            a(f"v_mul_f32 {v(O+i)}, {v(O+i)}, {v(T+3)}")
        for i in range(6):
            a(f"v_cvt_pk_bf16_f32 {v(T+4+i)}, {v(O+2*i)}, {v(O+2*i+1)}")
        if FUSE:
            off = n_*32*OREC
            a(f"v_cndmask_b32 {v(T+8)}, 0, {v(T+8)}, vcc")
            a(f"v_cndmask_b32 {v(T+9)}, 0, {v(T+9)}, vcc")
            a(f"ds_write_b64 {v(T)}, {v(T+4,2)} offset:{off}")
            a(f"ds_write_b64 {v(T)}, {v(T+6,2)} offset:{off+16}")
            a(f"ds_write_b64 {v(T)}, {v(T+8,2)} offset:{off+32}")
        else:
            if extra:
                a(f"s_add_u32 s{S_T+2}, s{S_T+2}, {extra}")
            a(f"buffer_store_dwordx2 {v(T+4,2)}, {v(T)}, {srd}, s{S_T+2} offen")
            a(f"buffer_store_dwordx2 {v(T+6,2)}, {v(T)}, {srd}, s{S_T+2} offen offset:16")
            a("s_mov_b32 exec_hi, 0")
            a(f"buffer_store_dwordx2 {v(T+8,2)}, {v(T)}, {srd}, s{S_T+2} offen offset:32")
            a(f"s_mov_b64 exec, -1")
    if FUSE:
        a("s_waitcnt lgkmcnt(0)")
        a(f"ds_read_b128 {v(4,4)}, {v(T+10)}")
        a(f"ds_read_b128 {v(8,4)}, {v(T+10)} offset:1024")
        a(f"ds_read_b128 {v(12,4)}, {v(T+10)} offset:2048")
        a("s_waitcnt lgkmcnt(0)")
        a(f"buffer_store_dwordx4 {v(4,4)}, {v(T+2)}, {srd}, s{S_T+2} offen sc1")
        a(f"buffer_store_dwordx4 {v(8,4)}, {v(T+2)}, {srd}, s{S_T+2} offen offset:1024 sc1")
        a(f"buffer_store_dwordx4 {v(12,4)}, {v(T+2)}, {srd}, s{S_T+2} offen offset:2048 sc1")
    if FUSE:
        a("s_waitcnt vmcnt(0) lgkmcnt(0)")
        a("s_barrier")
        lnf = a.newlabel("att_noflag")
        a(f"s_cmp_lg_u32 s{S_WAVE}, 0")
        a(f"s_cbranch_scc1 {lnf}")
        a(f"s_lshl_b32 s{S_T}, s{S_QB}, 7")
        a(f"s_add_u32 s{S_T}, s{S_T}, {WS_FLAGB}")
        a(f"s_lshl_b32 s{S_T+1}, s{S_HEAD}, 2")
        a(f"v_mov_b32 {v(T)}, s{S_T+1}")
        a(f"v_mov_b32 {v(T+1)}, s98")
        a("s_mov_b64 exec, 1")
        a(f"buffer_store_dword {v(T+1)}, {v(T)}, {srd}, s{S_T} offen sc1")
        a("s_mov_b64 exec, -1")
        a.label(lnf)
        lx = a.newlabel("att_exit")
        a("s_bitcmp1_b32 s2, 3")
        a(f"s_cbranch_scc1 {lx}")
        a(f"s_mov_b32 s60, s{S_WAVE}")
        a(f"s_mov_b32 s{gemm.S_WAVE}, s60")
        a("s_setprio 0")
        outp.scalars(a, 1)
        outp.compute(a, dbg_time)
        a.label(lx)
        if dbg_time: a(f"s_mov_b32 s{S_WAVE}, s60") if False else None
    if dbg_time:
        a("s_waitcnt vmcnt(0)")
        stamp_end(a, WS_DBG, KA_WS, 61)
    a("s_endpgm")
```

```python
from asmlib import *
from layout import *
from gemm import *
from roles import f32hex, srd, srd_fin, wave_lane
import os

BQ = G(NC=128, wstride=3840, acc0=64, vbase=1, NB=5, INIT=3)
BQ.pfw = 2

def role_b(a, L_attn, dbg=False):
    g = BQ
    VT = 52
    SC = " sc1"
    if dbg: stamp(a, 0)
    srd(a, S_X, KA_BX, 0); srd(a, S_W, KA_BWQKV, 0); srd(a, S_O, KA_WS, 0)
    wave_lane(a, VT)
    a(f"s_lshl_b32 s61, s{S_T+14}, 2")
    a(f"s_add_u32 s61, s61, s{S_WAVE}")
    a(f"s_and_b32 s{S_T}, s2, 7")
    a(f"s_lshr_b32 s{S_T+1}, s2, 3")
    a(f"s_lshr_b32 s{S_T+2}, s{S_T}, 1")
    a(f"s_lshl_b32 s{S_T+2}, s{S_T+2}, 2")
    a(f"s_and_b32 s{S_T+3}, s{S_T}, 1")
    a(f"s_lshr_b32 s{S_T+4}, s{S_T+1}, 3")
    a(f"s_and_b32 s{S_T+5}, s{S_T+1}, 7")
    a(f"s_mul_i32 s{S_T+6}, s{S_T+1}, 37")
    a(f"s_lshr_b32 s{S_T+6}, s{S_T+6}, 8")
    a(f"s_mul_i32 s{S_T+7}, s{S_T+6}, 7")
    a(f"s_sub_u32 s{S_T+7}, s{S_T+1}, s{S_T+7}")
    a(f"s_add_u32 s{S_T+7}, s{S_T+7}, 8")
    a(f"s_cmp_eq_u32 s{S_T+3}, 0")
    a(f"s_cselect_b32 s{S_RB}, s{S_T+4}, s{S_T+6}")
    a(f"s_cselect_b32 s{S_CB}, s{S_T+5}, s{S_T+7}")
    a(f"s_add_u32 s{S_RB}, s{S_RB}, s{S_T+2}")
    a(f"s_mul_i32 s{S_XOFF}, s{S_RB}, {128*1280}")
    a(f"s_lshl_b32 s{S_WOFF}, s{S_CB}, 8")
    a(f"s_mov_b32 s62, s{S_CB}")
    a(f"s_cmp_ge_u32 s{S_T+1}, 28")
    a(f"s_cselect_b32 s99, s{S_T+3}, 0")
    a(f"s_and_b32 s{S_T+8}, s{S_RB}, 3")
    a(f"s_mul_i32 s{S_T+8}, s{S_T+8}, 10")
    a(f"s_and_b32 s{S_T+9}, s{S_CB}, 7")
    a(f"s_mul_i32 s{S_T+9}, s{S_T+9}, 5")
    a(f"s_add_u32 s{S_T+8}, s{S_T+8}, s{S_T+9}")
    a(f"s_lshr_b32 s{S_T+8}, s{S_T+8}, 1")
    a(f"s_cmp_ge_u32 s{S_T+8}, 20")
    a(f"s_cselect_b32 s{S_T+9}, 20, 0")
    a(f"s_sub_u32 s59, s{S_T+8}, s{S_T+9}")
    a(f"s_mov_b32 s67, s{S_WOFF}")
    a("s_waitcnt lgkmcnt(0)")
    srd_fin(a, S_X, 2048*1280); srd_fin(a, S_W, 640*3840); srd_fin(a, S_O, WS_SIZE_SRD)
    lc = a.newlabel("b_compute"); ltail = a.newlabel("b_ltail"); lpub = a.newlabel("b_pub")
    a(f"s_cmp_eq_u32 s{S_T+14}, 0")
    a(f"s_cbranch_scc1 {lc}")
    a("s_cmp_lg_u32 s99, 0")
    a(f"s_cbranch_scc1 {ltail}")
    def tail():
        a.label(ltail)
        a("s_barrier")
        a(f"s_branch {L_attn}")
    loader(a, g, 'lin', tail)
    a.label(lc)
    lnt = a.newlabel("b_notag"); lnp = a.newlabel("b_nopubtag")
    a(f"s_cmp_lg_u32 s{S_WAVE}, 0")
    a(f"s_cbranch_scc1 {lnt}")
    a("s_cmp_lg_u32 s2, 0")
    a(f"s_cbranch_scc1 {lnp}")
    tag_publish(a, KA_DBG)
    a.label(lnp)
    tag_fetch(a, KA_DBG, VT, VT+1)
    a.label(lnt)
    a("s_cmp_lg_u32 s99, 0")
    a(f"s_cbranch_scc1 {lpub}")
    compute_addrs(a, g, VT)
    so = f"s[{S_O}:{S_O+3}]"
    lv = a.newlabel("bq_v")
    a(f"s_cmp_ge_u32 s{S_CB}, 10")
    a(f"s_cbranch_scc1 {lv}")
    compute_loop(a, g, ['FT']*4, False)
    if dbg: a('s_memtime s[76:77]')
    VL16, VL8 = VT, VT+1
    a(f"v_lshlrev_b32 {v(VL16)}, 4, v0")
    a(f"v_lshlrev_b32 {v(VL8)}, 3, v0")
    a(f"s_lshl_b32 s{S_T}, s{S_RB}, 2")
    a(f"s_add_u32 s{S_T}, s{S_T}, s{S_WAVE}")
    lk = a.newlabel("bq_k")
    a(f"s_cmp_ge_u32 s{S_CB}, 5")
    a(f"s_cbranch_scc1 {lk}")
    for typ in ('Q', 'K'):
        if typ == 'K':
            a.label(lk)
            a(f"s_sub_u32 s{S_CB}, s{S_CB}, 5")
            a(f"s_add_u32 s{S_T}, s{S_T}, 63")
            a(f"s_and_b32 s{S_T}, s{S_T}, 63")
            a(f"s_mul_i32 s{S_T+1}, s{S_T}, {TILE_REC}")
            a(f"s_add_u32 s{S_T+2}, s{S_T+1}, 3072")
            h1 = KV_HEAD
        else:
            a(f"s_lshl_b32 s{S_T+1}, s{S_T}, 10")
            a(f"s_add_u32 s{S_T+1}, s{S_T+1}, {WS_Q1}")
            a(f"s_lshl_b32 s{S_T+2}, s{S_T}, 9")
            a(f"s_add_u32 s{S_T+2}, s{S_T+2}, {WS_Q2}")
            h1 = 65536
            a(f"s_mov_b32 s{S_T+4}, {f32hex(QSCALE)}")
        labs = [a.newlabel(f"bq_{typ}{s_}") for s_ in range(5)]
        for s_ in range(1, 5):
            a(f"s_cmp_eq_u32 s{S_CB}, {s_}")
            a(f"s_cbranch_scc1 {labs[s_]}")
        for s_ in range(5):
            a.label(labs[s_])
            a("s_nop 7")
            a("s_nop 3")
            rot = 0
            def pack(Gl, dst):
                R = g.acc + 16*(Gl//4) + 4*(Gl % 4)
                if typ == 'Q':
                    for i in range(4):
                        a(f"v_mul_f32 {v(R+i)}, s{S_T+4}, {v(R+i)}")
                a(f"v_cvt_pk_bf16_f32 {v(dst)}, {v(R)}, {v(R+1)}")
                a(f"v_cvt_pk_bf16_f32 {v(dst+1)}, {v(R+2)}, {v(R+3)}")
            Gl = 0
            while Gl < 16:
                Gi = 16*s_ + Gl
                p, r = divmod(Gi, 5)
                tp = VT + 4 + 4*(rot % 2); rot += 1
                if r in (0, 3) and Gl < 15:
                    pack(Gl, tp); pack(Gl+1, tp+2)
                    head = 2*p + (1 if r == 3 else 0)
                    a(f"s_add_u32 s{S_T+3}, s{S_T+1}, {head*h1}")
                    a(f"buffer_store_dwordx4 {v(tp,4)}, {v(VL16)}, {so}, s{S_T+3} offen{SC}")
                    Gl += 2
                    continue
                pack(Gl, tp)
                if r != 2:
                    head = 2*p + (1 if r >= 3 else 0)
                    off8 = 8*(r if r < 2 else r-3)
                    a(f"s_add_u32 s{S_T+3}, s{S_T+1}, {head*h1}")
                    a(f"buffer_store_dwordx2 {v(tp,2)}, {v(VL16)}, {so}, s{S_T+3} offen offset:{off8}{SC}")
                elif typ == 'Q':
                    a(f"s_add_u32 s{S_T+3}, s{S_T+2}, {p*32768}")
                    a(f"buffer_store_dwordx2 {v(tp,2)}, {v(VL8)}, {so}, s{S_T+3} offen{SC}")
                else:
                    a(f"s_add_u32 s{S_T+3}, s{S_T+2}, {2*p*KV_HEAD}")
                    a(f"buffer_store_dwordx2 {v(tp,2)}, {v(VL8)}, {so}, s{S_T+3} offen{SC}")
                    a(f"s_add_u32 s{S_T+3}, s{S_T+3}, {KV_HEAD}")
                    a(f"buffer_store_dwordx2 {v(tp,2)}, {v(VL8)}, {so}, s{S_T+3} offen{SC}")
                Gl += 1
            a(f"s_branch {lpub}")
    a.label(lv)
    compute_loop(a, g, ['TF']*4, False)
    if dbg: a('s_memtime s[76:77]')
    a(f"s_sub_u32 s{S_CB}, s{S_CB}, 10")
    a(f"s_lshl_b32 s{S_T}, s{S_RB}, 2")
    a(f"s_add_u32 s{S_T}, s{S_T}, s{S_WAVE}")
    a(f"s_mul_i32 s{S_T+1}, s{S_T}, {TILE_REC}")
    a(f"s_add_u32 s{S_T+1}, s{S_T+1}, 1024")
    a(f"s_lshl_b32 s{S_T+2}, s{S_CB}, 7")
    ONE = VT + 8
    for i in range(4):
        a(f"v_mov_b32 {v(ONE+i)}, 0x3f803f80")
    VA, VD, VH, VB = VT, VT+1, VT+2, VT+3
    PK = g.xf[0]
    a(f"v_lshrrev_b32 {v(VH)}, 5, v0")
    a(f"v_lshlrev_b32 {v(VH)}, 9, {v(VH)}")
    a(f"s_mov_b32 s{S_T+3}, {KV_HEAD}")
    a("s_nop 7")
    for ct in range(4):
        a(f"v_and_b32 {v(VD)}, 31, v0")
        a(f"v_add_u32 {v(VD)}, s{S_T+2}, {v(VD)}")
        if ct: a(f"v_add_u32 {v(VD)}, {32*ct}, {v(VD)}")
        a(f"v_mul_u32_u24 {v(VA)}, 52429, {v(VD)}")
        a(f"v_lshrrev_b32 {v(VA)}, 20, {v(VA)}")
        a(f"v_mul_u32_u24 {v(VB)}, 20, {v(VA)}")
        a(f"v_sub_u32 {v(VD)}, {v(VD)}, {v(VB)}")
        a(f"v_mul_lo_u32 {v(VA)}, {v(VA)}, s{S_T+3}")
        a(f"v_lshlrev_b32 {v(VB)}, 4, {v(VD)}")
        a(f"v_add3_u32 {v(VA)}, {v(VA)}, {v(VB)}, {v(VH)}")
        for mf in range(2):
            R = g.acc + 16*ct + 8*mf
            P_ = PK + 4*mf
            for i in range(4):
                a(f"v_cvt_pk_bf16_f32 {v(P_+i)}, {v(R+2*i)}, {v(R+2*i+1)}")
            a(f"buffer_store_dwordx4 {v(P_,4)}, {v(VA)}, {so}, s{S_T+1} offen offset:{1024*mf}{SC}")
        a(f"v_and_b32 {v(VB)}, 27, {v(VD)}")
        a(f"v_cmp_eq_u32 vcc, 8, {v(VB)}")
        a(f"v_mov_b32 {v(VB)}, 0x3f803f80")
        a("s_nop 0")
        for i in range(4):
            a(f"v_cndmask_b32 {v(ONE+i)}, 0, {v(VB)}, vcc")
        a(f"v_add_u32 {v(VA)}, 192, {v(VA)}")
        a(f"v_cmp_le_u32 vcc, 8, {v(VD)}")
        a(f"s_and_saveexec_b64 s[30:31], vcc")
        lsk = a.newlabel("bq_noones")
        a(f"s_cbranch_execz {lsk}")
        for mf in range(2):
            a(f"buffer_store_dwordx4 {v(ONE,4)}, {v(VA)}, {so}, s{S_T+1} offen offset:{1024*mf}{SC}")
        a.label(lsk)
        a("s_mov_b64 exec, -1")
        a("s_nop 1")
    a.label(lpub)
    lw = a.newlabel("b_notagw")
    a(f"s_cmp_lg_u32 s{S_WAVE}, 0")
    a(f"s_cbranch_scc1 {lw}")
    a(f"v_mov_b32 {v(VT)}, 0")
    a(f"v_mov_b32 {v(VT+1)}, s98")
    a(f"ds_write_b32 {v(VT)}, {v(VT+1)}")
    a.label(lw)
    a("s_waitcnt vmcnt(0) lgkmcnt(0)")
    a("s_barrier")
    lnf = a.newlabel("b_noflag")
    a(f"s_cmp_lg_u32 s{S_WAVE}, 0")
    a(f"s_cbranch_scc1 {lnf}")
    a("s_cmp_lg_u32 s99, 0")
    a(f"s_cbranch_scc1 {lnf}")
    a(f"s_lshl_b32 s{S_T}, s62, 7")
    a(f"s_add_u32 s{S_T}, s{S_T}, {WS_FLAGQ}")
    a(f"s_lshl_b32 s{S_T+1}, s{S_RB}, 2")
    a(f"v_mov_b32 {v(VT)}, s{S_T+1}")
    a(f"v_mov_b32 {v(VT+1)}, s98")
    a("s_mov_b64 exec, 1")
    a(f"buffer_store_dword {v(VT+1)}, {v(VT)}, {so}, s{S_T} offen sc1")
    a("s_mov_b64 exec, -1")
    a.label(lnf)
    if dbg: a('s_memtime s[78:79]')
    a(f"s_branch {L_attn}")
```

```python
from asmlib import *
from layout import *
from gemm import *
import struct, os
BNB = int(os.environ.get('BNB','10'))
BINIT = int(os.environ.get('BINIT','5'))
ROT = int(os.environ.get('ROT','1'))

def f32hex(x):
    return "0x%08x" % struct.unpack("<I", struct.pack("<f", x))[0]

def srd(a, s0, kaoff, nbytes):
    a(f"s_load_dwordx2 s[{s0}:{s0+1}], s[0:1], {kaoff}")
def srd_fin(a, s0, nbytes):
    a(f"s_mov_b32 s{s0+2}, {nbytes}")
    a(f"s_mov_b32 s{s0+3}, 0x00020000")

def wave_lane(a, vt):
    a(f"v_lshrrev_b32 {v(vt)}, 6, v0")
    a(f"v_and_b32 v0, 63, v0")
    a(f"v_readfirstlane_b32 s{S_WAVE}, {v(vt)}")
    a("s_nop 3")
    a(f"s_lshr_b32 s{S_T+14}, s{S_WAVE}, 2")
    a(f"s_and_b32 s{S_WAVE}, s{S_WAVE}, 3")

def split_roles(a, g, colmode, tail=None):
    lc = a.newlabel("compute")
    a(f"s_cmp_eq_u32 s{S_T+14}, 0")
    a(f"s_cbranch_scc1 {lc}")
    loader(a, g, colmode, tail)
    a.label(lc)

PREFETCH = False
WARM = False
TOUCH = False
def IDLE_PF(a, g, VT):
    t0 = VT; t1 = VT+1; va = VT+2
    a(f"v_lshrrev_b32 {v(t0)}, 5, v0")
    a(f"v_lshlrev_b32 {v(t0)}, 6, {v(t0)}")
    a(f"v_bfe_u32 {v(t1)}, v0, 4, 1")
    a(f"v_add_u32 {v(t0)}, {v(t0)}, {v(t1)}")
    a(f"s_lshl_b32 s{S_T}, s64, 1")
    a(f"v_add_u32 {v(t0)}, s{S_T}, {v(t0)}")
    a(f"v_mul_u32_u24 {v(va)}, 3840, {v(t0)}")
    a(f"v_and_b32 {v(t1)}, 15, v0")
    a(f"v_lshlrev_b32 {v(t1)}, 7, {v(t1)}")
    a(f"v_add_u32 {v(va)}, {v(va)}, {v(t1)}")
    a(f"s_lshl_b32 s{S_T}, s{S_WAVE}, 1")
    a(f"s_mul_i32 s{S_T}, s{S_T}, {64*3840}")
    a(f"s_lshl_b32 s{S_T+4}, s65, 11")
    a(f"s_add_u32 s{S_T}, s{S_T}, s{S_T+4}")
    a(f"buffer_load_dword {v(VT+3)}, {v(va)}, s[{S_W}:{S_W+3}], s{S_T} offen")
    a(f"s_add_u32 s{S_T}, s{S_T}, {8*64*3840}")
    a(f"buffer_load_dword {v(VT+4)}, {v(va)}, s[{S_W}:{S_W+3}], s{S_T} offen")
    a(f"v_and_b32 {v(t0)}, 15, v0")
    a(f"s_lshl_b32 s{S_T}, s64, 4")
    a(f"v_add_u32 {v(t0)}, s{S_T}, {v(t0)}")
    a(f"v_mul_u32_u24 {v(va)}, 1280, {v(t0)}")
    a(f"v_lshrrev_b32 {v(t1)}, 4, v0")
    a(f"v_lshlrev_b32 {v(t1)}, 7, {v(t1)}")
    a(f"v_add_u32 {v(va)}, {v(va)}, {v(t1)}")
    a(f"s_mul_i32 s{S_T}, s66, {128*1280}")
    a(f"s_lshl_b32 s{S_T+4}, s{S_WAVE}, 9")
    a(f"s_add_u32 s{S_T}, s{S_T}, s{S_T+4}")
    a(f"buffer_load_dword {v(VT+5)}, {v(va)}, s[{S_X}:{S_X+3}], s{S_T} offen")
K1NB = int(os.environ.get('K1NB','5')); K1INIT = int(os.environ.get('K1INIT','3'))
BQ = G(NC=128, wstride=3840, acc0=(64 if K1NB == 5 else 80), vbase=1, NB=K1NB, INIT=K1INIT)
BQ.pfw = int(os.environ.get('PFW','2'))
BQ_NVGPR = 128 if K1NB == 5 else 144
def role_bqkv(a, dbg=False):
    g = BQ
    VT = 52 if K1NB == 5 else 64
    assert g.vend <= VT, g.vend
    if dbg: stamp(a, 0)
    srd(a, S_X, KA_BX, 0); srd(a, S_W, KA_BWQKV, 0); srd(a, S_O, KA_WS, 0)
    wave_lane(a, VT)
    if OFFDBG[0]:
        a(f"s_or_b32 s85, s{S_WAVE}, s{S_T+14}")
        off_stamp(a, 0, neg=True, back=-512, cond_wave=85)
    a(f"s_and_b32 s{S_T}, s2, 7")
    a(f"s_lshr_b32 s{S_T+1}, s2, 3")
    a(f"s_lshr_b32 s{S_T+2}, s{S_T}, 1")
    a(f"s_lshl_b32 s{S_T+2}, s{S_T+2}, 2")
    a(f"s_and_b32 s{S_T+3}, s{S_T}, 1")
    a(f"s_lshr_b32 s{S_T+4}, s{S_T+1}, 3")
    a(f"s_and_b32 s{S_T+5}, s{S_T+1}, 7")
    a(f"s_mul_i32 s{S_T+6}, s{S_T+1}, 37")
    a(f"s_lshr_b32 s{S_T+6}, s{S_T+6}, 8")
    a(f"s_mul_i32 s{S_T+7}, s{S_T+6}, 7")
    a(f"s_sub_u32 s{S_T+7}, s{S_T+1}, s{S_T+7}")
    a(f"s_add_u32 s{S_T+7}, s{S_T+7}, 8")
    a(f"s_cmp_eq_u32 s{S_T+3}, 0")
    a(f"s_cselect_b32 s{S_RB}, s{S_T+4}, s{S_T+6}")
    a(f"s_cselect_b32 s{S_CB}, s{S_T+5}, s{S_T+7}")
    a(f"s_add_u32 s{S_RB}, s{S_RB}, s{S_T+2}")
    a(f"s_mul_i32 s{S_XOFF}, s{S_RB}, {128*1280}")
    a(f"s_lshl_b32 s{S_WOFF}, s{S_CB}, 8")
    a("s_waitcnt lgkmcnt(0)")
    srd_fin(a, S_X, 2048*1280); srd_fin(a, S_W, 640*3840); srd_fin(a, S_O, WS_SIZE_SRD)
    lgo = a.newlabel("bq_go")
    a(f"s_cmp_eq_u32 s{S_T+3}, 0")
    a(f"s_cbranch_scc1 {lgo}")
    a(f"s_cmp_lt_u32 s{S_T+1}, 28")
    a(f"s_cbranch_scc1 {lgo}")
    if PREFETCH:
        lnp = a.newlabel("bq_idle_nopf")
        a(f"s_cmp_lg_u32 s{S_T+14}, 0")
        a(f"s_cbranch_scc1 {lnp}")
        a(f"s_mov_b32 s64, s{S_T+1}")
        a(f"s_mov_b32 s65, s{S_T+3}")
        a(f"s_mov_b32 s66, s{S_T+2}")
        IDLE_PF(a, g, VT)
        a.label(lnp)
    if WARM:
        a(f"s_load_dwordx2 s[68:69], s[0:1], {KA_AX}")
        a(f"s_load_dwordx2 s[72:73], s[0:1], {KA_AWQKV}")
        a(f"s_and_b32 s{S_T}, s2, 7")
        a(f"s_lshr_b32 s{S_T}, s{S_T}, 1")
        a(f"s_lshl_b32 s{S_T}, s{S_T}, 2")
        a(f"s_add_u32 s{S_T}, s{S_T}, s{S_T+1}")
        a(f"s_sub_u32 s{S_T}, s{S_T}, 28")
        a(f"s_lshl_b32 s{S_T+2}, s{S_T+14}, 2")
        a(f"s_add_u32 s{S_T+2}, s{S_T+2}, s{S_WAVE}")
        a(f"s_lshl_b32 s{S_T+2}, s{S_T+2}, 6")
        a(f"v_add_u32 {v(VT)}, s{S_T+2}, v0")
        a(f"v_lshlrev_b32 {v(VT)}, 7, {v(VT)}")
        a("s_waitcnt lgkmcnt(0)")
        a(f"s_mov_b32 s70, {2048*1280}"); a("s_mov_b32 s71, 0x00020000")
        a(f"s_mov_b32 s74, {640*3840}"); a("s_mov_b32 s75, 0x00020000")
        lw = a.newlabel("warm_w"); ld = a.newlabel("warm_done")
        a(f"s_cmp_ge_u32 s{S_T}, 8")
        a(f"s_cbranch_scc1 {lw}")
        a(f"s_mul_i32 s{S_T+3}, s{S_T}, {2560*128}")
        for r_ in range(5):
            a(f"buffer_load_dword {v(VT+2)}, {v(VT)}, s[68:71], s{S_T+3} offen")
            a(f"s_add_u32 s{S_T+3}, s{S_T+3}, {512*128}")
            a("s_waitcnt vmcnt(0)")
        a(f"s_branch {ld}")
        a.label(lw)
        a(f"s_sub_u32 s{S_T}, s{S_T}, 8")
        a(f"s_mul_i32 s{S_T+3}, s{S_T}, {2400*128}")
        for r_ in range(5):
            a(f"buffer_load_dword {v(VT+2)}, {v(VT)}, s[72:75], s{S_T+3} offen")
            a(f"s_add_u32 s{S_T+3}, s{S_T+3}, {512*128}")
            a("s_waitcnt vmcnt(0)")
        a.label(ld)
    a(f"s_cmp_lg_u32 s2, {28*8+1}")
    lz0 = a.newlabel("bq_z0")
    a(f"s_cbranch_scc1 {lz0}")
    a(f"s_mov_b32 s{S_T}, {WS_FLAG}")
    a(f"s_lshl_b32 s{S_T+2}, s{S_T+14}, 2")
    a(f"s_add_u32 s{S_T+2}, s{S_T+2}, s{S_WAVE}")
    a(f"s_lshl_b32 s{S_T+2}, s{S_T+2}, 6")
    a(f"v_add_u32 {v(VT)}, s{S_T+2}, v0")
    a(f"v_lshlrev_b32 {v(VT+1)}, 4, {v(VT)}")
    for i in range(4):
        a(f"v_mov_b32 {v(VT+4+i)}, 0")
    a(f"v_cmp_gt_u32 vcc, 512, {v(VT)}")
    a("s_nop 1")
    a("s_and_b64 exec, exec, vcc")
    lz = a.newlabel("bq_zskip")
    a(f"s_cbranch_execz {lz}")
    a(f"buffer_store_dwordx4 {v(VT+4,4)}, {v(VT+1)}, s[{S_O}:{S_O+3}], s{S_T} offen sc1")
    a.label(lz)
    a.label(lz0)
    a("s_endpgm")
    a.label(lgo)
    if ROT:
        a(f"s_and_b32 s{S_T+8}, s{S_RB}, 3")
        a(f"s_mul_i32 s{S_T+8}, s{S_T+8}, 10")
        a(f"s_and_b32 s{S_T+9}, s{S_CB}, 7")
        a(f"s_mul_i32 s{S_T+9}, s{S_T+9}, 5")
        a(f"s_add_u32 s{S_T+8}, s{S_T+8}, s{S_T+9}")
        a(f"s_lshr_b32 s{S_T+8}, s{S_T+8}, 1")
        a(f"s_cmp_ge_u32 s{S_T+8}, 20")
        a(f"s_cselect_b32 s{S_T+9}, 20, 0")
        a(f"s_sub_u32 s59, s{S_T+8}, s{S_T+9}")
    else:
        a("s_mov_b32 s59, 0")
    a(f"s_mov_b32 s67, s{S_WOFF}")
    a(f"s_mov_b32 s64, s{S_T+1}")
    a(f"s_mov_b32 s65, s{S_T+3}")
    a(f"s_mov_b32 s66, s{S_T+2}")
    pf = PF(VT+8, VT+9)
    def pf_setup():
        if not PREFETCH: return
        va = pf.va; t0 = VT; t1 = VT+1
        lx = a.newlabel("pf_x"); ld = a.newlabel("pf_d")
        pf.select_srd(a)
        a(f"s_cmp_eq_u32 s{S_WAVE}, 1")
        a(f"s_cbranch_scc1 {lx}")
        a(f"v_lshrrev_b32 {v(t0)}, 5, v0")
        a(f"v_lshlrev_b32 {v(t0)}, 6, {v(t0)}")
        a(f"v_bfe_u32 {v(t1)}, v0, 4, 1")
        a(f"v_add_u32 {v(t0)}, {v(t0)}, {v(t1)}")
        a(f"s_lshl_b32 s{S_T}, s64, 1")
        a(f"v_add_u32 {v(t0)}, s{S_T}, {v(t0)}")
        a(f"v_mul_u32_u24 {v(va)}, 3840, {v(t0)}")
        a(f"v_and_b32 {v(t1)}, 15, v0")
        a(f"v_lshlrev_b32 {v(t1)}, 7, {v(t1)}")
        a(f"v_add_u32 {v(va)}, {v(va)}, {v(t1)}")
        a(f"s_mul_i32 s{S_PFO}, s{S_WAVE}, {64*3840}")
        a(f"s_lshl_b32 s{S_T}, s65, 11")
        a(f"s_add_u32 s{S_PFO}, s{S_PFO}, s{S_T}")
        a(f"s_mov_b32 s{S_PFS}, {4*64*3840}")
        a(f"s_branch {ld}")
        a.label(lx)
        a(f"v_and_b32 {v(t0)}, 15, v0")
        a(f"s_lshl_b32 s{S_T}, s64, 4")
        a(f"v_add_u32 {v(t0)}, s{S_T}, {v(t0)}")
        a(f"v_mul_u32_u24 {v(va)}, 1280, {v(t0)}")
        a(f"v_lshrrev_b32 {v(t1)}, 4, v0")
        a(f"v_lshlrev_b32 {v(t1)}, 7, {v(t1)}")
        a(f"v_add_u32 {v(va)}, {v(va)}, {v(t1)}")
        a(f"s_mul_i32 s{S_PFO}, s66, {128*1280}")
        a(f"s_mov_b32 s{S_PFS}, 512")
        a.label(ld)
        pf.pre(a)
    pf_iter = (lambda: None) if PREFETCH else None
    lcomp = a.newlabel("bq_comp")
    if PREFETCH:
        lld = a.newlabel("bq_ld")
        a(f"s_cmp_lg_u32 s{S_T+14}, 0")
        a(f"s_cbranch_scc1 {lld}")
        pf_setup()
        a.label(lld)
    def touch_tail():
        if not TOUCH: return
        a(f"s_load_dwordx2 s[68:69], s[0:1], {KA_AX}")
        a(f"s_load_dwordx2 s[70:71], s[0:1], {KA_AWQKV}")
        a(f"s_load_dwordx2 s[72:73], s[0:1], {KA_AWO}")
        a(f"s_load_dwordx2 s[74:75], s[0:1], {KA_BWO}")
        a(f"s_and_b32 s{S_T}, s2, 7")
        a(f"s_lshr_b32 s{S_T+1}, s{S_T}, 1")
        a(f"s_mul_i32 s{S_T+1}, s{S_T+1}, 60")
        a(f"s_lshl_b32 s{S_T+4}, s65, 5")
        a(f"s_add_u32 s{S_T+1}, s{S_T+1}, s{S_T+4}")
        a(f"s_add_u32 s{S_T+1}, s{S_T+1}, s64")
        a(f"s_lshl_b32 s{S_T+1}, s{S_T+1}, 2")
        a(f"s_add_u32 s{S_T+1}, s{S_T+1}, s{S_WAVE}")
        a("s_waitcnt lgkmcnt(0)")
        a(f"s_mov_b32 s78, {2048*1280}")
        a(f"s_mov_b32 s80, 0")
        for lim, reg, nb in ((320, 70, 640*3840), (620, 72, 640*1280), (720, 74, 640*1280)):
            a(f"s_cmp_ge_u32 s{S_T+1}, {lim}")
            a(f"s_cselect_b32 s68, s{reg}, s68")
            a(f"s_cselect_b32 s69, s{reg+1}, s69")
            a(f"s_cselect_b32 s78, {nb}, s78")
            a(f"s_cselect_b32 s80, {lim}, s80")
        a(f"s_mov_b32 s76, s68")
        a(f"s_mov_b32 s77, s69")
        a(f"s_mov_b32 s79, 0x00020000")
        a(f"s_sub_u32 s{S_T+1}, s{S_T+1}, s80")
        a(f"s_lshl_b32 s{S_T+1}, s{S_T+1}, 13")
        a(f"v_lshlrev_b32 v3, 7, v0")
        a(f"buffer_load_dword v4, v3, s[76:79], s{S_T+1} offen")
    split_roles(a, g, 'lin', tail=touch_tail)
    compute_addrs(a, g, VT)
    lv = a.newlabel("bq_v")
    a(f"s_cmp_ge_u32 s{S_CB}, 10")
    a(f"s_cbranch_scc1 {lv}")
    compute_loop(a, g, ['FT']*4, dbg, per_iter=pf_iter)
    if dbg: a('s_memtime s[72:73]')
    so = f"s[{S_O}:{S_O+3}]"
    VL16, VL8 = VT, VT+1
    QS = 86
    a(f"v_lshlrev_b32 {v(VL16)}, 4, v0")
    a(f"v_lshlrev_b32 {v(VL8)}, 3, v0")
    a(f"s_lshl_b32 s{S_T}, s{S_RB}, 2")
    a(f"s_add_u32 s{S_T}, s{S_T}, s{S_WAVE}")
    lk = a.newlabel("bq_k")
    lend = a.newlabel("bq_end")
    a(f"s_cmp_ge_u32 s{S_CB}, 5")
    a(f"s_cbranch_scc1 {lk}")
    for typ in ('Q', 'K'):
        if typ == 'K':
            a.label(lk)
            a(f"s_sub_u32 s{S_CB}, s{S_CB}, 5")
            a(f"s_add_u32 s{S_T}, s{S_T}, 63")
            a(f"s_and_b32 s{S_T}, s{S_T}, 63")
            a(f"s_mul_i32 s{S_T+1}, s{S_T}, {TILE_REC}")
            a(f"s_add_u32 s{S_T+2}, s{S_T+1}, 3072")
            h1, h2 = KV_HEAD, None
        else:
            a(f"s_lshl_b32 s{S_T+1}, s{S_T}, 10")
            a(f"s_add_u32 s{S_T+1}, s{S_T+1}, {WS_Q1}")
            a(f"s_lshl_b32 s{S_T+2}, s{S_T}, 9")
            a(f"s_add_u32 s{S_T+2}, s{S_T+2}, {WS_Q2}")
            h1 = 65536
            a(f"s_mov_b32 s{QS}, {f32hex(QSCALE)}"); a(f"s_mov_b32 s{QS+1}, {f32hex(QSCALE)}")
        labs = [a.newlabel(f"bq_{typ}{s_}") for s_ in range(5)]
        for s_ in range(1, 5):
            a(f"s_cmp_eq_u32 s{S_CB}, {s_}")
            a(f"s_cbranch_scc1 {labs[s_]}")
        a("s_nop 7")
        for s_ in range(5):
            a.label(labs[s_])
            a("s_nop 7")
            a("s_nop 3")
            rot = 0
            def pack(Gl, dst):
                R = g.acc + 16*(Gl//4) + 4*(Gl % 4)
                if typ == 'Q':
                    a(f"v_pk_mul_f32 {v(R,2)}, {v(R,2)}, s[{QS}:{QS+1}]")
                    a(f"v_pk_mul_f32 {v(R+2,2)}, {v(R+2,2)}, s[{QS}:{QS+1}]")
                a(f"v_cvt_pk_bf16_f32 {v(dst)}, {v(R)}, {v(R+1)}")
                a(f"v_cvt_pk_bf16_f32 {v(dst+1)}, {v(R+2)}, {v(R+3)}")
            Gl = 0
            while Gl < 16:
                Gi = 16*s_ + Gl
                p, r = divmod(Gi, 5)
                tp = VT + 4 + 4*(rot % 2); rot += 1
                if r in (0, 3) and Gl < 15:
                    pack(Gl, tp); pack(Gl+1, tp+2)
                    head = 2*p + (1 if r == 3 else 0)
                    a(f"s_add_u32 s{S_T+3}, s{S_T+1}, {head*h1}")
                    a(f"buffer_store_dwordx4 {v(tp,4)}, {v(VL16)}, {so}, s{S_T+3} offen")
                    Gl += 2
                    continue
                pack(Gl, tp)
                if r != 2:
                    head = 2*p + (1 if r >= 3 else 0)
                    off8 = 8*(r if r < 2 else r-3)
                    a(f"s_add_u32 s{S_T+3}, s{S_T+1}, {head*h1}")
                    a(f"buffer_store_dwordx2 {v(tp,2)}, {v(VL16)}, {so}, s{S_T+3} offen offset:{off8}")
                elif typ == 'Q':
                    a(f"s_add_u32 s{S_T+3}, s{S_T+2}, {p*32768}")
                    a(f"buffer_store_dwordx2 {v(tp,2)}, {v(VL8)}, {so}, s{S_T+3} offen")
                else:
                    a(f"s_add_u32 s{S_T+3}, s{S_T+2}, {2*p*KV_HEAD}")
                    a(f"buffer_store_dwordx2 {v(tp,2)}, {v(VL8)}, {so}, s{S_T+3} offen")
                    if os.environ.get('EXPC') != '1':
                        a(f"s_add_u32 s{S_T+3}, s{S_T+3}, {KV_HEAD}")
                        a(f"buffer_store_dwordx2 {v(tp,2)}, {v(VL8)}, {so}, s{S_T+3} offen")
                Gl += 1
            a(f"s_branch {lend}")
    a.label(lv)
    compute_loop(a, g, ['TF']*4, dbg, per_iter=pf_iter)
    if dbg: a('s_memtime s[72:73]')
    a(f"s_sub_u32 s{S_CB}, s{S_CB}, 10")
    a(f"s_lshl_b32 s{S_T}, s{S_RB}, 2")
    a(f"s_add_u32 s{S_T}, s{S_T}, s{S_WAVE}")
    EXPC = os.environ.get('EXPC') == '1'
    a(f"s_mul_i32 s{S_T+1}, s{S_T}, {2304 if EXPC else TILE_REC}")
    a(f"s_add_u32 s{S_T+1}, s{S_T+1}, 1024")
    a(f"s_lshl_b32 s{S_T+2}, s{S_CB}, 7")
    ONE = VT + 8
    for i in range(4):
        a(f"v_mov_b32 {v(ONE+i)}, 0x3f803f80")
    VA, VD, VH, VB = VT, VT+1, VT+2, VT+3
    PK = g.xf[0]
    a(f"v_lshrrev_b32 {v(VH)}, 5, v0")
    if EXPC: a(f"v_mul_u32_u24 {v(VH)}, 320, {v(VH)}")
    else: a(f"v_lshlrev_b32 {v(VH)}, 9, {v(VH)}")
    a(f"s_mov_b32 s{S_T+3}, {KV_HEAD}")
    a("s_nop 7")
    for ct in range(4):
        a(f"v_and_b32 {v(VD)}, 31, v0")
        a(f"v_add_u32 {v(VD)}, s{S_T+2}, {v(VD)}")
        if ct: a(f"v_add_u32 {v(VD)}, {32*ct}, {v(VD)}")
        a(f"v_mul_u32_u24 {v(VA)}, 52429, {v(VD)}")
        a(f"v_lshrrev_b32 {v(VA)}, 20, {v(VA)}")
        a(f"v_mul_u32_u24 {v(VB)}, 20, {v(VA)}")
        a(f"v_sub_u32 {v(VD)}, {v(VD)}, {v(VB)}")
        a(f"v_mul_lo_u32 {v(VA)}, {v(VA)}, s{S_T+3}")
        a(f"v_lshlrev_b32 {v(VB)}, 4, {v(VD)}")
        a(f"v_add3_u32 {v(VA)}, {v(VA)}, {v(VB)}, {v(VH)}")
        for mf in range(2):
            R = g.acc + 16*ct + 8*mf
            P_ = PK + 4*mf
            for i in range(4):
                a(f"v_cvt_pk_bf16_f32 {v(P_+i)}, {v(R+2*i)}, {v(R+2*i+1)}")
            a(f"buffer_store_dwordx4 {v(P_,4)}, {v(VA)}, {so}, s{S_T+1} offen offset:{(640 if EXPC else 1024)*mf}")
        if EXPC: continue
        a(f"v_and_b32 {v(VB)}, 27, {v(VD)}")
        a(f"v_cmp_eq_u32 vcc, 8, {v(VB)}")
        a(f"v_mov_b32 {v(VB)}, 0x3f803f80")
        a("s_nop 0")
        for i in range(4):
            a(f"v_cndmask_b32 {v(ONE+i)}, 0, {v(VB)}, vcc")
        a(f"v_add_u32 {v(VA)}, 192, {v(VA)}")
        a(f"v_cmp_le_u32 vcc, 8, {v(VD)}")
        a(f"s_and_saveexec_b64 s[30:31], vcc")
        lsk = a.newlabel("bq_noones")
        a(f"s_cbranch_execz {lsk}")
        for mf in range(2):
            a(f"buffer_store_dwordx4 {v(ONE,4)}, {v(VA)}, {so}, s{S_T+1} offen offset:{1024*mf}")
        a.label(lsk)
        a("s_mov_b64 exec, -1")
        a("s_nop 1")
    a.label(lend)
    if OFFDBG[0]:
        a("s_waitcnt vmcnt(0)")
        off_stamp(a, 1, back=-512, cond_wave=S_WAVE)
    if dbg:
        a('s_memtime s[74:75]')
        a("s_waitcnt vmcnt(0)")
        stamp_end(a, WS_DBG, KA_WS, S_WAVE)
    a("s_endpgm")

OP = G(NC=96, wstride=1280, acc0=80, vbase=1, NB=BNB, INIT=BINIT)
OP.pfw = int(os.environ.get('PFW','2'))
OP_NVGPR = 128
def role_out(a, dbg=False):
    g = OP
    VT = 64
    assert g.vend <= VT, g.vend
    if dbg: stamp(a, 0)
    srd(a, S_X, KA_WS, 0); srd(a, S_O, KA_OUT, 0)
    a(f"s_load_dwordx2 s[{S_W}:{S_W+1}], s[0:1], {KA_AWO}")
    a(f"s_load_dwordx2 s[{S_T+8}:{S_T+9}], s[0:1], {KA_BWO}") if (S_T+8) % 2 == 0 else a(f"s_load_dwordx2 s[{S_T+9}:{S_T+10}], s[0:1], {KA_BWO}")
    BW = S_T+8 if (S_T+8) % 2 == 0 else S_T+9
    wave_lane(a, VT)
    a(f"s_and_b32 s{S_T}, s2, 7")
    a(f"s_lshr_b32 s{S_T+1}, s2, 3")
    a(f"s_lshr_b32 s{S_T+2}, s{S_T}, 2")
    a(f"s_and_b32 s{S_T}, s{S_T}, 3")
    a(f"s_lshl_b32 s{S_RB}, s{S_T}, 2")
    a(f"s_lshr_b32 s{S_T+3}, s{S_T+1}, 3")
    a(f"s_add_u32 s{S_RB}, s{S_RB}, s{S_T+3}")
    a(f"s_and_b32 s{S_CB}, s{S_T+1}, 7")
    a(f"s_mov_b32 s{S_T+6}, s{S_T+2}")
    a(f"s_mul_i32 s{S_XOFF}, s{S_RB}, {128*1280}")
    a(f"s_mul_i32 s{S_T+4}, s{S_T+6}, {WS_OB-WS_OA}")
    a(f"s_add_u32 s{S_T+4}, s{S_T+4}, {WS_OA}")
    a(f"s_add_u32 s{S_XOFF}, s{S_XOFF}, s{S_T+4}")
    a(f"s_mul_i32 s{S_WOFF}, s{S_CB}, 160")
    a("s_waitcnt lgkmcnt(0)")
    a(f"s_cmp_eq_u32 s{S_T+6}, 0")
    a(f"s_cselect_b32 s{S_W}, s{S_W}, s{BW}")
    a(f"s_cselect_b32 s{S_W+1}, s{S_W+1}, s{BW+1}")
    srd_fin(a, S_X, WS_SIZE_SRD); srd_fin(a, S_W, 640*1280); srd_fin(a, S_O, 2048*2560)
    a(f"s_mov_b32 s42, s{S_T+6}")
    if ROT:
        a(f"s_and_b32 s{S_T+8}, s{S_RB}, 3")
        a(f"s_mul_i32 s{S_T+8}, s{S_T+8}, 10")
        a(f"s_mul_i32 s{S_T+9}, s{S_CB}, 5")
        a(f"s_add_u32 s{S_T+8}, s{S_T+8}, s{S_T+9}")
        a(f"s_lshr_b32 s{S_T+8}, s{S_T+8}, 1")
        a(f"s_cmp_ge_u32 s{S_T+8}, 20")
        a(f"s_cselect_b32 s{S_T+9}, 20, 0")
        a(f"s_sub_u32 s59, s{S_T+8}, s{S_T+9}")
    else:
        a("s_mov_b32 s59, 0")
    a(f"s_mov_b32 s67, s{S_WOFF}")
    a(f"s_mov_b32 s64, s{S_T+1}")
    a(f"s_mov_b32 s65, s{S_T+4}")
    pf = PF(VT+8, VT+9)
    def pf_setup():
        if not PREFETCH: return
        va = pf.va; t0 = VT; t1 = VT+1
        lx = a.newlabel("pf_x"); ld = a.newlabel("pf_d")
        pf.select_srd(a)
        a(f"s_cmp_eq_u32 s{S_WAVE}, 1")
        a(f"s_cbranch_scc1 {lx}")
        a(f"v_mul_u32_u24 {v(t0)}, 3277, v0")
        a(f"v_lshrrev_b32 {v(t0)}, 16, {v(t0)}")
        a(f"v_mul_u32_u24 {v(t1)}, 20, {v(t0)}")
        a(f"v_sub_u32 {v(t1)}, v0, {v(t1)}")
        a(f"s_mul_i32 s{S_T}, s64, 20")
        a(f"v_add_u32 {v(t1)}, s{S_T}, {v(t1)}")
        a(f"v_lshlrev_b32 {v(t1)}, 7, {v(t1)}")
        a(f"v_mul_u32_u24 {v(va)}, 81920, {v(t0)}")
        a(f"v_add_u32 {v(va)}, {v(va)}, {v(t1)}")
        a(f"s_mul_i32 s{S_PFO}, s{S_WAVE}, {81920*3//2}")
        a(f"s_mov_b32 s{S_PFS}, {6*81920}")
        a(f"s_branch {ld}")
        a.label(lx)
        a(f"v_and_b32 {v(t0)}, 15, v0")
        a(f"s_lshl_b32 s{S_T}, s64, 4")
        a(f"v_add_u32 {v(t0)}, s{S_T}, {v(t0)}")
        a(f"v_mul_u32_u24 {v(va)}, 1280, {v(t0)}")
        a(f"v_lshrrev_b32 {v(t1)}, 4, v0")
        a(f"v_lshlrev_b32 {v(t1)}, 7, {v(t1)}")
        a(f"v_add_u32 {v(va)}, {v(va)}, {v(t1)}")
        a(f"s_and_b32 s{S_T}, s{S_RB}, 12")
        a(f"s_mul_i32 s{S_PFO}, s{S_T}, {128*1280}")
        a(f"s_add_u32 s{S_PFO}, s{S_PFO}, s65")
        a(f"s_mov_b32 s{S_PFS}, 512")
        a.label(ld)
        pf.pre(a)
    if PREFETCH:
        lld = a.newlabel("op_ld")
        a(f"s_cmp_lg_u32 s{S_T+14}, 0")
        a(f"s_cbranch_scc1 {lld}")
        pf_setup()
        a.label(lld)
    split_roles(a, g, 'lin')
    compute_addrs(a, g, VT)
    compute_loop(a, g, ['FT']*3, dbg, per_iter=(lambda: None) if PREFETCH else None)
    if dbg: a('s_memtime s[72:73]')
    so = f"s[{S_O}:{S_O+3}]"
    VA = VT
    a(f"v_and_b32 {v(VA)}, 31, v0")
    a(f"s_lshl_b32 s{S_T}, s{S_RB}, 7")
    a(f"s_lshl_b32 s{S_T+1}, s{S_WAVE}, 5")
    a(f"s_add_u32 s{S_T}, s{S_T}, s{S_T+1}")
    a(f"v_add_u32 {v(VA)}, s{S_T}, {v(VA)}")
    a(f"v_mul_u32_u24 {v(VA)}, 2560, {v(VA)}")
    a(f"v_lshrrev_b32 {v(VA+1)}, 5, v0")
    a(f"v_lshlrev_b32 {v(VA+1)}, 4, {v(VA+1)}")
    a(f"v_add_u32 {v(VA)}, {v(VA)}, {v(VA+1)}")
    a(f"s_mul_i32 s{S_T+2}, s42, 1280")
    a(f"s_mul_i32 s{S_T+3}, s{S_CB}, 160")
    a(f"s_add_u32 s{S_T+2}, s{S_T+2}, s{S_T+3}")
    a("s_nop 7")
    a("s_nop 3")
    for pr in range(5):
        G0 = 2*pr
        R0 = g.acc + 16*(G0//4) + 4*(G0 % 4)
        R1 = R0 + 4
        P_ = VT + 4 + 4*(pr % 2)
        a(f"v_cvt_pk_bf16_f32 {v(P_)}, {v(R0)}, {v(R0+1)}")
        a(f"v_cvt_pk_bf16_f32 {v(P_+1)}, {v(R0+2)}, {v(R0+3)}")
        a(f"v_cvt_pk_bf16_f32 {v(P_+2)}, {v(R1)}, {v(R1+1)}")
        a(f"v_cvt_pk_bf16_f32 {v(P_+3)}, {v(R1+2)}, {v(R1+3)}")
        a("s_nop 1")
        a(f"v_permlane32_swap_b32 {v(P_)}, {v(P_+2)}")
        a(f"v_permlane32_swap_b32 {v(P_+1)}, {v(P_+3)}")
        a("s_nop 1")
        a(f"buffer_store_dwordx4 {v(P_,4)}, {v(VA)}, {so}, s{S_T+2} offen offset:{32*pr}")
    if dbg:
        a('s_memtime s[74:75]')
        a("s_waitcnt vmcnt(0)")
        stamp_end(a, WS_DBG, KA_WS, S_WAVE)
    a("s_endpgm")


OF = G(NC=96, wstride=1280, acc0=80, vbase=1, NB=5, INIT=3)
OF.xflags = " sc1"
OF.pfw = 0
def out_scalars(a, branch):
    srd(a, S_X, KA_WS, 0); srd(a, S_O, KA_OUT, 0); srd(a, S_W, KA_AWO if branch == 0 else KA_BWO, 0)
    a(f"s_and_b32 s{S_T}, s2, 7")
    a(f"s_lshr_b32 s{S_T+1}, s2, 4")
    a(f"s_lshl_b32 s{S_RB}, s{S_T}, 1")
    a(f"s_lshr_b32 s{S_T+2}, s{S_T+1}, 3")
    a(f"s_add_u32 s{S_RB}, s{S_RB}, s{S_T+2}")
    a(f"s_and_b32 s{S_CB}, s{S_T+1}, 7")
    a(f"s_mul_i32 s{S_XOFF}, s{S_RB}, {128*1280}")
    a(f"s_add_u32 s{S_XOFF}, s{S_XOFF}, {WS_OA if branch == 0 else WS_OB}")
    a(f"s_mul_i32 s{S_WOFF}, s{S_CB}, 160")
    a(f"s_mul_i32 s{S_T+8}, s{S_CB}, 5")
    a(f"s_lshr_b32 s{S_T+8}, s{S_T+8}, 1")
    a(f"s_mov_b32 s59, s{S_T+8}")
    a(f"s_mov_b32 s42, {branch}")
    a("s_waitcnt lgkmcnt(0)")
    srd_fin(a, S_X, WS_SIZE_SRD); srd_fin(a, S_W, 640*1280); srd_fin(a, S_O, 2048*2560)

def out_poll(a, branch):
    a("s_barrier")
    lw = a.newlabel("op_nopoll")
    a(f"s_cmp_lg_u32 s{S_WAVE}, 0")
    a(f"s_cbranch_scc1 {lw}")
    if branch == 1:
        a(f"s_lshr_b32 s{S_T}, s{S_RB}, 1")
        a(f"s_lshl_b32 s{S_T}, s{S_T}, 7")
        a(f"s_add_u32 s{S_T}, s{S_T}, {WS_FLAGB}")
        mask = "0xffffffff"; n = 32
    else:
        a(f"s_lshl_b32 s{S_T}, s{S_RB}, 7")
        a(f"s_add_u32 s{S_T}, s{S_T}, {WS_FLAGA}")
        mask = "0xffff"; n = 16
    a(f"s_mov_b32 exec_lo, {mask}")
    a(f"s_mov_b32 exec_hi, 0")
    a(f"v_lshlrev_b32 v3, 2, v0")
    a(f"s_mov_b32 s{S_T+1}, 0")
    lp = a.newlabel("op_poll"); lpd = a.newlabel("op_poll_done")
    a.label(lp)
    a(f"buffer_load_dword v4, v3, s[{S_X}:{S_X+3}], s{S_T} offen sc1")
    a("s_waitcnt vmcnt(0)")
    a(f"v_cmp_eq_u32 vcc, 1, v4")
    a(f"s_add_u32 s{S_T+1}, s{S_T+1}, 1")
    a("s_nop 1")
    a(f"s_cmp_eq_u32 vcc_lo, {mask}")
    a(f"s_cbranch_scc1 {lpd}")
    a("s_sleep 4")
    a(f"s_cmp_lt_u32 s{S_T+1}, 0x40000")
    a(f"s_cbranch_scc1 {lp}")
    a.label(lpd)
    a("s_mov_b64 exec, -1")
    a.label(lw)
    a("s_barrier")

def out_loader(a, branch):
    OF.stoff = 0x100000 + branch*0x100000
    out_scalars(a, branch)
    if GOPT['ststamp']:
        a('s_memtime s[94:95]')
    out_poll(a, branch)
    if GOPT['ststamp']:
        a('s_memtime s[96:97]')
        a('s_waitcnt lgkmcnt(0)')
        a('v_writelane_b32 v10, s94, 20')
        a('v_writelane_b32 v11, s96, 20')
        a('v_writelane_b32 v12, s70, 20')
    loader(a, OF, 'lin')

def out_compute(a, dbg=False):
    g = OF
    VT = 64
    a("s_barrier")
    compute_addrs(a, g, VT)
    compute_loop(a, g, ['FT']*3, False)
    if dbg: a("s_memtime s[68:69]")
    so = f"s[{S_O}:{S_O+3}]"
    VA = VT
    a(f"v_and_b32 {v(VA)}, 31, v0")
    a(f"s_lshl_b32 s{S_T}, s{S_RB}, 7")
    a(f"s_lshl_b32 s{S_T+1}, s{S_WAVE}, 5")
    a(f"s_add_u32 s{S_T}, s{S_T}, s{S_T+1}")
    a(f"v_add_u32 {v(VA)}, s{S_T}, {v(VA)}")
    a(f"v_mul_u32_u24 {v(VA)}, 2560, {v(VA)}")
    a(f"v_lshrrev_b32 {v(VA+1)}, 5, v0")
    a(f"v_lshlrev_b32 {v(VA+1)}, 4, {v(VA+1)}")
    a(f"v_add_u32 {v(VA)}, {v(VA)}, {v(VA+1)}")
    a(f"s_mul_i32 s{S_T+2}, s42, 1280")
    a(f"s_mul_i32 s{S_T+3}, s{S_CB}, 160")
    a(f"s_add_u32 s{S_T+2}, s{S_T+2}, s{S_T+3}")
    a("s_nop 7")
    a("s_nop 3")
    for pr in range(5):
        G0 = 2*pr
        R0 = g.acc + 16*(G0//4) + 4*(G0 % 4)
        R1 = R0 + 4
        P_ = VT + 4 + 4*(pr % 2)
        a(f"v_cvt_pk_bf16_f32 {v(P_)}, {v(R0)}, {v(R0+1)}")
        a(f"v_cvt_pk_bf16_f32 {v(P_+1)}, {v(R0+2)}, {v(R0+3)}")
        a(f"v_cvt_pk_bf16_f32 {v(P_+2)}, {v(R1)}, {v(R1+1)}")
        a(f"v_cvt_pk_bf16_f32 {v(P_+3)}, {v(R1+2)}, {v(R1+3)}")
        a("s_nop 1")
        a(f"v_permlane32_swap_b32 {v(P_)}, {v(P_+2)}")
        a(f"v_permlane32_swap_b32 {v(P_+1)}, {v(P_+3)}")
        a("s_nop 1")
        a(f"buffer_store_dwordx4 {v(P_,4)}, {v(VA)}, {so}, s{S_T+2} offen offset:{32*pr}")
```

```python
from asmlib import *
from layout import *
import roles, gemm, outp
FUSE = True
WOPF = True
import os
CODEPF = int(os.environ.get('CODEPF', '0'))

CH = 8
CH_BYTES = CH * TILE_REC
NCH = 64 // CH
OPT = dict(nodma=False, nobar=False, nolds=False, prio=True, vmask=False, forcefb=False, cl4=False, uni=True)

V_A16 = 1
V_A8  = 2
V_G16 = 3
SA, SB = 4, 20
OA, OB = 36, 52
PA, PB = 68, 76
Q1A, Q1B = 84, 88
Q2A, Q2B = 92, 94
K1 = [96, 100]
VV0 = [104, 112]
VV1 = [108, 116]
K2 = [120, 122]
ATTN_NVGPR = 124
V_T0 = SA

S_WS = 8
S_HEAD = 12
S_QB = 13
S_WAVE = 14
S_DMAOFF = 15
S_LDSW = 16
S_BUFD = 17
S_CNT = 18
S_DMABUF = 19
S_T = 20

def mfma32(a, d, A, B, C, k16=True):
    op = "v_mfma_f32_32x32x16_bf16" if k16 else "v_mfma_f32_32x32x8_bf16"
    n = 4 if k16 else 2
    c = "0" if C is None else v(C, 16)
    a(f"{op} {v(d,16)}, {v(A,n)}, {v(B,n)}, {c}")

PENDING = []
def cvts(a, Sr, P, q):
    a(f"v_cvt_pk_bf16_f32 {v(P+2*q)}, {v(Sr+4*q)}, {v(Sr+4*q+1)}")
    a(f"v_cvt_pk_bf16_f32 {v(P+2*q+1)}, {v(Sr+4*q+2)}, {v(Sr+4*q+3)}")
def flush_cvts(a):
    while PENDING:
        cvts(a, *PENDING.pop(0))
def exps(a, Sr, P, q):
    for i in range(4):
        a(f"v_exp_f32 {v(Sr+4*q+i)}, {v(Sr+4*q+i)}")
    flush_cvts(a)
    PENDING.append((Sr, P, q))

V_GV = 10
S_K2O = 48
def dma_chunk(a):
    srd = f"s[{S_WS}:{S_WS+3}]"
    for rr in range(2):
        if rr == 0:
            a(f"s_add_u32 m0, s{S_DMABUF}, s{S_LDSW}")
        else:
            a(f"s_add_u32 m0, m0, {TILE_REC}")
        a(f"s_sub_u32 s{S_T+1}, s{S_DMAOFF}, 384")
        a(f"buffer_load_dwordx4 {v(V_G16)}, {srd}, s{S_DMAOFF} offen lds")
        a("s_mov_b64 exec, s[50:51]")
        a(f"buffer_load_dwordx4 {v(V_GV)}, {srd}, s{S_DMAOFF} offen offset:1024 lds")
        a(f"buffer_load_dwordx4 {v(V_GV)}, {srd}, s{S_T+1} offen offset:2048 lds")
        a("s_mov_b32 exec_lo, -1")
        a("s_mov_b32 exec_hi, 0")
        a(f"buffer_load_dwordx4 {v(V_G16)}, {srd}, s{S_K2O} offen offset:3072 lds")
        a("s_mov_b64 exec, -1")
        a(f"s_add_u32 s{S_DMAOFF}, s{S_DMAOFF}, {GREC if rr == 0 else 7*GREC}")
        a(f"s_add_u32 s{S_K2O}, s{S_K2O}, {512 if rr == 0 else 7*512}")

def safety_check_and_fallback(a):
    srd = f"s[{S_WS}:{S_WS+3}]"
    T = SA
    lok = a.newlabel("att_ok")
    a("s_nop 7")
    a("s_nop 3")
    a(f"v_lshrrev_b32 {v(T)}, 5, v0")
    a(f"v_cmp_eq_u32 vcc, 0, {v(T)}")
    a(f"s_mov_b64 s[26:27], 0")
    a(f"s_mov_b32 s28, 0x1f800000")
    a(f"s_mov_b32 s29, 0x5f800000")
    for O in (OA, OB):
        a(f"v_cndmask_b32 {v(T+1)}, {v(O+8)}, {v(O+12)}, vcc")
        a(f"v_pk_mul_f32 {v(T+2,2)}, {v(O,2)}, 0 op_sel_hi:[1,0]")
        for i in (2, 4, 6):
            a(f"v_pk_fma_f32 {v(T+2,2)}, {v(O+i,2)}, 0, {v(T+2,2)} op_sel_hi:[1,0,1]")
        a(f"v_pk_mul_f32 {v(T+4,2)}, {v(O+8,2)}, 0 op_sel_hi:[1,0]")
        a(f"v_pk_fma_f32 {v(T+4,2)}, {v(O+10,2)}, 0, {v(T+4,2)} op_sel_hi:[1,0,1]")
        a(f"v_cmp_nle_f32 s[22:23], s28, {v(T+1)}")
        a(f"v_cmp_nge_f32 s[24:25], s29, {v(T+1)}")
        a(f"v_cmp_u_f32 s[30:31], {v(T+2)}, {v(T+3)}")
        a(f"v_cmp_u_f32 s[36:37], {v(T+4)}, {v(T+5)}")
        a("s_nop 1")
        a("s_or_b64 s[26:27], s[26:27], s[22:23]")
        a("s_or_b64 s[26:27], s[26:27], s[24:25]")
        a("s_or_b64 s[26:27], s[26:27], s[30:31]")
        a("s_and_b64 s[36:37], s[36:37], vcc")
        a("s_or_b64 s[26:27], s[26:27], s[36:37]")
    if OPT['forcefb']:
        a("s_mov_b64 s[26:27], -1")
    a("s_cmp_eq_u64 s[26:27], 0")
    a(f"s_cbranch_scc1 {lok}")
    G16 = V_G16; G8 = T+1; MA, MB, TM = T+2, T+3, 120
    X = [SA + 0]
    SX, SY = 20, 100
    KA1, KA2, VA0, VA1 = 116, 122, 68, 72
    PX, PY = 76, 8
    MA, MB, TM = 4, 6, 7
    G8 = 5
    a(f"v_lshlrev_b32 {v(G8)}, 3, v0")
    a(f"s_mul_i32 s22, s{S_HEAD}, {GHEAD}")
    a(f"s_add_u32 s22, s22, {WS_KVC}")
    a(f"s_lshr_b32 s21, s{S_HEAD}, 1")
    a(f"s_lshl_b32 s21, s21, 15")
    a(f"s_add_u32 s21, s21, {WS_K2S}")
    a(f"v_lshrrev_b32 {v(121)}, 5, v0")
    a(f"v_mul_u32_u24 {v(121)}, 320, {v(121)}")
    a(f"v_and_b32 {v(120)}, 31, v0")
    a(f"v_lshl_add_u32 {v(120)}, {v(120)}, 4, {v(121)}")
    a(f"s_and_b32 s23, s{S_HEAD}, 1")
    a(f"s_cmp_eq_u32 s23, 0")
    a(f"s_cselect_b32 s36, -1, 0")
    a(f"s_cselect_b32 s37, 0, -1")
    a(f"v_mov_b32 {v(KA2)}, 0"); a(f"v_mov_b32 {v(KA2+1)}, 0")
    a(f"v_mov_b32 {v(MA)}, 0xff800000"); a(f"v_mov_b32 {v(MB)}, 0xff800000")
    def load_k():
        a(f"s_add_u32 s24, s{S_CNT}, 63")
        a(f"s_and_b32 s24, s24, 63")
        a(f"s_lshl_b32 s25, s24, 9")
        a(f"s_add_u32 s25, s25, s21")
        a(f"s_mul_i32 s24, s24, {GREC}")
        a(f"s_add_u32 s24, s24, s22")
        a(f"buffer_load_dwordx4 {v(KA1,4)}, {v(G16)}, {srd}, s24 offen")
        a(f"s_mov_b64 exec, s[36:37]")
        a(f"buffer_load_dwordx2 {v(KA2,2)}, {v(G8)}, {srd}, s25 offen")
        a(f"s_mov_b64 exec, -1")
    def qk():
        mfma32(a, SX, KA1, Q1A, None); mfma32(a, SX, KA2, Q2A, SX, k16=False)
        mfma32(a, SY, KA1, Q1B, None); mfma32(a, SY, KA2, Q2B, SY, k16=False)
        a("s_nop 7"); a("s_nop 7")
    a(f"s_mov_b32 s{S_CNT}, 0")
    l1 = a.newlabel("fb_max")
    a.label(l1)
    load_k()
    a("s_waitcnt vmcnt(0)")
    qk()
    for (Sx, M) in ((SX, MA), (SY, MB)):
        for i in range(0, 16, 2):
            a(f"v_max3_f32 {v(M)}, {v(M)}, {v(Sx+i)}, {v(Sx+i+1)}")
    a(f"s_add_u32 s{S_CNT}, s{S_CNT}, 1")
    a(f"s_cmp_lt_u32 s{S_CNT}, 64")
    a(f"s_cbranch_scc1 {l1}")
    for M in (MA, MB):
        a(f"v_mov_b32 {v(TM)}, {v(M)}")
        a("s_nop 1")
        a(f"v_permlane32_swap_b32 {v(M)}, {v(TM)}")
        a("s_nop 1")
        a(f"v_max_f32 {v(M)}, {v(M)}, {v(TM)}")
    for r in list(range(OA, OA+32)):
        a(f"v_mov_b32 {v(r)}, 0")
    a(f"v_and_b32 {v(TM)}, 31, v0")
    a(f"v_cmp_eq_u32 s[24:25], 20, {v(TM)}")
    a(f"v_cmp_eq_u32 vcc, 24, {v(TM)}")
    a(f"v_mov_b32 {v(TM)}, 0x3f803f80")
    a("s_nop 1")
    a("s_or_b64 vcc, vcc, s[24:25]")
    a("s_nop 1")
    for r in range(VA0, VA0+8):
        a(f"v_cndmask_b32 {v(r)}, 0, {v(TM)}, vcc")
    a("s_mov_b32 s38, 0x000fffff")
    a("s_mov_b32 s39, 0x000fffff")
    a(f"s_mov_b32 s{S_CNT}, 0")
    l2 = a.newlabel("fb_main")
    a.label(l2)
    load_k()
    a(f"s_mul_i32 s24, s{S_CNT}, {GREC}")
    a(f"s_add_u32 s24, s24, s22")
    a(f"s_mov_b64 exec, s[38:39]")
    a(f"buffer_load_dwordx4 {v(VA0,4)}, {v(120)}, {srd}, s24 offen offset:1024")
    a(f"buffer_load_dwordx4 {v(VA1,4)}, {v(120)}, {srd}, s24 offen offset:1664")
    a(f"s_mov_b64 exec, -1")
    a("s_waitcnt vmcnt(0)")
    qk()
    for (Sx, M, P, O) in ((SX, MA, PX, OA), (SY, MB, PY, OB)):
        for i in range(16):
            a(f"v_sub_f32 {v(Sx+i)}, {v(Sx+i)}, {v(M)}")
        for i in range(16):
            a(f"v_exp_f32 {v(Sx+i)}, {v(Sx+i)}")
        a("s_nop 0")
        for k in range(8):
            a(f"v_cvt_pk_bf16_f32 {v(P+k)}, {v(Sx+2*k)}, {v(Sx+2*k+1)}")
        a("s_nop 1")
        mfma32(a, O, VA0, P, O)
        mfma32(a, O, VA1, P+4, O)
    a(f"s_add_u32 s{S_CNT}, s{S_CNT}, 1")
    a(f"s_cmp_lt_u32 s{S_CNT}, 64")
    a(f"s_cbranch_scc1 {l2}")
    a("s_nop 7")
    a("s_nop 7")
    a.label(lok)

def gen_attn(a, dbg_time=False):
    srd = f"s[{S_WS}:{S_WS+3}]"
    if dbg_time and not MEGA[0]: stamp(a, 0)
    a(f"s_load_dwordx2 s[{S_WS}:{S_WS+1}], s[0:1], {KA_WS}")
    if FUSE and WOPF:
        a(f"s_load_dwordx2 s[40:41], s[0:1], {KA_AWO}")
        a(f"s_load_dwordx2 s[42:43], s[0:1], {KA_BWO}")
    a(f"s_and_b32 s{S_T}, s2, 7")
    a(f"s_lshr_b32 s{S_T+1}, s2, 3")
    a(f"s_and_b32 s{S_T+2}, s{S_T+1}, 3")
    a(f"s_lshl_b32 s{S_HEAD}, s{S_T}, 2")
    a(f"s_add_u32 s{S_HEAD}, s{S_HEAD}, s{S_T+2}")
    a(f"s_lshr_b32 s{S_QB}, s{S_T+1}, 2")
    if MEGA[0]:
        a(f"s_mov_b32 s{S_WAVE}, s61")
    else:
        a(f"v_lshrrev_b32 {v(SA)}, 6, v0")
        a(f"v_and_b32 v0, 63, v0")
        a(f"v_readfirstlane_b32 s{S_WAVE}, {v(SA)}")
        a("s_mov_b32 s98, 1")
    a(f"v_lshlrev_b32 {v(V_G16)}, 4, v0")
    a(f"s_mul_i32 s{S_T+6}, s{S_HEAD}, {GHEAD}")
    a(f"s_add_u32 s{S_T+6}, s{S_T+6}, {WS_KVC}")
    a(f"s_lshr_b32 s{S_T+7}, s{S_HEAD}, 1")
    a(f"s_lshl_b32 s{S_T+7}, s{S_T+7}, 15")
    a(f"s_add_u32 s{S_T+7}, s{S_T+7}, {WS_K2S}")
    a("s_waitcnt lgkmcnt(0)")
    a(f"s_mov_b32 s{S_WS+2}, {WS_SIZE_SRD}")
    a(f"s_mov_b32 s{S_WS+3}, 0x00020000")
    a(f"s_mov_b32 s61, s{S_WAVE}")
    off_stamp(a, 2, neg=True, back=0, cond_wave=S_WAVE)
    off_stamp(a, 3, back=0, cond_wave=S_WAVE)
    lcomp = a.newlabel("attn_compute")
    a(f"s_cmp_lt_u32 s{S_WAVE}, 4")
    a(f"s_cbranch_scc1 {lcomp}")
    if MEGA[0]:
        lnp = a.newlabel("q2_nopoll")
        a(f"s_cmp_lg_u32 s{S_WAVE}, 4")
        a(f"s_cbranch_scc1 {lnp}")
        a("v_mov_b32 v4, 0")
        a("ds_read_b32 v5, v4")
        a("s_waitcnt lgkmcnt(0)")
        a("v_readfirstlane_b32 s98, v5")
        a(f"s_lshr_b32 s{S_T}, s{S_HEAD}, 1")
        a(f"s_mul_i32 s{S_T}, s{S_T}, 40")
        a(f"s_add_u32 s{S_T+1}, s{S_T}, 39")
        a(f"s_lshr_b32 s{S_T}, s{S_T}, 7")
        a(f"s_lshr_b32 s{S_T+1}, s{S_T+1}, 7")
        a(f"v_lshrrev_b32 v4, 4, v0")
        a(f"v_and_b32 v5, 1, v4")
        a(f"s_sub_u32 s{S_T+2}, s{S_T+1}, s{S_T}")
        a(f"v_mul_u32_u24 v5, s{S_T+2}, v5")
        a(f"v_lshrrev_b32 v4, 1, v4")
        a(f"v_mul_u32_u24 v4, 5, v4")
        a(f"v_add3_u32 v4, v4, v5, s{S_T}")
        a(f"v_add_u32 v4, 5, v4")
        a(f"v_lshlrev_b32 v4, 7, v4")
        a(f"v_and_b32 v5, 15, v0")
        a(f"v_lshl_add_u32 v4, v5, 2, v4")
        a(f"v_and_b32 v6, 1, v0")
        a(f"v_mul_u32_u24 v6, s{S_T+2}, v6")
        a(f"v_add_u32 v6, s{S_T}, v6")
        a(f"v_lshlrev_b32 v6, 7, v6")
        a(f"v_bfe_u32 v7, v0, 1, 1")
        a(f"s_lshl_b32 s{S_T+3}, s{S_QB}, 1")
        a(f"v_add_u32 v7, s{S_T+3}, v7")
        a(f"v_lshl_add_u32 v6, v7, 2, v6")
        a(f"s_mov_b32 s{S_T+3}, {WS_FLAGQ}")
        a(f"s_mov_b32 s{S_T+4}, 0")
        lp = a.newlabel("q2_poll"); lpd = a.newlabel("q2_done")
        a.label(lp)
        a(f"buffer_load_dword v8, v4, {srd}, s{S_T+3} offen sc1")
        a(f"buffer_load_dword v9, v6, {srd}, s{S_T+3} offen sc1")
        a("s_waitcnt vmcnt(0)")
        a(f"v_cmp_eq_u32 vcc, s98, v8")
        a(f"v_cmp_eq_u32 s[28:29], s98, v9")
        a(f"s_add_u32 s{S_T+4}, s{S_T+4}, 1")
        a("s_nop 1")
        a("s_and_b64 vcc, vcc, s[28:29]")
        a("s_cmp_eq_u64 vcc, -1")
        a(f"s_cbranch_scc1 {lpd}")
        a("s_sleep 2")
        a(f"s_cmp_lt_u32 s{S_T+4}, 0x40000")
        a(f"s_cbranch_scc1 {lp}")
        a.label(lpd)
        a.label(lnp)
        a("s_barrier")
    a(f"s_sub_u32 s{S_T}, s{S_WAVE}, 4")
    a(f"s_mul_i32 s{S_LDSW}, s{S_T}, {2*TILE_REC}")
    a(f"s_mul_i32 s{S_T+1}, s{S_T}, {2*GREC}")
    a(f"s_add_u32 s{S_DMAOFF}, s{S_T+6}, s{S_T+1}")
    a(f"s_lshl_b32 s{S_T+1}, s{S_T}, 10")
    a(f"s_add_u32 s{S_K2O}, s{S_T+7}, s{S_T+1}")
    a(f"s_sub_u32 s{S_K2O}, s{S_K2O}, 3072")
    a("s_mov_b32 s50, 0x000fffff")
    a("s_mov_b32 s51, 0x000fffff")
    a(f"v_lshrrev_b32 v11, 5, v0")
    a(f"v_mul_u32_u24 v11, 320, v11")
    a(f"v_and_b32 {v(V_GV)}, 31, v0")
    a(f"v_lshl_add_u32 {v(V_GV)}, {v(V_GV)}, 4, v11")
    a(f"s_mov_b32 s{S_DMABUF}, 0")
    dma_chunk(a)
    if CODEPF:
        lcp = a.newlabel("codepf_skip"); lpc = a.newlabel("codepf_pc")
        a(f"s_lshr_b32 s{S_T}, s2, 3")
        a(f"s_cmp_ge_u32 s{S_T}, {CODEPF}")
        a(f"s_cbranch_scc1 {lcp}")
        a(f"s_cmp_lg_u32 s{S_WAVE}, 7")
        a(f"s_cbranch_scc1 {lcp}")
        a("s_getpc_b64 s[36:37]")
        a.label(lpc)
        a(f"s_lshl_b32 s{S_T}, s{S_T}, 13")
        a(f"v_lshlrev_b32 v6, 7, v0")
        a(f"v_add_u32 v6, s{S_T}, v6")
        a(f"v_mov_b32 v7, s37")
        a(f"v_subrev_u32 v8, ({lpc} - attn_kernel), v6") if False else None
        a(f"s_sub_u32 s36, s36, ({lpc} - attn_kernel)")
        a(f"s_subb_u32 s37, s37, 0")
        a(f"v_mov_b32 v7, s37")
        a(f"v_add_co_u32 v6, vcc, s36, v6")
        a("s_nop 1")
        a(f"v_addc_co_u32 v7, vcc, 0, v7, vcc")
        a(f"v_lshlrev_b32 v9, 7, v0")
        a(f"v_add_u32 v9, s{S_T}, v9")
        a(f"v_cmp_gt_u32 vcc, (L_k2_code_end - attn_kernel), v9")
        a("s_and_saveexec_b64 s[38:39], vcc")
        a(f"s_cbranch_execz {lcp}_r")
        a(f"global_load_dword v8, v[6:7], off")
        a.label(f"{lcp}_r")
        a("s_mov_b64 exec, -1")
        a.label(lcp)
    if FUSE and WOPF:
        a(f"s_lshr_b32 s{S_T}, s2, 3")
        a(f"s_mul_i32 s{S_T}, s{S_T}, 200")
        a(f"s_sub_u32 s{S_T+1}, s{S_WAVE}, 4")
        a(f"s_lshl_b32 s{S_T+1}, s{S_T+1}, 6")
        a(f"s_add_u32 s{S_T}, s{S_T}, s{S_T+1}")
        a(f"v_add_u32 v4, s{S_T}, v0")
        a(f"v_lshlrev_b32 v4, 7, v4")
        a(f"s_mov_b32 s46, {640*1280}")
        a(f"s_mov_b32 s47, 0x00020000")
    a(f"s_mov_b32 s{S_DMABUF}, {CH_BYTES}")
    a(f"s_mov_b32 s{S_CNT}, 0")
    a("s_waitcnt vmcnt(0)")
    a("s_barrier")
    lloop = a.newlabel("ld_loop"); lskip = a.newlabel("ld_skip")
    a.label(lloop)
    a(f"s_cmp_ge_u32 s{S_CNT}, {NCH-1}")
    a(f"s_cbranch_scc1 {lskip}")
    if not OPT['nodma']:
        dma_chunk(a)
    if FUSE and WOPF:
        lsk = a.newlabel("wopf_skip")
        a(f"s_sub_u32 s{S_T+1}, s{S_CNT}, 1")
        a(f"s_cmp_gt_u32 s{S_T+1}, 1")
        a(f"s_cbranch_scc1 {lsk}")
        a(f"s_cmp_eq_u32 s{S_CNT}, 1")
        a(f"s_cselect_b32 s44, s40, s42")
        a(f"s_cselect_b32 s45, s41, s43")
        a(f"buffer_load_dword v5, v4, s[44:47], 0 offen")
        a.label(lsk)
    a(f"s_sub_u32 s{S_DMABUF}, {CH_BYTES}, s{S_DMABUF}")
    a("s_waitcnt vmcnt(0)")
    a.label(lskip)
    if not OPT['nobar']:
        a("s_barrier")
    if gemm.GOPT['ststamp']:
        a("s_memtime s[90:91]"); a("s_waitcnt lgkmcnt(0)")
        a(f"s_mov_b32 m0, s{S_CNT}")
        a("s_sub_u32 s90, s90, s70")
        a("v_writelane_b32 v14, s90, m0")
    a(f"s_add_u32 s{S_CNT}, s{S_CNT}, 1")
    a(f"s_cmp_lt_u32 s{S_CNT}, {NCH}")
    a(f"s_cbranch_scc1 {lloop}")
    if gemm.GOPT['ststamp']:
        a(f"s_lshl_b32 s92, s2, 7")
        a(f"s_add_u32 s92, s92, {0x1E00000}")
        a("v_lshlrev_b32 v13, 2, v0")
        a(f"s_cmp_lg_u32 s{S_WAVE}, 4")
        lss = a.newlabel("ss_skip")
        a(f"s_cbranch_scc1 {lss}")
        a("s_mov_b64 exec, 0xff")
        a(f"buffer_store_dword v14, v13, {srd}, s92 offen")
        a("s_mov_b64 exec, -1")
        a.label(lss)
    if FUSE:
        lx = a.newlabel("ld_exit")
        a("s_bitcmp1_b32 s2, 3")
        a(f"s_cbranch_scc1 {lx}")
        a(f"s_and_b32 s{gemm.S_WAVE}, s{S_WAVE}, 3")
        outp.loader(a, 1)
        a.label(lx)
    a("s_endpgm")
    a.label(lcomp)
    if MEGA[0]: a("s_barrier")
    if OPT['prio']: a("s_setprio 2")
    a(f"v_mov_b32 {v(V_A16)}, {v(V_G16)}")
    a(f"v_lshlrev_b32 {v(V_A8)}, 3, v0")
    a(f"s_lshl_b32 s{S_T}, s{S_QB}, 3")
    a(f"s_lshl_b32 s{S_T+1}, s{S_WAVE}, 1")
    a(f"s_add_u32 s{S_T}, s{S_T}, s{S_T+1}")
    a(f"s_lshl_b32 s{S_T+1}, s{S_HEAD}, 6")
    a(f"s_add_u32 s{S_T+1}, s{S_T+1}, s{S_T}")
    a(f"s_lshl_b32 s{S_T+1}, s{S_T+1}, 10")
    a(f"s_add_u32 s{S_T+1}, s{S_T+1}, {WS_Q1}")
    a(f"buffer_load_dwordx4 {v(Q1A,4)}, {v(V_G16)}, {srd}, s{S_T+1} offen")
    a(f"buffer_load_dwordx4 {v(Q1B,4)}, {v(V_G16)}, {srd}, s{S_T+1} offen offset:1024")
    a(f"s_lshr_b32 s{S_T+2}, s{S_HEAD}, 1")
    a(f"s_lshl_b32 s{S_T+2}, s{S_T+2}, 6")
    a(f"s_add_u32 s{S_T+2}, s{S_T+2}, s{S_T}")
    a(f"s_lshl_b32 s{S_T+2}, s{S_T+2}, 9")
    a(f"s_add_u32 s{S_T+2}, s{S_T+2}, {WS_Q2}")
    a(f"buffer_load_dwordx2 {v(Q2A,2)}, {v(V_A8)}, {srd}, s{S_T+2} offen")
    a(f"buffer_load_dwordx2 {v(Q2B,2)}, {v(V_A8)}, {srd}, s{S_T+2} offen offset:512")
    a(f"s_add_u32 s{S_T+3}, s{S_T+6}, {63*GREC}")
    a(f"buffer_load_dwordx4 {v(K1[1],4)}, {v(V_G16)}, {srd}, s{S_T+3} offen")
    a(f"s_add_u32 s{S_T+3}, s{S_T+7}, {63*512}")
    a(f"buffer_load_dwordx2 {v(K2[1],2)}, {v(V_A8)}, {srd}, s{S_T+3} offen")
    a(f"v_and_b32 {v(SA)}, 27, v0")
    a(f"v_cmp_eq_u32 vcc, 20, {v(SA)}") if False else None
    a(f"v_and_b32 {v(SA)}, 31, v0")
    a(f"v_and_b32 {v(SA+1)}, 27, {v(SA)}")
    a(f"v_cmp_eq_u32 s[22:23], 20, {v(SA)}")
    a(f"v_cmp_eq_u32 s[24:25], 24, {v(SA)}")
    a(f"v_mov_b32 {v(SA+2)}, 0x3f803f80")
    a("s_nop 0")
    a("s_or_b64 vcc, s[22:23], s[24:25]")
    a("s_nop 1")
    for i in range(4):
        a(f"v_cndmask_b32 {v(SA+4+i)}, 0, {v(SA+2)}, vcc")
    a(f"s_mul_i32 s{S_T+3}, s{S_WAVE}, {4*TILE_REC}")
    a(f"v_add_u32 {v(SA+3)}, s{S_T+3}, {v(V_G16)}")
    a("s_mov_b32 exec_lo, 0xfff00000")
    a("s_mov_b32 exec_hi, 0xfff00000")
    for rr in range(4):
        for mf in range(2):
            a(f"ds_write_b128 {v(SA+3)}, {v(SA+4,4)} offset:{rr*TILE_REC + 1024 + 1024*mf}")
    a("s_mov_b64 exec, -1")
    for r in list(range(OA, OA+32)) + list(range(PB, PB+8)) + list(range(SB+12, SB+16)) + list(range(VV0[1], VV0[1]+4)) + list(range(VV1[1], VV1[1]+4)) + list(range(VV0[0], VV0[0]+4)) + list(range(VV1[0], VV1[0]+4)):
        a(f"v_mov_b32 {v(r)}, 0")
    a(f"s_and_b32 s{S_T+3}, s{S_HEAD}, 1")
    a(f"s_cmp_eq_u32 s{S_T+3}, 0")
    a(f"s_cselect_b32 s{S_T+4}, 0, -1")
    a(f"s_cselect_b32 s{S_T+5}, -1, 0")
    a(f"s_mov_b32 s{S_BUFD}, {CH_BYTES}")
    a("s_mov_b32 s34, 0x011fffff")
    a("s_mov_b32 s35, 0x011fffff")
    a("s_waitcnt vmcnt(0)")
    a(f"s_mov_b64 exec, s[{S_T+4}:{S_T+5}]")
    for r in (Q2A, Q2A+1, Q2B, Q2B+1):
        a(f"v_mov_b32 {v(r)}, 0")
    a("s_mov_b64 exec, -1")
    a("s_nop 1")
    a("s_waitcnt lgkmcnt(0)")
    mfma32(a, SA, K1[1], Q1A, None)
    mfma32(a, SA, K2[1], Q2A, SA, k16=False)
    a(f"s_mov_b32 s{S_CNT}, 0")
    a("s_barrier")
    def rd(txt):
        if not OPT['nolds']: a(txt)
    def reads(st, off):
        rd(f"ds_read_b128 {v(K1[st],4)}, {v(V_A16)} offset:{off}")
        rd(f"ds_read_b64 {v(K2[st],2)}, {v(V_A8)} offset:{off+3072}")
        if OPT['vmask']: a("s_mov_b64 exec, s[34:35]")
        rd(f"ds_read_b128 {v(VV0[st],4)}, {v(V_A16)} offset:{off+1024}")
        rd(f"ds_read_b128 {v(VV1[st],4)}, {v(V_A16)} offset:{off+2048}")
        if OPT['vmask']: a("s_mov_b64 exec, -1")
    reads(0, 0)
    a("s_nop 7")
    if dbg_time:
        stamp(a, 1)
        a("s_waitcnt lgkmcnt(0)")
    off_stamp(a, 4, back=0, cond_wave=S_WAVE)
    loop = a.newlabel("attn_loop")
    a.raw(".p2align 6")
    a.label(loop)
    def E(Sr, i): a(f"v_exp_f32 {v(Sr+i)}, {v(Sr+i)}")
    def C(Sr, P, k): a(f"v_cvt_pk_bf16_f32 {v(P+k)}, {v(Sr+2*k)}, {v(Sr+2*k+1)}")
    PEND = []
    def phase(Sr, P, m, rds):
        if OPT['uni']:
            for q in range(4):
                m[q]()
                if q == 0:
                    for r_ in rds[0:2]: rd(r_)
                if q == 1 and rds:
                    if OPT['vmask']: a("s_mov_b64 exec, s[34:35]")
                    for r_ in rds[2:4]: rd(r_)
                    if OPT['vmask']: a("s_mov_b64 exec, -1")
                for i in range(4): E(Sr, 4*q+i)
                while PEND:
                    (s_, p_, k_) = PEND.pop(0); C(s_, p_, k_)
                PEND.append((Sr, P, 2*q)); PEND.append((Sr, P, 2*q+1))
            return
        if OPT['cl4']:
            m[0]()
            for r_ in rds[0:2]: rd(r_)
            for i in (0, 1, 2): E(Sr, i)
            m[1]()
            if rds and OPT['vmask']: a("s_mov_b64 exec, s[34:35]")
            for r_ in rds[2:4]: rd(r_)
            if rds and OPT['vmask']: a("s_mov_b64 exec, -1")
            for i in (3, 4, 5): E(Sr, i)
            m[2]()
            for i in (6, 7, 8): E(Sr, i)
            m[3]()
            for i in range(9, 16): E(Sr, i)
            for k in range(8): C(Sr, P, k)
            return
        m[0]()
        for r_ in rds[0:2]: rd(r_)
        for i in (0, 1, 2): E(Sr, i)
        m[1]()
        if rds and OPT['vmask']: a("s_mov_b64 exec, s[34:35]")
        for r_ in rds[2:4]: rd(r_)
        if rds and OPT['vmask']: a("s_mov_b64 exec, -1")
        for i in (3, 4, 5, 6, 7): E(Sr, i)
        for k in (0, 1, 2, 3): C(Sr, P, k)
        m[2]()
        for i in (8, 9, 10): E(Sr, i)
        m[3]()
        for i in (11, 12, 13, 14, 15): E(Sr, i)
        for k in (4, 5, 6, 7): C(Sr, P, k)
    if OPT['uni']:
        PEND.append((SB, PB, 6)); PEND.append((SB, PB, 7))
    for j in range(CH):
        p = j & 1; pn = p ^ 1
        phase(SA, PA, [lambda: mfma32(a, OB, VV0[pn], PB, OB), lambda: mfma32(a, SB, K1[pn], Q1B, None),
                       lambda: mfma32(a, SB, K2[pn], Q2B, SB, k16=False), lambda: mfma32(a, OB, VV1[pn], PB+4, OB)], [])
        if not OPT['nolds']: a("s_waitcnt lgkmcnt(0)")
        if j == CH-1:
            if not OPT['nobar']:
                a("s_barrier")
            a(f"v_add_u32 {v(V_A16)}, s{S_BUFD}, {v(V_A16)}")
            a(f"v_add_u32 {v(V_A8)}, s{S_BUFD}, {v(V_A8)}")
            a(f"s_sub_u32 s{S_BUFD}, 0, s{S_BUFD}")
            off = 0
        else:
            off = (j+1)*TILE_REC
        rds = [f"ds_read_b128 {v(K1[pn],4)}, {v(V_A16)} offset:{off}",
               f"ds_read_b64 {v(K2[pn],2)}, {v(V_A8)} offset:{off+3072}",
               f"ds_read_b128 {v(VV0[pn],4)}, {v(V_A16)} offset:{off+1024}",
               f"ds_read_b128 {v(VV1[pn],4)}, {v(V_A16)} offset:{off+2048}"]
        phase(SB, PB, [lambda: mfma32(a, OA, VV0[p], PA, OA), lambda: mfma32(a, SA, K1[p], Q1A, None),
                       lambda: mfma32(a, SA, K2[p], Q2A, SA, k16=False), lambda: mfma32(a, OA, VV1[p], PA+4, OA)], rds)
    a(f"s_add_u32 s{S_CNT}, s{S_CNT}, 1")
    a(f"s_cmp_lt_u32 s{S_CNT}, {NCH}")
    a(f"s_cbranch_scc1 {loop}")
    if dbg_time: stamp(a, 2)
    if OPT['uni']:
        while PEND:
            (s_, p_, k_) = PEND.pop(0); C(s_, p_, k_)
    a("s_nop 1")
    mfma32(a, OB, VV0[1], PB, OB)
    mfma32(a, OB, VV1[1], PB+4, OB)
    off_stamp(a, 5, back=0, cond_wave=S_WAVE)
    off_stamp(a, 6, neg=True, back=0, cond_wave=S_WAVE)
    safety_check_and_fallback(a)
    T = 84
    a(f"v_and_b32 {v(T)}, 31, v0")
    a(f"v_lshrrev_b32 {v(T+1)}, 5, v0")
    a(f"v_cmp_eq_u32 vcc, 0, {v(T+1)}")
    if FUSE:
        a(f"s_mul_i32 s{S_T}, s{S_WAVE}, {64*OREC}")
        a(f"s_add_u32 s{S_T}, s{S_T}, 61440")
        a(f"v_mul_u32_u24 {v(T)}, {OREC}, {v(T)}")
        a(f"v_lshl_add_u32 {v(T)}, {v(T+1)}, 3, {v(T)}")
        a(f"v_add_u32 {v(T)}, s{S_T}, {v(T)}")
        a(f"v_lshlrev_b32 {v(T+2)}, 4, v0")
        a(f"v_add_u32 {v(T+10)}, s{S_T}, {v(T+2)}")
        a(f"s_lshl_b32 s{S_T+1}, s{S_QB}, 1")
        a(f"s_lshr_b32 s{S_T+2}, s{S_WAVE}, 1")
        a(f"s_add_u32 s{S_T+1}, s{S_T+1}, s{S_T+2}")
        a(f"s_lshl_b32 s{S_T+1}, s{S_T+1}, 5")
        a(f"s_add_u32 s{S_T+1}, s{S_T+1}, s{S_HEAD}")
        a(f"s_mul_i32 s{S_T+1}, s{S_T+1}, {OBLK}")
        a(f"s_and_b32 s{S_T+2}, s{S_WAVE}, 1")
        a(f"s_mul_i32 s{S_T+2}, s{S_T+2}, {64*OREC}")
        a(f"s_add_u32 s{S_T+2}, s{S_T+2}, s{S_T+1}")
        a(f"s_add_u32 s{S_T+2}, s{S_T+2}, {WS_OBF}")
    else:
        a(f"s_lshl_b32 s{S_T}, s{S_QB}, 8")
        a(f"s_lshl_b32 s{S_T+1}, s{S_WAVE}, 6")
        a(f"s_add_u32 s{S_T}, s{S_T}, s{S_T+1}")
        a(f"v_add_u32 {v(T)}, s{S_T}, {v(T)}")
        a(f"v_mul_u32_u24 {v(T)}, 1280, {v(T)}")
        a(f"v_lshlrev_b32 {v(T+2)}, 3, {v(T+1)}")
        a(f"v_add_u32 {v(T)}, {v(T)}, {v(T+2)}")
        a(f"s_mul_i32 s{S_T+2}, s{S_HEAD}, 40")
        a(f"s_add_u32 s{S_T+2}, s{S_T+2}, {WS_OB}")
    a("s_nop 1")
    for n_, (O, extra) in enumerate(((OA, 0), (OB, 32*1280))):
        if n_ == 1:
            a("s_nop 7")
        a(f"v_cndmask_b32 {v(T+3)}, {v(O+8)}, {v(O+12)}, vcc")
        a(f"v_rcp_f32 {v(T+3)}, {v(T+3)}")
        a("s_nop 0")
        for i in range(12):
            a(f"v_mul_f32 {v(O+i)}, {v(O+i)}, {v(T+3)}")
        for i in range(6):
            a(f"v_cvt_pk_bf16_f32 {v(T+4+i)}, {v(O+2*i)}, {v(O+2*i+1)}")
        if FUSE:
            off = n_*32*OREC
            a(f"v_cndmask_b32 {v(T+8)}, 0, {v(T+8)}, vcc")
            a(f"v_cndmask_b32 {v(T+9)}, 0, {v(T+9)}, vcc")
            a(f"ds_write_b64 {v(T)}, {v(T+4,2)} offset:{off}")
            a(f"ds_write_b64 {v(T)}, {v(T+6,2)} offset:{off+16}")
            a(f"ds_write_b64 {v(T)}, {v(T+8,2)} offset:{off+32}")
        else:
            if extra:
                a(f"s_add_u32 s{S_T+2}, s{S_T+2}, {extra}")
            a(f"buffer_store_dwordx2 {v(T+4,2)}, {v(T)}, {srd}, s{S_T+2} offen")
            a(f"buffer_store_dwordx2 {v(T+6,2)}, {v(T)}, {srd}, s{S_T+2} offen offset:16")
            a("s_mov_b32 exec_hi, 0")
            a(f"buffer_store_dwordx2 {v(T+8,2)}, {v(T)}, {srd}, s{S_T+2} offen offset:32")
            a(f"s_mov_b64 exec, -1")
    if FUSE:
        a("s_waitcnt lgkmcnt(0)")
        a(f"ds_read_b128 {v(4,4)}, {v(T+10)}")
        a(f"ds_read_b128 {v(8,4)}, {v(T+10)} offset:1024")
        a(f"ds_read_b128 {v(12,4)}, {v(T+10)} offset:2048")
        a("s_waitcnt lgkmcnt(0)")
        a(f"buffer_store_dwordx4 {v(4,4)}, {v(T+2)}, {srd}, s{S_T+2} offen sc1")
        a(f"buffer_store_dwordx4 {v(8,4)}, {v(T+2)}, {srd}, s{S_T+2} offen offset:1024 sc1")
        a(f"buffer_store_dwordx4 {v(12,4)}, {v(T+2)}, {srd}, s{S_T+2} offen offset:2048 sc1")
    if FUSE:
        a("s_waitcnt vmcnt(0) lgkmcnt(0)")
        a("s_barrier")
        lnf = a.newlabel("att_noflag")
        a(f"s_cmp_lg_u32 s{S_WAVE}, 0")
        a(f"s_cbranch_scc1 {lnf}")
        a(f"s_lshl_b32 s{S_T}, s{S_QB}, 7")
        a(f"s_add_u32 s{S_T}, s{S_T}, {WS_FLAGB}")
        a(f"s_lshl_b32 s{S_T+1}, s{S_HEAD}, 2")
        a(f"v_mov_b32 {v(T)}, s{S_T+1}")
        a(f"v_mov_b32 {v(T+1)}, s98")
        a("s_mov_b64 exec, 1")
        a(f"buffer_store_dword {v(T+1)}, {v(T)}, {srd}, s{S_T} offen sc1")
        a("s_mov_b64 exec, -1")
        a.label(lnf)
        lx = a.newlabel("att_exit")
        a("s_bitcmp1_b32 s2, 3")
        a(f"s_cbranch_scc1 {lx}")
        a(f"s_mov_b32 s60, s{S_WAVE}")
        a(f"s_mov_b32 s{gemm.S_WAVE}, s60")
        a("s_setprio 0")
        outp.scalars(a, 1)
        outp.compute(a, dbg_time)
        a.label(lx)
        if dbg_time: a(f"s_mov_b32 s{S_WAVE}, s60") if False else None
    if dbg_time:
        a("s_waitcnt vmcnt(0)")
        stamp_end(a, WS_DBG, KA_WS, 61)
    a("s_endpgm")
```

```python
from asmlib import *
from layout import *

S_X = 8
S_W = 12
S_O = 16
S_WAVE = 20
S_XOFF = 21
S_WOFF = 22
S_LB = 23
S_ST = 24
S_T = 25
S_LBW = 43
S_RB = 40
S_CB = 41
BK = 32
NST = 640 // BK
SPS = 5
XBYTES = 128 * 64

PFOPT = dict(allpre=1, delay0=0, delay1=0, ldelay=0)
GOPT = dict(noload=False, nocomp=False, nomfma=False, ntx=False, ntw=False, ntpf=False, ststamp=False)
class G:
    def __init__(self, NC, wstride, acc0, vbase, NB=5, INIT=None):
        self.NC = NC; self.wstride = wstride
        self.INIT = INIT if INIT is not None else NB - 2
        self.NB = NB; self.DEPTH = NB - 2; self.NSET = NB // SPS
        assert NB % SPS == 0 and NST % NB == 0
        self.NT = NC // 32
        self.rowb = NC * 2
        self.wbytes = BK * self.rowb
        self.wbase = NB * XBYTES
        self.lds = NB * (XBYTES + self.wbytes)
        self.acc = acc0
        r = vbase
        self.nwr = {128: 4, 96: 1, 64: 2}[NC]
        self.vxr = r; r += 2 * self.NSET
        self.vwr = r; r += self.nwr * self.NSET
        r = (r + 3) // 4 * 4
        self.xf = [r, r + 4]; r += 8
        self.wf = [[r + 4 * i + 4 * self.NT * b for i in range(self.NT)] for b in range(2)]; r += 8 * self.NT
        self.vend = r

def loader_addrs(a, g, colmode):
    t0, t1, t2, t3 = 3, 4, 5, 6
    a(f"v_lshrrev_b32 {v(t0)}, 2, v0")
    a(f"v_lshrrev_b32 {v(t1)}, 4, v0")
    a(f"v_and_b32 {v(t2)}, 3, v0")
    a(f"v_xor_b32 {v(t2)}, {v(t2)}, {v(t1)}")
    a(f"v_lshlrev_b32 {v(t2)}, 4, {v(t2)}")
    a(f"s_lshl_b32 s{S_T}, s{S_WAVE}, 4")
    a(f"v_add_u32 {v(t0)}, s{S_T}, {v(t0)}")
    a(f"v_mul_u32_u24 v1, 1280, {v(t0)}")
    a(f"v_add_u32 v1, v1, {v(t2)}")
    if g.NC == 128:
        a(f"v_lshrrev_b32 {v(t0)}, 4, v0")
        a(f"v_and_b32 {v(t1)}, 15, v0")
        a(f"v_lshlrev_b32 {v(t2)}, 2, {v(t0)}")
        a(f"v_xor_b32 {v(t1)}, {v(t1)}, {v(t2)}")
        if colmode == 'qkv':
            a(f"v_mov_b32 {v(t2)}, 0")
            for lim, add in ((5, 1200), (10, 2400), (15, -240)):
                a(f"v_cmp_le_u32 vcc, {lim}, {v(t1)}")
                a(f"v_mov_b32 {v(t3)}, {add}")
                a("s_nop 0")
                a(f"v_cndmask_b32 {v(t2)}, {v(t2)}, {v(t3)}, vcc")
            a(f"v_lshlrev_b32 {v(t1)}, 4, {v(t1)}")
            a(f"v_add_u32 {v(t1)}, {v(t1)}, {v(t2)}")
        else:
            a(f"v_lshlrev_b32 {v(t1)}, 4, {v(t1)}")
        a(f"s_lshl_b32 s{S_T}, s{S_WAVE}, 3")
        a(f"v_add_u32 {v(t0)}, s{S_T}, {v(t0)}")
        a(f"v_mul_u32_u24 v2, {g.wstride}, {v(t0)}")
        a(f"v_add_u32 v2, v2, {v(t1)}")
    elif g.NC == 64:
        a(f"v_lshrrev_b32 {v(t0)}, 3, v0")
        a(f"v_and_b32 {v(t1)}, 7, v0")
        a(f"v_bfe_u32 {v(t2)}, {v(t0)}, 1, 1")
        a(f"v_lshlrev_b32 {v(t2)}, 2, {v(t2)}")
        a(f"v_xor_b32 {v(t1)}, {v(t1)}, {v(t2)}")
        a(f"v_lshlrev_b32 {v(t1)}, 4, {v(t1)}")
        a(f"s_lshl_b32 s{S_T}, s{S_WAVE}, 3")
        a(f"v_add_u32 {v(t0)}, s{S_T}, {v(t0)}")
        a(f"v_mul_u32_u24 v2, {g.wstride}, {v(t0)}")
        a(f"v_add_u32 v2, v2, {v(t1)}")
    else:
        a(f"s_lshl_b32 s{S_T}, s{S_WAVE}, 6")
        a(f"v_add_u32 {v(t0)}, s{S_T}, v0")
        a(f"v_mul_u32_u24 {v(t1)}, 43691, {v(t0)}")
        a(f"v_lshrrev_b32 {v(t1)}, 19, {v(t1)}")
        a(f"v_mul_u32_u24 {v(t2)}, 12, {v(t1)}")
        a(f"v_sub_u32 {v(t2)}, {v(t0)}, {v(t2)}")
        a(f"v_lshlrev_b32 {v(t3)}, 4, {v(t2)}")
        if colmode == 'kv':
            a(f"v_cmp_le_u32 vcc, 5, {v(t2)}")
            a(f"v_mov_b32 {v(t0)}, 1200")
            a("s_nop 0")
            a(f"v_cndmask_b32 {v(t0)}, 0, {v(t0)}, vcc")
            a(f"v_cmp_le_u32 vcc, 10, {v(t2)}")
            a(f"v_mov_b32 {v(t2)}, -160")
            a("s_nop 0")
            a(f"v_cndmask_b32 {v(t0)}, {v(t0)}, {v(t2)}, vcc")
            a(f"v_add_u32 {v(t3)}, {v(t3)}, {v(t0)}")
        a(f"v_mul_u32_u24 v2, {g.wstride}, {v(t1)}")
        a(f"v_add_u32 v2, v2, {v(t3)}")

S_KS = 58
def loader_issue(a, g, with_w=True, slot=0):
    sx = f"s[{S_X}:{S_X+3}]"; sw = f"s[{S_W}:{S_W+3}]"
    fx = " nt" if GOPT['ntx'] else ""; fw = " nt" if GOPT['ntw'] else ""
    fx += getattr(g, 'xflags', '')
    a(f"s_add_u32 m0, s{S_T+2}, {slot*XBYTES}")
    a(f"s_add_u32 s{S_KS}, s{S_KS}, 1")
    a(f"buffer_load_dwordx4 v1, {sx}, s{S_XOFF} offen{fx} lds")
    a(f"s_add_u32 m0, s{S_T+2}, {slot*XBYTES + 4096}")
    a(f"s_cmp_eq_u32 s{S_KS}, {NST}")
    a(f"buffer_load_dwordx4 v8, {sx}, s{S_XOFF} offen{fx} lds")
    n = 2
    a(f"s_cselect_b32 s{S_T+4}, {BK*2 - 1280}, {BK*2}")
    if with_w:
        a(f"s_add_u32 m0, s{S_T+3}, {g.wbase + slot*g.wbytes}")
    a(f"s_add_u32 s{S_XOFF}, s{S_XOFF}, s{S_T+4}")
    if with_w:
        a(f"buffer_load_dwordx4 v2, {sw}, s{S_WOFF} offen{fw} lds")
        n += 1
        if g.NC == 128:
            a(f"buffer_load_dwordx4 v9, {sw}, s{S_WOFF} offen offset:1024{fw} lds")
            n += 1
        elif g.NC == 96:
            a(f"buffer_load_dwordx4 v9, {sw}, s{S_WOFF} offen offset:3072{fw} lds")
            n += 1
    a(f"s_cmp_eq_u32 s{S_KS}, {NST}")
    a(f"s_cselect_b32 s{S_T+4}, s69, s68")
    a(f"s_add_u32 s{S_WOFF}, s{S_WOFF}, s{S_T+4}")
    return n

def loader_body(a, g, with_w, tail=None):
    issued = 0
    n = None
    def issue():
        nonlocal issued, n
        n = loader_issue(a, g, with_w, issued % g.NB)
        issued += 1
    for i in range(g.INIT): issue()
    extra = 0
    if getattr(g, 'pfw', 0):
        LPR = 2 if g.NC == 128 else 2
        nslots = g.pfw * 32 * LPR
        a(f"s_lshl_b32 s{S_T+4}, s{S_WAVE}, 6")
        a(f"v_add_u32 v3, s{S_T+4}, v0")
        a(f"v_lshrrev_b32 v4, 1, v3")
        a(f"v_and_b32 v5, 1, v3")
        a(f"v_lshlrev_b32 v5, 7, v5")
        a(f"s_lshl_b32 s{S_T+4}, s{S_KS}, 5")
        a(f"v_add_u32 v4, s{S_T+4}, v4")
        a(f"v_subrev_u32 v6, 640, v4")
        a(f"v_cmp_le_u32 vcc, 640, v4")
        a("s_nop 1")
        a(f"v_cndmask_b32 v4, v4, v6, vcc")
        a(f"v_mul_u32_u24 v4, {g.wstride}, v4")
        a(f"v_add_u32 v4, v4, v5")
        a(f"v_cmp_gt_u32 vcc, {nslots}, v3")
        a(f"v_mov_b32 v5, 0x7ffffff0")
        a("s_nop 0")
        a(f"v_cndmask_b32 v4, v5, v4, vcc")
        a(f"buffer_load_dword v7, v4, s[{S_W}:{S_W+3}], s67 offen")
        extra = 1
    for s_ in range(NST):
        out = (issued - s_ - 1) * n + (extra if s_ < g.INIT else 0)
        assert out <= 63
        if GOPT['ststamp']:
            a("s_memtime s[90:91]")
            a("s_waitcnt lgkmcnt(0)")
            a(f"v_writelane_b32 v11, s90, {s_}")
        a(f"s_waitcnt vmcnt({out})")
        if GOPT['ststamp']:
            a("s_memtime s[90:91]")
            a("s_waitcnt lgkmcnt(0)")
            a(f"v_writelane_b32 v12, s90, {s_}")
        a("s_barrier")
        if GOPT['ststamp']:
            a("s_memtime s[90:91]")
            a("s_waitcnt lgkmcnt(0)")
            a(f"v_writelane_b32 v10, s90, {s_}")
        if GOPT['noload']: continue
        k = 0
        while issued < NST and issued <= s_ + g.NB - 2 and k < 2:
            issue(); k += 1
    if GOPT['ststamp']:
        a(f"s_load_dwordx2 s[88:89], s[0:1], {KA_WS}")
        a("s_waitcnt lgkmcnt(0)")
        a("s_mov_b32 s90, 0x2000000")
        a("s_mov_b32 s91, 0x00020000")
        a(f"s_lshl_b32 s92, s2, 11")
        a(f"s_lshl_b32 s93, s{S_WAVE}, 9")
        a("s_add_u32 s92, s92, s93")
        import asmlib
        a(f"s_add_u32 s92, s92, {0x1A00000 + asmlib.DBGK[0]*0x100000 + getattr(g, 'stoff', 0)}")
        a("v_lshlrev_b32 v13, 2, v0")
        a("s_mov_b64 exec, 0x1fffff")
        a("buffer_store_dword v10, v13, s[88:91], s92 offen")
        a("buffer_store_dword v11, v13, s[88:91], s92 offen offset:128")
        a("buffer_store_dword v12, v13, s[88:91], s92 offen offset:256")
        a("s_mov_b64 exec, -1")
    if tail: tail()
    a("s_endpgm")

def loader(a, g, colmode, tail=None):
    if PFOPT['ldelay']: a(f"s_sleep {PFOPT['ldelay']}")
    if getattr(g, 'lprio', 0): a(f"s_setprio {g.lprio}")
    loader_addrs(a, g, colmode)
    a(f"v_add_u32 v8, {64*1280}, v1")
    if g.NC == 128: a(f"v_add_u32 v9, {4*g.wstride-1024}, v2")
    if g.NC == 96: a(f"v_add_u32 v9, {16*g.wstride-3072}, v2")
    a(f"s_mov_b32 s68, {BK*g.wstride}")
    a(f"s_mov_b32 s69, {BK*g.wstride - 640*g.wstride}")
    a(f"s_mov_b32 s{S_KS}, s59")
    a(f"s_mul_i32 s{S_T+4}, s59, {BK*2}")
    a(f"s_add_u32 s{S_XOFF}, s{S_XOFF}, s{S_T+4}")
    a(f"s_mul_i32 s{S_T+4}, s59, {BK*g.wstride}")
    a(f"s_add_u32 s{S_WOFF}, s{S_WOFF}, s{S_T+4}")
    a(f"s_lshl_b32 s{S_T+2}, s{S_WAVE}, 10")
    if g.NC == 128:
        a(f"s_lshl_b32 s{S_T+3}, s{S_WAVE}, 11")
    else:
        a(f"s_lshl_b32 s{S_T+3}, s{S_WAVE}, 10")
    if g.NC == 96:
        l3 = a.newlabel("gl_w3")
        a(f"s_cmp_eq_u32 s{S_WAVE}, 3")
        a(f"s_cbranch_scc1 {l3}")
        loader_body(a, g, True, tail)
        a.label(l3)
        loader_body(a, g, False, tail)
    else:
        loader_body(a, g, True, tail)

def compute_addrs(a, g, vt):
    t0, t1, t2 = vt, vt + 1, vt + 2
    a(f"v_and_b32 {v(t0)}, 31, v0")
    a(f"s_lshl_b32 s{S_T}, s{S_WAVE}, 5")
    a(f"v_add_u32 {v(t0)}, s{S_T}, {v(t0)}")
    a(f"v_bfe_u32 {v(t1)}, {v(t0)}, 2, 2")
    a(f"v_lshrrev_b32 {v(t2)}, 5, v0")
    a(f"v_xor_b32 {v(t1)}, {v(t1)}, {v(t2)}")
    a(f"v_lshlrev_b32 {v(t1)}, 4, {v(t1)}")
    a(f"v_lshlrev_b32 {v(t0)}, 6, {v(t0)}")
    a(f"v_add_u32 {v(g.vxr)}, {v(t0)}, {v(t1)}")
    a(f"v_xor_b32 {v(g.vxr+1)}, 32, {v(g.vxr)}")
    a(f"v_bfe_u32 {v(t0)}, v0, 2, 2")
    a(f"v_lshrrev_b32 {v(t1)}, 5, v0")
    a(f"v_lshlrev_b32 {v(t1)}, 3, {v(t1)}")
    a(f"v_add_u32 {v(t1)}, {v(t1)}, {v(t0)}")
    a(f"v_mul_u32_u24 {v(t1)}, {g.rowb}, {v(t1)}")
    a(f"v_bfe_u32 {v(t2)}, v0, 4, 1")
    a(f"v_lshlrev_b32 {v(t2)}, 5, {v(t2)}")
    a(f"v_add_u32 {v(t1)}, {v(t1)}, {v(t2)}")
    a(f"v_and_b32 {v(t2)}, 3, v0")
    a(f"v_lshlrev_b32 {v(t2)}, 3, {v(t2)}")
    a(f"v_add_u32 {v(t1)}, {v(t1)}, {v(t2)}")
    a(f"v_add_u32 {v(t1)}, {g.wbase}, {v(t1)}")
    if g.NC == 128:
        for ct in range(4):
            a(f"v_xor_b32 {v(t2)}, {ct}, {v(t0)}")
            a(f"v_lshlrev_b32 {v(t2)}, 6, {v(t2)}")
            a(f"v_add_u32 {v(g.vwr+ct)}, {v(t1)}, {v(t2)}")
    elif g.NC == 96:
        a(f"v_mov_b32 {v(g.vwr)}, {v(t1)}")
    else:
        a(f"v_lshrrev_b32 {v(t0)}, 1, {v(t0)}")
        for ct in range(2):
            a(f"v_xor_b32 {v(t2)}, {ct}, {v(t0)}")
            a(f"v_lshlrev_b32 {v(t2)}, 6, {v(t2)}")
            a(f"v_add_u32 {v(g.vwr+ct)}, {v(t1)}, {v(t2)}")
    for st in range(1, g.NSET):
        for i in range(2):
            a(f"v_add_u32 {v(g.vxr+2*st+i)}, {st*SPS*XBYTES}, {v(g.vxr+i)}")
        for i in range(g.nwr):
            a(f"v_add_u32 {v(g.vwr+g.nwr*st+i)}, {st*SPS*g.wbytes}, {v(g.vwr+i)}")

def rd_list(g, buf, ks, b):
    st, sl = divmod(buf, SPS)
    L = [f"ds_read_b128 {v(g.xf[b],4)}, {v(g.vxr+2*st+ks)} offset:{sl*XBYTES}"]
    base = sl * g.wbytes
    for i in range(g.NT):
        if g.NC == 96:
            addr = g.vwr + g.nwr*st; off = base + i*64 + ks*16*g.rowb
        else:
            addr = g.vwr + g.nwr*st + i; off = base + ks*16*g.rowb
        L.append(f"ds_read_b64_tr_b16 {v(g.wf[b][i],2)}, {v(addr)} offset:{off}")
        L.append(f"ds_read_b64_tr_b16 {v(g.wf[b][i]+2,2)}, {v(addr)} offset:{off+4*g.rowb}")
    if GOPT['nocomp'] or getattr(g, 'nord', False): L = []
    return L

def mf_list(g, b, orient):
    L = []
    for i in range(g.NT):
        d = g.acc + 16*i
        if orient[i] == 'FT':
            L.append(f"v_mfma_f32_32x32x16_bf16 {v(d,16)}, {v(g.wf[b][i],4)}, {v(g.xf[b],4)}, {v(d,16)}")
        else:
            L.append(f"v_mfma_f32_32x32x16_bf16 {v(d,16)}, {v(g.xf[b],4)}, {v(g.wf[b][i],4)}, {v(d,16)}")
    if GOPT['nocomp'] or GOPT['nomfma'] or getattr(g, 'nomf', False): L = []
    return L

def mfmas(a, g, b, orient):
    for m in mf_list(g, b, orient): a(m)

def interleave(a, g, mf, rd):
    nrd = 1 + 2*g.NT
    if not rd:
        for m in mf: a(m)
        return
    if not mf: mf = None
    per = [3] + [2]*(g.NT-1)
    k = 0
    for i in range(g.NT):
        old_younger = nrd - 3 - 2*i
        a(f"s_waitcnt lgkmcnt({old_younger + k})")
        if mf: a(mf[i])
        for j in range(per[i]):
            a(rd[k]); k += 1

def compute_loop(a, g, orient, dbg=False, pre_loop=None, per_iter=None):
    for r in range(g.acc, g.acc + 16*g.NT):
        a(f"v_mov_b32 {v(r)}, 0")
    for r in list(range(g.xf[1], g.xf[1]+4)) + [g.wf[1][i]+k for i in range(g.NT) for k in range(4)]:
        a(f"v_mov_b32 {v(r)}, 0")
    if pre_loop: pre_loop()
    a(f"s_mov_b32 s{S_ST}, 0")
    if dbg:
        a("s_memtime s[78:79]")
        a("s_waitcnt lgkmcnt(0)")
    loop = a.newlabel("gc_loop")
    a.label(loop)
    for b in range(g.NB):
        a("s_barrier")
        if dbg and b == 0:
            sk = a.newlabel("st")
            a(f"s_cmp_lg_u32 s{S_ST}, 0")
            a(f"s_cbranch_scc1 {sk}")
            a("s_memtime s[76:77]")
            a("s_waitcnt lgkmcnt(0)")
            a.label(sk)
        if b == 0 and per_iter: per_iter()
        interleave(a, g, mf_list(g, 1, orient), rd_list(g, b, 0, 0))
        interleave(a, g, mf_list(g, 0, orient), rd_list(g, b, 1, 1))
    a(f"s_add_u32 s{S_ST}, s{S_ST}, {g.NB}")
    a(f"s_cmp_lt_u32 s{S_ST}, {NST}")
    a(f"s_cbranch_scc1 {loop}")
    a("s_waitcnt lgkmcnt(0)")
    mfmas(a, g, 1, orient)
    if per_iter: a("s_waitcnt vmcnt(0)")

S_PFO = 44+12
S_PFS = 57
class PF:
    SRD = 60
    def __init__(self, vaddr, vdummy):
        self.va = vaddr; self.vd = vdummy
    def issue(self, a):
        a(f"buffer_load_dword {v(self.vd)}, {v(self.va)}, s[{self.SRD}:{self.SRD+3}], s{S_PFO} offen" + (" nt" if GOPT['ntpf'] else ""))
        a(f"s_add_u32 s{S_PFO}, s{S_PFO}, s{S_PFS}")
    def pre(self, a):
        lab = a.newlabel("pf_skip")
        a(f"s_cmp_eq_u32 s{S_WAVE}, 3")
        a(f"s_cbranch_scc1 {lab}")
        if PFOPT['delay0']: a(f"s_sleep {PFOPT['delay0']}")
        self.issue(a)
        if PFOPT['allpre']:
            if PFOPT['delay1']: a(f"s_sleep {PFOPT['delay1']}")
            self.issue(a)
            if PFOPT['delay1']: a(f"s_sleep {PFOPT['delay1']}")
            self.issue(a)
        a.label(lab)
    def iter(self, a):
        if PFOPT['allpre']: return
        lab = a.newlabel("pf_skip")
        a(f"s_cmp_eq_u32 s{S_WAVE}, 3")
        a(f"s_cbranch_scc1 {lab}")
        a(f"s_cmp_ge_u32 s{S_ST}, 10")
        a(f"s_cbranch_scc1 {lab}")
        self.issue(a)
        a.label(lab)
    def select_srd(self, a):
        a(f"s_cmp_eq_u32 s{S_WAVE}, 1")
        for i in range(4):
            a(f"s_cselect_b32 s{self.SRD+i}, s{S_X+i}, s{S_W+i}")

def compute_loop_paced(a, g, orient):
    for r in range(g.acc, g.acc + 16*g.NT):
        a(f"v_mov_b32 {v(r)}, 0")
    a(f"s_mov_b32 s{S_ST}, 0")
    loop = a.newlabel("gp_loop")
    a.label(loop)
    for b in range(g.NB):
        a("s_barrier")
        for ks in range(2):
            rd = rd_list(g, b, ks, ks)
            mf = mf_list(g, ks, orient)
            a(rd[0]); a(rd[1]); a(rd[2])
            for i in range(g.NT):
                a("s_waitcnt lgkmcnt(0)")
                if i + 1 < g.NT:
                    a(rd[3+2*i]); a(rd[4+2*i])
                    a(mf[i])
                else:
                    a(mf[i])
    a(f"s_add_u32 s{S_ST}, s{S_ST}, {g.NB}")
    a(f"s_cmp_lt_u32 s{S_ST}, {NST}")
    a(f"s_cbranch_scc1 {loop}")

def compute_loop_paced2(a, g, orient, ahead=2):
    for r in range(g.acc, g.acc + 16*g.NT):
        a(f"v_mov_b32 {v(r)}, 0")
    a(f"s_mov_b32 s{S_ST}, 0")
    loop = a.newlabel("gp_loop")
    a.label(loop)
    for b in range(g.NB):
        a("s_barrier")
        rds = [rd_list(g, b, ks, ks) for ks in range(2)]
        mfs = [mf_list(g, ks, orient) for ks in range(2)]
        steps = [(ks, i) for ks in range(2) for i in range(g.NT)]
        queue = []
        def issue(n):
            ks, i = steps[n]
            if i == 0:
                a(rds[ks][0]); queue.append(n)
            a(rds[ks][1+2*i]); queue.append(n)
            a(rds[ks][2+2*i]); queue.append(n)
        for n in range(min(ahead, len(steps))): issue(n)
        for n, (ks, i) in enumerate(steps):
            last = max(k for k, s_ in enumerate(queue) if s_ == n)
            a(f"s_waitcnt lgkmcnt({len(queue) - 1 - last})")
            del queue[:last+1]
            if n + ahead < len(steps): issue(n + ahead)
            a(mfs[ks][i])
    a(f"s_add_u32 s{S_ST}, s{S_ST}, {g.NB}")
    a(f"s_cmp_lt_u32 s{S_ST}, {NST}")
    a(f"s_cbranch_scc1 {loop}")
```

```python
S = 2048; D = 640; H = 32; DH = 20
TILE_REC = 3584
KV_HEAD = 64 * TILE_REC
WS_KV  = 0
WS_Q1  = 0x700000
WS_Q2  = 0x900000
WS_OB  = 0x980000
WS_OA  = 0xC00000
WS_KVS = 0xE80000
KVS_REC = 21*20*4
KVS_BYTES = 64*KVS_REC
WS_SIZE_SRD = 0x2000000
KA_AX, KA_AWQKV, KA_AWPHI, KA_AWO, KA_BX, KA_BWQKV, KA_BWO, KA_OUT, KA_DBG, KA_WS = [8*i for i in range(10)]
QSCALE = (20 ** -0.5) * 1.4426950408889634
WS_DBG = 0x1800000
WS_KVP = 0xF00000
WS_FLAG = 0xE80000
WS_PHQ = 0x1100000
WS_FLAGB = WS_FLAG + 2048
WS_FLAGA = WS_FLAG + 4096
WS_FLAGQ = WS_FLAG + 8192
WS_OBF = 0x1100000
WS_OAF = 0x1400000
OREC = 48
OBLK = 128*OREC
GREC = 2304
GHEAD = 64*GREC
WS_K2S = 0x500000
WS_KVC = 4096
```

```python
from asmlib import *
from layout import *
from gemm import *
import struct, os
BNB = int(os.environ.get('BNB','10'))
BINIT = int(os.environ.get('BINIT','5'))
ROT = int(os.environ.get('ROT','1'))

def f32hex(x):
    return "0x%08x" % struct.unpack("<I", struct.pack("<f", x))[0]

def srd(a, s0, kaoff, nbytes):
    a(f"s_load_dwordx2 s[{s0}:{s0+1}], s[0:1], {kaoff}")
def srd_fin(a, s0, nbytes):
    a(f"s_mov_b32 s{s0+2}, {nbytes}")
    a(f"s_mov_b32 s{s0+3}, 0x00020000")

def wave_lane(a, vt):
    a(f"v_lshrrev_b32 {v(vt)}, 6, v0")
    a(f"v_and_b32 v0, 63, v0")
    a(f"v_readfirstlane_b32 s{S_WAVE}, {v(vt)}")
    a("s_nop 3")
    a(f"s_lshr_b32 s{S_T+14}, s{S_WAVE}, 2")
    a(f"s_and_b32 s{S_WAVE}, s{S_WAVE}, 3")

def split_roles(a, g, colmode, tail=None):
    lc = a.newlabel("compute")
    a(f"s_cmp_eq_u32 s{S_T+14}, 0")
    a(f"s_cbranch_scc1 {lc}")
    loader(a, g, colmode, tail)
    a.label(lc)

PREFETCH = False
WARM = False
TOUCH = False
def IDLE_PF(a, g, VT):
    t0 = VT; t1 = VT+1; va = VT+2
    a(f"v_lshrrev_b32 {v(t0)}, 5, v0")
    a(f"v_lshlrev_b32 {v(t0)}, 6, {v(t0)}")
    a(f"v_bfe_u32 {v(t1)}, v0, 4, 1")
    a(f"v_add_u32 {v(t0)}, {v(t0)}, {v(t1)}")
    a(f"s_lshl_b32 s{S_T}, s64, 1")
    a(f"v_add_u32 {v(t0)}, s{S_T}, {v(t0)}")
    a(f"v_mul_u32_u24 {v(va)}, 3840, {v(t0)}")
    a(f"v_and_b32 {v(t1)}, 15, v0")
    a(f"v_lshlrev_b32 {v(t1)}, 7, {v(t1)}")
    a(f"v_add_u32 {v(va)}, {v(va)}, {v(t1)}")
    a(f"s_lshl_b32 s{S_T}, s{S_WAVE}, 1")
    a(f"s_mul_i32 s{S_T}, s{S_T}, {64*3840}")
    a(f"s_lshl_b32 s{S_T+4}, s65, 11")
    a(f"s_add_u32 s{S_T}, s{S_T}, s{S_T+4}")
    a(f"buffer_load_dword {v(VT+3)}, {v(va)}, s[{S_W}:{S_W+3}], s{S_T} offen")
    a(f"s_add_u32 s{S_T}, s{S_T}, {8*64*3840}")
    a(f"buffer_load_dword {v(VT+4)}, {v(va)}, s[{S_W}:{S_W+3}], s{S_T} offen")
    a(f"v_and_b32 {v(t0)}, 15, v0")
    a(f"s_lshl_b32 s{S_T}, s64, 4")
    a(f"v_add_u32 {v(t0)}, s{S_T}, {v(t0)}")
    a(f"v_mul_u32_u24 {v(va)}, 1280, {v(t0)}")
    a(f"v_lshrrev_b32 {v(t1)}, 4, v0")
    a(f"v_lshlrev_b32 {v(t1)}, 7, {v(t1)}")
    a(f"v_add_u32 {v(va)}, {v(va)}, {v(t1)}")
    a(f"s_mul_i32 s{S_T}, s66, {128*1280}")
    a(f"s_lshl_b32 s{S_T+4}, s{S_WAVE}, 9")
    a(f"s_add_u32 s{S_T}, s{S_T}, s{S_T+4}")
    a(f"buffer_load_dword {v(VT+5)}, {v(va)}, s[{S_X}:{S_X+3}], s{S_T} offen")
K1NB = int(os.environ.get('K1NB','5')); K1INIT = int(os.environ.get('K1INIT','3'))
BQ = G(NC=128, wstride=3840, acc0=(64 if K1NB == 5 else 80), vbase=1, NB=K1NB, INIT=K1INIT)
BQ.pfw = int(os.environ.get('PFW','2'))
BQ_NVGPR = 128 if K1NB == 5 else 144
def role_bqkv(a, dbg=False):
    g = BQ
    VT = 52 if K1NB == 5 else 64
    assert g.vend <= VT, g.vend
    if dbg: stamp(a, 0)
    srd(a, S_X, KA_BX, 0); srd(a, S_W, KA_BWQKV, 0); srd(a, S_O, KA_WS, 0)
    wave_lane(a, VT)
    if OFFDBG[0]:
        a(f"s_or_b32 s85, s{S_WAVE}, s{S_T+14}")
        off_stamp(a, 0, neg=True, back=-512, cond_wave=85)
    a(f"s_and_b32 s{S_T}, s2, 7")
    a(f"s_lshr_b32 s{S_T+1}, s2, 3")
    a(f"s_lshr_b32 s{S_T+2}, s{S_T}, 1")
    a(f"s_lshl_b32 s{S_T+2}, s{S_T+2}, 2")
    a(f"s_and_b32 s{S_T+3}, s{S_T}, 1")
    a(f"s_lshr_b32 s{S_T+4}, s{S_T+1}, 3")
    a(f"s_and_b32 s{S_T+5}, s{S_T+1}, 7")
    a(f"s_mul_i32 s{S_T+6}, s{S_T+1}, 37")
    a(f"s_lshr_b32 s{S_T+6}, s{S_T+6}, 8")
    a(f"s_mul_i32 s{S_T+7}, s{S_T+6}, 7")
    a(f"s_sub_u32 s{S_T+7}, s{S_T+1}, s{S_T+7}")
    a(f"s_add_u32 s{S_T+7}, s{S_T+7}, 8")
    a(f"s_cmp_eq_u32 s{S_T+3}, 0")
    a(f"s_cselect_b32 s{S_RB}, s{S_T+4}, s{S_T+6}")
    a(f"s_cselect_b32 s{S_CB}, s{S_T+5}, s{S_T+7}")
    a(f"s_add_u32 s{S_RB}, s{S_RB}, s{S_T+2}")
    a(f"s_mul_i32 s{S_XOFF}, s{S_RB}, {128*1280}")
    a(f"s_lshl_b32 s{S_WOFF}, s{S_CB}, 8")
    a("s_waitcnt lgkmcnt(0)")
    srd_fin(a, S_X, 2048*1280); srd_fin(a, S_W, 640*3840); srd_fin(a, S_O, WS_SIZE_SRD)
    lgo = a.newlabel("bq_go")
    a(f"s_cmp_eq_u32 s{S_T+3}, 0")
    a(f"s_cbranch_scc1 {lgo}")
    a(f"s_cmp_lt_u32 s{S_T+1}, 28")
    a(f"s_cbranch_scc1 {lgo}")
    if PREFETCH:
        lnp = a.newlabel("bq_idle_nopf")
        a(f"s_cmp_lg_u32 s{S_T+14}, 0")
        a(f"s_cbranch_scc1 {lnp}")
        a(f"s_mov_b32 s64, s{S_T+1}")
        a(f"s_mov_b32 s65, s{S_T+3}")
        a(f"s_mov_b32 s66, s{S_T+2}")
        IDLE_PF(a, g, VT)
        a.label(lnp)
    if WARM:
        a(f"s_load_dwordx2 s[68:69], s[0:1], {KA_AX}")
        a(f"s_load_dwordx2 s[72:73], s[0:1], {KA_AWQKV}")
        a(f"s_and_b32 s{S_T}, s2, 7")
        a(f"s_lshr_b32 s{S_T}, s{S_T}, 1")
        a(f"s_lshl_b32 s{S_T}, s{S_T}, 2")
        a(f"s_add_u32 s{S_T}, s{S_T}, s{S_T+1}")
        a(f"s_sub_u32 s{S_T}, s{S_T}, 28")
        a(f"s_lshl_b32 s{S_T+2}, s{S_T+14}, 2")
        a(f"s_add_u32 s{S_T+2}, s{S_T+2}, s{S_WAVE}")
        a(f"s_lshl_b32 s{S_T+2}, s{S_T+2}, 6")
        a(f"v_add_u32 {v(VT)}, s{S_T+2}, v0")
        a(f"v_lshlrev_b32 {v(VT)}, 7, {v(VT)}")
        a("s_waitcnt lgkmcnt(0)")
        a(f"s_mov_b32 s70, {2048*1280}"); a("s_mov_b32 s71, 0x00020000")
        a(f"s_mov_b32 s74, {640*3840}"); a("s_mov_b32 s75, 0x00020000")
        lw = a.newlabel("warm_w"); ld = a.newlabel("warm_done")
        a(f"s_cmp_ge_u32 s{S_T}, 8")
        a(f"s_cbranch_scc1 {lw}")
        a(f"s_mul_i32 s{S_T+3}, s{S_T}, {2560*128}")
        for r_ in range(5):
            a(f"buffer_load_dword {v(VT+2)}, {v(VT)}, s[68:71], s{S_T+3} offen")
            a(f"s_add_u32 s{S_T+3}, s{S_T+3}, {512*128}")
            a("s_waitcnt vmcnt(0)")
        a(f"s_branch {ld}")
        a.label(lw)
        a(f"s_sub_u32 s{S_T}, s{S_T}, 8")
        a(f"s_mul_i32 s{S_T+3}, s{S_T}, {2400*128}")
        for r_ in range(5):
            a(f"buffer_load_dword {v(VT+2)}, {v(VT)}, s[72:75], s{S_T+3} offen")
            a(f"s_add_u32 s{S_T+3}, s{S_T+3}, {512*128}")
            a("s_waitcnt vmcnt(0)")
        a.label(ld)
    a(f"s_cmp_lg_u32 s2, {28*8+1}")
    lz0 = a.newlabel("bq_z0")
    a(f"s_cbranch_scc1 {lz0}")
    a(f"s_mov_b32 s{S_T}, {WS_FLAG}")
    a(f"s_lshl_b32 s{S_T+2}, s{S_T+14}, 2")
    a(f"s_add_u32 s{S_T+2}, s{S_T+2}, s{S_WAVE}")
    a(f"s_lshl_b32 s{S_T+2}, s{S_T+2}, 6")
    a(f"v_add_u32 {v(VT)}, s{S_T+2}, v0")
    a(f"v_lshlrev_b32 {v(VT+1)}, 4, {v(VT)}")
    for i in range(4):
        a(f"v_mov_b32 {v(VT+4+i)}, 0")
    a(f"v_cmp_gt_u32 vcc, 512, {v(VT)}")
    a("s_nop 1")
    a("s_and_b64 exec, exec, vcc")
    lz = a.newlabel("bq_zskip")
    a(f"s_cbranch_execz {lz}")
    a(f"buffer_store_dwordx4 {v(VT+4,4)}, {v(VT+1)}, s[{S_O}:{S_O+3}], s{S_T} offen sc1")
    a.label(lz)
    a.label(lz0)
    a("s_endpgm")
    a.label(lgo)
    if ROT:
        a(f"s_and_b32 s{S_T+8}, s{S_RB}, 3")
        a(f"s_mul_i32 s{S_T+8}, s{S_T+8}, 10")
        a(f"s_and_b32 s{S_T+9}, s{S_CB}, 7")
        a(f"s_mul_i32 s{S_T+9}, s{S_T+9}, 5")
        a(f"s_add_u32 s{S_T+8}, s{S_T+8}, s{S_T+9}")
        a(f"s_lshr_b32 s{S_T+8}, s{S_T+8}, 1")
        a(f"s_cmp_ge_u32 s{S_T+8}, 20")
        a(f"s_cselect_b32 s{S_T+9}, 20, 0")
        a(f"s_sub_u32 s59, s{S_T+8}, s{S_T+9}")
    else:
        a("s_mov_b32 s59, 0")
    a(f"s_mov_b32 s67, s{S_WOFF}")
    a(f"s_mov_b32 s64, s{S_T+1}")
    a(f"s_mov_b32 s65, s{S_T+3}")
    a(f"s_mov_b32 s66, s{S_T+2}")
    pf = PF(VT+8, VT+9)
    def pf_setup():
        if not PREFETCH: return
        va = pf.va; t0 = VT; t1 = VT+1
        lx = a.newlabel("pf_x"); ld = a.newlabel("pf_d")
        pf.select_srd(a)
        a(f"s_cmp_eq_u32 s{S_WAVE}, 1")
        a(f"s_cbranch_scc1 {lx}")
        a(f"v_lshrrev_b32 {v(t0)}, 5, v0")
        a(f"v_lshlrev_b32 {v(t0)}, 6, {v(t0)}")
        a(f"v_bfe_u32 {v(t1)}, v0, 4, 1")
        a(f"v_add_u32 {v(t0)}, {v(t0)}, {v(t1)}")
        a(f"s_lshl_b32 s{S_T}, s64, 1")
        a(f"v_add_u32 {v(t0)}, s{S_T}, {v(t0)}")
        a(f"v_mul_u32_u24 {v(va)}, 3840, {v(t0)}")
        a(f"v_and_b32 {v(t1)}, 15, v0")
        a(f"v_lshlrev_b32 {v(t1)}, 7, {v(t1)}")
        a(f"v_add_u32 {v(va)}, {v(va)}, {v(t1)}")
        a(f"s_mul_i32 s{S_PFO}, s{S_WAVE}, {64*3840}")
        a(f"s_lshl_b32 s{S_T}, s65, 11")
        a(f"s_add_u32 s{S_PFO}, s{S_PFO}, s{S_T}")
        a(f"s_mov_b32 s{S_PFS}, {4*64*3840}")
        a(f"s_branch {ld}")
        a.label(lx)
        a(f"v_and_b32 {v(t0)}, 15, v0")
        a(f"s_lshl_b32 s{S_T}, s64, 4")
        a(f"v_add_u32 {v(t0)}, s{S_T}, {v(t0)}")
        a(f"v_mul_u32_u24 {v(va)}, 1280, {v(t0)}")
        a(f"v_lshrrev_b32 {v(t1)}, 4, v0")
        a(f"v_lshlrev_b32 {v(t1)}, 7, {v(t1)}")
        a(f"v_add_u32 {v(va)}, {v(va)}, {v(t1)}")
        a(f"s_mul_i32 s{S_PFO}, s66, {128*1280}")
        a(f"s_mov_b32 s{S_PFS}, 512")
        a.label(ld)
        pf.pre(a)
    pf_iter = (lambda: None) if PREFETCH else None
    lcomp = a.newlabel("bq_comp")
    if PREFETCH:
        lld = a.newlabel("bq_ld")
        a(f"s_cmp_lg_u32 s{S_T+14}, 0")
        a(f"s_cbranch_scc1 {lld}")
        pf_setup()
        a.label(lld)
    def touch_tail():
        if not TOUCH: return
        a(f"s_load_dwordx2 s[68:69], s[0:1], {KA_AX}")
        a(f"s_load_dwordx2 s[70:71], s[0:1], {KA_AWQKV}")
        a(f"s_load_dwordx2 s[72:73], s[0:1], {KA_AWO}")
        a(f"s_load_dwordx2 s[74:75], s[0:1], {KA_BWO}")
        a(f"s_and_b32 s{S_T}, s2, 7")
        a(f"s_lshr_b32 s{S_T+1}, s{S_T}, 1")
        a(f"s_mul_i32 s{S_T+1}, s{S_T+1}, 60")
        a(f"s_lshl_b32 s{S_T+4}, s65, 5")
        a(f"s_add_u32 s{S_T+1}, s{S_T+1}, s{S_T+4}")
        a(f"s_add_u32 s{S_T+1}, s{S_T+1}, s64")
        a(f"s_lshl_b32 s{S_T+1}, s{S_T+1}, 2")
        a(f"s_add_u32 s{S_T+1}, s{S_T+1}, s{S_WAVE}")
        a("s_waitcnt lgkmcnt(0)")
        a(f"s_mov_b32 s78, {2048*1280}")
        a(f"s_mov_b32 s80, 0")
        for lim, reg, nb in ((320, 70, 640*3840), (620, 72, 640*1280), (720, 74, 640*1280)):
            a(f"s_cmp_ge_u32 s{S_T+1}, {lim}")
            a(f"s_cselect_b32 s68, s{reg}, s68")
            a(f"s_cselect_b32 s69, s{reg+1}, s69")
            a(f"s_cselect_b32 s78, {nb}, s78")
            a(f"s_cselect_b32 s80, {lim}, s80")
        a(f"s_mov_b32 s76, s68")
        a(f"s_mov_b32 s77, s69")
        a(f"s_mov_b32 s79, 0x00020000")
        a(f"s_sub_u32 s{S_T+1}, s{S_T+1}, s80")
        a(f"s_lshl_b32 s{S_T+1}, s{S_T+1}, 13")
        a(f"v_lshlrev_b32 v3, 7, v0")
        a(f"buffer_load_dword v4, v3, s[76:79], s{S_T+1} offen")
    split_roles(a, g, 'lin', tail=touch_tail)
    compute_addrs(a, g, VT)
    lv = a.newlabel("bq_v")
    a(f"s_cmp_ge_u32 s{S_CB}, 10")
    a(f"s_cbranch_scc1 {lv}")
    compute_loop(a, g, ['FT']*4, dbg, per_iter=pf_iter)
    if dbg: a('s_memtime s[72:73]')
    so = f"s[{S_O}:{S_O+3}]"
    VL16, VL8 = VT, VT+1
    QS = 86
    a(f"v_lshlrev_b32 {v(VL16)}, 4, v0")
    a(f"v_lshlrev_b32 {v(VL8)}, 3, v0")
    a(f"s_lshl_b32 s{S_T}, s{S_RB}, 2")
    a(f"s_add_u32 s{S_T}, s{S_T}, s{S_WAVE}")
    lk = a.newlabel("bq_k")
    lend = a.newlabel("bq_end")
    a(f"s_cmp_ge_u32 s{S_CB}, 5")
    a(f"s_cbranch_scc1 {lk}")
    for typ in ('Q', 'K'):
        if typ == 'K':
            a.label(lk)
            a(f"s_sub_u32 s{S_CB}, s{S_CB}, 5")
            a(f"s_add_u32 s{S_T}, s{S_T}, 63")
            a(f"s_and_b32 s{S_T}, s{S_T}, 63")
            a(f"s_mul_i32 s{S_T+1}, s{S_T}, {GREC}")
            a(f"s_add_u32 s{S_T+1}, s{S_T+1}, {WS_KVC}")
            a(f"s_lshl_b32 s{S_T+2}, s{S_T}, 9")
            a(f"s_add_u32 s{S_T+2}, s{S_T+2}, {WS_K2S}")
            h1, h2 = GHEAD, None
        else:
            a(f"s_lshl_b32 s{S_T+1}, s{S_T}, 10")
            a(f"s_add_u32 s{S_T+1}, s{S_T+1}, {WS_Q1}")
            a(f"s_lshl_b32 s{S_T+2}, s{S_T}, 9")
            a(f"s_add_u32 s{S_T+2}, s{S_T+2}, {WS_Q2}")
            h1 = 65536
            a(f"s_mov_b32 s{QS}, {f32hex(QSCALE)}"); a(f"s_mov_b32 s{QS+1}, {f32hex(QSCALE)}")
        labs = [a.newlabel(f"bq_{typ}{s_}") for s_ in range(5)]
        for s_ in range(1, 5):
            a(f"s_cmp_eq_u32 s{S_CB}, {s_}")
            a(f"s_cbranch_scc1 {labs[s_]}")
        a("s_nop 7")
        for s_ in range(5):
            a.label(labs[s_])
            a("s_nop 7")
            a("s_nop 3")
            rot = 0
            def pack(Gl, dst):
                R = g.acc + 16*(Gl//4) + 4*(Gl % 4)
                if typ == 'Q':
                    a(f"v_pk_mul_f32 {v(R,2)}, {v(R,2)}, s[{QS}:{QS+1}]")
                    a(f"v_pk_mul_f32 {v(R+2,2)}, {v(R+2,2)}, s[{QS}:{QS+1}]")
                a(f"v_cvt_pk_bf16_f32 {v(dst)}, {v(R)}, {v(R+1)}")
                a(f"v_cvt_pk_bf16_f32 {v(dst+1)}, {v(R+2)}, {v(R+3)}")
            Gl = 0
            while Gl < 16:
                Gi = 16*s_ + Gl
                p, r = divmod(Gi, 5)
                tp = VT + 4 + 4*(rot % 2); rot += 1
                if r in (0, 3) and Gl < 15:
                    pack(Gl, tp); pack(Gl+1, tp+2)
                    head = 2*p + (1 if r == 3 else 0)
                    a(f"s_add_u32 s{S_T+3}, s{S_T+1}, {head*h1}")
                    a(f"buffer_store_dwordx4 {v(tp,4)}, {v(VL16)}, {so}, s{S_T+3} offen")
                    Gl += 2
                    continue
                pack(Gl, tp)
                if r != 2:
                    head = 2*p + (1 if r >= 3 else 0)
                    off8 = 8*(r if r < 2 else r-3)
                    a(f"s_add_u32 s{S_T+3}, s{S_T+1}, {head*h1}")
                    a(f"buffer_store_dwordx2 {v(tp,2)}, {v(VL16)}, {so}, s{S_T+3} offen offset:{off8}")
                elif typ == 'Q':
                    a(f"s_add_u32 s{S_T+3}, s{S_T+2}, {p*32768}")
                    a(f"buffer_store_dwordx2 {v(tp,2)}, {v(VL8)}, {so}, s{S_T+3} offen")
                else:
                    a(f"s_add_u32 s{S_T+3}, s{S_T+2}, {p*32768}")
                    a(f"buffer_store_dwordx2 {v(tp,2)}, {v(VL8)}, {so}, s{S_T+3} offen")
                Gl += 1
            a(f"s_branch {lend}")
    a.label(lv)
    compute_loop(a, g, ['TF']*4, dbg, per_iter=pf_iter)
    if dbg: a('s_memtime s[72:73]')
    a(f"s_sub_u32 s{S_CB}, s{S_CB}, 10")
    a(f"s_lshl_b32 s{S_T}, s{S_RB}, 2")
    a(f"s_add_u32 s{S_T}, s{S_T}, s{S_WAVE}")
    EXPC = True
    a(f"s_mul_i32 s{S_T+1}, s{S_T}, {GREC}")
    a(f"s_add_u32 s{S_T+1}, s{S_T+1}, {WS_KVC + 1024}")
    a(f"s_lshl_b32 s{S_T+2}, s{S_CB}, 7")
    ONE = VT + 8
    for i in range(4):
        a(f"v_mov_b32 {v(ONE+i)}, 0x3f803f80")
    VA, VD, VH, VB = VT, VT+1, VT+2, VT+3
    PK = g.xf[0]
    a(f"v_lshrrev_b32 {v(VH)}, 5, v0")
    if EXPC: a(f"v_mul_u32_u24 {v(VH)}, 320, {v(VH)}")
    else: a(f"v_lshlrev_b32 {v(VH)}, 9, {v(VH)}")
    a(f"s_mov_b32 s{S_T+3}, {GHEAD}")
    a("s_nop 7")
    for ct in range(4):
        a(f"v_and_b32 {v(VD)}, 31, v0")
        a(f"v_add_u32 {v(VD)}, s{S_T+2}, {v(VD)}")
        if ct: a(f"v_add_u32 {v(VD)}, {32*ct}, {v(VD)}")
        a(f"v_mul_u32_u24 {v(VA)}, 52429, {v(VD)}")
        a(f"v_lshrrev_b32 {v(VA)}, 20, {v(VA)}")
        a(f"v_mul_u32_u24 {v(VB)}, 20, {v(VA)}")
        a(f"v_sub_u32 {v(VD)}, {v(VD)}, {v(VB)}")
        a(f"v_mul_lo_u32 {v(VA)}, {v(VA)}, s{S_T+3}")
        a(f"v_lshlrev_b32 {v(VB)}, 4, {v(VD)}")
        a(f"v_add3_u32 {v(VA)}, {v(VA)}, {v(VB)}, {v(VH)}")
        for mf in range(2):
            R = g.acc + 16*ct + 8*mf
            P_ = PK + 4*mf
            for i in range(4):
                a(f"v_cvt_pk_bf16_f32 {v(P_+i)}, {v(R+2*i)}, {v(R+2*i+1)}")
            a(f"buffer_store_dwordx4 {v(P_,4)}, {v(VA)}, {so}, s{S_T+1} offen offset:{(640 if EXPC else 1024)*mf}")
        if EXPC: continue
        a(f"v_and_b32 {v(VB)}, 27, {v(VD)}")
        a(f"v_cmp_eq_u32 vcc, 8, {v(VB)}")
        a(f"v_mov_b32 {v(VB)}, 0x3f803f80")
        a("s_nop 0")
        for i in range(4):
            a(f"v_cndmask_b32 {v(ONE+i)}, 0, {v(VB)}, vcc")
        a(f"v_add_u32 {v(VA)}, 192, {v(VA)}")
        a(f"v_cmp_le_u32 vcc, 8, {v(VD)}")
        a(f"s_and_saveexec_b64 s[30:31], vcc")
        lsk = a.newlabel("bq_noones")
        a(f"s_cbranch_execz {lsk}")
        for mf in range(2):
            a(f"buffer_store_dwordx4 {v(ONE,4)}, {v(VA)}, {so}, s{S_T+1} offen offset:{1024*mf}")
        a.label(lsk)
        a("s_mov_b64 exec, -1")
        a("s_nop 1")
    a.label(lend)
    if OFFDBG[0]:
        a("s_waitcnt vmcnt(0)")
        off_stamp(a, 1, back=-512, cond_wave=S_WAVE)
    if dbg:
        a('s_memtime s[74:75]')
        a("s_waitcnt vmcnt(0)")
        stamp_end(a, WS_DBG, KA_WS, S_WAVE)
    a("s_endpgm")

OP = G(NC=96, wstride=1280, acc0=80, vbase=1, NB=BNB, INIT=BINIT)
OP.pfw = int(os.environ.get('PFW','2'))
OP_NVGPR = 128
def role_out(a, dbg=False):
    g = OP
    VT = 64
    assert g.vend <= VT, g.vend
    if dbg: stamp(a, 0)
    srd(a, S_X, KA_WS, 0); srd(a, S_O, KA_OUT, 0)
    a(f"s_load_dwordx2 s[{S_W}:{S_W+1}], s[0:1], {KA_AWO}")
    a(f"s_load_dwordx2 s[{S_T+8}:{S_T+9}], s[0:1], {KA_BWO}") if (S_T+8) % 2 == 0 else a(f"s_load_dwordx2 s[{S_T+9}:{S_T+10}], s[0:1], {KA_BWO}")
    BW = S_T+8 if (S_T+8) % 2 == 0 else S_T+9
    wave_lane(a, VT)
    a(f"s_and_b32 s{S_T}, s2, 7")
    a(f"s_lshr_b32 s{S_T+1}, s2, 3")
    a(f"s_lshr_b32 s{S_T+2}, s{S_T}, 2")
    a(f"s_and_b32 s{S_T}, s{S_T}, 3")
    a(f"s_lshl_b32 s{S_RB}, s{S_T}, 2")
    a(f"s_lshr_b32 s{S_T+3}, s{S_T+1}, 3")
    a(f"s_add_u32 s{S_RB}, s{S_RB}, s{S_T+3}")
    a(f"s_and_b32 s{S_CB}, s{S_T+1}, 7")
    a(f"s_mov_b32 s{S_T+6}, s{S_T+2}")
    a(f"s_mul_i32 s{S_XOFF}, s{S_RB}, {128*1280}")
    a(f"s_mul_i32 s{S_T+4}, s{S_T+6}, {WS_OB-WS_OA}")
    a(f"s_add_u32 s{S_T+4}, s{S_T+4}, {WS_OA}")
    a(f"s_add_u32 s{S_XOFF}, s{S_XOFF}, s{S_T+4}")
    a(f"s_mul_i32 s{S_WOFF}, s{S_CB}, 160")
    a("s_waitcnt lgkmcnt(0)")
    a(f"s_cmp_eq_u32 s{S_T+6}, 0")
    a(f"s_cselect_b32 s{S_W}, s{S_W}, s{BW}")
    a(f"s_cselect_b32 s{S_W+1}, s{S_W+1}, s{BW+1}")
    srd_fin(a, S_X, WS_SIZE_SRD); srd_fin(a, S_W, 640*1280); srd_fin(a, S_O, 2048*2560)
    a(f"s_mov_b32 s42, s{S_T+6}")
    if ROT:
        a(f"s_and_b32 s{S_T+8}, s{S_RB}, 3")
        a(f"s_mul_i32 s{S_T+8}, s{S_T+8}, 10")
        a(f"s_mul_i32 s{S_T+9}, s{S_CB}, 5")
        a(f"s_add_u32 s{S_T+8}, s{S_T+8}, s{S_T+9}")
        a(f"s_lshr_b32 s{S_T+8}, s{S_T+8}, 1")
        a(f"s_cmp_ge_u32 s{S_T+8}, 20")
        a(f"s_cselect_b32 s{S_T+9}, 20, 0")
        a(f"s_sub_u32 s59, s{S_T+8}, s{S_T+9}")
    else:
        a("s_mov_b32 s59, 0")
    a(f"s_mov_b32 s67, s{S_WOFF}")
    a(f"s_mov_b32 s64, s{S_T+1}")
    a(f"s_mov_b32 s65, s{S_T+4}")
    pf = PF(VT+8, VT+9)
    def pf_setup():
        if not PREFETCH: return
        va = pf.va; t0 = VT; t1 = VT+1
        lx = a.newlabel("pf_x"); ld = a.newlabel("pf_d")
        pf.select_srd(a)
        a(f"s_cmp_eq_u32 s{S_WAVE}, 1")
        a(f"s_cbranch_scc1 {lx}")
        a(f"v_mul_u32_u24 {v(t0)}, 3277, v0")
        a(f"v_lshrrev_b32 {v(t0)}, 16, {v(t0)}")
        a(f"v_mul_u32_u24 {v(t1)}, 20, {v(t0)}")
        a(f"v_sub_u32 {v(t1)}, v0, {v(t1)}")
        a(f"s_mul_i32 s{S_T}, s64, 20")
        a(f"v_add_u32 {v(t1)}, s{S_T}, {v(t1)}")
        a(f"v_lshlrev_b32 {v(t1)}, 7, {v(t1)}")
        a(f"v_mul_u32_u24 {v(va)}, 81920, {v(t0)}")
        a(f"v_add_u32 {v(va)}, {v(va)}, {v(t1)}")
        a(f"s_mul_i32 s{S_PFO}, s{S_WAVE}, {81920*3//2}")
        a(f"s_mov_b32 s{S_PFS}, {6*81920}")
        a(f"s_branch {ld}")
        a.label(lx)
        a(f"v_and_b32 {v(t0)}, 15, v0")
        a(f"s_lshl_b32 s{S_T}, s64, 4")
        a(f"v_add_u32 {v(t0)}, s{S_T}, {v(t0)}")
        a(f"v_mul_u32_u24 {v(va)}, 1280, {v(t0)}")
        a(f"v_lshrrev_b32 {v(t1)}, 4, v0")
        a(f"v_lshlrev_b32 {v(t1)}, 7, {v(t1)}")
        a(f"v_add_u32 {v(va)}, {v(va)}, {v(t1)}")
        a(f"s_and_b32 s{S_T}, s{S_RB}, 12")
        a(f"s_mul_i32 s{S_PFO}, s{S_T}, {128*1280}")
        a(f"s_add_u32 s{S_PFO}, s{S_PFO}, s65")
        a(f"s_mov_b32 s{S_PFS}, 512")
        a.label(ld)
        pf.pre(a)
    if PREFETCH:
        lld = a.newlabel("op_ld")
        a(f"s_cmp_lg_u32 s{S_T+14}, 0")
        a(f"s_cbranch_scc1 {lld}")
        pf_setup()
        a.label(lld)
    split_roles(a, g, 'lin')
    compute_addrs(a, g, VT)
    compute_loop(a, g, ['FT']*3, dbg, per_iter=(lambda: None) if PREFETCH else None)
    if dbg: a('s_memtime s[72:73]')
    so = f"s[{S_O}:{S_O+3}]"
    VA = VT
    a(f"v_and_b32 {v(VA)}, 31, v0")
    a(f"s_lshl_b32 s{S_T}, s{S_RB}, 7")
    a(f"s_lshl_b32 s{S_T+1}, s{S_WAVE}, 5")
    a(f"s_add_u32 s{S_T}, s{S_T}, s{S_T+1}")
    a(f"v_add_u32 {v(VA)}, s{S_T}, {v(VA)}")
    a(f"v_mul_u32_u24 {v(VA)}, 2560, {v(VA)}")
    a(f"v_lshrrev_b32 {v(VA+1)}, 5, v0")
    a(f"v_lshlrev_b32 {v(VA+1)}, 4, {v(VA+1)}")
    a(f"v_add_u32 {v(VA)}, {v(VA)}, {v(VA+1)}")
    a(f"s_mul_i32 s{S_T+2}, s42, 1280")
    a(f"s_mul_i32 s{S_T+3}, s{S_CB}, 160")
    a(f"s_add_u32 s{S_T+2}, s{S_T+2}, s{S_T+3}")
    a("s_nop 7")
    a("s_nop 3")
    for pr in range(5):
        G0 = 2*pr
        R0 = g.acc + 16*(G0//4) + 4*(G0 % 4)
        R1 = R0 + 4
        P_ = VT + 4 + 4*(pr % 2)
        a(f"v_cvt_pk_bf16_f32 {v(P_)}, {v(R0)}, {v(R0+1)}")
        a(f"v_cvt_pk_bf16_f32 {v(P_+1)}, {v(R0+2)}, {v(R0+3)}")
        a(f"v_cvt_pk_bf16_f32 {v(P_+2)}, {v(R1)}, {v(R1+1)}")
        a(f"v_cvt_pk_bf16_f32 {v(P_+3)}, {v(R1+2)}, {v(R1+3)}")
        a("s_nop 1")
        a(f"v_permlane32_swap_b32 {v(P_)}, {v(P_+2)}")
        a(f"v_permlane32_swap_b32 {v(P_+1)}, {v(P_+3)}")
        a("s_nop 1")
        a(f"buffer_store_dwordx4 {v(P_,4)}, {v(VA)}, {so}, s{S_T+2} offen offset:{32*pr}")
    if dbg:
        a('s_memtime s[74:75]')
        a("s_waitcnt vmcnt(0)")
        stamp_end(a, WS_DBG, KA_WS, S_WAVE)
    a("s_endpgm")


OF = G(NC=96, wstride=1280, acc0=80, vbase=1, NB=5, INIT=3)
OF.xflags = " sc1"
OF.pfw = 0
def out_scalars(a, branch):
    srd(a, S_X, KA_WS, 0); srd(a, S_O, KA_OUT, 0); srd(a, S_W, KA_AWO if branch == 0 else KA_BWO, 0)
    a(f"s_and_b32 s{S_T}, s2, 7")
    a(f"s_lshr_b32 s{S_T+1}, s2, 4")
    a(f"s_lshl_b32 s{S_RB}, s{S_T}, 1")
    a(f"s_lshr_b32 s{S_T+2}, s{S_T+1}, 3")
    a(f"s_add_u32 s{S_RB}, s{S_RB}, s{S_T+2}")
    a(f"s_and_b32 s{S_CB}, s{S_T+1}, 7")
    a(f"s_mul_i32 s{S_XOFF}, s{S_RB}, {128*1280}")
    a(f"s_add_u32 s{S_XOFF}, s{S_XOFF}, {WS_OA if branch == 0 else WS_OB}")
    a(f"s_mul_i32 s{S_WOFF}, s{S_CB}, 160")
    a(f"s_mul_i32 s{S_T+8}, s{S_CB}, 5")
    a(f"s_lshr_b32 s{S_T+8}, s{S_T+8}, 1")
    a(f"s_mov_b32 s59, s{S_T+8}")
    a(f"s_mov_b32 s42, {branch}")
    a("s_waitcnt lgkmcnt(0)")
    srd_fin(a, S_X, WS_SIZE_SRD); srd_fin(a, S_W, 640*1280); srd_fin(a, S_O, 2048*2560)

def out_poll(a, branch):
    a("s_barrier")
    lw = a.newlabel("op_nopoll")
    a(f"s_cmp_lg_u32 s{S_WAVE}, 0")
    a(f"s_cbranch_scc1 {lw}")
    if branch == 1:
        a(f"s_lshr_b32 s{S_T}, s{S_RB}, 1")
        a(f"s_lshl_b32 s{S_T}, s{S_T}, 7")
        a(f"s_add_u32 s{S_T}, s{S_T}, {WS_FLAGB}")
        mask = "0xffffffff"; n = 32
    else:
        a(f"s_lshl_b32 s{S_T}, s{S_RB}, 7")
        a(f"s_add_u32 s{S_T}, s{S_T}, {WS_FLAGA}")
        mask = "0xffff"; n = 16
    a(f"s_mov_b32 exec_lo, {mask}")
    a(f"s_mov_b32 exec_hi, 0")
    a(f"v_lshlrev_b32 v3, 2, v0")
    a(f"s_mov_b32 s{S_T+1}, 0")
    lp = a.newlabel("op_poll"); lpd = a.newlabel("op_poll_done")
    a.label(lp)
    a(f"buffer_load_dword v4, v3, s[{S_X}:{S_X+3}], s{S_T} offen sc1")
    a("s_waitcnt vmcnt(0)")
    a(f"v_cmp_eq_u32 vcc, 1, v4")
    a(f"s_add_u32 s{S_T+1}, s{S_T+1}, 1")
    a("s_nop 1")
    a(f"s_cmp_eq_u32 vcc_lo, {mask}")
    a(f"s_cbranch_scc1 {lpd}")
    a("s_sleep 4")
    a(f"s_cmp_lt_u32 s{S_T+1}, 0x40000")
    a(f"s_cbranch_scc1 {lp}")
    a.label(lpd)
    a("s_mov_b64 exec, -1")
    a.label(lw)
    a("s_barrier")

def out_loader(a, branch):
    OF.stoff = 0x100000 + branch*0x100000
    out_scalars(a, branch)
    if GOPT['ststamp']:
        a('s_memtime s[94:95]')
    out_poll(a, branch)
    if GOPT['ststamp']:
        a('s_memtime s[96:97]')
        a('s_waitcnt lgkmcnt(0)')
        a('v_writelane_b32 v10, s94, 20')
        a('v_writelane_b32 v11, s96, 20')
        a('v_writelane_b32 v12, s70, 20')
    loader(a, OF, 'lin')

def out_compute(a, dbg=False):
    g = OF
    VT = 64
    a("s_barrier")
    compute_addrs(a, g, VT)
    compute_loop(a, g, ['FT']*3, False)
    if dbg: a("s_memtime s[68:69]")
    so = f"s[{S_O}:{S_O+3}]"
    VA = VT
    a(f"v_and_b32 {v(VA)}, 31, v0")
    a(f"s_lshl_b32 s{S_T}, s{S_RB}, 7")
    a(f"s_lshl_b32 s{S_T+1}, s{S_WAVE}, 5")
    a(f"s_add_u32 s{S_T}, s{S_T}, s{S_T+1}")
    a(f"v_add_u32 {v(VA)}, s{S_T}, {v(VA)}")
    a(f"v_mul_u32_u24 {v(VA)}, 2560, {v(VA)}")
    a(f"v_lshrrev_b32 {v(VA+1)}, 5, v0")
    a(f"v_lshlrev_b32 {v(VA+1)}, 4, {v(VA+1)}")
    a(f"v_add_u32 {v(VA)}, {v(VA)}, {v(VA+1)}")
    a(f"s_mul_i32 s{S_T+2}, s42, 1280")
    a(f"s_mul_i32 s{S_T+3}, s{S_CB}, 160")
    a(f"s_add_u32 s{S_T+2}, s{S_T+2}, s{S_T+3}")
    a("s_nop 7")
    a("s_nop 3")
    for pr in range(5):
        G0 = 2*pr
        R0 = g.acc + 16*(G0//4) + 4*(G0 % 4)
        R1 = R0 + 4
        P_ = VT + 4 + 4*(pr % 2)
        a(f"v_cvt_pk_bf16_f32 {v(P_)}, {v(R0)}, {v(R0+1)}")
        a(f"v_cvt_pk_bf16_f32 {v(P_+1)}, {v(R0+2)}, {v(R0+3)}")
        a(f"v_cvt_pk_bf16_f32 {v(P_+2)}, {v(R1)}, {v(R1+1)}")
        a(f"v_cvt_pk_bf16_f32 {v(P_+3)}, {v(R1+2)}, {v(R1+3)}")
        a("s_nop 1")
        a(f"v_permlane32_swap_b32 {v(P_)}, {v(P_+2)}")
        a(f"v_permlane32_swap_b32 {v(P_+1)}, {v(P_+3)}")
        a("s_nop 1")
        a(f"buffer_store_dwordx4 {v(P_,4)}, {v(VA)}, {so}, s{S_T+2} offen offset:{32*pr}")
```

```python
from asmlib import *
from layout import *
from gemm import *
from roles import f32hex, srd, srd_fin, wave_lane
import os

BQ = G(NC=128, wstride=3840, acc0=64, vbase=1, NB=5, INIT=3)
BQ.pfw = 2

def role_b(a, L_attn, dbg=False):
    g = BQ
    VT = 52
    SC = " sc1"
    if dbg: stamp(a, 0)
    srd(a, S_X, KA_BX, 0); srd(a, S_W, KA_BWQKV, 0); srd(a, S_O, KA_WS, 0)
    wave_lane(a, VT)
    a(f"s_lshl_b32 s61, s{S_T+14}, 2")
    a(f"s_add_u32 s61, s61, s{S_WAVE}")
    a(f"s_and_b32 s{S_T}, s2, 7")
    a(f"s_lshr_b32 s{S_T+1}, s2, 3")
    a(f"s_lshr_b32 s{S_T+2}, s{S_T}, 1")
    a(f"s_lshl_b32 s{S_T+2}, s{S_T+2}, 2")
    a(f"s_and_b32 s{S_T+3}, s{S_T}, 1")
    a(f"s_lshr_b32 s{S_T+4}, s{S_T+1}, 3")
    a(f"s_and_b32 s{S_T+5}, s{S_T+1}, 7")
    a(f"s_mul_i32 s{S_T+6}, s{S_T+1}, 37")
    a(f"s_lshr_b32 s{S_T+6}, s{S_T+6}, 8")
    a(f"s_mul_i32 s{S_T+7}, s{S_T+6}, 7")
    a(f"s_sub_u32 s{S_T+7}, s{S_T+1}, s{S_T+7}")
    a(f"s_add_u32 s{S_T+7}, s{S_T+7}, 8")
    a(f"s_cmp_eq_u32 s{S_T+3}, 0")
    a(f"s_cselect_b32 s{S_RB}, s{S_T+4}, s{S_T+6}")
    a(f"s_cselect_b32 s{S_CB}, s{S_T+5}, s{S_T+7}")
    a(f"s_add_u32 s{S_RB}, s{S_RB}, s{S_T+2}")
    a(f"s_mul_i32 s{S_XOFF}, s{S_RB}, {128*1280}")
    a(f"s_lshl_b32 s{S_WOFF}, s{S_CB}, 8")
    a(f"s_mov_b32 s62, s{S_CB}")
    a(f"s_cmp_ge_u32 s{S_T+1}, 28")
    a(f"s_cselect_b32 s99, s{S_T+3}, 0")
    a(f"s_and_b32 s{S_T+8}, s{S_RB}, 3")
    a(f"s_mul_i32 s{S_T+8}, s{S_T+8}, 10")
    a(f"s_and_b32 s{S_T+9}, s{S_CB}, 7")
    a(f"s_mul_i32 s{S_T+9}, s{S_T+9}, 5")
    a(f"s_add_u32 s{S_T+8}, s{S_T+8}, s{S_T+9}")
    a(f"s_lshr_b32 s{S_T+8}, s{S_T+8}, 1")
    a(f"s_cmp_ge_u32 s{S_T+8}, 20")
    a(f"s_cselect_b32 s{S_T+9}, 20, 0")
    a(f"s_sub_u32 s59, s{S_T+8}, s{S_T+9}")
    a(f"s_mov_b32 s67, s{S_WOFF}")
    a("s_waitcnt lgkmcnt(0)")
    srd_fin(a, S_X, 2048*1280); srd_fin(a, S_W, 640*3840); srd_fin(a, S_O, WS_SIZE_SRD)
    lc = a.newlabel("b_compute"); ltail = a.newlabel("b_ltail"); lpub = a.newlabel("b_pub")
    a(f"s_cmp_eq_u32 s{S_T+14}, 0")
    a(f"s_cbranch_scc1 {lc}")
    a("s_cmp_lg_u32 s99, 0")
    a(f"s_cbranch_scc1 {ltail}")
    def tail():
        a.label(ltail)
        a("s_barrier")
        a(f"s_branch {L_attn}")
    loader(a, g, 'lin', tail)
    a.label(lc)
    lnt = a.newlabel("b_notag"); lnp = a.newlabel("b_nopubtag")
    a(f"s_cmp_lg_u32 s{S_WAVE}, 0")
    a(f"s_cbranch_scc1 {lnt}")
    a("s_cmp_lg_u32 s2, 0")
    a(f"s_cbranch_scc1 {lnp}")
    tag_publish(a, KA_DBG)
    a.label(lnp)
    tag_fetch(a, KA_DBG, VT, VT+1)
    a.label(lnt)
    a("s_cmp_lg_u32 s99, 0")
    a(f"s_cbranch_scc1 {lpub}")
    compute_addrs(a, g, VT)
    so = f"s[{S_O}:{S_O+3}]"
    lv = a.newlabel("bq_v")
    a(f"s_cmp_ge_u32 s{S_CB}, 10")
    a(f"s_cbranch_scc1 {lv}")
    compute_loop(a, g, ['FT']*4, False)
    if dbg: a('s_memtime s[76:77]')
    VL16, VL8 = VT, VT+1
    a(f"v_lshlrev_b32 {v(VL16)}, 4, v0")
    a(f"v_lshlrev_b32 {v(VL8)}, 3, v0")
    a(f"s_lshl_b32 s{S_T}, s{S_RB}, 2")
    a(f"s_add_u32 s{S_T}, s{S_T}, s{S_WAVE}")
    lk = a.newlabel("bq_k")
    a(f"s_cmp_ge_u32 s{S_CB}, 5")
    a(f"s_cbranch_scc1 {lk}")
    for typ in ('Q', 'K'):
        if typ == 'K':
            a.label(lk)
            a(f"s_sub_u32 s{S_CB}, s{S_CB}, 5")
            a(f"s_add_u32 s{S_T}, s{S_T}, 63")
            a(f"s_and_b32 s{S_T}, s{S_T}, 63")
            a(f"s_mul_i32 s{S_T+1}, s{S_T}, {GREC}")
            a(f"s_add_u32 s{S_T+1}, s{S_T+1}, {WS_KVC}")
            a(f"s_lshl_b32 s{S_T+2}, s{S_T}, 9")
            a(f"s_add_u32 s{S_T+2}, s{S_T+2}, {WS_K2S}")
            h1 = GHEAD
        else:
            a(f"s_lshl_b32 s{S_T+1}, s{S_T}, 10")
            a(f"s_add_u32 s{S_T+1}, s{S_T+1}, {WS_Q1}")
            a(f"s_lshl_b32 s{S_T+2}, s{S_T}, 9")
            a(f"s_add_u32 s{S_T+2}, s{S_T+2}, {WS_Q2}")
            h1 = 65536
            a(f"s_mov_b32 s{S_T+4}, {f32hex(QSCALE)}")
        labs = [a.newlabel(f"bq_{typ}{s_}") for s_ in range(5)]
        for s_ in range(1, 5):
            a(f"s_cmp_eq_u32 s{S_CB}, {s_}")
            a(f"s_cbranch_scc1 {labs[s_]}")
        for s_ in range(5):
            a.label(labs[s_])
            a("s_nop 7")
            a("s_nop 3")
            rot = 0
            def pack(Gl, dst):
                R = g.acc + 16*(Gl//4) + 4*(Gl % 4)
                if typ == 'Q':
                    for i in range(4):
                        a(f"v_mul_f32 {v(R+i)}, s{S_T+4}, {v(R+i)}")
                a(f"v_cvt_pk_bf16_f32 {v(dst)}, {v(R)}, {v(R+1)}")
                a(f"v_cvt_pk_bf16_f32 {v(dst+1)}, {v(R+2)}, {v(R+3)}")
            Gl = 0
            while Gl < 16:
                Gi = 16*s_ + Gl
                p, r = divmod(Gi, 5)
                tp = VT + 4 + 4*(rot % 2); rot += 1
                if r in (0, 3) and Gl < 15:
                    pack(Gl, tp); pack(Gl+1, tp+2)
                    head = 2*p + (1 if r == 3 else 0)
                    a(f"s_add_u32 s{S_T+3}, s{S_T+1}, {head*h1}")
                    a(f"buffer_store_dwordx4 {v(tp,4)}, {v(VL16)}, {so}, s{S_T+3} offen{SC}")
                    Gl += 2
                    continue
                pack(Gl, tp)
                if r != 2:
                    head = 2*p + (1 if r >= 3 else 0)
                    off8 = 8*(r if r < 2 else r-3)
                    a(f"s_add_u32 s{S_T+3}, s{S_T+1}, {head*h1}")
                    a(f"buffer_store_dwordx2 {v(tp,2)}, {v(VL16)}, {so}, s{S_T+3} offen offset:{off8}{SC}")
                elif typ == 'Q':
                    a(f"s_add_u32 s{S_T+3}, s{S_T+2}, {p*32768}")
                    a(f"buffer_store_dwordx2 {v(tp,2)}, {v(VL8)}, {so}, s{S_T+3} offen{SC}")
                else:
                    a(f"s_add_u32 s{S_T+3}, s{S_T+2}, {p*32768}")
                    a(f"buffer_store_dwordx2 {v(tp,2)}, {v(VL8)}, {so}, s{S_T+3} offen{SC}")
                Gl += 1
            a(f"s_branch {lpub}")
    a.label(lv)
    compute_loop(a, g, ['TF']*4, False)
    if dbg: a('s_memtime s[76:77]')
    a(f"s_sub_u32 s{S_CB}, s{S_CB}, 10")
    a(f"s_lshl_b32 s{S_T}, s{S_RB}, 2")
    a(f"s_add_u32 s{S_T}, s{S_T}, s{S_WAVE}")
    a(f"s_mul_i32 s{S_T+1}, s{S_T}, {GREC}")
    a(f"s_add_u32 s{S_T+1}, s{S_T+1}, {WS_KVC + 1024}")
    a(f"s_lshl_b32 s{S_T+2}, s{S_CB}, 7")
    ONE = VT + 8
    for i in range(4):
        a(f"v_mov_b32 {v(ONE+i)}, 0x3f803f80")
    VA, VD, VH, VB = VT, VT+1, VT+2, VT+3
    PK = g.xf[0]
    a(f"v_lshrrev_b32 {v(VH)}, 5, v0")
    a(f"v_mul_u32_u24 {v(VH)}, 320, {v(VH)}")
    a(f"s_mov_b32 s{S_T+3}, {GHEAD}")
    a("s_nop 7")
    for ct in range(4):
        a(f"v_and_b32 {v(VD)}, 31, v0")
        a(f"v_add_u32 {v(VD)}, s{S_T+2}, {v(VD)}")
        if ct: a(f"v_add_u32 {v(VD)}, {32*ct}, {v(VD)}")
        a(f"v_mul_u32_u24 {v(VA)}, 52429, {v(VD)}")
        a(f"v_lshrrev_b32 {v(VA)}, 20, {v(VA)}")
        a(f"v_mul_u32_u24 {v(VB)}, 20, {v(VA)}")
        a(f"v_sub_u32 {v(VD)}, {v(VD)}, {v(VB)}")
        a(f"v_mul_lo_u32 {v(VA)}, {v(VA)}, s{S_T+3}")
        a(f"v_lshlrev_b32 {v(VB)}, 4, {v(VD)}")
        a(f"v_add3_u32 {v(VA)}, {v(VA)}, {v(VB)}, {v(VH)}")
        for mf in range(2):
            R = g.acc + 16*ct + 8*mf
            P_ = PK + 4*mf
            for i in range(4):
                a(f"v_cvt_pk_bf16_f32 {v(P_+i)}, {v(R+2*i)}, {v(R+2*i+1)}")
            a(f"buffer_store_dwordx4 {v(P_,4)}, {v(VA)}, {so}, s{S_T+1} offen offset:{640*mf}{SC}")
        continue
        a(f"v_and_b32 {v(VB)}, 27, {v(VD)}")
        a(f"v_cmp_eq_u32 vcc, 8, {v(VB)}")
        a(f"v_mov_b32 {v(VB)}, 0x3f803f80")
        a("s_nop 0")
        for i in range(4):
            a(f"v_cndmask_b32 {v(ONE+i)}, 0, {v(VB)}, vcc")
        a(f"v_add_u32 {v(VA)}, 192, {v(VA)}")
        a(f"v_cmp_le_u32 vcc, 8, {v(VD)}")
        a(f"s_and_saveexec_b64 s[30:31], vcc")
        lsk = a.newlabel("bq_noones")
        a(f"s_cbranch_execz {lsk}")
        for mf in range(2):
            a(f"buffer_store_dwordx4 {v(ONE,4)}, {v(VA)}, {so}, s{S_T+1} offen offset:{1024*mf}{SC}")
        a.label(lsk)
        a("s_mov_b64 exec, -1")
        a("s_nop 1")
    a.label(lpub)
    lw = a.newlabel("b_notagw")
    a(f"s_cmp_lg_u32 s{S_WAVE}, 0")
    a(f"s_cbranch_scc1 {lw}")
    a(f"v_mov_b32 {v(VT)}, 0")
    a(f"v_mov_b32 {v(VT+1)}, s98")
    a(f"ds_write_b32 {v(VT)}, {v(VT+1)}")
    a.label(lw)
    a("s_waitcnt vmcnt(0) lgkmcnt(0)")
    a("s_barrier")
    lnf = a.newlabel("b_noflag")
    a(f"s_cmp_lg_u32 s{S_WAVE}, 0")
    a(f"s_cbranch_scc1 {lnf}")
    a("s_cmp_lg_u32 s99, 0")
    a(f"s_cbranch_scc1 {lnf}")
    a(f"s_lshl_b32 s{S_T}, s62, 7")
    a(f"s_add_u32 s{S_T}, s{S_T}, {WS_FLAGQ}")
    a(f"s_lshl_b32 s{S_T+1}, s{S_RB}, 2")
    a(f"v_mov_b32 {v(VT)}, s{S_T+1}")
    a(f"v_mov_b32 {v(VT+1)}, s98")
    a("s_mov_b64 exec, 1")
    a(f"buffer_store_dword {v(VT+1)}, {v(VT)}, {so}, s{S_T} offen sc1")
    a("s_mov_b64 exec, -1")
    a.label(lnf)
    if dbg: a('s_memtime s[78:79]')
    a(f"s_branch {L_attn}")
```

```python
from asmlib import *
from layout import *
import gemm
from gemm import G, XBYTES, S_X, S_W, S_O, S_WAVE, S_T, S_RB, S_CB, GOPT, compute_addrs, rd_list, mf_list, interleave, mfmas
from roles import srd, srd_fin
import os

NB = 5
NS = 24
OF = G(NC=96, wstride=1280, acc0=80, vbase=1, NB=5, INIT=3)
RBB = 32 * OBLK
S_XO = 21; S_WO = 22; S_TT = 58

def scalars(a, branch):
    srd(a, S_X, KA_WS, 0); srd(a, S_O, KA_OUT, 0); srd(a, S_W, KA_AWO if branch == 0 else KA_BWO, 0)
    a(f"s_load_dwordx2 s[62:63], s[0:1], {KA_WS}")
    a(f"s_and_b32 s{S_T}, s2, 7")
    a(f"s_lshr_b32 s{S_T+1}, s2, 4")
    a(f"s_lshl_b32 s{S_RB}, s{S_T}, 1")
    a(f"s_lshr_b32 s{S_T+2}, s{S_T+1}, 3")
    a(f"s_add_u32 s{S_RB}, s{S_RB}, s{S_T+2}")
    a(f"s_and_b32 s{S_CB}, s{S_T+1}, 7")
    a(f"s_mov_b32 s42, {branch}")
    a(f"s_mul_i32 s{S_T+3}, s{S_RB}, {RBB}")
    a(f"s_add_u32 s{S_T+3}, s{S_T+3}, {WS_OAF if branch == 0 else WS_OBF}")
    a("s_waitcnt lgkmcnt(0)")
    a(f"s_add_u32 s{S_X}, s{S_X}, s{S_T+3}")
    a(f"s_addc_u32 s{S_X+1}, s{S_X+1}, 0")
    srd_fin(a, S_X, RBB); srd_fin(a, S_W, 640*1280); srd_fin(a, S_O, 2048*2560)
    a("s_mov_b32 s64, s62"); a("s_mov_b32 s65, s63")
    a(f"s_mov_b32 s66, {WS_SIZE_SRD}"); a("s_mov_b32 s67, 0x00020000")

def poll(a, branch):
    lw = a.newlabel("op_nopoll")
    a(f"s_cmp_lg_u32 s{S_WAVE}, 0")
    a(f"s_cbranch_scc1 {lw}")
    if branch == 1:
        a(f"s_lshr_b32 s{S_T}, s{S_RB}, 1")
        a(f"s_lshl_b32 s{S_T}, s{S_T}, 7")
        a(f"s_add_u32 s{S_T}, s{S_T}, {WS_FLAGB}")
        mask = "0xffffffff"
    else:
        a(f"s_lshl_b32 s{S_T}, s{S_RB}, 7")
        a(f"s_add_u32 s{S_T}, s{S_T}, {WS_FLAGA}")
        mask = "0xffff"
    a(f"s_mov_b32 exec_lo, {mask}")
    a(f"s_mov_b32 exec_hi, 0")
    a(f"v_lshlrev_b32 v3, 2, v0")
    a(f"s_mov_b32 s{S_T+1}, 0")
    lp = a.newlabel("op_poll"); lpd = a.newlabel("op_poll_done")
    a(f"buffer_load_dword v4, v3, s[64:67], s{S_T} offen sc1")
    a("s_sleep 6")
    a(f"buffer_load_dword v5, v3, s[64:67], s{S_T} offen sc1")
    a("s_sleep 6")
    a.label(lp)
    for (cur, nxt) in ((4, 6), (5, 4), (6, 5)):
        a(f"buffer_load_dword v{nxt}, v3, s[64:67], s{S_T} offen sc1")
        a("s_waitcnt vmcnt(2)")
        a(f"v_cmp_eq_u32 vcc, s98, v{cur}")
        a("s_nop 1")
        a(f"s_cmp_eq_u32 vcc_lo, {mask}")
        a(f"s_cbranch_scc1 {lpd}")
        a("s_sleep 4")
    a(f"s_add_u32 s{S_T+1}, s{S_T+1}, 1")
    a(f"s_cmp_lt_u32 s{S_T+1}, 0x20000")
    a(f"s_cbranch_scc1 {lp}")
    a.label(lpd)
    a("s_waitcnt vmcnt(0)")
    if ACQ:
        a("buffer_inv sc1")
        a("s_waitcnt vmcnt(0)")
    a("s_mov_b64 exec, -1")
    a.label(lw)
    a("s_barrier")
ACQ = False
XPF = False

NS = 16
NBR = 4
XST = 2*OBLK
WST = 8192
WBASE = NBR*XST
VW0, VW1, VL16 = 16, 17, 18
def loader_setup(a):
    t0, t1, t2, t3 = 3, 4, 5, 6
    a(f"v_lshlrev_b32 {v(VL16)}, 4, v0")
    for i, dst in enumerate((VW0, VW1)):
        a(f"s_lshl_b32 s{S_T}, s{S_WAVE}, 7")
        if i: a(f"s_add_u32 s{S_T}, s{S_T}, 64")
        a(f"v_add_u32 {v(t0)}, s{S_T}, v0")
        a(f"v_mul_u32_u24 {v(t1)}, 43691, {v(t0)}")
        a(f"v_lshrrev_b32 {v(t1)}, 19, {v(t1)}")
        a(f"v_mul_u32_u24 {v(t2)}, 12, {v(t1)}")
        a(f"v_sub_u32 {v(t2)}, {v(t0)}, {v(t2)}")
        a(f"v_lshlrev_b32 {v(t2)}, 4, {v(t2)}")
        a(f"v_mul_u32_u24 {v(t3)}, 1280, {v(t1)}")
        a(f"v_add_u32 {v(t3)}, {v(t3)}, {v(t2)}")
        a(f"v_cmp_le_u32 vcc, 40, {v(t1)}")
        a(f"v_mov_b32 {v(t2)}, 0x7ff00000")
        a("s_nop 0")
        a(f"v_cndmask_b32 {v(dst)}, {v(t3)}, {v(t2)}, vcc")
    a(f"s_lshl_b32 s{S_TT}, s{S_CB}, 1")
    a(f"s_mul_i32 s{S_XO}, s{S_TT}, {XST}")
    a(f"s_mul_i32 s{S_T}, s{S_WAVE}, 3072")
    a(f"s_add_u32 s{S_XO}, s{S_XO}, s{S_T}")
    a(f"s_mov_b32 s{S_T+2}, s{S_T}")
    a(f"s_lshl_b32 s{S_T+3}, s{S_WAVE}, 11")
    a(f"s_mov_b32 s60, s{S_TT}")
    a(f"s_mul_i32 s{S_WO}, s{S_TT}, {40*1280}")
    a(f"s_mul_i32 s{S_T}, s{S_CB}, 160")
    a(f"s_and_b32 s{S_T}, s{S_T}, -64")
    a(f"s_add_u32 s{S_WO}, s{S_WO}, s{S_T}")
    a(f"s_mov_b32 s68, {XST - 16*XST}")
    a(f"s_mov_b32 s69, {40*1280 - 16*40*1280}")
    a(f"s_mov_b32 s63, {40*1280}")

def issue_w(a, s_):
    slot = s_ % NBR
    sw = f"s[{S_W}:{S_W+3}]"
    a(f"s_add_u32 m0, s{S_T+3}, {WBASE + slot*WST}")
    a(f"s_add_u32 s60, s60, 1")
    a(f"buffer_load_dwordx4 {v(VW0)}, {sw}, s{S_WO} offen lds")
    a(f"s_add_u32 m0, s{S_T+3}, {WBASE + slot*WST + 1024}")
    a(f"s_cmp_eq_u32 s60, 16")
    a(f"buffer_load_dwordx4 {v(VW1)}, {sw}, s{S_WO} offen lds")
    a(f"s_cselect_b32 s{S_T+4}, s69, s63")
    a(f"s_add_u32 s{S_WO}, s{S_WO}, s{S_T+4}")
    return 2
def issue_x(a, s_):
    slot = s_ % NBR
    sx = f"s[{S_X}:{S_X+3}]"
    a(f"s_add_u32 m0, s{S_T+2}, {slot*XST}")
    a(f"s_add_u32 s{S_TT}, s{S_TT}, 1")
    for i in range(3):
        a(f"buffer_load_dwordx4 {v(VL16)}, {sx}, s{S_XO} offen offset:{1024*i} lds")
    a(f"s_cmp_eq_u32 s{S_TT}, 16")
    a(f"s_cselect_b32 s{S_T+4}, s68, {XST}")
    a(f"s_add_u32 s{S_XO}, s{S_XO}, s{S_T+4}")
    return 3

def loader(a, branch):
    scalars(a, branch)
    loader_setup(a)
    a("s_barrier")
    INIT = NBR - 1
    seq = []
    for i in range(INIT):
        issue_w(a, i); seq += [i]*2
    poll(a, branch)
    for i in range(INIT):
        issue_x(a, i); seq += [i]*3
    issued = INIT
    for s_ in range(NS):
        last = max(i for i, st in enumerate(seq) if st == s_)
        if GOPT['ststamp']:
            a("s_memtime s[90:91]"); a("s_waitcnt lgkmcnt(0)"); a(f"v_writelane_b32 v11, s90, {s_}")
        a(f"s_waitcnt vmcnt({len(seq) - 1 - last})")
        if GOPT['ststamp']:
            a("s_memtime s[90:91]"); a("s_waitcnt lgkmcnt(0)"); a(f"v_writelane_b32 v12, s90, {s_}")
        a("s_barrier")
        if GOPT['ststamp']:
            a("s_memtime s[90:91]"); a("s_waitcnt lgkmcnt(0)"); a(f"v_writelane_b32 v10, s90, {s_}")
        while issued < NS and issued <= s_ + NBR - 1:
            issue_w(a, issued); issue_x(a, issued)
            seq += [issued]*5
            issued += 1
    if GOPT['ststamp']:
        a(f"s_lshl_b32 s92, s2, 11")
        a(f"s_lshl_b32 s93, s{S_WAVE}, 9")
        a("s_add_u32 s92, s92, s93")
        a(f"s_lshl_b32 s93, s42, 20")
        a(f"s_add_u32 s92, s92, s93")
        a(f"s_add_u32 s92, s92, {0x1C00000}")
        a("v_lshlrev_b32 v13, 2, v0")
        a("s_mov_b64 exec, 0x3ffffff")
        a("buffer_store_dword v10, v13, s[64:67], s92 offen")
        a("buffer_store_dword v11, v13, s[64:67], s92 offen offset:128")
        a("buffer_store_dword v12, v13, s[64:67], s92 offen offset:256")
        a("s_mov_b64 exec, -1")
    a("s_endpgm")

ACC = 80
XF = [8, 12]
WF = [[16, 20, 24], [28, 32, 36]]
VXA, VXC, VWA, VWC = 1, 2, 3, 4
def compute(a, dbg=False):
    VT = 64
    t0, t1, t2 = VT, VT+1, VT+2
    a(f"v_and_b32 {v(t0)}, 31, v0")
    a(f"s_lshl_b32 s{S_T}, s{S_WAVE}, 5")
    a(f"v_add_u32 {v(t0)}, s{S_T}, {v(t0)}")
    a(f"v_mul_u32_u24 {v(t0)}, {OREC}, {v(t0)}")
    a(f"v_lshrrev_b32 {v(t1)}, 5, v0")
    a(f"v_lshl_add_u32 {v(VXA)}, {v(t1)}, 4, {v(t0)}")
    a(f"v_mul_u32_u24 {v(t2)}, {OBLK}, {v(t1)}")
    a(f"v_add3_u32 {v(VXC)}, {v(t0)}, {v(t2)}, 32")
    a(f"v_bfe_u32 {v(t0)}, v0, 2, 2")
    a(f"v_bfe_u32 {v(t2)}, v0, 4, 1")
    a(f"v_lshlrev_b32 {v(t2)}, 5, {v(t2)}")
    a(f"v_and_b32 {v(VWC)}, 3, v0")
    a(f"v_lshl_add_u32 {v(t2)}, {v(VWC)}, 3, {v(t2)}")
    a(f"v_add_u32 {v(t2)}, {WBASE}, {v(t2)}")
    a(f"s_and_b32 s{S_T}, s{S_CB}, 1")
    a(f"s_lshl_b32 s{S_T}, s{S_T}, 5")
    a(f"v_add_u32 {v(t2)}, s{S_T}, {v(t2)}")
    a(f"v_lshl_add_u32 {v(VWA)}, {v(t1)}, 3, {v(t0)}")
    a(f"v_mul_u32_u24 {v(VWA)}, 192, {v(VWA)}")
    a(f"v_add_u32 {v(VWA)}, {v(VWA)}, {v(t2)}")
    a(f"v_mul_u32_u24 {v(VWC)}, 20, {v(t1)}")
    a(f"v_add3_u32 {v(VWC)}, {v(VWC)}, {v(t0)}, 16")
    a(f"v_mul_u32_u24 {v(VWC)}, 192, {v(VWC)}")
    a(f"v_add_u32 {v(VWC)}, {v(VWC)}, {v(t2)}")
    for r in range(ACC, ACC+48):
        a(f"v_mov_b32 {v(r)}, 0")
    a("s_barrier")
    off_stamp(a, 7, back=0, cond_wave=S_WAVE, va=70)
    if dbg: a("s_memtime s[76:77]")
    if XPF:
        lsk = a.newlabel("xpf_skip")
        a(f"s_cmp_eq_u32 s{S_WAVE}, 3")
        a(f"s_cbranch_scc1 {lsk}")
        a(f"s_mul_i32 s{S_T}, s{S_CB}, 192")
        a(f"s_lshl_b32 s{S_T+1}, s{S_WAVE}, 6")
        a(f"s_add_u32 s{S_T}, s{S_T}, s{S_T+1}")
        a(f"v_add_u32 {v(VT)}, s{S_T}, v0")
        a(f"v_lshlrev_b32 {v(VT)}, 7, {v(VT)}")
        a(f"buffer_load_dword {v(VT+1)}, {v(VT)}, s[{S_X}:{S_X+3}], 0 offen")
        a.label(lsk)
    def reads(stage, kind, b):
        slot = stage % NBR
        xo = slot*XST; wo = slot*WST
        L = []
        if kind == 'C':
            L.append((f"ds_read_b64 {v(XF[b],2)}, {v(VXC)} offset:{xo}", 'x'))
            for i in range(3):
                L.append((f"ds_read_b64_tr_b16 {v(WF[b][i],2)}, {v(VWC)} offset:{wo + i*64}", i))
        else:
            hb = 0 if kind == 'A' else 1
            L.append((f"ds_read_b128 {v(XF[b],4)}, {v(VXA)} offset:{xo + hb*OBLK}", 'x'))
            for i in range(3):
                off = wo + i*64 + hb*20*192
                L.append((f"ds_read_b64_tr_b16 {v(WF[b][i],2)}, {v(VWA)} offset:{off}", i))
                L.append((f"ds_read_b64_tr_b16 {v(WF[b][i]+2,2)}, {v(VWA)} offset:{off + 4*192}", i))
        return L
    def mf(kind, b, i):
        d = ACC + 16*i
        if kind == 'C':
            return f"v_mfma_f32_32x32x8_bf16 {v(d,16)}, {v(WF[b][i],2)}, {v(XF[b],2)}, {v(d,16)}"
        return f"v_mfma_f32_32x32x16_bf16 {v(d,16)}, {v(WF[b][i],4)}, {v(XF[b],4)}, {v(d,16)}"
    steps = [(st, k) for st in range(NBR) for k in 'ABC']
    queue = []
    def wait_for(step, tag):
        need = [n for n, (s_, t_) in enumerate(queue) if s_ == step and (t_ == tag or t_ == 'x')]
        if not need: return
        last = max(need)
        a(f"s_waitcnt lgkmcnt({min(15, len(queue) - 1 - last)})")
        del queue[:last+1]
    a("s_barrier")
    for (txt, tag) in reads(0, 'A', 0):
        a(txt); queue.append((0, tag))
    a(f"s_mov_b32 s{S_T+10}, 0")
    loop = a.newlabel("oc_loop")
    if os.environ.get('ALIGN', '1') == '1': a.raw('.p2align 6')
    a.label(loop)
    for n, (st, k) in enumerate(steps):
        b = n & 1
        last_step = (n + 1 == len(steps))
        nxt = steps[0] if last_step else steps[n+1]
        nidx = 0 if last_step else n + 1
        if nxt[1] == 'A':
            a("s_waitcnt lgkmcnt(0)"); queue.clear()
            if last_step:
                sk = a.newlabel("oc_nobar")
                a(f"s_cmp_eq_u32 s{S_T+10}, {NS//NBR - 1}")
                a(f"s_cbranch_scc1 {sk}")
                a("s_barrier")
                a.label(sk)
            else:
                a("s_barrier")
        R = reads(nxt[0], nxt[1], b ^ 1)
        per = [3, 2, 2] if len(R) == 7 else [2, 1, 1]
        kk = 0
        for i in range(3):
            wait_for(n, i)
            a(mf(k, b, i))
            for j in range(per[i]):
                a(R[kk][0]); queue.append((nidx + (100 if last_step else 0), R[kk][1])); kk += 1
    assert [q[1] for q in queue] == ['x', 0, 0, 1, 1, 2, 2]
    a(f"s_add_u32 s{S_T+10}, s{S_T+10}, 1")
    a(f"s_cmp_lt_u32 s{S_T+10}, {NS//NBR}")
    a(f"s_cbranch_scc1 {loop}")
    a("s_waitcnt lgkmcnt(0)")
    a("s_waitcnt vmcnt(0)")
    if dbg: a("s_memtime s[78:79]")
    so = f"s[{S_O}:{S_O+3}]"
    VA = VT
    a(f"v_and_b32 {v(VA)}, 31, v0")
    a(f"s_lshl_b32 s{S_T}, s{S_RB}, 7")
    a(f"s_lshl_b32 s{S_T+1}, s{S_WAVE}, 5")
    a(f"s_add_u32 s{S_T}, s{S_T}, s{S_T+1}")
    a(f"v_add_u32 {v(VA)}, s{S_T}, {v(VA)}")
    a(f"v_mul_u32_u24 {v(VA)}, 2560, {v(VA)}")
    a(f"v_lshrrev_b32 {v(VA+1)}, 5, v0")
    a(f"v_lshlrev_b32 {v(VA+1)}, 4, {v(VA+1)}")
    a(f"v_add_u32 {v(VA)}, {v(VA)}, {v(VA+1)}")
    a(f"s_mul_i32 s{S_T+2}, s42, 1280")
    a(f"s_mul_i32 s{S_T+3}, s{S_CB}, 160")
    a(f"s_add_u32 s{S_T+2}, s{S_T+2}, s{S_T+3}")
    a("s_nop 7")
    a("s_nop 3")
    for pr in range(5):
        G0 = 2*pr
        R0 = ACC + 16*(G0//4) + 4*(G0 % 4)
        R1 = R0 + 4
        P_ = VT + 4 + 4*(pr % 2)
        a(f"v_cvt_pk_bf16_f32 {v(P_)}, {v(R0)}, {v(R0+1)}")
        a(f"v_cvt_pk_bf16_f32 {v(P_+1)}, {v(R0+2)}, {v(R0+3)}")
        a(f"v_cvt_pk_bf16_f32 {v(P_+2)}, {v(R1)}, {v(R1+1)}")
        a(f"v_cvt_pk_bf16_f32 {v(P_+3)}, {v(R1+2)}, {v(R1+3)}")
        a("s_nop 1")
        a(f"v_permlane32_swap_b32 {v(P_)}, {v(P_+2)}")
        a(f"v_permlane32_swap_b32 {v(P_+1)}, {v(P_+3)}")
        a("s_nop 1")
        a(f"buffer_store_dwordx4 {v(P_,4)}, {v(VA)}, {so}, s{S_T+2} offen offset:{32*pr}" + os.environ.get('OUTF', ''))
    if OFFDBG[0]:
        a("s_waitcnt vmcnt(0)")
        off_stamp(a, 8, back=0, cond_wave=S_WAVE, va=78)

def publish_block(a, PK, vt, lds_base_sgpr, ntok, srd_txt, soff_sgpr):
    pass
```

```python
from asmlib import *
from layout import *
import roles, gemm, outp
FUSE = True
WOPF = True
import os
CODEPF = int(os.environ.get('CODEPF', '0'))

CH = 8
CH_BYTES = CH * TILE_REC
NCH = 64 // CH
OPT = dict(nodma=False, nobar=False, nolds=False, prio=True, vmask=False, forcefb=False, cl4=False, uni=True)

V_A16 = 1
V_A8  = 2
V_G16 = 3
SA, SB = 4, 20
OA, OB = 36, 52
PA, PB = 68, 76
Q1A, Q1B = 84, 88
Q2A, Q2B = 92, 94
K1 = [96, 100]
VV0 = [104, 112]
VV1 = [108, 116]
K2 = [120, 122]
ATTN_NVGPR = 124
V_T0 = SA

S_WS = 8
S_HEAD = 12
S_QB = 13
S_WAVE = 14
S_DMAOFF = 15
S_LDSW = 16
S_BUFD = 17
S_CNT = 18
S_DMABUF = 19
S_T = 20

def mfma32(a, d, A, B, C, k16=True):
    op = "v_mfma_f32_32x32x16_bf16" if k16 else "v_mfma_f32_32x32x8_bf16"
    n = 4 if k16 else 2
    c = "0" if C is None else v(C, 16)
    a(f"{op} {v(d,16)}, {v(A,n)}, {v(B,n)}, {c}")

PENDING = []
def cvts(a, Sr, P, q):
    a(f"v_cvt_pk_bf16_f32 {v(P+2*q)}, {v(Sr+4*q)}, {v(Sr+4*q+1)}")
    a(f"v_cvt_pk_bf16_f32 {v(P+2*q+1)}, {v(Sr+4*q+2)}, {v(Sr+4*q+3)}")
def flush_cvts(a):
    while PENDING:
        cvts(a, *PENDING.pop(0))
def exps(a, Sr, P, q):
    for i in range(4):
        a(f"v_exp_f32 {v(Sr+4*q+i)}, {v(Sr+4*q+i)}")
    flush_cvts(a)
    PENDING.append((Sr, P, q))

V_GV = 10
S_K2O = 48
def dma_chunk(a):
    srd = f"s[{S_WS}:{S_WS+3}]"
    for rr in range(2):
        if rr == 0:
            a(f"s_add_u32 m0, s{S_DMABUF}, s{S_LDSW}")
        else:
            a(f"s_add_u32 m0, m0, {TILE_REC}")
        a(f"s_sub_u32 s{S_T+1}, s{S_DMAOFF}, 384")
        a(f"buffer_load_dwordx4 {v(V_G16)}, {srd}, s{S_DMAOFF} offen lds")
        a("s_mov_b64 exec, s[50:51]")
        a(f"buffer_load_dwordx4 {v(V_GV)}, {srd}, s{S_DMAOFF} offen offset:1024 lds")
        a(f"buffer_load_dwordx4 {v(V_GV)}, {srd}, s{S_T+1} offen offset:2048 lds")
        a("s_mov_b32 exec_lo, -1")
        a("s_mov_b32 exec_hi, 0")
        a(f"buffer_load_dwordx4 {v(V_G16)}, {srd}, s{S_K2O} offen offset:3072 lds")
        a("s_mov_b64 exec, -1")
        a(f"s_add_u32 s{S_DMAOFF}, s{S_DMAOFF}, {GREC if rr == 0 else 7*GREC}")
        a(f"s_add_u32 s{S_K2O}, s{S_K2O}, {512 if rr == 0 else 7*512}")

def safety_check_and_fallback(a):
    srd = f"s[{S_WS}:{S_WS+3}]"
    T = SA
    lok = a.newlabel("att_ok")
    a("s_nop 7")
    a("s_nop 3")
    a(f"v_lshrrev_b32 {v(T)}, 5, v0")
    a(f"v_cmp_eq_u32 vcc, 0, {v(T)}")
    a(f"s_mov_b64 s[26:27], 0")
    a(f"s_mov_b32 s28, 0x1f800000")
    a(f"s_mov_b32 s29, 0x5f800000")
    for O in (OA, OB):
        a(f"v_cndmask_b32 {v(T+1)}, {v(O+8)}, {v(O+12)}, vcc")
        a(f"v_pk_mul_f32 {v(T+2,2)}, {v(O,2)}, 0 op_sel_hi:[1,0]")
        for i in (2, 4, 6):
            a(f"v_pk_fma_f32 {v(T+2,2)}, {v(O+i,2)}, 0, {v(T+2,2)} op_sel_hi:[1,0,1]")
        a(f"v_pk_mul_f32 {v(T+4,2)}, {v(O+8,2)}, 0 op_sel_hi:[1,0]")
        a(f"v_pk_fma_f32 {v(T+4,2)}, {v(O+10,2)}, 0, {v(T+4,2)} op_sel_hi:[1,0,1]")
        a(f"v_cmp_nle_f32 s[22:23], s28, {v(T+1)}")
        a(f"v_cmp_nge_f32 s[24:25], s29, {v(T+1)}")
        a(f"v_cmp_u_f32 s[30:31], {v(T+2)}, {v(T+3)}")
        a(f"v_cmp_u_f32 s[36:37], {v(T+4)}, {v(T+5)}")
        a("s_nop 1")
        a("s_or_b64 s[26:27], s[26:27], s[22:23]")
        a("s_or_b64 s[26:27], s[26:27], s[24:25]")
        a("s_or_b64 s[26:27], s[26:27], s[30:31]")
        a("s_and_b64 s[36:37], s[36:37], vcc")
        a("s_or_b64 s[26:27], s[26:27], s[36:37]")
    if OPT['forcefb']:
        a("s_mov_b64 s[26:27], -1")
    lslow = a.newlabel("att_slow")
    if os.environ.get('INLINE_SLOW') == '1':
        a("s_cmp_eq_u64 s[26:27], 0")
        a(f"s_cbranch_scc1 {lok}")
        slow_path_body(a, lok)
        a.label(lok)
        return
    a("s_cmp_lg_u64 s[26:27], 0")
    a(f"s_cbranch_scc1 {lslow}")
    a.label(lok)
    SLOW.append((lslow, lok))

SLOW = []
def emit_slow_paths(a):
    for (lslow, lok) in SLOW:
        a.label(lslow)
        slow_path_body(a, lok)
    SLOW.clear()

def slow_path_body(a, lok):
    srd = f"s[{S_WS}:{S_WS+3}]"
    T = SA
    G16 = V_G16; G8 = T+1; MA, MB, TM = T+2, T+3, 120
    X = [SA + 0]
    SX, SY = 20, 100
    KA1, KA2, VA0, VA1 = 116, 122, 68, 72
    PX, PY = 76, 8
    MA, MB, TM = 4, 6, 7
    G8 = 5
    a(f"v_lshlrev_b32 {v(G8)}, 3, v0")
    a(f"s_mul_i32 s22, s{S_HEAD}, {GHEAD}")
    a(f"s_add_u32 s22, s22, {WS_KVC}")
    a(f"s_lshr_b32 s21, s{S_HEAD}, 1")
    a(f"s_lshl_b32 s21, s21, 15")
    a(f"s_add_u32 s21, s21, {WS_K2S}")
    a(f"v_lshrrev_b32 {v(121)}, 5, v0")
    a(f"v_mul_u32_u24 {v(121)}, 320, {v(121)}")
    a(f"v_and_b32 {v(120)}, 31, v0")
    a(f"v_lshl_add_u32 {v(120)}, {v(120)}, 4, {v(121)}")
    a(f"s_and_b32 s23, s{S_HEAD}, 1")
    a(f"s_cmp_eq_u32 s23, 0")
    a(f"s_cselect_b32 s36, -1, 0")
    a(f"s_cselect_b32 s37, 0, -1")
    a(f"v_mov_b32 {v(KA2)}, 0"); a(f"v_mov_b32 {v(KA2+1)}, 0")
    a(f"v_mov_b32 {v(MA)}, 0xff800000"); a(f"v_mov_b32 {v(MB)}, 0xff800000")
    def load_k():
        a(f"s_add_u32 s24, s{S_CNT}, 63")
        a(f"s_and_b32 s24, s24, 63")
        a(f"s_lshl_b32 s25, s24, 9")
        a(f"s_add_u32 s25, s25, s21")
        a(f"s_mul_i32 s24, s24, {GREC}")
        a(f"s_add_u32 s24, s24, s22")
        a(f"buffer_load_dwordx4 {v(KA1,4)}, {v(G16)}, {srd}, s24 offen")
        a(f"s_mov_b64 exec, s[36:37]")
        a(f"buffer_load_dwordx2 {v(KA2,2)}, {v(G8)}, {srd}, s25 offen")
        a(f"s_mov_b64 exec, -1")
    def qk():
        mfma32(a, SX, KA1, Q1A, None); mfma32(a, SX, KA2, Q2A, SX, k16=False)
        mfma32(a, SY, KA1, Q1B, None); mfma32(a, SY, KA2, Q2B, SY, k16=False)
        a("s_nop 7"); a("s_nop 7")
    a(f"s_mov_b32 s{S_CNT}, 0")
    l1 = a.newlabel("fb_max")
    a.label(l1)
    load_k()
    a("s_waitcnt vmcnt(0)")
    qk()
    for (Sx, M) in ((SX, MA), (SY, MB)):
        for i in range(0, 16, 2):
            a(f"v_max3_f32 {v(M)}, {v(M)}, {v(Sx+i)}, {v(Sx+i+1)}")
    a(f"s_add_u32 s{S_CNT}, s{S_CNT}, 1")
    a(f"s_cmp_lt_u32 s{S_CNT}, 64")
    a(f"s_cbranch_scc1 {l1}")
    for M in (MA, MB):
        a(f"v_mov_b32 {v(TM)}, {v(M)}")
        a("s_nop 1")
        a(f"v_permlane32_swap_b32 {v(M)}, {v(TM)}")
        a("s_nop 1")
        a(f"v_max_f32 {v(M)}, {v(M)}, {v(TM)}")
    for r in list(range(OA, OA+32)):
        a(f"v_mov_b32 {v(r)}, 0")
    a(f"v_and_b32 {v(TM)}, 31, v0")
    a(f"v_cmp_eq_u32 s[24:25], 20, {v(TM)}")
    a(f"v_cmp_eq_u32 vcc, 24, {v(TM)}")
    a(f"v_mov_b32 {v(TM)}, 0x3f803f80")
    a("s_nop 1")
    a("s_or_b64 vcc, vcc, s[24:25]")
    a("s_nop 1")
    for r in range(VA0, VA0+8):
        a(f"v_cndmask_b32 {v(r)}, 0, {v(TM)}, vcc")
    a("s_mov_b32 s38, 0x000fffff")
    a("s_mov_b32 s39, 0x000fffff")
    a(f"s_mov_b32 s{S_CNT}, 0")
    l2 = a.newlabel("fb_main")
    a.label(l2)
    load_k()
    a(f"s_mul_i32 s24, s{S_CNT}, {GREC}")
    a(f"s_add_u32 s24, s24, s22")
    a(f"s_mov_b64 exec, s[38:39]")
    a(f"buffer_load_dwordx4 {v(VA0,4)}, {v(120)}, {srd}, s24 offen offset:1024")
    a(f"buffer_load_dwordx4 {v(VA1,4)}, {v(120)}, {srd}, s24 offen offset:1664")
    a(f"s_mov_b64 exec, -1")
    a("s_waitcnt vmcnt(0)")
    qk()
    for (Sx, M, P, O) in ((SX, MA, PX, OA), (SY, MB, PY, OB)):
        for i in range(16):
            a(f"v_sub_f32 {v(Sx+i)}, {v(Sx+i)}, {v(M)}")
        for i in range(16):
            a(f"v_exp_f32 {v(Sx+i)}, {v(Sx+i)}")
        a("s_nop 0")
        for k in range(8):
            a(f"v_cvt_pk_bf16_f32 {v(P+k)}, {v(Sx+2*k)}, {v(Sx+2*k+1)}")
        a("s_nop 1")
        mfma32(a, O, VA0, P, O)
        mfma32(a, O, VA1, P+4, O)
    a(f"s_add_u32 s{S_CNT}, s{S_CNT}, 1")
    a(f"s_cmp_lt_u32 s{S_CNT}, 64")
    a(f"s_cbranch_scc1 {l2}")
    a("s_nop 7")
    a("s_nop 7")
    a(f"s_branch {lok}")


def gen_attn(a, dbg_time=False):
    srd = f"s[{S_WS}:{S_WS+3}]"
    if dbg_time and not MEGA[0]: stamp(a, 0)
    a(f"s_load_dwordx2 s[{S_WS}:{S_WS+1}], s[0:1], {KA_WS}")
    if FUSE and WOPF:
        a(f"s_load_dwordx2 s[40:41], s[0:1], {KA_AWO}")
        a(f"s_load_dwordx2 s[42:43], s[0:1], {KA_BWO}")
    a(f"s_and_b32 s{S_T}, s2, 7")
    a(f"s_lshr_b32 s{S_T+1}, s2, 3")
    a(f"s_and_b32 s{S_T+2}, s{S_T+1}, 3")
    a(f"s_lshl_b32 s{S_HEAD}, s{S_T}, 2")
    a(f"s_add_u32 s{S_HEAD}, s{S_HEAD}, s{S_T+2}")
    a(f"s_lshr_b32 s{S_QB}, s{S_T+1}, 2")
    if MEGA[0]:
        a(f"s_mov_b32 s{S_WAVE}, s61")
    else:
        a(f"v_lshrrev_b32 {v(SA)}, 6, v0")
        a(f"v_and_b32 v0, 63, v0")
        a(f"v_readfirstlane_b32 s{S_WAVE}, {v(SA)}")
        a("s_mov_b32 s98, 1")
    a(f"v_lshlrev_b32 {v(V_G16)}, 4, v0")
    a(f"s_mul_i32 s{S_T+6}, s{S_HEAD}, {GHEAD}")
    a(f"s_add_u32 s{S_T+6}, s{S_T+6}, {WS_KVC}")
    a(f"s_lshr_b32 s{S_T+7}, s{S_HEAD}, 1")
    a(f"s_lshl_b32 s{S_T+7}, s{S_T+7}, 15")
    a(f"s_add_u32 s{S_T+7}, s{S_T+7}, {WS_K2S}")
    a("s_waitcnt lgkmcnt(0)")
    a(f"s_mov_b32 s{S_WS+2}, {WS_SIZE_SRD}")
    a(f"s_mov_b32 s{S_WS+3}, 0x00020000")
    a(f"s_mov_b32 s61, s{S_WAVE}")
    off_stamp(a, 2, neg=True, back=0, cond_wave=S_WAVE)
    off_stamp(a, 3, back=0, cond_wave=S_WAVE)
    lcomp = a.newlabel("attn_compute")
    a(f"s_cmp_lt_u32 s{S_WAVE}, 4")
    a(f"s_cbranch_scc1 {lcomp}")
    if MEGA[0]:
        lnp = a.newlabel("q2_nopoll")
        a(f"s_cmp_lg_u32 s{S_WAVE}, 4")
        a(f"s_cbranch_scc1 {lnp}")
        a("v_mov_b32 v4, 0")
        a("ds_read_b32 v5, v4")
        a("s_waitcnt lgkmcnt(0)")
        a("v_readfirstlane_b32 s98, v5")
        a(f"s_lshr_b32 s{S_T}, s{S_HEAD}, 1")
        a(f"s_mul_i32 s{S_T}, s{S_T}, 40")
        a(f"s_add_u32 s{S_T+1}, s{S_T}, 39")
        a(f"s_lshr_b32 s{S_T}, s{S_T}, 7")
        a(f"s_lshr_b32 s{S_T+1}, s{S_T+1}, 7")
        a(f"v_lshrrev_b32 v4, 4, v0")
        a(f"v_and_b32 v5, 1, v4")
        a(f"s_sub_u32 s{S_T+2}, s{S_T+1}, s{S_T}")
        a(f"v_mul_u32_u24 v5, s{S_T+2}, v5")
        a(f"v_lshrrev_b32 v4, 1, v4")
        a(f"v_mul_u32_u24 v4, 5, v4")
        a(f"v_add3_u32 v4, v4, v5, s{S_T}")
        a(f"v_add_u32 v4, 5, v4")
        a(f"v_lshlrev_b32 v4, 7, v4")
        a(f"v_and_b32 v5, 15, v0")
        a(f"v_lshl_add_u32 v4, v5, 2, v4")
        a(f"v_and_b32 v6, 1, v0")
        a(f"v_mul_u32_u24 v6, s{S_T+2}, v6")
        a(f"v_add_u32 v6, s{S_T}, v6")
        a(f"v_lshlrev_b32 v6, 7, v6")
        a(f"v_bfe_u32 v7, v0, 1, 1")
        a(f"s_lshl_b32 s{S_T+3}, s{S_QB}, 1")
        a(f"v_add_u32 v7, s{S_T+3}, v7")
        a(f"v_lshl_add_u32 v6, v7, 2, v6")
        a(f"s_mov_b32 s{S_T+3}, {WS_FLAGQ}")
        a(f"s_mov_b32 s{S_T+4}, 0")
        lp = a.newlabel("q2_poll"); lpd = a.newlabel("q2_done")
        a.label(lp)
        a(f"buffer_load_dword v8, v4, {srd}, s{S_T+3} offen sc1")
        a(f"buffer_load_dword v9, v6, {srd}, s{S_T+3} offen sc1")
        a("s_waitcnt vmcnt(0)")
        a(f"v_cmp_eq_u32 vcc, s98, v8")
        a(f"v_cmp_eq_u32 s[28:29], s98, v9")
        a(f"s_add_u32 s{S_T+4}, s{S_T+4}, 1")
        a("s_nop 1")
        a("s_and_b64 vcc, vcc, s[28:29]")
        a("s_cmp_eq_u64 vcc, -1")
        a(f"s_cbranch_scc1 {lpd}")
        a("s_sleep 2")
        a(f"s_cmp_lt_u32 s{S_T+4}, 0x40000")
        a(f"s_cbranch_scc1 {lp}")
        a.label(lpd)
        a.label(lnp)
        a("s_barrier")
    a(f"s_sub_u32 s{S_T}, s{S_WAVE}, 4")
    a(f"s_mul_i32 s{S_LDSW}, s{S_T}, {2*TILE_REC}")
    a(f"s_mul_i32 s{S_T+1}, s{S_T}, {2*GREC}")
    a(f"s_add_u32 s{S_DMAOFF}, s{S_T+6}, s{S_T+1}")
    a(f"s_lshl_b32 s{S_T+1}, s{S_T}, 10")
    a(f"s_add_u32 s{S_K2O}, s{S_T+7}, s{S_T+1}")
    a(f"s_sub_u32 s{S_K2O}, s{S_K2O}, 3072")
    a("s_mov_b32 s50, 0x000fffff")
    a("s_mov_b32 s51, 0x000fffff")
    a(f"v_lshrrev_b32 v11, 5, v0")
    a(f"v_mul_u32_u24 v11, 320, v11")
    a(f"v_and_b32 {v(V_GV)}, 31, v0")
    a(f"v_lshl_add_u32 {v(V_GV)}, {v(V_GV)}, 4, v11")
    a(f"s_mov_b32 s{S_DMABUF}, 0")
    dma_chunk(a)
    if CODEPF:
        lcp = a.newlabel("codepf_skip"); lpc = a.newlabel("codepf_pc")
        a(f"s_lshr_b32 s{S_T}, s2, 3")
        a(f"s_cmp_ge_u32 s{S_T}, {CODEPF}")
        a(f"s_cbranch_scc1 {lcp}")
        a(f"s_cmp_lg_u32 s{S_WAVE}, 7")
        a(f"s_cbranch_scc1 {lcp}")
        a("s_getpc_b64 s[36:37]")
        a.label(lpc)
        a(f"s_lshl_b32 s{S_T}, s{S_T}, 13")
        a(f"v_lshlrev_b32 v6, 7, v0")
        a(f"v_add_u32 v6, s{S_T}, v6")
        a(f"v_mov_b32 v7, s37")
        a(f"v_subrev_u32 v8, ({lpc} - attn_kernel), v6") if False else None
        a(f"s_sub_u32 s36, s36, ({lpc} - attn_kernel)")
        a(f"s_subb_u32 s37, s37, 0")
        a(f"v_mov_b32 v7, s37")
        a(f"v_add_co_u32 v6, vcc, s36, v6")
        a("s_nop 1")
        a(f"v_addc_co_u32 v7, vcc, 0, v7, vcc")
        a(f"v_lshlrev_b32 v9, 7, v0")
        a(f"v_add_u32 v9, s{S_T}, v9")
        a(f"v_cmp_gt_u32 vcc, (L_k2_code_end - attn_kernel), v9")
        a("s_and_saveexec_b64 s[38:39], vcc")
        a(f"s_cbranch_execz {lcp}_r")
        a(f"global_load_dword v8, v[6:7], off")
        a.label(f"{lcp}_r")
        a("s_mov_b64 exec, -1")
        a.label(lcp)
    if FUSE and WOPF:
        a(f"s_lshr_b32 s{S_T}, s2, 3")
        a(f"s_mul_i32 s{S_T}, s{S_T}, 200")
        a(f"s_sub_u32 s{S_T+1}, s{S_WAVE}, 4")
        a(f"s_lshl_b32 s{S_T+1}, s{S_T+1}, 6")
        a(f"s_add_u32 s{S_T}, s{S_T}, s{S_T+1}")
        a(f"v_add_u32 v4, s{S_T}, v0")
        a(f"v_lshlrev_b32 v4, 7, v4")
        a(f"s_mov_b32 s46, {640*1280}")
        a(f"s_mov_b32 s47, 0x00020000")
    a(f"s_mov_b32 s{S_DMABUF}, {CH_BYTES}")
    a(f"s_mov_b32 s{S_CNT}, 0")
    a("s_waitcnt vmcnt(0)")
    a("s_barrier")
    lloop = a.newlabel("ld_loop"); lskip = a.newlabel("ld_skip")
    a.label(lloop)
    a(f"s_cmp_ge_u32 s{S_CNT}, {NCH-1}")
    a(f"s_cbranch_scc1 {lskip}")
    if not OPT['nodma']:
        dma_chunk(a)
    if FUSE and WOPF:
        lsk = a.newlabel("wopf_skip")
        a(f"s_sub_u32 s{S_T+1}, s{S_CNT}, 1")
        a(f"s_cmp_gt_u32 s{S_T+1}, 1")
        a(f"s_cbranch_scc1 {lsk}")
        a(f"s_cmp_eq_u32 s{S_CNT}, 1")
        a(f"s_cselect_b32 s44, s40, s42")
        a(f"s_cselect_b32 s45, s41, s43")
        a(f"buffer_load_dword v5, v4, s[44:47], 0 offen")
        a.label(lsk)
    a(f"s_sub_u32 s{S_DMABUF}, {CH_BYTES}, s{S_DMABUF}")
    a("s_waitcnt vmcnt(0)")
    a.label(lskip)
    if not OPT['nobar']:
        a("s_barrier")
    if gemm.GOPT['ststamp']:
        a("s_memtime s[90:91]"); a("s_waitcnt lgkmcnt(0)")
        a(f"s_mov_b32 m0, s{S_CNT}")
        a("s_sub_u32 s90, s90, s70")
        a("v_writelane_b32 v14, s90, m0")
    a(f"s_add_u32 s{S_CNT}, s{S_CNT}, 1")
    a(f"s_cmp_lt_u32 s{S_CNT}, {NCH}")
    a(f"s_cbranch_scc1 {lloop}")
    if gemm.GOPT['ststamp']:
        a(f"s_lshl_b32 s92, s2, 7")
        a(f"s_add_u32 s92, s92, {0x1E00000}")
        a("v_lshlrev_b32 v13, 2, v0")
        a(f"s_cmp_lg_u32 s{S_WAVE}, 4")
        lss = a.newlabel("ss_skip")
        a(f"s_cbranch_scc1 {lss}")
        a("s_mov_b64 exec, 0xff")
        a(f"buffer_store_dword v14, v13, {srd}, s92 offen")
        a("s_mov_b64 exec, -1")
        a.label(lss)
    if FUSE:
        lx = a.newlabel("ld_exit")
        a("s_bitcmp1_b32 s2, 3")
        a(f"s_cbranch_scc1 {lx}")
        a(f"s_and_b32 s{gemm.S_WAVE}, s{S_WAVE}, 3")
        outp.loader(a, 1)
        a.label(lx)
    a("s_endpgm")
    a.label(lcomp)
    if MEGA[0]: a("s_barrier")
    if OPT['prio']: a("s_setprio 2")
    a(f"v_mov_b32 {v(V_A16)}, {v(V_G16)}")
    a(f"v_lshlrev_b32 {v(V_A8)}, 3, v0")
    a(f"s_lshl_b32 s{S_T}, s{S_QB}, 3")
    a(f"s_lshl_b32 s{S_T+1}, s{S_WAVE}, 1")
    a(f"s_add_u32 s{S_T}, s{S_T}, s{S_T+1}")
    a(f"s_lshl_b32 s{S_T+1}, s{S_HEAD}, 6")
    a(f"s_add_u32 s{S_T+1}, s{S_T+1}, s{S_T}")
    a(f"s_lshl_b32 s{S_T+1}, s{S_T+1}, 10")
    a(f"s_add_u32 s{S_T+1}, s{S_T+1}, {WS_Q1}")
    a(f"buffer_load_dwordx4 {v(Q1A,4)}, {v(V_G16)}, {srd}, s{S_T+1} offen")
    a(f"buffer_load_dwordx4 {v(Q1B,4)}, {v(V_G16)}, {srd}, s{S_T+1} offen offset:1024")
    a(f"s_lshr_b32 s{S_T+2}, s{S_HEAD}, 1")
    a(f"s_lshl_b32 s{S_T+2}, s{S_T+2}, 6")
    a(f"s_add_u32 s{S_T+2}, s{S_T+2}, s{S_T}")
    a(f"s_lshl_b32 s{S_T+2}, s{S_T+2}, 9")
    a(f"s_add_u32 s{S_T+2}, s{S_T+2}, {WS_Q2}")
    a(f"buffer_load_dwordx2 {v(Q2A,2)}, {v(V_A8)}, {srd}, s{S_T+2} offen")
    a(f"buffer_load_dwordx2 {v(Q2B,2)}, {v(V_A8)}, {srd}, s{S_T+2} offen offset:512")
    a(f"s_add_u32 s{S_T+3}, s{S_T+6}, {63*GREC}")
    a(f"buffer_load_dwordx4 {v(K1[1],4)}, {v(V_G16)}, {srd}, s{S_T+3} offen")
    a(f"s_add_u32 s{S_T+3}, s{S_T+7}, {63*512}")
    a(f"buffer_load_dwordx2 {v(K2[1],2)}, {v(V_A8)}, {srd}, s{S_T+3} offen")
    a(f"v_and_b32 {v(SA)}, 27, v0")
    a(f"v_cmp_eq_u32 vcc, 20, {v(SA)}") if False else None
    a(f"v_and_b32 {v(SA)}, 31, v0")
    a(f"v_and_b32 {v(SA+1)}, 27, {v(SA)}")
    a(f"v_cmp_eq_u32 s[22:23], 20, {v(SA)}")
    a(f"v_cmp_eq_u32 s[24:25], 24, {v(SA)}")
    a(f"v_mov_b32 {v(SA+2)}, 0x3f803f80")
    a("s_nop 0")
    a("s_or_b64 vcc, s[22:23], s[24:25]")
    a("s_nop 1")
    for i in range(4):
        a(f"v_cndmask_b32 {v(SA+4+i)}, 0, {v(SA+2)}, vcc")
    a(f"s_mul_i32 s{S_T+3}, s{S_WAVE}, {4*TILE_REC}")
    a(f"v_add_u32 {v(SA+3)}, s{S_T+3}, {v(V_G16)}")
    a("s_mov_b32 exec_lo, 0xfff00000")
    a("s_mov_b32 exec_hi, 0xfff00000")
    for rr in range(4):
        for mf in range(2):
            a(f"ds_write_b128 {v(SA+3)}, {v(SA+4,4)} offset:{rr*TILE_REC + 1024 + 1024*mf}")
    a("s_mov_b64 exec, -1")
    for r in list(range(OA, OA+32)) + list(range(PB, PB+8)) + list(range(SB+12, SB+16)) + list(range(VV0[1], VV0[1]+4)) + list(range(VV1[1], VV1[1]+4)) + list(range(VV0[0], VV0[0]+4)) + list(range(VV1[0], VV1[0]+4)):
        a(f"v_mov_b32 {v(r)}, 0")
    a(f"s_and_b32 s{S_T+3}, s{S_HEAD}, 1")
    a(f"s_cmp_eq_u32 s{S_T+3}, 0")
    a(f"s_cselect_b32 s{S_T+4}, 0, -1")
    a(f"s_cselect_b32 s{S_T+5}, -1, 0")
    a(f"s_mov_b32 s{S_BUFD}, {CH_BYTES}")
    a("s_mov_b32 s34, 0x011fffff")
    a("s_mov_b32 s35, 0x011fffff")
    a("s_waitcnt vmcnt(0)")
    a(f"s_mov_b64 exec, s[{S_T+4}:{S_T+5}]")
    for r in (Q2A, Q2A+1, Q2B, Q2B+1):
        a(f"v_mov_b32 {v(r)}, 0")
    a("s_mov_b64 exec, -1")
    a("s_nop 1")
    a("s_waitcnt lgkmcnt(0)")
    mfma32(a, SA, K1[1], Q1A, None)
    mfma32(a, SA, K2[1], Q2A, SA, k16=False)
    a(f"s_mov_b32 s{S_CNT}, 0")
    a("s_barrier")
    def rd(txt):
        if not OPT['nolds']: a(txt)
    def reads(st, off):
        rd(f"ds_read_b128 {v(K1[st],4)}, {v(V_A16)} offset:{off}")
        rd(f"ds_read_b64 {v(K2[st],2)}, {v(V_A8)} offset:{off+3072}")
        if OPT['vmask']: a("s_mov_b64 exec, s[34:35]")
        rd(f"ds_read_b128 {v(VV0[st],4)}, {v(V_A16)} offset:{off+1024}")
        rd(f"ds_read_b128 {v(VV1[st],4)}, {v(V_A16)} offset:{off+2048}")
        if OPT['vmask']: a("s_mov_b64 exec, -1")
    reads(0, 0)
    a("s_nop 7")
    if dbg_time:
        stamp(a, 1)
        a("s_waitcnt lgkmcnt(0)")
    off_stamp(a, 4, back=0, cond_wave=S_WAVE)
    loop = a.newlabel("attn_loop")
    a.raw(".p2align 6")
    a.label(loop)
    def E(Sr, i): a(f"v_exp_f32 {v(Sr+i)}, {v(Sr+i)}")
    def C(Sr, P, k): a(f"v_cvt_pk_bf16_f32 {v(P+k)}, {v(Sr+2*k)}, {v(Sr+2*k+1)}")
    PEND = []
    def phase(Sr, P, m, rds):
        if OPT['uni']:
            for q in range(4):
                m[q]()
                if q == 0:
                    for r_ in rds[0:2]: rd(r_)
                if q == 1 and rds:
                    if OPT['vmask']: a("s_mov_b64 exec, s[34:35]")
                    for r_ in rds[2:4]: rd(r_)
                    if OPT['vmask']: a("s_mov_b64 exec, -1")
                for i in range(4): E(Sr, 4*q+i)
                while PEND:
                    (s_, p_, k_) = PEND.pop(0); C(s_, p_, k_)
                PEND.append((Sr, P, 2*q)); PEND.append((Sr, P, 2*q+1))
            return
        if OPT['cl4']:
            m[0]()
            for r_ in rds[0:2]: rd(r_)
            for i in (0, 1, 2): E(Sr, i)
            m[1]()
            if rds and OPT['vmask']: a("s_mov_b64 exec, s[34:35]")
            for r_ in rds[2:4]: rd(r_)
            if rds and OPT['vmask']: a("s_mov_b64 exec, -1")
            for i in (3, 4, 5): E(Sr, i)
            m[2]()
            for i in (6, 7, 8): E(Sr, i)
            m[3]()
            for i in range(9, 16): E(Sr, i)
            for k in range(8): C(Sr, P, k)
            return
        m[0]()
        for r_ in rds[0:2]: rd(r_)
        for i in (0, 1, 2): E(Sr, i)
        m[1]()
        if rds and OPT['vmask']: a("s_mov_b64 exec, s[34:35]")
        for r_ in rds[2:4]: rd(r_)
        if rds and OPT['vmask']: a("s_mov_b64 exec, -1")
        for i in (3, 4, 5, 6, 7): E(Sr, i)
        for k in (0, 1, 2, 3): C(Sr, P, k)
        m[2]()
        for i in (8, 9, 10): E(Sr, i)
        m[3]()
        for i in (11, 12, 13, 14, 15): E(Sr, i)
        for k in (4, 5, 6, 7): C(Sr, P, k)
    if OPT['uni']:
        PEND.append((SB, PB, 6)); PEND.append((SB, PB, 7))
    for j in range(CH):
        p = j & 1; pn = p ^ 1
        phase(SA, PA, [lambda: mfma32(a, OB, VV0[pn], PB, OB), lambda: mfma32(a, SB, K1[pn], Q1B, None),
                       lambda: mfma32(a, SB, K2[pn], Q2B, SB, k16=False), lambda: mfma32(a, OB, VV1[pn], PB+4, OB)], [])
        if not OPT['nolds']: a("s_waitcnt lgkmcnt(0)")
        if j == CH-1:
            if not OPT['nobar']:
                a("s_barrier")
            a(f"v_add_u32 {v(V_A16)}, s{S_BUFD}, {v(V_A16)}")
            a(f"v_add_u32 {v(V_A8)}, s{S_BUFD}, {v(V_A8)}")
            a(f"s_sub_u32 s{S_BUFD}, 0, s{S_BUFD}")
            off = 0
        else:
            off = (j+1)*TILE_REC
        rds = [f"ds_read_b128 {v(K1[pn],4)}, {v(V_A16)} offset:{off}",
               f"ds_read_b64 {v(K2[pn],2)}, {v(V_A8)} offset:{off+3072}",
               f"ds_read_b128 {v(VV0[pn],4)}, {v(V_A16)} offset:{off+1024}",
               f"ds_read_b128 {v(VV1[pn],4)}, {v(V_A16)} offset:{off+2048}"]
        phase(SB, PB, [lambda: mfma32(a, OA, VV0[p], PA, OA), lambda: mfma32(a, SA, K1[p], Q1A, None),
                       lambda: mfma32(a, SA, K2[p], Q2A, SA, k16=False), lambda: mfma32(a, OA, VV1[p], PA+4, OA)], rds)
    a(f"s_add_u32 s{S_CNT}, s{S_CNT}, 1")
    a(f"s_cmp_lt_u32 s{S_CNT}, {NCH}")
    a(f"s_cbranch_scc1 {loop}")
    if dbg_time: stamp(a, 2)
    if OPT['uni']:
        while PEND:
            (s_, p_, k_) = PEND.pop(0); C(s_, p_, k_)
    a("s_nop 1")
    mfma32(a, OB, VV0[1], PB, OB)
    mfma32(a, OB, VV1[1], PB+4, OB)
    off_stamp(a, 5, back=0, cond_wave=S_WAVE)
    off_stamp(a, 6, neg=True, back=0, cond_wave=S_WAVE)
    safety_check_and_fallback(a)
    T = 84
    a(f"v_and_b32 {v(T)}, 31, v0")
    a(f"v_lshrrev_b32 {v(T+1)}, 5, v0")
    a(f"v_cmp_eq_u32 vcc, 0, {v(T+1)}")
    if FUSE:
        a(f"s_mul_i32 s{S_T}, s{S_WAVE}, {64*OREC}")
        a(f"s_add_u32 s{S_T}, s{S_T}, 61440")
        a(f"v_mul_u32_u24 {v(T)}, {OREC}, {v(T)}")
        a(f"v_lshl_add_u32 {v(T)}, {v(T+1)}, 3, {v(T)}")
        a(f"v_add_u32 {v(T)}, s{S_T}, {v(T)}")
        a(f"v_lshlrev_b32 {v(T+2)}, 4, v0")
        a(f"v_add_u32 {v(T+10)}, s{S_T}, {v(T+2)}")
        a(f"s_lshl_b32 s{S_T+1}, s{S_QB}, 1")
        a(f"s_lshr_b32 s{S_T+2}, s{S_WAVE}, 1")
        a(f"s_add_u32 s{S_T+1}, s{S_T+1}, s{S_T+2}")
        a(f"s_lshl_b32 s{S_T+1}, s{S_T+1}, 5")
        a(f"s_add_u32 s{S_T+1}, s{S_T+1}, s{S_HEAD}")
        a(f"s_mul_i32 s{S_T+1}, s{S_T+1}, {OBLK}")
        a(f"s_and_b32 s{S_T+2}, s{S_WAVE}, 1")
        a(f"s_mul_i32 s{S_T+2}, s{S_T+2}, {64*OREC}")
        a(f"s_add_u32 s{S_T+2}, s{S_T+2}, s{S_T+1}")
        a(f"s_add_u32 s{S_T+2}, s{S_T+2}, {WS_OBF}")
    else:
        a(f"s_lshl_b32 s{S_T}, s{S_QB}, 8")
        a(f"s_lshl_b32 s{S_T+1}, s{S_WAVE}, 6")
        a(f"s_add_u32 s{S_T}, s{S_T}, s{S_T+1}")
        a(f"v_add_u32 {v(T)}, s{S_T}, {v(T)}")
        a(f"v_mul_u32_u24 {v(T)}, 1280, {v(T)}")
        a(f"v_lshlrev_b32 {v(T+2)}, 3, {v(T+1)}")
        a(f"v_add_u32 {v(T)}, {v(T)}, {v(T+2)}")
        a(f"s_mul_i32 s{S_T+2}, s{S_HEAD}, 40")
        a(f"s_add_u32 s{S_T+2}, s{S_T+2}, {WS_OB}")
    a("s_nop 1")
    for n_, (O, extra) in enumerate(((OA, 0), (OB, 32*1280))):
        if n_ == 1:
            a("s_nop 7")
        a(f"v_cndmask_b32 {v(T+3)}, {v(O+8)}, {v(O+12)}, vcc")
        a(f"v_rcp_f32 {v(T+3)}, {v(T+3)}")
        a("s_nop 0")
        for i in range(12):
            a(f"v_mul_f32 {v(O+i)}, {v(O+i)}, {v(T+3)}")
        for i in range(6):
            a(f"v_cvt_pk_bf16_f32 {v(T+4+i)}, {v(O+2*i)}, {v(O+2*i+1)}")
        if FUSE:
            off = n_*32*OREC
            a(f"v_cndmask_b32 {v(T+8)}, 0, {v(T+8)}, vcc")
            a(f"v_cndmask_b32 {v(T+9)}, 0, {v(T+9)}, vcc")
            a(f"ds_write_b64 {v(T)}, {v(T+4,2)} offset:{off}")
            a(f"ds_write_b64 {v(T)}, {v(T+6,2)} offset:{off+16}")
            a(f"ds_write_b64 {v(T)}, {v(T+8,2)} offset:{off+32}")
        else:
            if extra:
                a(f"s_add_u32 s{S_T+2}, s{S_T+2}, {extra}")
            a(f"buffer_store_dwordx2 {v(T+4,2)}, {v(T)}, {srd}, s{S_T+2} offen")
            a(f"buffer_store_dwordx2 {v(T+6,2)}, {v(T)}, {srd}, s{S_T+2} offen offset:16")
            a("s_mov_b32 exec_hi, 0")
            a(f"buffer_store_dwordx2 {v(T+8,2)}, {v(T)}, {srd}, s{S_T+2} offen offset:32")
            a(f"s_mov_b64 exec, -1")
    if FUSE:
        a("s_waitcnt lgkmcnt(0)")
        a(f"ds_read_b128 {v(4,4)}, {v(T+10)}")
        a(f"ds_read_b128 {v(8,4)}, {v(T+10)} offset:1024")
        a(f"ds_read_b128 {v(12,4)}, {v(T+10)} offset:2048")
        a("s_waitcnt lgkmcnt(0)")
        a(f"buffer_store_dwordx4 {v(4,4)}, {v(T+2)}, {srd}, s{S_T+2} offen sc1")
        a(f"buffer_store_dwordx4 {v(8,4)}, {v(T+2)}, {srd}, s{S_T+2} offen offset:1024 sc1")
        a(f"buffer_store_dwordx4 {v(12,4)}, {v(T+2)}, {srd}, s{S_T+2} offen offset:2048 sc1")
    if FUSE:
        a("s_waitcnt vmcnt(0) lgkmcnt(0)")
        a("s_barrier")
        lnf = a.newlabel("att_noflag")
        a(f"s_cmp_lg_u32 s{S_WAVE}, 0")
        a(f"s_cbranch_scc1 {lnf}")
        a(f"s_lshl_b32 s{S_T}, s{S_QB}, 7")
        a(f"s_add_u32 s{S_T}, s{S_T}, {WS_FLAGB}")
        a(f"s_lshl_b32 s{S_T+1}, s{S_HEAD}, 2")
        a(f"v_mov_b32 {v(T)}, s{S_T+1}")
        a(f"v_mov_b32 {v(T+1)}, s98")
        a("s_mov_b64 exec, 1")
        a(f"buffer_store_dword {v(T+1)}, {v(T)}, {srd}, s{S_T} offen sc1")
        a("s_mov_b64 exec, -1")
        a.label(lnf)
        lx = a.newlabel("att_exit")
        a("s_bitcmp1_b32 s2, 3")
        a(f"s_cbranch_scc1 {lx}")
        a(f"s_mov_b32 s60, s{S_WAVE}")
        a(f"s_mov_b32 s{gemm.S_WAVE}, s60")
        a("s_setprio 0")
        outp.scalars(a, 1)
        outp.compute(a, dbg_time)
        a.label(lx)
        if dbg_time: a(f"s_mov_b32 s{S_WAVE}, s60") if False else None
    if dbg_time:
        a("s_waitcnt vmcnt(0)")
        stamp_end(a, WS_DBG, KA_WS, 61)
    a("s_endpgm")
```

```python
from asmlib import *
from layout import *
import os

S_X = 8
S_W = 12
S_O = 16
S_WAVE = 20
S_XOFF = 21
S_WOFF = 22
S_LB = 23
S_ST = 24
S_T = 25
S_LBW = 43
S_RB = 40
S_CB = 41
BK = 32
NST = 640 // BK
SPS = 5
XBYTES = 128 * 64

PFOPT = dict(allpre=1, delay0=0, delay1=0, ldelay=0)
GOPT = dict(noload=False, nocomp=False, nomfma=False, ntx=False, ntw=False, ntpf=False, ststamp=False)
class G:
    def __init__(self, NC, wstride, acc0, vbase, NB=5, INIT=None):
        self.NC = NC; self.wstride = wstride
        self.INIT = INIT if INIT is not None else NB - 2
        self.NB = NB; self.DEPTH = NB - 2; self.NSET = NB // SPS
        assert NB % SPS == 0 and NST % NB == 0
        self.NT = NC // 32
        self.rowb = NC * 2
        self.wbytes = BK * self.rowb
        self.wbase = NB * XBYTES
        self.lds = NB * (XBYTES + self.wbytes)
        self.acc = acc0
        r = vbase
        self.nwr = {128: 4, 96: 1, 64: 2}[NC]
        self.vxr = r; r += 2 * self.NSET
        self.vwr = r; r += self.nwr * self.NSET
        r = (r + 3) // 4 * 4
        self.xf = [r, r + 4]; r += 8
        self.wf = [[r + 4 * i + 4 * self.NT * b for i in range(self.NT)] for b in range(2)]; r += 8 * self.NT
        self.vend = r

def loader_addrs(a, g, colmode):
    t0, t1, t2, t3 = 3, 4, 5, 6
    a(f"v_lshrrev_b32 {v(t0)}, 2, v0")
    a(f"v_lshrrev_b32 {v(t1)}, 4, v0")
    a(f"v_and_b32 {v(t2)}, 3, v0")
    a(f"v_xor_b32 {v(t2)}, {v(t2)}, {v(t1)}")
    a(f"v_lshlrev_b32 {v(t2)}, 4, {v(t2)}")
    a(f"s_lshl_b32 s{S_T}, s{S_WAVE}, 4")
    a(f"v_add_u32 {v(t0)}, s{S_T}, {v(t0)}")
    a(f"v_mul_u32_u24 v1, 1280, {v(t0)}")
    a(f"v_add_u32 v1, v1, {v(t2)}")
    if g.NC == 128:
        a(f"v_lshrrev_b32 {v(t0)}, 4, v0")
        a(f"v_and_b32 {v(t1)}, 15, v0")
        a(f"v_lshlrev_b32 {v(t2)}, 2, {v(t0)}")
        a(f"v_xor_b32 {v(t1)}, {v(t1)}, {v(t2)}")
        if colmode == 'qkv':
            a(f"v_mov_b32 {v(t2)}, 0")
            for lim, add in ((5, 1200), (10, 2400), (15, -240)):
                a(f"v_cmp_le_u32 vcc, {lim}, {v(t1)}")
                a(f"v_mov_b32 {v(t3)}, {add}")
                a("s_nop 0")
                a(f"v_cndmask_b32 {v(t2)}, {v(t2)}, {v(t3)}, vcc")
            a(f"v_lshlrev_b32 {v(t1)}, 4, {v(t1)}")
            a(f"v_add_u32 {v(t1)}, {v(t1)}, {v(t2)}")
        else:
            a(f"v_lshlrev_b32 {v(t1)}, 4, {v(t1)}")
        a(f"s_lshl_b32 s{S_T}, s{S_WAVE}, 3")
        a(f"v_add_u32 {v(t0)}, s{S_T}, {v(t0)}")
        a(f"v_mul_u32_u24 v2, {g.wstride}, {v(t0)}")
        a(f"v_add_u32 v2, v2, {v(t1)}")
    elif g.NC == 64:
        a(f"v_lshrrev_b32 {v(t0)}, 3, v0")
        a(f"v_and_b32 {v(t1)}, 7, v0")
        a(f"v_bfe_u32 {v(t2)}, {v(t0)}, 1, 1")
        a(f"v_lshlrev_b32 {v(t2)}, 2, {v(t2)}")
        a(f"v_xor_b32 {v(t1)}, {v(t1)}, {v(t2)}")
        a(f"v_lshlrev_b32 {v(t1)}, 4, {v(t1)}")
        a(f"s_lshl_b32 s{S_T}, s{S_WAVE}, 3")
        a(f"v_add_u32 {v(t0)}, s{S_T}, {v(t0)}")
        a(f"v_mul_u32_u24 v2, {g.wstride}, {v(t0)}")
        a(f"v_add_u32 v2, v2, {v(t1)}")
    else:
        a(f"s_lshl_b32 s{S_T}, s{S_WAVE}, 6")
        a(f"v_add_u32 {v(t0)}, s{S_T}, v0")
        a(f"v_mul_u32_u24 {v(t1)}, 43691, {v(t0)}")
        a(f"v_lshrrev_b32 {v(t1)}, 19, {v(t1)}")
        a(f"v_mul_u32_u24 {v(t2)}, 12, {v(t1)}")
        a(f"v_sub_u32 {v(t2)}, {v(t0)}, {v(t2)}")
        a(f"v_lshlrev_b32 {v(t3)}, 4, {v(t2)}")
        if colmode == 'kv':
            a(f"v_cmp_le_u32 vcc, 5, {v(t2)}")
            a(f"v_mov_b32 {v(t0)}, 1200")
            a("s_nop 0")
            a(f"v_cndmask_b32 {v(t0)}, 0, {v(t0)}, vcc")
            a(f"v_cmp_le_u32 vcc, 10, {v(t2)}")
            a(f"v_mov_b32 {v(t2)}, -160")
            a("s_nop 0")
            a(f"v_cndmask_b32 {v(t0)}, {v(t0)}, {v(t2)}, vcc")
            a(f"v_add_u32 {v(t3)}, {v(t3)}, {v(t0)}")
        a(f"v_mul_u32_u24 v2, {g.wstride}, {v(t1)}")
        a(f"v_add_u32 v2, v2, {v(t3)}")

S_KS = 58
def loader_issue(a, g, with_w=True, slot=0):
    sx = f"s[{S_X}:{S_X+3}]"; sw = f"s[{S_W}:{S_W+3}]"
    fx = " nt" if GOPT['ntx'] else ""; fw = " nt" if GOPT['ntw'] else ""
    fx += getattr(g, 'xflags', '')
    a(f"s_add_u32 m0, s{S_T+2}, {slot*XBYTES}")
    a(f"s_add_u32 s{S_KS}, s{S_KS}, 1")
    a(f"buffer_load_dwordx4 v1, {sx}, s{S_XOFF} offen{fx} lds")
    a(f"s_add_u32 m0, s{S_T+2}, {slot*XBYTES + 4096}")
    a(f"s_cmp_eq_u32 s{S_KS}, {NST}")
    a(f"buffer_load_dwordx4 v8, {sx}, s{S_XOFF} offen{fx} lds")
    n = 2
    a(f"s_cselect_b32 s{S_T+4}, {BK*2 - 1280}, {BK*2}")
    if with_w:
        a(f"s_add_u32 m0, s{S_T+3}, {g.wbase + slot*g.wbytes}")
    a(f"s_add_u32 s{S_XOFF}, s{S_XOFF}, s{S_T+4}")
    if with_w:
        a(f"buffer_load_dwordx4 v2, {sw}, s{S_WOFF} offen{fw} lds")
        n += 1
        if g.NC == 128:
            a(f"buffer_load_dwordx4 v9, {sw}, s{S_WOFF} offen offset:1024{fw} lds")
            n += 1
        elif g.NC == 96:
            a(f"buffer_load_dwordx4 v9, {sw}, s{S_WOFF} offen offset:3072{fw} lds")
            n += 1
    a(f"s_cmp_eq_u32 s{S_KS}, {NST}")
    a(f"s_cselect_b32 s{S_T+4}, s69, s68")
    a(f"s_add_u32 s{S_WOFF}, s{S_WOFF}, s{S_T+4}")
    return n

S_SLX = 62
S_SLW = 63
def loader_issue_dyn(a, g, with_w=True):
    sx = f"s[{S_X}:{S_X+3}]"; sw = f"s[{S_W}:{S_W+3}]"
    fx = getattr(g, 'xflags', '')
    a(f"s_add_u32 m0, s{S_T+2}, s{S_SLX}")
    a(f"s_add_u32 s{S_KS}, s{S_KS}, 1")
    a(f"buffer_load_dwordx4 v1, {sx}, s{S_XOFF} offen{fx} lds")
    a(f"s_add_u32 m0, m0, 4096")
    a(f"s_cmp_eq_u32 s{S_KS}, {NST}")
    a(f"buffer_load_dwordx4 v8, {sx}, s{S_XOFF} offen{fx} lds")
    n = 2
    a(f"s_cselect_b32 s{S_T+4}, {BK*2 - 1280}, {BK*2}")
    a(f"s_cselect_b32 s{S_T+5}, s69, s68")
    if with_w:
        a(f"s_add_u32 m0, s{S_T+3}, s{S_SLW}")
    a(f"s_add_u32 s{S_XOFF}, s{S_XOFF}, s{S_T+4}")
    if with_w:
        a(f"buffer_load_dwordx4 v2, {sw}, s{S_WOFF} offen lds")
        n += 1
        if g.NC == 128:
            a(f"buffer_load_dwordx4 v9, {sw}, s{S_WOFF} offen offset:1024 lds"); n += 1
        elif g.NC == 96:
            a(f"buffer_load_dwordx4 v9, {sw}, s{S_WOFF} offen offset:3072 lds"); n += 1
    a(f"s_add_u32 s{S_WOFF}, s{S_WOFF}, s{S_T+5}")
    a(f"s_add_u32 s{S_SLX}, s{S_SLX}, {XBYTES}")
    a(f"s_add_u32 s{S_SLW}, s{S_SLW}, {g.wbytes}")
    a(f"s_cmp_eq_u32 s{S_SLX}, {g.NB*XBYTES}")
    a(f"s_cselect_b32 s{S_SLX}, 0, s{S_SLX}")
    a(f"s_cselect_b32 s{S_SLW}, s{S_T+6}, s{S_SLW}")
    return n

def loader_body(a, g, with_w, tail=None):
    issued = 0
    n = None
    def issue():
        nonlocal issued, n
        n = loader_issue(a, g, with_w, issued % g.NB)
        issued += 1
    for i in range(g.INIT): issue()
    extra = 0
    if getattr(g, 'pfw', 0):
        LPR = 2 if g.NC == 128 else 2
        nslots = g.pfw * 32 * LPR
        a(f"s_lshl_b32 s{S_T+4}, s{S_WAVE}, 6")
        a(f"v_add_u32 v3, s{S_T+4}, v0")
        a(f"v_lshrrev_b32 v4, 1, v3")
        a(f"v_and_b32 v5, 1, v3")
        a(f"v_lshlrev_b32 v5, 7, v5")
        a(f"s_lshl_b32 s{S_T+4}, s{S_KS}, 5")
        a(f"v_add_u32 v4, s{S_T+4}, v4")
        a(f"v_subrev_u32 v6, 640, v4")
        a(f"v_cmp_le_u32 vcc, 640, v4")
        a("s_nop 1")
        a(f"v_cndmask_b32 v4, v4, v6, vcc")
        a(f"v_mul_u32_u24 v4, {g.wstride}, v4")
        a(f"v_add_u32 v4, v4, v5")
        a(f"v_cmp_gt_u32 vcc, {nslots}, v3")
        a(f"v_mov_b32 v5, 0x7ffffff0")
        a("s_nop 0")
        a(f"v_cndmask_b32 v4, v5, v4, vcc")
        a(f"buffer_load_dword v7, v4, s[{S_W}:{S_W+3}], s67 offen")
        extra = 1
    ROLL = (not GOPT['ststamp']) and (not GOPT['noload']) and g.INIT == g.NB - 2 and os.environ.get('ROLL', '0') == '1'
    if ROLL:
        D = g.INIT
        for s_ in range(D):
            a(f"s_waitcnt vmcnt({(D-1)*n + extra})")
            a("s_barrier")
            issue()
        a(f"s_mov_b32 s{S_SLX}, {(issued % g.NB)*XBYTES}")
        a(f"s_mov_b32 s{S_SLW}, {g.wbase + (issued % g.NB)*g.wbytes}")
        a(f"s_mov_b32 s{S_T+6}, {g.wbase}")
        a(f"s_mov_b32 s{S_ST}, {D}")
        lp = a.newlabel("gl_roll")
        a.label(lp)
        a(f"s_waitcnt vmcnt({(D-1)*n})")
        a("s_barrier")
        loader_issue_dyn(a, g, with_w)
        a(f"s_add_u32 s{S_ST}, s{S_ST}, 1")
        a(f"s_cmp_lt_u32 s{S_ST}, {NST-D}")
        a(f"s_cbranch_scc1 {lp}")
        for k in range(D-1, -1, -1):
            a(f"s_waitcnt vmcnt({k*n})")
            a("s_barrier")
    else:
        for s_ in range(NST):
            out = (issued - s_ - 1) * n + (extra if s_ < g.INIT else 0)
            assert out <= 63
            if GOPT['ststamp']:
                a("s_memtime s[90:91]")
                a("s_waitcnt lgkmcnt(0)")
                a(f"v_writelane_b32 v11, s90, {s_}")
            a(f"s_waitcnt vmcnt({out})")
            if GOPT['ststamp']:
                a("s_memtime s[90:91]")
                a("s_waitcnt lgkmcnt(0)")
                a(f"v_writelane_b32 v12, s90, {s_}")
            a("s_barrier")
            if GOPT['ststamp']:
                a("s_memtime s[90:91]")
                a("s_waitcnt lgkmcnt(0)")
                a(f"v_writelane_b32 v10, s90, {s_}")
            if GOPT['noload']: continue
            k = 0
            while issued < NST and issued <= s_ + g.NB - 2 and k < 2:
                issue(); k += 1
    if GOPT['ststamp']:
        a(f"s_load_dwordx2 s[88:89], s[0:1], {KA_WS}")
        a("s_waitcnt lgkmcnt(0)")
        a("s_mov_b32 s90, 0x2000000")
        a("s_mov_b32 s91, 0x00020000")
        a(f"s_lshl_b32 s92, s2, 11")
        a(f"s_lshl_b32 s93, s{S_WAVE}, 9")
        a("s_add_u32 s92, s92, s93")
        import asmlib
        a(f"s_add_u32 s92, s92, {0x1A00000 + asmlib.DBGK[0]*0x100000 + getattr(g, 'stoff', 0)}")
        a("v_lshlrev_b32 v13, 2, v0")
        a("s_mov_b64 exec, 0x1fffff")
        a("buffer_store_dword v10, v13, s[88:91], s92 offen")
        a("buffer_store_dword v11, v13, s[88:91], s92 offen offset:128")
        a("buffer_store_dword v12, v13, s[88:91], s92 offen offset:256")
        a("s_mov_b64 exec, -1")
    if tail: tail()
    a("s_endpgm")

def loader(a, g, colmode, tail=None):
    if PFOPT['ldelay']: a(f"s_sleep {PFOPT['ldelay']}")
    if getattr(g, 'lprio', 0): a(f"s_setprio {g.lprio}")
    loader_addrs(a, g, colmode)
    a(f"v_add_u32 v8, {64*1280}, v1")
    if g.NC == 128: a(f"v_add_u32 v9, {4*g.wstride-1024}, v2")
    if g.NC == 96: a(f"v_add_u32 v9, {16*g.wstride-3072}, v2")
    a(f"s_mov_b32 s68, {BK*g.wstride}")
    a(f"s_mov_b32 s69, {BK*g.wstride - 640*g.wstride}")
    a(f"s_mov_b32 s{S_KS}, s59")
    a(f"s_mul_i32 s{S_T+4}, s59, {BK*2}")
    a(f"s_add_u32 s{S_XOFF}, s{S_XOFF}, s{S_T+4}")
    a(f"s_mul_i32 s{S_T+4}, s59, {BK*g.wstride}")
    a(f"s_add_u32 s{S_WOFF}, s{S_WOFF}, s{S_T+4}")
    a(f"s_lshl_b32 s{S_T+2}, s{S_WAVE}, 10")
    if g.NC == 128:
        a(f"s_lshl_b32 s{S_T+3}, s{S_WAVE}, 11")
    else:
        a(f"s_lshl_b32 s{S_T+3}, s{S_WAVE}, 10")
    if g.NC == 96:
        l3 = a.newlabel("gl_w3")
        a(f"s_cmp_eq_u32 s{S_WAVE}, 3")
        a(f"s_cbranch_scc1 {l3}")
        loader_body(a, g, True, tail)
        a.label(l3)
        loader_body(a, g, False, tail)
    else:
        loader_body(a, g, True, tail)

def compute_addrs(a, g, vt):
    t0, t1, t2 = vt, vt + 1, vt + 2
    a(f"v_and_b32 {v(t0)}, 31, v0")
    a(f"s_lshl_b32 s{S_T}, s{S_WAVE}, 5")
    a(f"v_add_u32 {v(t0)}, s{S_T}, {v(t0)}")
    a(f"v_bfe_u32 {v(t1)}, {v(t0)}, 2, 2")
    a(f"v_lshrrev_b32 {v(t2)}, 5, v0")
    a(f"v_xor_b32 {v(t1)}, {v(t1)}, {v(t2)}")
    a(f"v_lshlrev_b32 {v(t1)}, 4, {v(t1)}")
    a(f"v_lshlrev_b32 {v(t0)}, 6, {v(t0)}")
    a(f"v_add_u32 {v(g.vxr)}, {v(t0)}, {v(t1)}")
    a(f"v_xor_b32 {v(g.vxr+1)}, 32, {v(g.vxr)}")
    a(f"v_bfe_u32 {v(t0)}, v0, 2, 2")
    a(f"v_lshrrev_b32 {v(t1)}, 5, v0")
    a(f"v_lshlrev_b32 {v(t1)}, 3, {v(t1)}")
    a(f"v_add_u32 {v(t1)}, {v(t1)}, {v(t0)}")
    a(f"v_mul_u32_u24 {v(t1)}, {g.rowb}, {v(t1)}")
    a(f"v_bfe_u32 {v(t2)}, v0, 4, 1")
    a(f"v_lshlrev_b32 {v(t2)}, 5, {v(t2)}")
    a(f"v_add_u32 {v(t1)}, {v(t1)}, {v(t2)}")
    a(f"v_and_b32 {v(t2)}, 3, v0")
    a(f"v_lshlrev_b32 {v(t2)}, 3, {v(t2)}")
    a(f"v_add_u32 {v(t1)}, {v(t1)}, {v(t2)}")
    a(f"v_add_u32 {v(t1)}, {g.wbase}, {v(t1)}")
    if g.NC == 128:
        for ct in range(4):
            a(f"v_xor_b32 {v(t2)}, {ct}, {v(t0)}")
            a(f"v_lshlrev_b32 {v(t2)}, 6, {v(t2)}")
            a(f"v_add_u32 {v(g.vwr+ct)}, {v(t1)}, {v(t2)}")
    elif g.NC == 96:
        a(f"v_mov_b32 {v(g.vwr)}, {v(t1)}")
    else:
        a(f"v_lshrrev_b32 {v(t0)}, 1, {v(t0)}")
        for ct in range(2):
            a(f"v_xor_b32 {v(t2)}, {ct}, {v(t0)}")
            a(f"v_lshlrev_b32 {v(t2)}, 6, {v(t2)}")
            a(f"v_add_u32 {v(g.vwr+ct)}, {v(t1)}, {v(t2)}")
    for st in range(1, g.NSET):
        for i in range(2):
            a(f"v_add_u32 {v(g.vxr+2*st+i)}, {st*SPS*XBYTES}, {v(g.vxr+i)}")
        for i in range(g.nwr):
            a(f"v_add_u32 {v(g.vwr+g.nwr*st+i)}, {st*SPS*g.wbytes}, {v(g.vwr+i)}")

def rd_list(g, buf, ks, b):
    st, sl = divmod(buf, SPS)
    L = [f"ds_read_b128 {v(g.xf[b],4)}, {v(g.vxr+2*st+ks)} offset:{sl*XBYTES}"]
    base = sl * g.wbytes
    for i in range(g.NT):
        if g.NC == 96:
            addr = g.vwr + g.nwr*st; off = base + i*64 + ks*16*g.rowb
        else:
            addr = g.vwr + g.nwr*st + i; off = base + ks*16*g.rowb
        L.append(f"ds_read_b64_tr_b16 {v(g.wf[b][i],2)}, {v(addr)} offset:{off}")
        L.append(f"ds_read_b64_tr_b16 {v(g.wf[b][i]+2,2)}, {v(addr)} offset:{off+4*g.rowb}")
    if GOPT['nocomp'] or getattr(g, 'nord', False): L = []
    return L

def mf_list(g, b, orient):
    L = []
    for i in range(g.NT):
        d = g.acc + 16*i
        if orient[i] == 'FT':
            L.append(f"v_mfma_f32_32x32x16_bf16 {v(d,16)}, {v(g.wf[b][i],4)}, {v(g.xf[b],4)}, {v(d,16)}")
        else:
            L.append(f"v_mfma_f32_32x32x16_bf16 {v(d,16)}, {v(g.xf[b],4)}, {v(g.wf[b][i],4)}, {v(d,16)}")
    if GOPT['nocomp'] or GOPT['nomfma'] or getattr(g, 'nomf', False): L = []
    return L

def mfmas(a, g, b, orient):
    for m in mf_list(g, b, orient): a(m)

def interleave(a, g, mf, rd):
    nrd = 1 + 2*g.NT
    if not rd:
        for m in mf: a(m)
        return
    if not mf: mf = None
    per = [3] + [2]*(g.NT-1)
    k = 0
    for i in range(g.NT):
        old_younger = nrd - 3 - 2*i
        a(f"s_waitcnt lgkmcnt({old_younger + k})")
        if mf: a(mf[i])
        for j in range(per[i]):
            a(rd[k]); k += 1

def compute_loop(a, g, orient, dbg=False, pre_loop=None, per_iter=None):
    for r in range(g.acc, g.acc + 16*g.NT):
        a(f"v_mov_b32 {v(r)}, 0")
    for r in list(range(g.xf[1], g.xf[1]+4)) + [g.wf[1][i]+k for i in range(g.NT) for k in range(4)]:
        a(f"v_mov_b32 {v(r)}, 0")
    if pre_loop: pre_loop()
    a(f"s_mov_b32 s{S_ST}, 0")
    if dbg:
        a("s_memtime s[78:79]")
        a("s_waitcnt lgkmcnt(0)")
    loop = a.newlabel("gc_loop")
    if os.environ.get('ALIGN', '0') == '1': a.raw('.p2align 6')
    a.label(loop)
    for b in range(g.NB):
        a("s_barrier")
        if dbg and b == 0:
            sk = a.newlabel("st")
            a(f"s_cmp_lg_u32 s{S_ST}, 0")
            a(f"s_cbranch_scc1 {sk}")
            a("s_memtime s[76:77]")
            a("s_waitcnt lgkmcnt(0)")
            a.label(sk)
        if b == 0 and per_iter: per_iter()
        interleave(a, g, mf_list(g, 1, orient), rd_list(g, b, 0, 0))
        interleave(a, g, mf_list(g, 0, orient), rd_list(g, b, 1, 1))
    a(f"s_add_u32 s{S_ST}, s{S_ST}, {g.NB}")
    a(f"s_cmp_lt_u32 s{S_ST}, {NST}")
    a(f"s_cbranch_scc1 {loop}")
    a("s_waitcnt lgkmcnt(0)")
    mfmas(a, g, 1, orient)
    if per_iter: a("s_waitcnt vmcnt(0)")

S_PFO = 44+12
S_PFS = 57
class PF:
    SRD = 60
    def __init__(self, vaddr, vdummy):
        self.va = vaddr; self.vd = vdummy
    def issue(self, a):
        a(f"buffer_load_dword {v(self.vd)}, {v(self.va)}, s[{self.SRD}:{self.SRD+3}], s{S_PFO} offen" + (" nt" if GOPT['ntpf'] else ""))
        a(f"s_add_u32 s{S_PFO}, s{S_PFO}, s{S_PFS}")
    def pre(self, a):
        lab = a.newlabel("pf_skip")
        a(f"s_cmp_eq_u32 s{S_WAVE}, 3")
        a(f"s_cbranch_scc1 {lab}")
        if PFOPT['delay0']: a(f"s_sleep {PFOPT['delay0']}")
        self.issue(a)
        if PFOPT['allpre']:
            if PFOPT['delay1']: a(f"s_sleep {PFOPT['delay1']}")
            self.issue(a)
            if PFOPT['delay1']: a(f"s_sleep {PFOPT['delay1']}")
            self.issue(a)
        a.label(lab)
    def iter(self, a):
        if PFOPT['allpre']: return
        lab = a.newlabel("pf_skip")
        a(f"s_cmp_eq_u32 s{S_WAVE}, 3")
        a(f"s_cbranch_scc1 {lab}")
        a(f"s_cmp_ge_u32 s{S_ST}, 10")
        a(f"s_cbranch_scc1 {lab}")
        self.issue(a)
        a.label(lab)
    def select_srd(self, a):
        a(f"s_cmp_eq_u32 s{S_WAVE}, 1")
        for i in range(4):
            a(f"s_cselect_b32 s{self.SRD+i}, s{S_X+i}, s{S_W+i}")

def compute_loop_paced(a, g, orient):
    for r in range(g.acc, g.acc + 16*g.NT):
        a(f"v_mov_b32 {v(r)}, 0")
    a(f"s_mov_b32 s{S_ST}, 0")
    loop = a.newlabel("gp_loop")
    if os.environ.get('ALIGN', '0') == '1': a.raw('.p2align 6')
    a.label(loop)
    for b in range(g.NB):
        a("s_barrier")
        for ks in range(2):
            rd = rd_list(g, b, ks, ks)
            mf = mf_list(g, ks, orient)
            a(rd[0]); a(rd[1]); a(rd[2])
            for i in range(g.NT):
                a("s_waitcnt lgkmcnt(0)")
                if i + 1 < g.NT:
                    a(rd[3+2*i]); a(rd[4+2*i])
                    a(mf[i])
                else:
                    a(mf[i])
    a(f"s_add_u32 s{S_ST}, s{S_ST}, {g.NB}")
    a(f"s_cmp_lt_u32 s{S_ST}, {NST}")
    a(f"s_cbranch_scc1 {loop}")

def compute_loop_paced2(a, g, orient, ahead=2):
    for r in range(g.acc, g.acc + 16*g.NT):
        a(f"v_mov_b32 {v(r)}, 0")
    a(f"s_mov_b32 s{S_ST}, 0")
    loop = a.newlabel("gp_loop")
    if os.environ.get('ALIGN', '0') == '1': a.raw('.p2align 6')
    a.label(loop)
    for b in range(g.NB):
        a("s_barrier")
        rds = [rd_list(g, b, ks, ks) for ks in range(2)]
        mfs = [mf_list(g, ks, orient) for ks in range(2)]
        steps = [(ks, i) for ks in range(2) for i in range(g.NT)]
        queue = []
        def issue(n):
            ks, i = steps[n]
            if i == 0:
                a(rds[ks][0]); queue.append(n)
            a(rds[ks][1+2*i]); queue.append(n)
            a(rds[ks][2+2*i]); queue.append(n)
        for n in range(min(ahead, len(steps))): issue(n)
        for n, (ks, i) in enumerate(steps):
            last = max(k for k, s_ in enumerate(queue) if s_ == n)
            a(f"s_waitcnt lgkmcnt({len(queue) - 1 - last})")
            del queue[:last+1]
            if n + ahead < len(steps): issue(n + ahead)
            a(mfs[ks][i])
    a(f"s_add_u32 s{S_ST}, s{S_ST}, {g.NB}")
    a(f"s_cmp_lt_u32 s{S_ST}, {NST}")
    a(f"s_cbranch_scc1 {loop}")
```

```python
from asmlib import *
from layout import *
from gemm import *
from roles import f32hex, srd, srd_fin, wave_lane, split_roles
import roles, outp
FUSE = True

APRIO = 2
import os
PACED = os.environ.get('PACED', '1') == '1'
AGP = int(os.environ.get('AGP', '0'))
APF = os.environ.get('APF', '0') == '1'
AG = G(NC=128, wstride=3840, acc0=64, vbase=1)
A_NVGPR = 128
LOG2E = 1.4426950408889634
S_PH = 44
S_DB = 48
S_L = 52
S_NL = 53
WPE1, WPO1, WPE2, WPO2 = 52, 56, 60, 62

def halves_reduce(a, x, t, op):
    a(f"v_mov_b32 {v(t)}, {v(x)}")
    a("s_nop 1")
    a(f"v_permlane32_swap_b32 {v(x)}, {v(t)}")
    a("s_nop 1")
    a(f"{op} {v(x)}, {v(x)}, {v(t)}")

def feature_task(a, B1, B2, WP1, WP2, D, E, T, POS, NEG):
    a(f"v_mfma_f32_32x32x16_bf16 {v(D,16)}, {v(WP1,4)}, {v(B1,4)}, 0")
    a(f"v_mfma_f32_32x32x8_bf16 {v(D,16)}, {v(WP2,2)}, {v(B2,2)}, {v(D,16)}")
    a("s_nop 7")
    a("s_nop 4")
    MX, MN, TT, TU, SP, SN = T, T+1, T+2, T+3, T+4, T+6
    x = [D+i for i in range(10)]
    a(f"v_max3_f32 {v(MX)}, {v(x[0])}, {v(x[1])}, {v(x[2])}")
    a(f"v_min3_f32 {v(MN)}, {v(x[0])}, {v(x[1])}, {v(x[2])}")
    for i in (3, 5, 7):
        a(f"v_max3_f32 {v(MX)}, {v(MX)}, {v(x[i])}, {v(x[i+1])}")
        a(f"v_min3_f32 {v(MN)}, {v(MN)}, {v(x[i])}, {v(x[i+1])}")
    a(f"v_max_f32 {v(MX)}, {v(MX)}, {v(x[9])}")
    a(f"v_min_f32 {v(MN)}, {v(MN)}, {v(x[9])}")
    a(f"v_mov_b32 {v(TT)}, {v(MX)}")
    a(f"v_mov_b32 {v(TU)}, {v(MN)}")
    a("s_nop 1")
    a(f"v_permlane32_swap_b32 {v(MX)}, {v(TT)}")
    a(f"v_permlane32_swap_b32 {v(MN)}, {v(TU)}")
    a("s_nop 1")
    a(f"v_max_f32 {v(MX)}, {v(MX)}, {v(TT)}")
    a(f"v_min_f32 {v(MN)}, {v(MN)}, {v(TU)}")
    a(f"v_mul_f32 {v(MX)}, s{S_NL}, {v(MX)}")
    a(f"v_mul_f32 {v(MN)}, s{S_L}, {v(MN)}")
    e = [E+i for i in range(10)]
    for i in range(0, 10, 2):
        a(f"v_pk_fma_f32 {v(e[i],2)}, {v(x[i],2)}, s[86:87], {v(MX,2)} op_sel:[0,0,1] op_sel_hi:[1,1,1]")
        a(f"v_pk_fma_f32 {v(x[i],2)}, {v(x[i],2)}, s[100:101], {v(MX,2)} op_sel:[0,0,0] op_sel_hi:[1,1,0]")
    for i in range(10):
        a(f"v_exp_f32 {v(x[i])}, {v(x[i])}")
        a(f"v_exp_f32 {v(e[i])}, {v(e[i])}")
    a("s_nop 0")
    a(f"v_pk_add_f32 {v(SP,2)}, {v(x[0],2)}, {v(x[2],2)}")
    a(f"v_pk_add_f32 {v(SN,2)}, {v(e[0],2)}, {v(e[2],2)}")
    for i in (4, 6, 8):
        a(f"v_pk_add_f32 {v(SP,2)}, {v(SP,2)}, {v(x[i],2)}")
        a(f"v_pk_add_f32 {v(SN,2)}, {v(SN,2)}, {v(e[i],2)}")
    a(f"v_add_f32 {v(SP)}, {v(SP)}, {v(SP+1)}")
    a(f"v_add_f32 {v(SN)}, {v(SN)}, {v(SN+1)}")
    a(f"v_mov_b32 {v(TT)}, {v(SP)}")
    a(f"v_mov_b32 {v(TU)}, {v(SN)}")
    a("s_nop 1")
    a(f"v_permlane32_swap_b32 {v(SP)}, {v(TT)}")
    a(f"v_permlane32_swap_b32 {v(SN)}, {v(TU)}")
    a("s_nop 1")
    a(f"v_add_f32 {v(SP)}, {v(SP)}, {v(TT)}")
    a(f"v_add_f32 {v(SN)}, {v(SN)}, {v(TU)}")
    a(f"v_rcp_f32 {v(SP)}, {v(SP)}")
    a(f"v_rcp_f32 {v(SN)}, {v(SN)}")
    a("s_nop 0")
    for i in range(0, 10, 2):
        a(f"v_pk_mul_f32 {v(x[i],2)}, {v(x[i],2)}, {v(SP,2)} op_sel:[0,0] op_sel_hi:[1,0]")
        a(f"v_pk_mul_f32 {v(e[i],2)}, {v(e[i],2)}, {v(SN,2)} op_sel:[0,0] op_sel_hi:[1,0]")
    for i in range(5):
        a(f"v_cvt_pk_bf16_f32 {v(POS+i)}, {v(x[2*i])}, {v(x[2*i+1])}")
        a(f"v_cvt_pk_bf16_f32 {v(NEG+i)}, {v(e[2*i])}, {v(e[2*i+1])}")

def role_a(a, dbg=False, mode='k1'):
    g = AG
    SC = ' sc1' if mode == 'k2' else ''
    VT = 44
    if dbg: stamp(a, 0)
    srd(a, S_X, KA_AX, 0); srd(a, S_W, KA_AWQKV, 0); srd(a, S_O, KA_WS, 0); srd(a, S_PH, KA_AWPHI, 0);
    wave_lane(a, 3)
    a(f"s_and_b32 s{S_T}, s2, 7")
    a(f"s_lshr_b32 s{S_T+1}, s2, 3")
    a(f"s_lshr_b32 s{S_T+2}, s{S_T}, 1")
    a(f"s_lshl_b32 s{S_RB}, s{S_T+2}, 2")
    a(f"s_lshr_b32 s{S_T+2}, s{S_T+1}, 3")
    a(f"s_add_u32 s{S_RB}, s{S_RB}, s{S_T+2}")
    a(f"s_and_b32 s{S_CB}, s{S_T}, 1")
    a(f"s_lshl_b32 s{S_CB}, s{S_CB}, 3")
    a(f"s_and_b32 s{S_T+2}, s{S_T+1}, 7")
    a(f"s_add_u32 s{S_CB}, s{S_CB}, s{S_T+2}")
    a(f"s_mul_i32 s{S_XOFF}, s{S_RB}, {128*1280}")
    a(f"s_mul_i32 s{S_WOFF}, s{S_CB}, 80")
    a(f"s_mov_b32 s{S_L}, {f32hex(LOG2E)}")
    a(f"s_mov_b32 s{S_NL}, {f32hex(-LOG2E)}")
    a(f"s_mov_b32 s100, {f32hex(LOG2E)}"); a(f"s_mov_b32 s101, {f32hex(LOG2E)}")
    a(f"s_mov_b32 s86, {f32hex(-LOG2E)}"); a(f"s_mov_b32 s87, {f32hex(-LOG2E)}")
    a("s_waitcnt lgkmcnt(0)")
    srd_fin(a, S_X, 2048*1280); srd_fin(a, S_W, 640*3840); srd_fin(a, S_O, WS_SIZE_SRD)
    srd_fin(a, S_PH, 25600)
    a(f"s_and_b32 s{S_T+8}, s{S_RB}, 3")
    a(f"s_mul_i32 s{S_T+8}, s{S_T+8}, 10")
    a(f"s_and_b32 s{S_T+9}, s{S_CB}, 7")
    a(f"s_mul_i32 s{S_T+9}, s{S_T+9}, 5")
    a(f"s_add_u32 s{S_T+8}, s{S_T+8}, s{S_T+9}")
    a(f"s_lshr_b32 s{S_T+8}, s{S_T+8}, 1")
    a(f"s_cmp_ge_u32 s{S_T+8}, 20")
    a(f"s_cselect_b32 s{S_T+9}, 20, 0")
    a(f"s_sub_u32 s59, s{S_T+8}, s{S_T+9}")
    if MEGA[0]:
        lc = a.newlabel("a0_comp"); lb = a.newlabel("a0_bar")
        a(f"s_cmp_eq_u32 s{S_T+14}, 0")
        a(f"s_cbranch_scc1 {lb}")
        a(f"s_cmp_lg_u32 s{S_WAVE}, 0")
        a(f"s_cbranch_scc1 {lb}")
        tag_fetch(a, KA_DBG, 3, 4)
        a(f"s_lshr_b32 s{S_T}, s2, 3")
        a(f"s_cmp_ge_u32 s{S_T}, 15")
        a(f"s_cselect_b32 s{S_T+1}, 15, 0")
        a(f"s_sub_u32 s{S_T}, s{S_T}, s{S_T+1}")
        a(f"s_cmp_ge_u32 s{S_T}, 15")
        a(f"s_cselect_b32 s{S_T+1}, 15, 0")
        a(f"s_sub_u32 s{S_T}, s{S_T}, s{S_T+1}")
        a(f"s_lshl_b32 s{S_T}, s{S_T}, 7")
        a(f"s_add_u32 s{S_T}, s{S_T}, {WS_FLAGQ}")
        a("s_mov_b64 exec, 0xffff")
        a(f"v_lshlrev_b32 v3, 2, v0")
        a(f"s_mov_b32 s{S_T+1}, 0")
        lp = a.newlabel("a0_poll"); lpd = a.newlabel("a0_done")
        a.label(lp)
        a(f"buffer_load_dword v4, v3, s[{S_O}:{S_O+3}], s{S_T} offen sc1")
        a("s_waitcnt vmcnt(0)")
        a(f"v_cmp_eq_u32 vcc, s98, v4")
        a(f"s_add_u32 s{S_T+1}, s{S_T+1}, 1")
        a("s_nop 1")
        a(f"s_cmp_eq_u32 vcc_lo, 0xffff")
        a(f"s_cbranch_scc1 {lpd}")
        a("s_sleep 16")
        a(f"s_cmp_lt_u32 s{S_T+1}, 0x10000")
        a(f"s_cbranch_scc1 {lp}")
        a.label(lpd)
        a("s_mov_b64 exec, -1")
        a(f"v_mov_b32 v3, 32768")
        a(f"v_mov_b32 v4, s98")
        a("ds_write_b32 v3, v4")
        a("s_waitcnt lgkmcnt(0)")
        a.label(lb)
        a("s_barrier")
        lnr = a.newlabel("a0_noread")
        a(f"s_cmp_lg_u32 s{S_T+14}, 0")
        a(f"s_cbranch_scc1 {lnr}")
        a(f"v_mov_b32 v3, 32768")
        a("ds_read_b32 v4, v3")
        a("s_waitcnt lgkmcnt(0)")
        a("v_readfirstlane_b32 s98, v4")
        a.label(lnr)
    else:
        a("s_mov_b32 s98, 1")
    def a_loader_tail():
        if mode != 'k2' or not FUSE: return
        lx = a.newlabel("ald_exit")
        a("s_bitcmp0_b32 s2, 3")
        a(f"s_cbranch_scc1 {lx}")
        for i in range(5): a("s_barrier")
        a("s_mov_b32 s42, 0")
        a(f"s_branch {outp.L_LOADER}")
        a.label(lx)
    split_roles(a, g, 'qkv', tail=a_loader_tail)
    if mode == 'k1' and APRIO: a(f"s_setprio {APRIO}")
    if mode == 'k2' and AGP: a(f"s_setprio {AGP}")
    if APF and mode == 'k2':
        a(f"s_lshr_b32 s{S_T}, s2, 3")
        a(f"s_mul_i32 s{S_T+1}, s{S_T}, 300")
        a(f"s_lshl_b32 s{S_T+2}, s{S_WAVE}, 6")
        a(f"s_add_u32 s{S_T+1}, s{S_T+1}, s{S_T+2}")
        a(f"s_and_b32 s{S_T+3}, s2, 1")
        a(f"s_mul_i32 s{S_T+3}, s{S_T+3}, 640")
        def wline(extra):
            a(f"v_add_u32 v64, s{S_T+1}, v0")
            if extra: a(f"v_add_u32 v64, {extra}, v64")
            a(f"v_mul_u32_u24 v65, 34953, v64")
            a(f"v_lshrrev_b32 v65, 19, v65")
            a(f"v_mul_u32_u24 v66, 15, v65")
            a(f"v_sub_u32 v66, v64, v66")
            a(f"v_mul_u32_u24 v67, 52, v66")
            a(f"v_lshrrev_b32 v67, 8, v67")
            a(f"v_mul_u32_u24 v68, 5, v67")
            a(f"v_sub_u32 v66, v66, v68")
            a(f"v_mul_u32_u24 v65, 3840, v65")
            a(f"v_mul_u32_u24 v67, 1280, v67")
            a(f"v_lshlrev_b32 v66, 7, v66")
            a(f"v_add3_u32 v65, v65, v67, v66")
        wline(0)
        a(f"buffer_load_dword v69, v65, s[{S_W}:{S_W+3}], s{S_T+3} offen")
        l1 = a.newlabel("apf_x"); l2 = a.newlabel("apf_d")
        a(f"s_cmp_lg_u32 s{S_WAVE}, 0")
        a(f"s_cbranch_scc1 {l1}")
        wline(256)
        a(f"buffer_load_dword v70, v65, s[{S_W}:{S_W+3}], s{S_T+3} offen")
        a(f"s_branch {l2}")
        a.label(l1)
        a(f"s_mul_i32 s{S_T+1}, s{S_T}, 160")
        a(f"s_add_u32 s{S_T+1}, s{S_T+1}, s{S_T+2}")
        a(f"s_sub_u32 s{S_T+1}, s{S_T+1}, 64")
        a(f"v_add_u32 v64, s{S_T+1}, v0")
        a(f"v_lshlrev_b32 v64, 7, v64")
        a(f"s_and_b32 s{S_T+1}, s{S_RB}, 12")
        a(f"s_mul_i32 s{S_T+1}, s{S_T+1}, {128*1280}")
        a(f"buffer_load_dword v70, v64, s[{S_X}:{S_X+3}], s{S_T+1} offen")
        a.label(l2)
    t0, t1, t2, t3 = 12, 13, 14, 15
    sph = f"s[{S_PH}:{S_PH+3}]"
    a(f"v_and_b32 {v(t0)}, 31, v0")
    a(f"v_lshrrev_b32 {v(t1)}, 5, v0")
    a(f"v_subrev_u32 {v(t2)}, 2, {v(t0)}")
    a(f"v_cmp_le_u32 vcc, 20, {v(t0)}")
    a("s_nop 1")
    a(f"v_cndmask_b32 {v(t2)}, {v(t0)}, {v(t2)}, vcc")
    a(f"v_lshlrev_b32 {v(t2)}, 1, {v(t2)}")
    a(f"v_and_b32 {v(t3)}, 30, {v(t0)}")
    a(f"v_cmp_eq_u32 vcc, 18, {v(t3)}")
    a(f"v_cmp_le_u32 s[{S_T+2-1}:{S_T+2}], 22, {v(t0)}") if (S_T+1) % 2 == 0 else a(f"v_cmp_le_u32 s[{S_T+3}:{S_T+4}], 22, {v(t0)}")
    PAIR = (S_T+1) if (S_T+1) % 2 == 0 else (S_T+3)
    a("s_nop 1")
    a(f"s_or_b64 vcc, vcc, s[{PAIR}:{PAIR+1}]")
    a(f"v_mov_b32 {v(t3)}, 0x20000")
    a("s_nop 1")
    a(f"v_cndmask_b32 {v(t2)}, {v(t2)}, {v(t3)}, vcc")
    a(f"v_mul_u32_u24 {v(t3)}, 160, {v(t1)}")
    a(f"v_add_u32 {v(t0)}, {v(t2)}, {v(t3)}")
    a(f"s_mul_i32 s{S_T}, s{S_CB}, 1600")
    TMP = 64
    n_ = 0
    packs = []
    for (reg, hoff, dadd) in ((WPE1, 0, 0), (WPO1, 800, 4)):
        for j in range(8):
            d = dadd + (j if j < 4 else j + 4)
            a(f"buffer_load_ushort {v(TMP+n_)}, {v(t0)}, {sph}, s{S_T} offen offset:{hoff + d*40}")
            if j & 1: packs.append((reg + j//2, TMP+n_-1, TMP+n_))
            n_ += 1
    a(f"v_cmp_eq_u32 vcc, 0, {v(t1)}")
    a(f"v_mov_b32 {v(t3)}, 0x20000")
    a("s_nop 0")
    a(f"v_cndmask_b32 {v(t0)}, {v(t3)}, {v(t2)}, vcc")
    a(f"v_cndmask_b32 {v(t1)}, {v(t2)}, {v(t3)}, vcc")
    for (reg, va, base) in ((WPE2, t0, 16*40), (WPO2, t1, 800)):
        for j in range(4):
            a(f"buffer_load_ushort {v(TMP+n_)}, {v(va)}, {sph}, s{S_T} offen offset:{base + j*40}")
            if j & 1: packs.append((reg + j//2, TMP+n_-1, TMP+n_))
            n_ += 1
    a("s_waitcnt vmcnt(0)")
    for (dst, lo, hi) in packs:
        a(f"v_lshl_or_b32 {v(dst)}, {v(hi)}, 16, {v(lo)}")
    compute_addrs(a, g, 12)
    if os.environ.get('PACE2') and mode == 'k2': compute_loop_paced2(a, g, ['FT']*4, int(os.environ['PACE2']))
    elif PACED and mode == 'k2': compute_loop_paced(a, g, ['FT']*4)
    else: compute_loop(a, g, ['FT']*4)
    if dbg: a('s_memtime s[72:73]')
    if mode == 'k2': a(f"s_setprio {os.environ.get('AEP', '3')}")
    PG = 4
    a("s_nop 7")
    a("s_nop 3")
    for Gc in range(15):
        R = g.acc + 16*(Gc//4) + 4*(Gc % 4)
        a(f"v_cvt_pk_bf16_f32 {v(PG+2*Gc)}, {v(R)}, {v(R+1)}")
        a(f"v_cvt_pk_bf16_f32 {v(PG+2*Gc+1)}, {v(R+2)}, {v(R+3)}")
    a("s_barrier")
    D, E, T = 64, 80, 92
    POS, NEG = 100, 106
    VA_, VS_, VH_ = 34, 35, 36
    a(f"v_and_b32 {v(VA_)}, 31, v0")
    a(f"s_lshl_b32 s{S_T}, s{S_WAVE}, 5")
    a(f"v_add_u32 {v(VA_)}, s{S_T}, {v(VA_)}")
    a(f"v_bfe_u32 {v(VS_)}, {v(VA_)}, 1, 3")
    a(f"v_lshlrev_b32 {v(VA_)}, 6, {v(VA_)}")
    a(f"v_lshrrev_b32 {v(VH_)}, 5, v0")
    def piece_addr(dst, pc_lo, pc_hi, extra_lo=0, extra_hi=0):
        if pc_hi - pc_lo == 1 and extra_hi == extra_lo:
            a(f"v_add_u32 {v(dst)}, {pc_lo}, {v(VH_)}")
            a(f"v_xor_b32 {v(dst)}, {v(dst)}, {v(VS_)}")
            a(f"v_lshl_add_u32 {v(dst)}, {v(dst)}, 3, {v(VA_)}")
            if extra_lo: a(f"v_add_u32 {v(dst)}, {extra_lo}, {v(dst)}")
        else:
            a(f"v_mul_i32_i24 {v(dst)}, {pc_hi-pc_lo}, {v(VH_)}")
            a(f"v_add_u32 {v(dst)}, {pc_lo}, {v(dst)}")
            a(f"v_xor_b32 {v(dst)}, {v(dst)}, {v(VS_)}")
            a(f"v_lshl_add_u32 {v(dst)}, {v(dst)}, 3, {v(VA_)}")
            a(f"v_mul_i32_i24 {v(37)}, {extra_hi-extra_lo}, {v(VH_)}")
            a(f"v_add_u32 {v(dst)}, {v(dst)}, {v(37)}")
            if extra_lo: a(f"v_add_u32 {v(dst)}, {extra_lo}, {v(dst)}")
    PHI_OFF = 0
    VP_OFF = 32768
    A01, A23, A4 = 38, 39, 40
    piece_addr(A01, 0, 1)
    piece_addr(A23, 2, 3)
    piece_addr(A4, 4, 4, 0, 4)
    for hd, (B1, B2, W1, W2) in enumerate(((PG+10, PG+14, WPE1, WPE2), (PG+16, PG+14, WPO1, WPO2))):
        feature_task(a, B1, B2, W1, W2, D, E, T, POS, NEG)
        for pn, P_ in enumerate((POS, NEG)):
            off = PHI_OFF + (hd*2 + pn)*8192
            a(f"ds_write_b64 {v(A01)}, {v(P_,2)} offset:{off}")
            a(f"ds_write_b64 {v(A23)}, {v(P_+2,2)} offset:{off}")
            a(f"ds_write_b32 {v(A4)}, {v(P_+4)} offset:{off}")
    AV = 41
    vmap = [((0, 0), (0, 1)), ((0, 2), (0, 3)), ((0, 4), (1, 0)), ((1, 1), (1, 2)), ((1, 3), (1, 4))]
    for Gv in range(5):
        (h0, p0), (h1, p1) = vmap[Gv]
        piece_addr(AV, p0, p1, h0*8192, h1*8192)
        a(f"ds_write_b64 {v(AV)}, {v(PG+2*(10+Gv),2)} offset:{VP_OFF}")
    piece_addr(AV, 5, 5, 0, 8192)
    a(f"v_mov_b32 {v(T)}, 0x3f80")
    a(f"v_mov_b32 {v(T+1)}, 0")
    a(f"ds_write_b64 {v(AV)}, {v(T,2)} offset:{VP_OFF}")
    a("s_waitcnt lgkmcnt(0)")
    a("s_barrier")
    R0, R1 = 38, 39
    a(f"v_bfe_u32 {v(T)}, v0, 2, 2")
    a(f"v_lshrrev_b32 {v(T+1)}, 5, v0")
    a(f"v_lshlrev_b32 {v(T+2)}, 3, {v(T+1)}")
    a(f"v_add_u32 {v(T+2)}, {v(T+2)}, {v(T)}")
    a(f"v_lshlrev_b32 {v(T+2)}, 6, {v(T+2)}")
    a(f"v_bfe_u32 {v(T+3)}, v0, 4, 1")
    a(f"v_lshlrev_b32 {v(T+3)}, 2, {v(T+3)}")
    a(f"v_and_b32 {v(T+4)}, 3, v0")
    a(f"v_add_u32 {v(T+3)}, {v(T+3)}, {v(T+4)}")
    a(f"v_lshlrev_b32 {v(T+4)}, 2, {v(T+1)}")
    a(f"v_lshrrev_b32 {v(T+5)}, 1, {v(T)}")
    a(f"v_add_u32 {v(T+4)}, {v(T+4)}, {v(T+5)}")
    a(f"v_xor_b32 {v(T+5)}, {v(T+3)}, {v(T+4)}")
    a(f"v_lshl_add_u32 {v(R0)}, {v(T+5)}, 3, {v(T+2)}")
    a(f"v_add_u32 {v(T+4)}, 2, {v(T+4)}")
    a(f"v_xor_b32 {v(T+5)}, {v(T+3)}, {v(T+4)}")
    a(f"v_lshl_add_u32 {v(R1)}, {v(T+5)}, 3, {v(T+2)}")
    a(f"v_add_u32 {v(R1)}, 256, {v(R1)}")
    a(f"s_and_b32 s{S_T}, s{S_WAVE}, 1")
    a(f"s_lshr_b32 s{S_T+1}, s{S_WAVE}, 1")
    a(f"s_lshl_b32 s{S_T+2}, s{S_T}, 1")
    a(f"s_add_u32 s{S_T+2}, s{S_T+2}, s{S_T+1}")
    a(f"s_lshl_b32 s{S_T+2}, s{S_T+2}, 13")
    a(f"s_lshl_b32 s{S_T+3}, s{S_T}, 13")
    a(f"s_add_u32 s{S_T+3}, s{S_T+3}, {VP_OFF}")
    PA0, PA1, VB0, VB1 = 40, 41, 42, 43
    a(f"v_add_u32 {v(PA0)}, s{S_T+2}, {v(R0)}")
    a(f"v_add_u32 {v(PA1)}, s{S_T+2}, {v(R1)}")
    a(f"v_add_u32 {v(VB0)}, s{S_T+3}, {v(R0)}")
    a(f"v_add_u32 {v(VB1)}, s{S_T+3}, {v(R1)}")
    FA, FB = 80, 112
    for half in range(2):
        for ks in range(4):
            k_ = half*4 + ks
            a(f"ds_read_b64_tr_b16 {v(80+8*ks,2)}, {v(VB0)} offset:{k_*1024}")
            a(f"ds_read_b64_tr_b16 {v(80+8*ks+2,2)}, {v(VB1)} offset:{k_*1024}")
            a(f"ds_read_b64_tr_b16 {v(80+8*ks+4,2)}, {v(PA0)} offset:{k_*1024}")
            a(f"ds_read_b64_tr_b16 {v(80+8*ks+6,2)}, {v(PA1)} offset:{k_*1024}")
        for ks in range(4):
            a(f"s_waitcnt lgkmcnt({4*(3-ks)})")
            c = "0" if (half == 0 and ks == 0) else v(D,16)
            a(f"v_mfma_f32_32x32x16_bf16 {v(D,16)}, {v(80+8*ks+4,4)}, {v(80+8*ks,4)}, {c}")
    so = f"s[{S_O}:{S_O+3}]"
    a(f"v_and_b32 {v(T)}, 31, v0")
    a(f"v_lshrrev_b32 {v(T+1)}, 5, v0")
    a(f"v_mul_u32_u24 {v(T+2)}, 80, {v(T)}")
    a(f"v_lshl_add_u32 {v(T+2)}, {v(T+1)}, 4, {v(T+2)}")
    a(f"s_lshl_b32 s{S_T+2}, s{S_CB}, 1")
    a(f"s_add_u32 s{S_T+2}, s{S_T+2}, s{S_T}")
    a(f"s_lshl_b32 s{S_T+2}, s{S_T+2}, 1")
    a(f"s_add_u32 s{S_T+2}, s{S_T+2}, s{S_T+1}")
    a(f"s_lshl_b32 s{S_T+3}, s{S_RB}, 6")
    a(f"s_add_u32 s{S_T+2}, s{S_T+2}, s{S_T+3}")
    a(f"s_mul_i32 s{S_T+2}, s{S_T+2}, {KVS_REC}")
    a(f"s_add_u32 s{S_T+2}, s{S_T+2}, {WS_KVP}")
    a(f"v_cmp_ge_u32 vcc, 20, {v(T)}")
    a("s_nop 4")
    a("s_and_b64 exec, exec, vcc")
    a(f"buffer_store_dwordx4 {v(D,4)}, {v(T+2)}, {so}, s{S_T+2} offen{SC}")
    a(f"buffer_store_dwordx4 {v(D+4,4)}, {v(T+2)}, {so}, s{S_T+2} offen offset:32{SC}")
    a("s_mov_b32 exec_hi, 0")
    a(f"buffer_store_dwordx4 {v(D+8,4)}, {v(T+2)}, {so}, s{S_T+2} offen offset:64{SC}")
    a("s_mov_b64 exec, -1")
    D2 = 112
    QP = [[100, 106], [14, 20]]
    for hd, (B1, B2, W1, W2) in enumerate(((PG+0, PG+4, WPE1, WPE2), (PG+6, PG+4, WPO1, WPO2))):
        feature_task(a, B1, B2, W1, W2, D2, E, T, QP[hd][0], QP[hd][1])
        P_, N_ = QP[hd]
        if mode == 'k2':
            a(f"v_mov_b32 {v(P_+5)}, 0")
            a(f"v_mov_b32 {v(N_+5)}, 0")
            continue
        if hd == 0:
            a(f"s_lshl_b32 s{S_T}, s{S_RB}, 2")
            a(f"s_add_u32 s{S_T}, s{S_T}, s{S_WAVE}")
            a(f"s_lshl_b32 s{S_T}, s{S_T}, 5")
            a(f"s_lshl_b32 s{S_T+1}, s{S_CB}, 1")
            a(f"s_add_u32 s{S_T}, s{S_T}, s{S_T+1}")
            a(f"s_mul_i32 s{S_T}, s{S_T}, 2560")
            a(f"s_add_u32 s{S_T}, s{S_T}, {WS_PHQ}")
            a(f"v_lshlrev_b32 {v(44)}, 4, v0")
            a(f"v_lshlrev_b32 {v(45)}, 3, v0")
        else:
            a(f"s_add_u32 s{S_T}, s{S_T}, 2560")
        a(f"v_mov_b32 {v(P_+5)}, {v(N_+4)}")
        a(f"buffer_store_dwordx4 {v(P_,4)}, {v(44)}, {so}, s{S_T} offen")
        a(f"buffer_store_dwordx4 {v(N_,4)}, {v(44)}, {so}, s{S_T} offen offset:1024")
        a(f"buffer_store_dwordx2 {v(P_+4,2)}, {v(45)}, {so}, s{S_T} offen offset:2048")
    if mode == 'k2':
        if dbg: a('s_memtime s[74:75]')
        a("s_waitcnt vmcnt(0)")
        a("s_barrier")
        lw = a.newlabel("a_wait_done")
        a(f"s_cmp_lg_u32 s{S_WAVE}, 0")
        a(f"s_cbranch_scc1 {lw}")
        a(f"s_lshl_b32 s{S_T}, s{S_CB}, 7")
        a(f"s_add_u32 s{S_T}, s{S_T}, {WS_FLAG}")
        a(f"s_lshl_b32 s{S_T+3}, s{S_RB}, 2")
        a(f"v_mov_b32 {v(T)}, s{S_T+3}")
        a(f"v_mov_b32 {v(T+1)}, s98")
        a("s_mov_b64 exec, 1")
        a(f"buffer_store_dword {v(T+1)}, {v(T)}, {so}, s{S_T} offen sc1")
        a("s_mov_b64 exec, 0xffff")
        a(f"v_lshlrev_b32 {v(T)}, 2, v0")
        a(f"s_mov_b32 s{S_T+1}, 0")
        lp = a.newlabel("a_poll")
        a.label(lp)
        a(f"buffer_load_dword {v(T+2)}, {v(T)}, {so}, s{S_T} offen sc1")
        a("s_waitcnt vmcnt(0)")
        a(f"v_cmp_eq_u32 vcc, s98, {v(T+2)}")
        a(f"s_add_u32 s{S_T+1}, s{S_T+1}, 1")
        a("s_nop 1")
        a(f"s_cmp_eq_u32 vcc_lo, 0xffff")
        lpd = a.newlabel("a_poll_done")
        a(f"s_cbranch_scc1 {lpd}")
        a("s_sleep 8")
        a(f"s_cmp_lt_u32 s{S_T+1}, 0x40000")
        a(f"s_cbranch_scc1 {lp}")
        a.label(lpd)
        a("s_mov_b64 exec, -1")
        a.label(lw)
        a("s_barrier")
        if dbg: a('s_memtime s[76:77]')
        back_part(a, dbg, sc=' sc1', fix_p4=False)
        return
    if dbg:
        a('s_memtime s[74:75]')
        a("s_waitcnt vmcnt(0)")
        a('s_memtime s[76:77]')
        stamp_end(a, WS_DBG + 256*512, KA_WS, S_WAVE, idsgpr="s2")
    a("s_endpgm")

def role_a2(a, dbg=False):
    T = 92
    QP = [[100, 106], [14, 20]]
    if dbg: stamp(a, 0)
    srd(a, S_O, KA_WS, 0)
    wave_lane(a, 3)
    a(f"s_cmp_lg_u32 s{S_T+14}, 0")
    lq = a.newlabel("a2_go")
    a(f"s_cbranch_scc0 {lq}")
    a("s_endpgm")
    a.label(lq)
    a(f"s_and_b32 s{S_T}, s2, 7")
    a(f"s_lshr_b32 s{S_T+1}, s2, 3")
    a(f"s_lshr_b32 s{S_T+2}, s{S_T}, 1")
    a(f"s_lshl_b32 s{S_RB}, s{S_T+2}, 2")
    a(f"s_lshr_b32 s{S_T+2}, s{S_T+1}, 3")
    a(f"s_add_u32 s{S_RB}, s{S_RB}, s{S_T+2}")
    a(f"s_and_b32 s{S_CB}, s{S_T}, 1")
    a(f"s_lshl_b32 s{S_CB}, s{S_CB}, 3")
    a(f"s_and_b32 s{S_T+2}, s{S_T+1}, 7")
    a(f"s_add_u32 s{S_CB}, s{S_CB}, s{S_T+2}")
    a("s_waitcnt lgkmcnt(0)")
    srd_fin(a, S_O, WS_SIZE_SRD)
    so = f"s[{S_O}:{S_O+3}]"
    a(f"s_lshl_b32 s{S_T}, s{S_RB}, 2")
    a(f"s_add_u32 s{S_T}, s{S_T}, s{S_WAVE}")
    a(f"s_lshl_b32 s{S_T}, s{S_T}, 5")
    a(f"s_lshl_b32 s{S_T+1}, s{S_CB}, 1")
    a(f"s_add_u32 s{S_T}, s{S_T}, s{S_T+1}")
    a(f"s_mul_i32 s{S_T}, s{S_T}, 2560")
    a(f"s_add_u32 s{S_T}, s{S_T}, {WS_PHQ}")
    a(f"v_lshlrev_b32 {v(44)}, 4, v0")
    a(f"v_lshlrev_b32 {v(45)}, 3, v0")
    for hd in range(2):
        P_, N_ = QP[hd]
        a(f"buffer_load_dwordx4 {v(P_,4)}, {v(44)}, {so}, s{S_T} offen offset:{0}")
        a(f"buffer_load_dwordx4 {v(N_,4)}, {v(44)}, {so}, s{S_T} offen offset:{1024}")
        a(f"buffer_load_dwordx2 {v(48+2*hd,2)}, {v(45)}, {so}, s{S_T} offen offset:{2048}")
        if hd == 0: a(f"s_add_u32 s{S_T}, s{S_T}, 2560")
    if dbg:
        a('s_memtime s[72:73]'); a('s_memtime s[74:75]'); a('s_memtime s[76:77]')
    back_part(a, dbg, sc='', fix_p4=True)

def back_part(a, dbg, sc, fix_p4):
    T = 92
    QP = [[100, 106], [14, 20]]
    so = f"s[{S_O}:{S_O+3}]"
    a(f"s_and_b32 s{S_T}, s{S_WAVE}, 1")
    a(f"s_lshr_b32 s{S_T+1}, s{S_WAVE}, 1")
    a(f"s_lshl_b32 s{S_T}, s{S_T}, 1")
    a(f"s_add_u32 s{S_T}, s{S_T}, s{S_T+1}")
    a(f"s_lshl_b32 s{S_T+1}, s{S_CB}, 2")
    a(f"s_add_u32 s{S_T+1}, s{S_T+1}, s{S_T}")
    a(f"s_mul_i32 s{S_T+1}, s{S_T+1}, {KVS_REC}")
    a(f"s_add_u32 s{S_T+1}, s{S_T+1}, {WS_KVP}")
    a(f"v_lshlrev_b32 {v(44)}, 4, v0")
    a(f"v_add_u32 {v(45)}, 1024, {v(44)}")
    a(f"v_mov_b32 {v(46)}, 0x7000000")
    a(f"v_cmp_gt_u32 vcc, 41, v0")
    a("s_nop 1")
    a(f"v_cndmask_b32 {v(45)}, {v(46)}, {v(45)}, vcc")
    ACC = 26
    RB0 = 64
    for i in range(8):
        a(f"v_mov_b32 {v(ACC+i)}, 0")
    def issue(b, base):
        for r_ in range(4):
            rb_ = 4*b + r_
            a(f"s_add_u32 s{S_T+2}, s{S_T+1}, {rb_*64*KVS_REC}")
            a(f"buffer_load_dwordx4 {v(base+8*r_,4)}, {v(44)}, {so}, s{S_T+2} offen{sc}")
            a(f"buffer_load_dwordx4 {v(base+8*r_+4,4)}, {v(45)}, {so}, s{S_T+2} offen{sc}")
    def accum(base, nvm):
        a(f"s_waitcnt vmcnt({nvm})")
        for r_ in range(4):
            for i in range(0, 8, 2):
                a(f"v_pk_add_f32 {v(ACC+i,2)}, {v(ACC+i,2)}, {v(base+8*r_+i,2)}")
    BA, BB = 64, 112 - 0
    issue(0, 64)
    def issue2(rb0, base):
        for r_ in range(2):
            rb_ = rb0 + r_
            a(f"s_add_u32 s{S_T+2}, s{S_T+1}, {rb_*64*KVS_REC}")
            a(f"buffer_load_dwordx4 {v(base+8*r_,4)}, {v(44)}, {so}, s{S_T+2} offen{sc}")
            a(f"buffer_load_dwordx4 {v(base+8*r_+4,4)}, {v(45)}, {so}, s{S_T+2} offen{sc}")
    def accum2(base, nvm):
        a(f"s_waitcnt vmcnt({nvm})")
        for r_ in range(2):
            for i in range(0, 8, 2):
                a(f"v_pk_add_f32 {v(ACC+i,2)}, {v(ACC+i,2)}, {v(base+8*r_+i,2)}")
    issue2(4, 112)
    accum(64, 4)
    issue(0, 64) if False else None
    for r_ in range(4):
        rb_ = 6 + r_
        a(f"s_add_u32 s{S_T+2}, s{S_T+1}, {rb_*64*KVS_REC}")
        a(f"buffer_load_dwordx4 {v(64+8*r_,4)}, {v(44)}, {so}, s{S_T+2} offen{sc}")
        a(f"buffer_load_dwordx4 {v(64+8*r_+4,4)}, {v(45)}, {so}, s{S_T+2} offen{sc}")
    accum2(112, 8)
    issue2(10, 112)
    accum(64, 4)
    for r_ in range(4):
        rb_ = 12 + r_
        a(f"s_add_u32 s{S_T+2}, s{S_T+1}, {rb_*64*KVS_REC}")
        a(f"buffer_load_dwordx4 {v(64+8*r_,4)}, {v(44)}, {so}, s{S_T+2} offen{sc}")
        a(f"buffer_load_dwordx4 {v(64+8*r_+4,4)}, {v(45)}, {so}, s{S_T+2} offen{sc}")
    accum2(112, 8)
    accum(64, 0)
    a(f"s_lshl_b32 s{S_T}, s{S_T}, 11")
    a(f"v_add_u32 {v(46)}, s{S_T}, {v(44)}")
    a(f"ds_write_b128 {v(46)}, {v(ACC,4)}")
    a(f"s_mov_b64 s[{S_T+1}:{S_T+2}], exec")
    a(f"v_cmp_gt_u32 vcc, 41, v0")
    a("s_nop 1")
    a("s_and_b64 exec, exec, vcc")
    a(f"ds_write_b128 {v(46)}, {v(ACC+4,4)} offset:1024")
    a("s_mov_b64 exec, -1")
    a("s_waitcnt lgkmcnt(0)")
    a("s_barrier")
    a(f"v_and_b32 {v(T)}, 31, v0")
    a(f"v_lshrrev_b32 {v(T+1)}, 5, v0")
    a(f"v_mov_b32 {v(T+2)}, 20")
    a(f"v_cmp_eq_u32 vcc, 24, {v(T)}")
    a("s_nop 1")
    a(f"v_cndmask_b32 {v(T)}, {v(T)}, {v(T+2)}, vcc")
    a(f"v_min_u32 {v(T+3)}, 20, {v(T)}")
    a(f"v_mul_u32_u24 {v(T+2)}, 80, {v(T+3)}")
    a(f"v_lshl_add_u32 {v(44)}, {v(T+1)}, 4, {v(T+2)}")
    a(f"v_lshl_add_u32 {v(45)}, {v(T+1)}, 3, {v(T+2)}")
    a(f"v_cmp_lt_u32 vcc, 20, {v(T)}")
    RAW = [64, 74, 84, 116]
    for c in range(4):
        a(f"ds_read_b128 {v(RAW[c],4)}, {v(44)} offset:{c*2048}")
        a(f"ds_read_b128 {v(RAW[c]+4,4)}, {v(44)} offset:{c*2048+32}")
        a(f"ds_read_b64 {v(RAW[c]+8,2)}, {v(45)} offset:{c*2048+64}")
    KF = [26, 32, 38, 94]
    for c in range(4):
        a(f"s_waitcnt lgkmcnt({3*(3-c)})")
        for i in range(5):
            a(f"v_cvt_pk_bf16_f32 {v(KF[c]+i)}, {v(RAW[c]+2*i)}, {v(RAW[c]+2*i+1)}")
            a(f"v_cndmask_b32 {v(KF[c]+i)}, {v(KF[c]+i)}, 0, vcc") if False else None
        a(f"v_mov_b32 {v(KF[c]+5)}, 0")
    a("s_nop 1")
    for hd in range(2 if fix_p4 else 0):
        P_, N_ = QP[hd]
        a(f"v_mov_b32 {v(P_+4)}, {v(48+2*hd)}")
        a(f"v_mov_b32 {v(N_+4)}, {v(48+2*hd+1)}")
        a(f"v_mov_b32 {v(P_+5)}, 0")
        a(f"v_mov_b32 {v(N_+5)}, 0")
    a("s_nop 1")
    DO = [64, 112]
    for hd in range(2):
        P_, N_ = QP[hd]
        a(f"v_mfma_f32_32x32x16_bf16 {v(DO[hd],16)}, {v(KF[2*hd],4)}, {v(P_,4)}, 0")
        a(f"v_mfma_f32_32x32x8_bf16 {v(DO[hd],16)}, {v(KF[2*hd]+4,2)}, {v(P_+4,2)}, {v(DO[hd],16)}")
        a(f"v_mfma_f32_32x32x16_bf16 {v(DO[hd],16)}, {v(KF[2*hd+1],4)}, {v(N_,4)}, {v(DO[hd],16)}")
        a(f"v_mfma_f32_32x32x8_bf16 {v(DO[hd],16)}, {v(KF[2*hd+1]+4,2)}, {v(N_+4,2)}, {v(DO[hd],16)}")
    TT = 100
    a(f"v_and_b32 {v(TT)}, 31, v0")
    a(f"v_lshrrev_b32 {v(TT+1)}, 5, v0")
    a(f"v_cmp_eq_u32 vcc, 0, {v(TT+1)}")
    if FUSE:
        a(f"s_mul_i32 s{S_T}, s{S_WAVE}, {64*OREC}")
        a(f"s_add_u32 s{S_T}, s{S_T}, 16384")
        a(f"v_mul_u32_u24 {v(TT)}, {OREC}, {v(TT)}")
        a(f"v_lshl_add_u32 {v(TT)}, {v(TT+1)}, 3, {v(TT)}")
        a(f"v_add_u32 {v(TT)}, s{S_T}, {v(TT)}")
        a(f"v_lshlrev_b32 {v(TT+2)}, 4, v0")
        a(f"v_add_u32 {v(TT+10)}, s{S_T}, {v(TT+2)}")
        a(f"s_lshl_b32 s{S_T+1}, s{S_RB}, 5")
        a(f"s_lshl_b32 s{S_T+2}, s{S_CB}, 1")
        a(f"s_add_u32 s{S_T+1}, s{S_T+1}, s{S_T+2}")
        a(f"s_mul_i32 s{S_T+1}, s{S_T+1}, {OBLK}")
        a(f"s_mul_i32 s{S_T+2}, s{S_WAVE}, {32*OREC}")
        a(f"s_add_u32 s{S_T+2}, s{S_T+2}, s{S_T+1}")
        a(f"s_add_u32 s{S_T+2}, s{S_T+2}, {WS_OAF}")
    else:
        a(f"s_lshl_b32 s{S_T}, s{S_RB}, 7")
        a(f"s_lshl_b32 s{S_T+1}, s{S_WAVE}, 5")
        a(f"s_add_u32 s{S_T}, s{S_T}, s{S_T+1}")
        a(f"v_add_u32 {v(TT)}, s{S_T}, {v(TT)}")
        a(f"v_mul_u32_u24 {v(TT)}, 1280, {v(TT)}")
        a(f"v_lshlrev_b32 {v(TT+2)}, 3, {v(TT+1)}")
        a(f"v_add_u32 {v(TT)}, {v(TT)}, {v(TT+2)}")
        a(f"s_mul_i32 s{S_T+2}, s{S_CB}, 80")
        a(f"s_add_u32 s{S_T+2}, s{S_T+2}, {WS_OA}")
    a(f"s_mov_b32 s{S_T+3}, {f32hex(1e-6)}")
    a("s_nop 7")
    a("s_nop 7")
    for hd in range(2):
        O = DO[hd]
        a(f"v_cndmask_b32 {v(TT+3)}, {v(O+8)}, {v(O+12)}, vcc")
        a(f"v_add_f32 {v(TT+3)}, s{S_T+3}, {v(TT+3)}")
        a(f"v_rcp_f32 {v(TT+3)}, {v(TT+3)}")
        a("s_nop 0")
        for i in range(0, 12, 2):
            a(f"v_pk_mul_f32 {v(O+i,2)}, {v(O+i,2)}, {v(TT+2,2)} op_sel:[0,1] op_sel_hi:[1,1]")
        for i in range(6):
            a(f"v_cvt_pk_bf16_f32 {v(TT+4+i)}, {v(O+2*i)}, {v(O+2*i+1)}")
        if FUSE:
            off = hd*32*OREC
            a(f"v_cndmask_b32 {v(TT+8)}, 0, {v(TT+8)}, vcc")
            a(f"v_cndmask_b32 {v(TT+9)}, 0, {v(TT+9)}, vcc")
            a(f"ds_write_b64 {v(TT)}, {v(TT+4,2)} offset:{off}")
            a(f"ds_write_b64 {v(TT)}, {v(TT+6,2)} offset:{off+16}")
            a(f"ds_write_b64 {v(TT)}, {v(TT+8,2)} offset:{off+32}")
        else:
            a(f"buffer_store_dwordx2 {v(TT+4,2)}, {v(TT)}, {so}, s{S_T+2} offen offset:{40*hd}")
            a(f"buffer_store_dwordx2 {v(TT+6,2)}, {v(TT)}, {so}, s{S_T+2} offen offset:{40*hd+16}")
            a("s_mov_b32 exec_hi, 0")
            a(f"buffer_store_dwordx2 {v(TT+8,2)}, {v(TT)}, {so}, s{S_T+2} offen offset:{40*hd+32}")
            a("s_mov_b64 exec, -1")
    if FUSE:
        a("s_waitcnt lgkmcnt(0)")
        a(f"ds_read_b128 {v(4,4)}, {v(TT+10)}")
        a(f"ds_read_b128 {v(8,4)}, {v(TT+10)} offset:1536")
        a(f"ds_read_b128 {v(16,4)}, {v(TT+10)} offset:1024")
        a(f"ds_read_b128 {v(20,4)}, {v(TT+10)} offset:2560")
        a("s_waitcnt lgkmcnt(0)")
        a(f"buffer_store_dwordx4 {v(4,4)}, {v(TT+2)}, {so}, s{S_T+2} offen sc1")
        a(f"s_add_u32 s{S_T+3}, s{S_T+2}, {OBLK}")
        a(f"buffer_store_dwordx4 {v(8,4)}, {v(TT+2)}, {so}, s{S_T+3} offen sc1")
        a("s_mov_b32 exec_hi, 0")
        a(f"buffer_store_dwordx4 {v(16,4)}, {v(TT+2)}, {so}, s{S_T+2} offen offset:1024 sc1")
        a(f"buffer_store_dwordx4 {v(20,4)}, {v(TT+2)}, {so}, s{S_T+3} offen offset:1024 sc1")
        a("s_mov_b64 exec, -1")
    if FUSE:
        a("s_waitcnt vmcnt(0)")
        a("s_barrier")
        lnf = a.newlabel("a_noflag")
        a(f"s_cmp_lg_u32 s{S_WAVE}, 0")
        a(f"s_cbranch_scc1 {lnf}")
        a(f"s_lshl_b32 s{S_T}, s{S_RB}, 7")
        a(f"s_add_u32 s{S_T}, s{S_T}, {WS_FLAGA}")
        a(f"s_lshl_b32 s{S_T+1}, s{S_CB}, 2")
        a(f"v_mov_b32 {v(TT)}, s{S_T+1}")
        a(f"v_mov_b32 {v(TT+1)}, s98")
        a("s_mov_b64 exec, 1")
        a(f"buffer_store_dword {v(TT+1)}, {v(TT)}, {so}, s{S_T} offen sc1")
        a("s_mov_b64 exec, -1")
        a.label(lnf)
        lx = a.newlabel("a_exit")
        a("s_bitcmp0_b32 s2, 3")
        a(f"s_cbranch_scc1 {lx}")
        a("s_setprio 0")
        a("s_mov_b32 s42, 0")
        a(f"s_branch {outp.L_COMPUTE}")
        a.label(lx)
    if dbg:
        a("s_waitcnt vmcnt(0)")
        stamp_end(a, WS_DBG, KA_WS, S_WAVE, idsgpr="s54")
    a("s_endpgm")
```

```python
from asmlib import *
from layout import *
import roles, gemm, outp
FUSE = True
WOPF = True
import os
CODEPF = int(os.environ.get('CODEPF', '0'))

CH = 8
CH_BYTES = CH * TILE_REC
NCH = 64 // CH
OPT = dict(nodma=False, nobar=False, nolds=False, prio=True, vmask=False, forcefb=False, cl4=False, uni=True)

V_A16 = 1
V_A8  = 2
V_G16 = 3
SA, SB = 4, 20
OA, OB = 36, 52
PA, PB = 68, 76
Q1A, Q1B = 84, 88
Q2A, Q2B = 92, 94
K1 = [96, 100]
VV0 = [104, 112]
VV1 = [108, 116]
K2 = [120, 122]
ATTN_NVGPR = 124
V_T0 = SA

S_WS = 8
S_HEAD = 12
S_QB = 13
S_WAVE = 14
S_DMAOFF = 15
S_LDSW = 16
S_BUFD = 17
S_CNT = 18
S_DMABUF = 19
S_T = 20

def mfma32(a, d, A, B, C, k16=True):
    op = "v_mfma_f32_32x32x16_bf16" if k16 else "v_mfma_f32_32x32x8_bf16"
    n = 4 if k16 else 2
    c = "0" if C is None else v(C, 16)
    a(f"{op} {v(d,16)}, {v(A,n)}, {v(B,n)}, {c}")

PENDING = []
def cvts(a, Sr, P, q):
    a(f"v_cvt_pk_bf16_f32 {v(P+2*q)}, {v(Sr+4*q)}, {v(Sr+4*q+1)}")
    a(f"v_cvt_pk_bf16_f32 {v(P+2*q+1)}, {v(Sr+4*q+2)}, {v(Sr+4*q+3)}")
def flush_cvts(a):
    while PENDING:
        cvts(a, *PENDING.pop(0))
def exps(a, Sr, P, q):
    for i in range(4):
        a(f"v_exp_f32 {v(Sr+4*q+i)}, {v(Sr+4*q+i)}")
    flush_cvts(a)
    PENDING.append((Sr, P, q))

V_GV = 10
S_K2O = 48
def dma_chunk(a):
    srd = f"s[{S_WS}:{S_WS+3}]"
    for rr in range(2):
        if rr == 0:
            a(f"s_add_u32 m0, s{S_DMABUF}, s{S_LDSW}")
        else:
            a(f"s_add_u32 m0, m0, {TILE_REC}")
        a(f"s_sub_u32 s{S_T+1}, s{S_DMAOFF}, 384")
        a(f"buffer_load_dwordx4 {v(V_G16)}, {srd}, s{S_DMAOFF} offen lds")
        a("s_mov_b64 exec, s[50:51]")
        a(f"buffer_load_dwordx4 {v(V_GV)}, {srd}, s{S_DMAOFF} offen offset:1024 lds")
        a(f"buffer_load_dwordx4 {v(V_GV)}, {srd}, s{S_T+1} offen offset:2048 lds")
        a("s_mov_b32 exec_lo, -1")
        a("s_mov_b32 exec_hi, 0")
        a(f"buffer_load_dwordx4 {v(V_G16)}, {srd}, s{S_K2O} offen offset:3072 lds")
        a("s_mov_b64 exec, -1")
        a(f"s_add_u32 s{S_DMAOFF}, s{S_DMAOFF}, {GREC if rr == 0 else 7*GREC}")
        a(f"s_add_u32 s{S_K2O}, s{S_K2O}, {512 if rr == 0 else 7*512}")

def safety_check_and_fallback(a):
    srd = f"s[{S_WS}:{S_WS+3}]"
    T = SA
    lok = a.newlabel("att_ok")
    a("s_nop 7")
    a("s_nop 3")
    a(f"v_lshrrev_b32 {v(T)}, 5, v0")
    a(f"v_cmp_eq_u32 vcc, 0, {v(T)}")
    a(f"s_mov_b64 s[26:27], 0")
    a(f"s_mov_b32 s28, 0x1f800000")
    a(f"s_mov_b32 s29, 0x5f800000")
    for O in (OA, OB):
        a(f"v_cndmask_b32 {v(T+1)}, {v(O+8)}, {v(O+12)}, vcc")
        a(f"v_pk_mul_f32 {v(T+2,2)}, {v(O,2)}, 0 op_sel_hi:[1,0]")
        for i in (2, 4, 6):
            a(f"v_pk_fma_f32 {v(T+2,2)}, {v(O+i,2)}, 0, {v(T+2,2)} op_sel_hi:[1,0,1]")
        a(f"v_pk_mul_f32 {v(T+4,2)}, {v(O+8,2)}, 0 op_sel_hi:[1,0]")
        a(f"v_pk_fma_f32 {v(T+4,2)}, {v(O+10,2)}, 0, {v(T+4,2)} op_sel_hi:[1,0,1]")
        a(f"v_cmp_nle_f32 s[22:23], s28, {v(T+1)}")
        a(f"v_cmp_nge_f32 s[24:25], s29, {v(T+1)}")
        a(f"v_cmp_u_f32 s[30:31], {v(T+2)}, {v(T+3)}")
        a(f"v_cmp_u_f32 s[36:37], {v(T+4)}, {v(T+5)}")
        a("s_nop 1")
        a("s_or_b64 s[26:27], s[26:27], s[22:23]")
        a("s_or_b64 s[26:27], s[26:27], s[24:25]")
        a("s_or_b64 s[26:27], s[26:27], s[30:31]")
        a("s_and_b64 s[36:37], s[36:37], vcc")
        a("s_or_b64 s[26:27], s[26:27], s[36:37]")
    if OPT['forcefb']:
        a("s_mov_b64 s[26:27], -1")
    lslow = a.newlabel("att_slow")
    if os.environ.get('INLINE_SLOW', '1') == '1':
        a("s_cmp_eq_u64 s[26:27], 0")
        a(f"s_cbranch_scc1 {lok}")
        slow_path_body(a, lok)
        a.label(lok)
        return
    a("s_cmp_lg_u64 s[26:27], 0")
    a(f"s_cbranch_scc1 {lslow}")
    a.label(lok)
    SLOW.append((lslow, lok))

SLOW = []
def emit_slow_paths(a):
    for (lslow, lok) in SLOW:
        a.label(lslow)
        slow_path_body(a, lok)
    SLOW.clear()

def slow_path_body(a, lok):
    srd = f"s[{S_WS}:{S_WS+3}]"
    T = SA
    G16 = V_G16; G8 = T+1; MA, MB, TM = T+2, T+3, 120
    X = [SA + 0]
    SX, SY = 20, 100
    KA1, KA2, VA0, VA1 = 116, 122, 68, 72
    PX, PY = 76, 8
    MA, MB, TM = 4, 6, 7
    G8 = 5
    a(f"v_lshlrev_b32 {v(G8)}, 3, v0")
    a(f"s_mul_i32 s22, s{S_HEAD}, {GHEAD}")
    a(f"s_add_u32 s22, s22, {WS_KVC}")
    a(f"s_lshr_b32 s21, s{S_HEAD}, 1")
    a(f"s_lshl_b32 s21, s21, 15")
    a(f"s_add_u32 s21, s21, {WS_K2S}")
    a(f"v_lshrrev_b32 {v(121)}, 5, v0")
    a(f"v_mul_u32_u24 {v(121)}, 320, {v(121)}")
    a(f"v_and_b32 {v(120)}, 31, v0")
    a(f"v_lshl_add_u32 {v(120)}, {v(120)}, 4, {v(121)}")
    a(f"s_and_b32 s23, s{S_HEAD}, 1")
    a(f"s_cmp_eq_u32 s23, 0")
    a(f"s_cselect_b32 s36, -1, 0")
    a(f"s_cselect_b32 s37, 0, -1")
    a(f"v_mov_b32 {v(KA2)}, 0"); a(f"v_mov_b32 {v(KA2+1)}, 0")
    a(f"v_mov_b32 {v(MA)}, 0xff800000"); a(f"v_mov_b32 {v(MB)}, 0xff800000")
    def load_k():
        a(f"s_add_u32 s24, s{S_CNT}, 63")
        a(f"s_and_b32 s24, s24, 63")
        a(f"s_lshl_b32 s25, s24, 9")
        a(f"s_add_u32 s25, s25, s21")
        a(f"s_mul_i32 s24, s24, {GREC}")
        a(f"s_add_u32 s24, s24, s22")
        a(f"buffer_load_dwordx4 {v(KA1,4)}, {v(G16)}, {srd}, s24 offen")
        a(f"s_mov_b64 exec, s[36:37]")
        a(f"buffer_load_dwordx2 {v(KA2,2)}, {v(G8)}, {srd}, s25 offen")
        a(f"s_mov_b64 exec, -1")
    def qk():
        mfma32(a, SX, KA1, Q1A, None); mfma32(a, SX, KA2, Q2A, SX, k16=False)
        mfma32(a, SY, KA1, Q1B, None); mfma32(a, SY, KA2, Q2B, SY, k16=False)
        a("s_nop 7"); a("s_nop 7")
    a(f"s_mov_b32 s{S_CNT}, 0")
    l1 = a.newlabel("fb_max")
    a.label(l1)
    load_k()
    a("s_waitcnt vmcnt(0)")
    qk()
    for (Sx, M) in ((SX, MA), (SY, MB)):
        for i in range(0, 16, 2):
            a(f"v_max3_f32 {v(M)}, {v(M)}, {v(Sx+i)}, {v(Sx+i+1)}")
    a(f"s_add_u32 s{S_CNT}, s{S_CNT}, 1")
    a(f"s_cmp_lt_u32 s{S_CNT}, 64")
    a(f"s_cbranch_scc1 {l1}")
    for M in (MA, MB):
        a(f"v_mov_b32 {v(TM)}, {v(M)}")
        a("s_nop 1")
        a(f"v_permlane32_swap_b32 {v(M)}, {v(TM)}")
        a("s_nop 1")
        a(f"v_max_f32 {v(M)}, {v(M)}, {v(TM)}")
    for r in list(range(OA, OA+32)):
        a(f"v_mov_b32 {v(r)}, 0")
    a(f"v_and_b32 {v(TM)}, 31, v0")
    a(f"v_cmp_eq_u32 s[24:25], 20, {v(TM)}")
    a(f"v_cmp_eq_u32 vcc, 24, {v(TM)}")
    a(f"v_mov_b32 {v(TM)}, 0x3f803f80")
    a("s_nop 1")
    a("s_or_b64 vcc, vcc, s[24:25]")
    a("s_nop 1")
    for r in range(VA0, VA0+8):
        a(f"v_cndmask_b32 {v(r)}, 0, {v(TM)}, vcc")
    a("s_mov_b32 s38, 0x000fffff")
    a("s_mov_b32 s39, 0x000fffff")
    a(f"s_mov_b32 s{S_CNT}, 0")
    l2 = a.newlabel("fb_main")
    a.label(l2)
    load_k()
    a(f"s_mul_i32 s24, s{S_CNT}, {GREC}")
    a(f"s_add_u32 s24, s24, s22")
    a(f"s_mov_b64 exec, s[38:39]")
    a(f"buffer_load_dwordx4 {v(VA0,4)}, {v(120)}, {srd}, s24 offen offset:1024")
    a(f"buffer_load_dwordx4 {v(VA1,4)}, {v(120)}, {srd}, s24 offen offset:1664")
    a(f"s_mov_b64 exec, -1")
    a("s_waitcnt vmcnt(0)")
    qk()
    for (Sx, M, P, O) in ((SX, MA, PX, OA), (SY, MB, PY, OB)):
        for i in range(16):
            a(f"v_sub_f32 {v(Sx+i)}, {v(Sx+i)}, {v(M)}")
        for i in range(16):
            a(f"v_exp_f32 {v(Sx+i)}, {v(Sx+i)}")
        a("s_nop 0")
        for k in range(8):
            a(f"v_cvt_pk_bf16_f32 {v(P+k)}, {v(Sx+2*k)}, {v(Sx+2*k+1)}")
        a("s_nop 1")
        mfma32(a, O, VA0, P, O)
        mfma32(a, O, VA1, P+4, O)
    a(f"s_add_u32 s{S_CNT}, s{S_CNT}, 1")
    a(f"s_cmp_lt_u32 s{S_CNT}, 64")
    a(f"s_cbranch_scc1 {l2}")
    a("s_nop 7")
    a("s_nop 7")
    a(f"s_branch {lok}")


def gen_attn(a, dbg_time=False):
    srd = f"s[{S_WS}:{S_WS+3}]"
    if dbg_time and not MEGA[0]: stamp(a, 0)
    a(f"s_load_dwordx2 s[{S_WS}:{S_WS+1}], s[0:1], {KA_WS}")
    if FUSE and WOPF:
        a(f"s_load_dwordx2 s[40:41], s[0:1], {KA_AWO}")
        a(f"s_load_dwordx2 s[42:43], s[0:1], {KA_BWO}")
    a(f"s_and_b32 s{S_T}, s2, 7")
    a(f"s_lshr_b32 s{S_T+1}, s2, 3")
    a(f"s_and_b32 s{S_T+2}, s{S_T+1}, 3")
    a(f"s_lshl_b32 s{S_HEAD}, s{S_T}, 2")
    a(f"s_add_u32 s{S_HEAD}, s{S_HEAD}, s{S_T+2}")
    a(f"s_lshr_b32 s{S_QB}, s{S_T+1}, 2")
    if MEGA[0]:
        a(f"s_mov_b32 s{S_WAVE}, s61")
    else:
        a(f"v_lshrrev_b32 {v(SA)}, 6, v0")
        a(f"v_and_b32 v0, 63, v0")
        a(f"v_readfirstlane_b32 s{S_WAVE}, {v(SA)}")
        a("s_mov_b32 s98, 1")
    a(f"v_lshlrev_b32 {v(V_G16)}, 4, v0")
    a(f"s_mul_i32 s{S_T+6}, s{S_HEAD}, {GHEAD}")
    a(f"s_add_u32 s{S_T+6}, s{S_T+6}, {WS_KVC}")
    a(f"s_lshr_b32 s{S_T+7}, s{S_HEAD}, 1")
    a(f"s_lshl_b32 s{S_T+7}, s{S_T+7}, 15")
    a(f"s_add_u32 s{S_T+7}, s{S_T+7}, {WS_K2S}")
    a("s_waitcnt lgkmcnt(0)")
    a(f"s_mov_b32 s{S_WS+2}, {WS_SIZE_SRD}")
    a(f"s_mov_b32 s{S_WS+3}, 0x00020000")
    a(f"s_mov_b32 s61, s{S_WAVE}")
    off_stamp(a, 2, neg=True, back=0, cond_wave=S_WAVE)
    off_stamp(a, 3, back=0, cond_wave=S_WAVE)
    lcomp = a.newlabel("attn_compute")
    a(f"s_cmp_lt_u32 s{S_WAVE}, 4")
    a(f"s_cbranch_scc1 {lcomp}")
    if MEGA[0]:
        lnp = a.newlabel("q2_nopoll")
        a(f"s_cmp_lg_u32 s{S_WAVE}, 4")
        a(f"s_cbranch_scc1 {lnp}")
        a("v_mov_b32 v4, 0")
        a("ds_read_b32 v5, v4")
        a("s_waitcnt lgkmcnt(0)")
        a("v_readfirstlane_b32 s98, v5")
        a(f"s_lshr_b32 s{S_T}, s{S_HEAD}, 1")
        a(f"s_mul_i32 s{S_T}, s{S_T}, 40")
        a(f"s_add_u32 s{S_T+1}, s{S_T}, 39")
        a(f"s_lshr_b32 s{S_T}, s{S_T}, 7")
        a(f"s_lshr_b32 s{S_T+1}, s{S_T+1}, 7")
        a(f"v_lshrrev_b32 v4, 4, v0")
        a(f"v_and_b32 v5, 1, v4")
        a(f"s_sub_u32 s{S_T+2}, s{S_T+1}, s{S_T}")
        a(f"v_mul_u32_u24 v5, s{S_T+2}, v5")
        a(f"v_lshrrev_b32 v4, 1, v4")
        a(f"v_mul_u32_u24 v4, 5, v4")
        a(f"v_add3_u32 v4, v4, v5, s{S_T}")
        a(f"v_add_u32 v4, 5, v4")
        a(f"v_lshlrev_b32 v4, 7, v4")
        a(f"v_and_b32 v5, 15, v0")
        a(f"v_lshl_add_u32 v4, v5, 2, v4")
        a(f"v_and_b32 v6, 1, v0")
        a(f"v_mul_u32_u24 v6, s{S_T+2}, v6")
        a(f"v_add_u32 v6, s{S_T}, v6")
        a(f"v_lshlrev_b32 v6, 7, v6")
        a(f"v_bfe_u32 v7, v0, 1, 1")
        a(f"s_lshl_b32 s{S_T+3}, s{S_QB}, 1")
        a(f"v_add_u32 v7, s{S_T+3}, v7")
        a(f"v_lshl_add_u32 v6, v7, 2, v6")
        a(f"s_mov_b32 s{S_T+3}, {WS_FLAGQ}")
        a(f"s_mov_b32 s{S_T+4}, 0")
        lp = a.newlabel("q2_poll"); lpd = a.newlabel("q2_done")
        a.label(lp)
        a(f"buffer_load_dword v8, v4, {srd}, s{S_T+3} offen sc1")
        a(f"buffer_load_dword v9, v6, {srd}, s{S_T+3} offen sc1")
        a("s_waitcnt vmcnt(0)")
        a(f"v_cmp_eq_u32 vcc, s98, v8")
        a(f"v_cmp_eq_u32 s[28:29], s98, v9")
        a(f"s_add_u32 s{S_T+4}, s{S_T+4}, 1")
        a("s_nop 1")
        a("s_and_b64 vcc, vcc, s[28:29]")
        a("s_cmp_eq_u64 vcc, -1")
        a(f"s_cbranch_scc1 {lpd}")
        a("s_sleep 2")
        a(f"s_cmp_lt_u32 s{S_T+4}, 0x40000")
        a(f"s_cbranch_scc1 {lp}")
        a.label(lpd)
        a.label(lnp)
        a("s_barrier")
    a(f"s_sub_u32 s{S_T}, s{S_WAVE}, 4")
    a(f"s_mul_i32 s{S_LDSW}, s{S_T}, {2*TILE_REC}")
    a(f"s_mul_i32 s{S_T+1}, s{S_T}, {2*GREC}")
    a(f"s_add_u32 s{S_DMAOFF}, s{S_T+6}, s{S_T+1}")
    a(f"s_lshl_b32 s{S_T+1}, s{S_T}, 10")
    a(f"s_add_u32 s{S_K2O}, s{S_T+7}, s{S_T+1}")
    a(f"s_sub_u32 s{S_K2O}, s{S_K2O}, 3072")
    a("s_mov_b32 s50, 0x000fffff")
    a("s_mov_b32 s51, 0x000fffff")
    a(f"v_lshrrev_b32 v11, 5, v0")
    a(f"v_mul_u32_u24 v11, 320, v11")
    a(f"v_and_b32 {v(V_GV)}, 31, v0")
    a(f"v_lshl_add_u32 {v(V_GV)}, {v(V_GV)}, 4, v11")
    a(f"s_mov_b32 s{S_DMABUF}, 0")
    dma_chunk(a)
    if CODEPF:
        lcp = a.newlabel("codepf_skip"); lpc = a.newlabel("codepf_pc")
        a(f"s_lshr_b32 s{S_T}, s2, 3")
        a(f"s_cmp_ge_u32 s{S_T}, {CODEPF}")
        a(f"s_cbranch_scc1 {lcp}")
        a(f"s_cmp_lg_u32 s{S_WAVE}, 7")
        a(f"s_cbranch_scc1 {lcp}")
        a("s_getpc_b64 s[36:37]")
        a.label(lpc)
        a(f"s_lshl_b32 s{S_T}, s{S_T}, 13")
        a(f"v_lshlrev_b32 v6, 7, v0")
        a(f"v_add_u32 v6, s{S_T}, v6")
        a(f"v_mov_b32 v7, s37")
        a(f"v_subrev_u32 v8, ({lpc} - attn_kernel), v6") if False else None
        a(f"s_sub_u32 s36, s36, ({lpc} - attn_kernel)")
        a(f"s_subb_u32 s37, s37, 0")
        a(f"v_mov_b32 v7, s37")
        a(f"v_add_co_u32 v6, vcc, s36, v6")
        a("s_nop 1")
        a(f"v_addc_co_u32 v7, vcc, 0, v7, vcc")
        a(f"v_lshlrev_b32 v9, 7, v0")
        a(f"v_add_u32 v9, s{S_T}, v9")
        a(f"v_cmp_gt_u32 vcc, (L_k2_code_end - attn_kernel), v9")
        a("s_and_saveexec_b64 s[38:39], vcc")
        a(f"s_cbranch_execz {lcp}_r")
        a(f"global_load_dword v8, v[6:7], off")
        a.label(f"{lcp}_r")
        a("s_mov_b64 exec, -1")
        a.label(lcp)
    if FUSE and WOPF:
        a(f"s_lshr_b32 s{S_T}, s2, 3")
        a(f"s_mul_i32 s{S_T}, s{S_T}, 200")
        a(f"s_sub_u32 s{S_T+1}, s{S_WAVE}, 4")
        a(f"s_lshl_b32 s{S_T+1}, s{S_T+1}, 6")
        a(f"s_add_u32 s{S_T}, s{S_T}, s{S_T+1}")
        a(f"v_add_u32 v4, s{S_T}, v0")
        a(f"v_lshlrev_b32 v4, 7, v4")
        a(f"s_mov_b32 s46, {640*1280}")
        a(f"s_mov_b32 s47, 0x00020000")
    a(f"s_mov_b32 s{S_DMABUF}, {CH_BYTES}")
    a(f"s_mov_b32 s{S_CNT}, 0")
    a("s_waitcnt vmcnt(0)")
    a("s_barrier")
    lloop = a.newlabel("ld_loop"); lskip = a.newlabel("ld_skip")
    a.label(lloop)
    a(f"s_cmp_ge_u32 s{S_CNT}, {NCH-1}")
    a(f"s_cbranch_scc1 {lskip}")
    if not OPT['nodma']:
        dma_chunk(a)
    if FUSE and WOPF:
        lsk = a.newlabel("wopf_skip")
        a(f"s_sub_u32 s{S_T+1}, s{S_CNT}, 1")
        a(f"s_cmp_gt_u32 s{S_T+1}, 1")
        a(f"s_cbranch_scc1 {lsk}")
        a(f"s_cmp_eq_u32 s{S_CNT}, 1")
        a(f"s_cselect_b32 s44, s40, s42")
        a(f"s_cselect_b32 s45, s41, s43")
        a(f"buffer_load_dword v5, v4, s[44:47], 0 offen")
        a.label(lsk)
    a(f"s_sub_u32 s{S_DMABUF}, {CH_BYTES}, s{S_DMABUF}")
    a("s_waitcnt vmcnt(0)")
    a.label(lskip)
    if not OPT['nobar']:
        a("s_barrier")
    if gemm.GOPT['ststamp']:
        a("s_memtime s[90:91]"); a("s_waitcnt lgkmcnt(0)")
        a(f"s_mov_b32 m0, s{S_CNT}")
        a("s_sub_u32 s90, s90, s70")
        a("v_writelane_b32 v14, s90, m0")
    a(f"s_add_u32 s{S_CNT}, s{S_CNT}, 1")
    a(f"s_cmp_lt_u32 s{S_CNT}, {NCH}")
    a(f"s_cbranch_scc1 {lloop}")
    if gemm.GOPT['ststamp']:
        a(f"s_lshl_b32 s92, s2, 7")
        a(f"s_add_u32 s92, s92, {0x1E00000}")
        a("v_lshlrev_b32 v13, 2, v0")
        a(f"s_cmp_lg_u32 s{S_WAVE}, 4")
        lss = a.newlabel("ss_skip")
        a(f"s_cbranch_scc1 {lss}")
        a("s_mov_b64 exec, 0xff")
        a(f"buffer_store_dword v14, v13, {srd}, s92 offen")
        a("s_mov_b64 exec, -1")
        a.label(lss)
    if FUSE:
        lx = a.newlabel("ld_exit")
        a("s_bitcmp1_b32 s2, 3")
        a(f"s_cbranch_scc1 {lx}")
        a(f"s_and_b32 s{gemm.S_WAVE}, s{S_WAVE}, 3")
        a("s_mov_b32 s42, 1")
        a(f"s_branch {outp.L_LOADER}")
        a.label(lx)
    a("s_endpgm")
    a.label(lcomp)
    if MEGA[0]: a("s_barrier")
    if OPT['prio']: a("s_setprio 2")
    a(f"v_mov_b32 {v(V_A16)}, {v(V_G16)}")
    a(f"v_lshlrev_b32 {v(V_A8)}, 3, v0")
    a(f"s_lshl_b32 s{S_T}, s{S_QB}, 3")
    a(f"s_lshl_b32 s{S_T+1}, s{S_WAVE}, 1")
    a(f"s_add_u32 s{S_T}, s{S_T}, s{S_T+1}")
    a(f"s_lshl_b32 s{S_T+1}, s{S_HEAD}, 6")
    a(f"s_add_u32 s{S_T+1}, s{S_T+1}, s{S_T}")
    a(f"s_lshl_b32 s{S_T+1}, s{S_T+1}, 10")
    a(f"s_add_u32 s{S_T+1}, s{S_T+1}, {WS_Q1}")
    a(f"buffer_load_dwordx4 {v(Q1A,4)}, {v(V_G16)}, {srd}, s{S_T+1} offen")
    a(f"buffer_load_dwordx4 {v(Q1B,4)}, {v(V_G16)}, {srd}, s{S_T+1} offen offset:1024")
    a(f"s_lshr_b32 s{S_T+2}, s{S_HEAD}, 1")
    a(f"s_lshl_b32 s{S_T+2}, s{S_T+2}, 6")
    a(f"s_add_u32 s{S_T+2}, s{S_T+2}, s{S_T}")
    a(f"s_lshl_b32 s{S_T+2}, s{S_T+2}, 9")
    a(f"s_add_u32 s{S_T+2}, s{S_T+2}, {WS_Q2}")
    a(f"buffer_load_dwordx2 {v(Q2A,2)}, {v(V_A8)}, {srd}, s{S_T+2} offen")
    a(f"buffer_load_dwordx2 {v(Q2B,2)}, {v(V_A8)}, {srd}, s{S_T+2} offen offset:512")
    a(f"s_add_u32 s{S_T+3}, s{S_T+6}, {63*GREC}")
    a(f"buffer_load_dwordx4 {v(K1[1],4)}, {v(V_G16)}, {srd}, s{S_T+3} offen")
    a(f"s_add_u32 s{S_T+3}, s{S_T+7}, {63*512}")
    a(f"buffer_load_dwordx2 {v(K2[1],2)}, {v(V_A8)}, {srd}, s{S_T+3} offen")
    a(f"v_and_b32 {v(SA)}, 27, v0")
    a(f"v_cmp_eq_u32 vcc, 20, {v(SA)}") if False else None
    a(f"v_and_b32 {v(SA)}, 31, v0")
    a(f"v_and_b32 {v(SA+1)}, 27, {v(SA)}")
    a(f"v_cmp_eq_u32 s[22:23], 20, {v(SA)}")
    a(f"v_cmp_eq_u32 s[24:25], 24, {v(SA)}")
    a(f"v_mov_b32 {v(SA+2)}, 0x3f803f80")
    a("s_nop 0")
    a("s_or_b64 vcc, s[22:23], s[24:25]")
    a("s_nop 1")
    for i in range(4):
        a(f"v_cndmask_b32 {v(SA+4+i)}, 0, {v(SA+2)}, vcc")
    a(f"s_mul_i32 s{S_T+3}, s{S_WAVE}, {4*TILE_REC}")
    a(f"v_add_u32 {v(SA+3)}, s{S_T+3}, {v(V_G16)}")
    a("s_mov_b32 exec_lo, 0xfff00000")
    a("s_mov_b32 exec_hi, 0xfff00000")
    for rr in range(4):
        for mf in range(2):
            a(f"ds_write_b128 {v(SA+3)}, {v(SA+4,4)} offset:{rr*TILE_REC + 1024 + 1024*mf}")
    a("s_mov_b64 exec, -1")
    for r in list(range(OA, OA+32)) + list(range(PB, PB+8)) + list(range(SB+12, SB+16)) + list(range(VV0[1], VV0[1]+4)) + list(range(VV1[1], VV1[1]+4)) + list(range(VV0[0], VV0[0]+4)) + list(range(VV1[0], VV1[0]+4)):
        a(f"v_mov_b32 {v(r)}, 0")
    a(f"s_and_b32 s{S_T+3}, s{S_HEAD}, 1")
    a(f"s_cmp_eq_u32 s{S_T+3}, 0")
    a(f"s_cselect_b32 s{S_T+4}, 0, -1")
    a(f"s_cselect_b32 s{S_T+5}, -1, 0")
    a(f"s_mov_b32 s{S_BUFD}, {CH_BYTES}")
    a("s_mov_b32 s34, 0x011fffff")
    a("s_mov_b32 s35, 0x011fffff")
    a("s_waitcnt vmcnt(0)")
    a(f"s_mov_b64 exec, s[{S_T+4}:{S_T+5}]")
    for r in (Q2A, Q2A+1, Q2B, Q2B+1):
        a(f"v_mov_b32 {v(r)}, 0")
    a("s_mov_b64 exec, -1")
    a("s_nop 1")
    a("s_waitcnt lgkmcnt(0)")
    mfma32(a, SA, K1[1], Q1A, None)
    mfma32(a, SA, K2[1], Q2A, SA, k16=False)
    a(f"s_mov_b32 s{S_CNT}, 0")
    a("s_barrier")
    def rd(txt):
        if not OPT['nolds']: a(txt)
    def reads(st, off):
        rd(f"ds_read_b128 {v(K1[st],4)}, {v(V_A16)} offset:{off}")
        rd(f"ds_read_b64 {v(K2[st],2)}, {v(V_A8)} offset:{off+3072}")
        if OPT['vmask']: a("s_mov_b64 exec, s[34:35]")
        rd(f"ds_read_b128 {v(VV0[st],4)}, {v(V_A16)} offset:{off+1024}")
        rd(f"ds_read_b128 {v(VV1[st],4)}, {v(V_A16)} offset:{off+2048}")
        if OPT['vmask']: a("s_mov_b64 exec, -1")
    reads(0, 0)
    a("s_nop 7")
    if dbg_time:
        stamp(a, 1)
        a("s_waitcnt lgkmcnt(0)")
    off_stamp(a, 4, back=0, cond_wave=S_WAVE)
    loop = a.newlabel("attn_loop")
    a.raw(".p2align 6")
    a.label(loop)
    def E(Sr, i): a(f"v_exp_f32 {v(Sr+i)}, {v(Sr+i)}")
    def C(Sr, P, k): a(f"v_cvt_pk_bf16_f32 {v(P+k)}, {v(Sr+2*k)}, {v(Sr+2*k+1)}")
    PEND = []
    def phase(Sr, P, m, rds):
        if OPT['uni']:
            for q in range(4):
                m[q]()
                if q == 0:
                    for r_ in rds[0:2]: rd(r_)
                if q == 1 and rds:
                    if OPT['vmask']: a("s_mov_b64 exec, s[34:35]")
                    for r_ in rds[2:4]: rd(r_)
                    if OPT['vmask']: a("s_mov_b64 exec, -1")
                for i in range(4): E(Sr, 4*q+i)
                while PEND:
                    (s_, p_, k_) = PEND.pop(0); C(s_, p_, k_)
                PEND.append((Sr, P, 2*q)); PEND.append((Sr, P, 2*q+1))
            return
        if OPT['cl4']:
            m[0]()
            for r_ in rds[0:2]: rd(r_)
            for i in (0, 1, 2): E(Sr, i)
            m[1]()
            if rds and OPT['vmask']: a("s_mov_b64 exec, s[34:35]")
            for r_ in rds[2:4]: rd(r_)
            if rds and OPT['vmask']: a("s_mov_b64 exec, -1")
            for i in (3, 4, 5): E(Sr, i)
            m[2]()
            for i in (6, 7, 8): E(Sr, i)
            m[3]()
            for i in range(9, 16): E(Sr, i)
            for k in range(8): C(Sr, P, k)
            return
        m[0]()
        for r_ in rds[0:2]: rd(r_)
        for i in (0, 1, 2): E(Sr, i)
        m[1]()
        if rds and OPT['vmask']: a("s_mov_b64 exec, s[34:35]")
        for r_ in rds[2:4]: rd(r_)
        if rds and OPT['vmask']: a("s_mov_b64 exec, -1")
        for i in (3, 4, 5, 6, 7): E(Sr, i)
        for k in (0, 1, 2, 3): C(Sr, P, k)
        m[2]()
        for i in (8, 9, 10): E(Sr, i)
        m[3]()
        for i in (11, 12, 13, 14, 15): E(Sr, i)
        for k in (4, 5, 6, 7): C(Sr, P, k)
    if OPT['uni']:
        PEND.append((SB, PB, 6)); PEND.append((SB, PB, 7))
    for j in range(CH):
        p = j & 1; pn = p ^ 1
        phase(SA, PA, [lambda: mfma32(a, OB, VV0[pn], PB, OB), lambda: mfma32(a, SB, K1[pn], Q1B, None),
                       lambda: mfma32(a, SB, K2[pn], Q2B, SB, k16=False), lambda: mfma32(a, OB, VV1[pn], PB+4, OB)], [])
        if not OPT['nolds']: a("s_waitcnt lgkmcnt(0)")
        if j == CH-1:
            if not OPT['nobar']:
                a("s_barrier")
            a(f"v_add_u32 {v(V_A16)}, s{S_BUFD}, {v(V_A16)}")
            a(f"v_add_u32 {v(V_A8)}, s{S_BUFD}, {v(V_A8)}")
            a(f"s_sub_u32 s{S_BUFD}, 0, s{S_BUFD}")
            off = 0
        else:
            off = (j+1)*TILE_REC
        rds = [f"ds_read_b128 {v(K1[pn],4)}, {v(V_A16)} offset:{off}",
               f"ds_read_b64 {v(K2[pn],2)}, {v(V_A8)} offset:{off+3072}",
               f"ds_read_b128 {v(VV0[pn],4)}, {v(V_A16)} offset:{off+1024}",
               f"ds_read_b128 {v(VV1[pn],4)}, {v(V_A16)} offset:{off+2048}"]
        phase(SB, PB, [lambda: mfma32(a, OA, VV0[p], PA, OA), lambda: mfma32(a, SA, K1[p], Q1A, None),
                       lambda: mfma32(a, SA, K2[p], Q2A, SA, k16=False), lambda: mfma32(a, OA, VV1[p], PA+4, OA)], rds)
    a(f"s_add_u32 s{S_CNT}, s{S_CNT}, 1")
    a(f"s_cmp_lt_u32 s{S_CNT}, {NCH}")
    a(f"s_cbranch_scc1 {loop}")
    if dbg_time: stamp(a, 2)
    if OPT['uni']:
        while PEND:
            (s_, p_, k_) = PEND.pop(0); C(s_, p_, k_)
    a("s_nop 1")
    mfma32(a, OB, VV0[1], PB, OB)
    mfma32(a, OB, VV1[1], PB+4, OB)
    off_stamp(a, 5, back=0, cond_wave=S_WAVE)
    off_stamp(a, 6, neg=True, back=0, cond_wave=S_WAVE)
    safety_check_and_fallback(a)
    T = 84
    a(f"v_and_b32 {v(T)}, 31, v0")
    a(f"v_lshrrev_b32 {v(T+1)}, 5, v0")
    a(f"v_cmp_eq_u32 vcc, 0, {v(T+1)}")
    if FUSE:
        a(f"s_mul_i32 s{S_T}, s{S_WAVE}, {64*OREC}")
        a(f"s_add_u32 s{S_T}, s{S_T}, 61440")
        a(f"v_mul_u32_u24 {v(T)}, {OREC}, {v(T)}")
        a(f"v_lshl_add_u32 {v(T)}, {v(T+1)}, 3, {v(T)}")
        a(f"v_add_u32 {v(T)}, s{S_T}, {v(T)}")
        a(f"v_lshlrev_b32 {v(T+2)}, 4, v0")
        a(f"v_add_u32 {v(T+10)}, s{S_T}, {v(T+2)}")
        a(f"s_lshl_b32 s{S_T+1}, s{S_QB}, 1")
        a(f"s_lshr_b32 s{S_T+2}, s{S_WAVE}, 1")
        a(f"s_add_u32 s{S_T+1}, s{S_T+1}, s{S_T+2}")
        a(f"s_lshl_b32 s{S_T+1}, s{S_T+1}, 5")
        a(f"s_add_u32 s{S_T+1}, s{S_T+1}, s{S_HEAD}")
        a(f"s_mul_i32 s{S_T+1}, s{S_T+1}, {OBLK}")
        a(f"s_and_b32 s{S_T+2}, s{S_WAVE}, 1")
        a(f"s_mul_i32 s{S_T+2}, s{S_T+2}, {64*OREC}")
        a(f"s_add_u32 s{S_T+2}, s{S_T+2}, s{S_T+1}")
        a(f"s_add_u32 s{S_T+2}, s{S_T+2}, {WS_OBF}")
    else:
        a(f"s_lshl_b32 s{S_T}, s{S_QB}, 8")
        a(f"s_lshl_b32 s{S_T+1}, s{S_WAVE}, 6")
        a(f"s_add_u32 s{S_T}, s{S_T}, s{S_T+1}")
        a(f"v_add_u32 {v(T)}, s{S_T}, {v(T)}")
        a(f"v_mul_u32_u24 {v(T)}, 1280, {v(T)}")
        a(f"v_lshlrev_b32 {v(T+2)}, 3, {v(T+1)}")
        a(f"v_add_u32 {v(T)}, {v(T)}, {v(T+2)}")
        a(f"s_mul_i32 s{S_T+2}, s{S_HEAD}, 40")
        a(f"s_add_u32 s{S_T+2}, s{S_T+2}, {WS_OB}")
    a("s_nop 1")
    for n_, (O, extra) in enumerate(((OA, 0), (OB, 32*1280))):
        if n_ == 1:
            a("s_nop 7")
        a(f"v_cndmask_b32 {v(T+3)}, {v(O+8)}, {v(O+12)}, vcc")
        a(f"v_rcp_f32 {v(T+3)}, {v(T+3)}")
        a("s_nop 0")
        for i in range(12):
            a(f"v_mul_f32 {v(O+i)}, {v(O+i)}, {v(T+3)}")
        for i in range(6):
            a(f"v_cvt_pk_bf16_f32 {v(T+4+i)}, {v(O+2*i)}, {v(O+2*i+1)}")
        if FUSE:
            off = n_*32*OREC
            a(f"v_cndmask_b32 {v(T+8)}, 0, {v(T+8)}, vcc")
            a(f"v_cndmask_b32 {v(T+9)}, 0, {v(T+9)}, vcc")
            a(f"ds_write_b64 {v(T)}, {v(T+4,2)} offset:{off}")
            a(f"ds_write_b64 {v(T)}, {v(T+6,2)} offset:{off+16}")
            a(f"ds_write_b64 {v(T)}, {v(T+8,2)} offset:{off+32}")
        else:
            if extra:
                a(f"s_add_u32 s{S_T+2}, s{S_T+2}, {extra}")
            a(f"buffer_store_dwordx2 {v(T+4,2)}, {v(T)}, {srd}, s{S_T+2} offen")
            a(f"buffer_store_dwordx2 {v(T+6,2)}, {v(T)}, {srd}, s{S_T+2} offen offset:16")
            a("s_mov_b32 exec_hi, 0")
            a(f"buffer_store_dwordx2 {v(T+8,2)}, {v(T)}, {srd}, s{S_T+2} offen offset:32")
            a(f"s_mov_b64 exec, -1")
    if FUSE:
        a("s_waitcnt lgkmcnt(0)")
        a(f"ds_read_b128 {v(4,4)}, {v(T+10)}")
        a(f"ds_read_b128 {v(8,4)}, {v(T+10)} offset:1024")
        a(f"ds_read_b128 {v(12,4)}, {v(T+10)} offset:2048")
        a("s_waitcnt lgkmcnt(0)")
        a(f"buffer_store_dwordx4 {v(4,4)}, {v(T+2)}, {srd}, s{S_T+2} offen sc1")
        a(f"buffer_store_dwordx4 {v(8,4)}, {v(T+2)}, {srd}, s{S_T+2} offen offset:1024 sc1")
        a(f"buffer_store_dwordx4 {v(12,4)}, {v(T+2)}, {srd}, s{S_T+2} offen offset:2048 sc1")
    if FUSE:
        a("s_waitcnt vmcnt(0) lgkmcnt(0)")
        a("s_barrier")
        lnf = a.newlabel("att_noflag")
        a(f"s_cmp_lg_u32 s{S_WAVE}, 0")
        a(f"s_cbranch_scc1 {lnf}")
        a(f"s_lshl_b32 s{S_T}, s{S_QB}, 7")
        a(f"s_add_u32 s{S_T}, s{S_T}, {WS_FLAGB}")
        a(f"s_lshl_b32 s{S_T+1}, s{S_HEAD}, 2")
        a(f"v_mov_b32 {v(T)}, s{S_T+1}")
        a(f"v_mov_b32 {v(T+1)}, s98")
        a("s_mov_b64 exec, 1")
        a(f"buffer_store_dword {v(T+1)}, {v(T)}, {srd}, s{S_T} offen sc1")
        a("s_mov_b64 exec, -1")
        a.label(lnf)
        lx = a.newlabel("att_exit")
        a("s_bitcmp1_b32 s2, 3")
        a(f"s_cbranch_scc1 {lx}")
        a(f"s_mov_b32 s60, s{S_WAVE}")
        a(f"s_mov_b32 s{gemm.S_WAVE}, s60")
        a("s_setprio 0")
        a("s_mov_b32 s42, 1")
        a(f"s_branch {outp.L_COMPUTE}")
        a.label(lx)
        if dbg_time: a(f"s_mov_b32 s{S_WAVE}, s60") if False else None
    if dbg_time:
        a("s_waitcnt vmcnt(0)")
        stamp_end(a, WS_DBG, KA_WS, 61)
    a("s_endpgm")
```

```python
from asmlib import *
from layout import *
import gemm
from gemm import G, XBYTES, S_X, S_W, S_O, S_WAVE, S_T, S_RB, S_CB, GOPT, compute_addrs, rd_list, mf_list, interleave, mfmas
from roles import srd, srd_fin
import os

NB = 5
NS = 24
OF = G(NC=96, wstride=1280, acc0=80, vbase=1, NB=5, INIT=3)
RBB = 32 * OBLK
S_XO = 21; S_WO = 22; S_TT = 58

def scalars(a, branch=None):
    srd(a, S_X, KA_WS, 0); srd(a, S_O, KA_OUT, 0); srd(a, S_W, KA_AWO, 0)
    a(f"s_load_dwordx2 s[46:47], s[0:1], {KA_BWO}")
    a(f"s_load_dwordx2 s[62:63], s[0:1], {KA_WS}")
    a(f"s_and_b32 s{S_T}, s2, 7")
    a(f"s_lshr_b32 s{S_T+1}, s2, 4")
    a(f"s_lshl_b32 s{S_RB}, s{S_T}, 1")
    a(f"s_lshr_b32 s{S_T+2}, s{S_T+1}, 3")
    a(f"s_add_u32 s{S_RB}, s{S_RB}, s{S_T+2}")
    a(f"s_and_b32 s{S_CB}, s{S_T+1}, 7")
    a(f"s_mul_i32 s{S_T+3}, s{S_RB}, {RBB}")
    a(f"s_mul_i32 s{S_T+4}, s42, {WS_OBF - WS_OAF}")
    a(f"s_add_u32 s{S_T+3}, s{S_T+3}, s{S_T+4}")
    a(f"s_add_u32 s{S_T+3}, s{S_T+3}, {WS_OAF}")
    a("s_waitcnt lgkmcnt(0)")
    a(f"s_cmp_eq_u32 s42, 0")
    a(f"s_cselect_b32 s{S_W}, s{S_W}, s46")
    a(f"s_cselect_b32 s{S_W+1}, s{S_W+1}, s47")
    a(f"s_add_u32 s{S_X}, s{S_X}, s{S_T+3}")
    a(f"s_addc_u32 s{S_X+1}, s{S_X+1}, 0")
    srd_fin(a, S_X, RBB); srd_fin(a, S_W, 640*1280); srd_fin(a, S_O, 2048*2560)
    a("s_mov_b32 s64, s62"); a("s_mov_b32 s65, s63")
    a(f"s_mov_b32 s66, {WS_SIZE_SRD}"); a("s_mov_b32 s67, 0x00020000")

def poll(a, branch=None):
    lw = a.newlabel("op_nopoll")
    a(f"s_cmp_lg_u32 s{S_WAVE}, 0")
    a(f"s_cbranch_scc1 {lw}")
    a(f"s_lshr_b32 s{S_T}, s{S_RB}, s42")
    a(f"s_lshl_b32 s{S_T}, s{S_T}, 7")
    a(f"s_mov_b32 s{S_T+5}, {WS_FLAGA}")
    a(f"s_cmp_eq_u32 s42, 0")
    a(f"s_cselect_b32 s{S_T+5}, s{S_T+5}, {WS_FLAGB}")
    a(f"s_cselect_b32 s49, 0xffff, -1")
    a(f"s_add_u32 s{S_T}, s{S_T}, s{S_T+5}")
    a(f"s_mov_b32 exec_lo, s49")
    a(f"s_mov_b32 exec_hi, 0")
    a(f"v_lshlrev_b32 v3, 2, v0")
    a(f"s_mov_b32 s{S_T+1}, 0")
    lp = a.newlabel("op_poll"); lpd = a.newlabel("op_poll_done")
    a(f"buffer_load_dword v4, v3, s[64:67], s{S_T} offen sc1")
    a("s_sleep 6")
    a(f"buffer_load_dword v5, v3, s[64:67], s{S_T} offen sc1")
    a("s_sleep 6")
    a.label(lp)
    for (cur, nxt) in ((4, 6), (5, 4), (6, 5)):
        a(f"buffer_load_dword v{nxt}, v3, s[64:67], s{S_T} offen sc1")
        a("s_waitcnt vmcnt(2)")
        a(f"v_cmp_eq_u32 vcc, s98, v{cur}")
        a("s_nop 1")
        a(f"s_cmp_eq_u32 vcc_lo, s49")
        a(f"s_cbranch_scc1 {lpd}")
        a("s_sleep 4")
    a(f"s_add_u32 s{S_T+1}, s{S_T+1}, 1")
    a(f"s_cmp_lt_u32 s{S_T+1}, 0x20000")
    a(f"s_cbranch_scc1 {lp}")
    a.label(lpd)
    a("s_waitcnt vmcnt(0)")
    a("s_mov_b64 exec, -1")
    a.label(lw)
    a("s_barrier")
ACQ = False
XPF = False

NS = 16
NBR = 4
XST = 2*OBLK
WST = 8192
WBASE = NBR*XST
VW0, VW1, VL16 = 16, 17, 18
def loader_setup(a):
    t0, t1, t2, t3 = 3, 4, 5, 6
    a(f"v_lshlrev_b32 {v(VL16)}, 4, v0")
    for i, dst in enumerate((VW0, VW1)):
        a(f"s_lshl_b32 s{S_T}, s{S_WAVE}, 7")
        if i: a(f"s_add_u32 s{S_T}, s{S_T}, 64")
        a(f"v_add_u32 {v(t0)}, s{S_T}, v0")
        a(f"v_mul_u32_u24 {v(t1)}, 43691, {v(t0)}")
        a(f"v_lshrrev_b32 {v(t1)}, 19, {v(t1)}")
        a(f"v_mul_u32_u24 {v(t2)}, 12, {v(t1)}")
        a(f"v_sub_u32 {v(t2)}, {v(t0)}, {v(t2)}")
        a(f"v_lshlrev_b32 {v(t2)}, 4, {v(t2)}")
        a(f"v_mul_u32_u24 {v(t3)}, 1280, {v(t1)}")
        a(f"v_add_u32 {v(t3)}, {v(t3)}, {v(t2)}")
        a(f"v_cmp_le_u32 vcc, 40, {v(t1)}")
        a(f"v_mov_b32 {v(t2)}, 0x7ff00000")
        a("s_nop 0")
        a(f"v_cndmask_b32 {v(dst)}, {v(t3)}, {v(t2)}, vcc")
    a(f"s_lshl_b32 s{S_TT}, s{S_CB}, 1")
    a(f"s_mul_i32 s{S_XO}, s{S_TT}, {XST}")
    a(f"s_mul_i32 s{S_T}, s{S_WAVE}, 3072")
    a(f"s_add_u32 s{S_XO}, s{S_XO}, s{S_T}")
    a(f"s_mov_b32 s{S_T+2}, s{S_T}")
    a(f"s_lshl_b32 s{S_T+3}, s{S_WAVE}, 11")
    a(f"s_mov_b32 s60, s{S_TT}")
    a(f"s_mul_i32 s{S_WO}, s{S_TT}, {40*1280}")
    a(f"s_mul_i32 s{S_T}, s{S_CB}, 160")
    a(f"s_and_b32 s{S_T}, s{S_T}, -64")
    a(f"s_add_u32 s{S_WO}, s{S_WO}, s{S_T}")
    a(f"s_mov_b32 s68, {XST - 16*XST}")
    a(f"s_mov_b32 s69, {40*1280 - 16*40*1280}")
    a(f"s_mov_b32 s63, {40*1280}")

def issue_w(a, s_):
    slot = s_ % NBR
    sw = f"s[{S_W}:{S_W+3}]"
    a(f"s_add_u32 m0, s{S_T+3}, {WBASE + slot*WST}")
    a(f"s_add_u32 s60, s60, 1")
    a(f"buffer_load_dwordx4 {v(VW0)}, {sw}, s{S_WO} offen lds")
    a(f"s_add_u32 m0, s{S_T+3}, {WBASE + slot*WST + 1024}")
    a(f"s_cmp_eq_u32 s60, 16")
    a(f"buffer_load_dwordx4 {v(VW1)}, {sw}, s{S_WO} offen lds")
    a(f"s_cselect_b32 s{S_T+4}, s69, s63")
    a(f"s_add_u32 s{S_WO}, s{S_WO}, s{S_T+4}")
    return 2
def issue_x(a, s_):
    slot = s_ % NBR
    sx = f"s[{S_X}:{S_X+3}]"
    a(f"s_add_u32 m0, s{S_T+2}, {slot*XST}")
    a(f"s_add_u32 s{S_TT}, s{S_TT}, 1")
    for i in range(3):
        a(f"buffer_load_dwordx4 {v(VL16)}, {sx}, s{S_XO} offen offset:{1024*i}{os.environ.get('XSC', ' sc1')} lds")
    a(f"s_cmp_eq_u32 s{S_TT}, 16")
    a(f"s_cselect_b32 s{S_T+4}, s68, {XST}")
    a(f"s_add_u32 s{S_XO}, s{S_XO}, s{S_T+4}")
    return 3

def loader(a, branch):
    scalars(a, branch)
    loader_setup(a)
    a("s_barrier")
    INIT = NBR - 1
    seq = []
    for i in range(INIT):
        issue_w(a, i); seq += [i]*2
    poll(a, branch)
    for i in range(INIT):
        issue_x(a, i); seq += [i]*3
    issued = INIT
    for s_ in range(NS):
        last = max(i for i, st in enumerate(seq) if st == s_)
        if GOPT['ststamp']:
            a("s_memtime s[90:91]"); a("s_waitcnt lgkmcnt(0)"); a(f"v_writelane_b32 v11, s90, {s_}")
        a(f"s_waitcnt vmcnt({len(seq) - 1 - last})")
        if GOPT['ststamp']:
            a("s_memtime s[90:91]"); a("s_waitcnt lgkmcnt(0)"); a(f"v_writelane_b32 v12, s90, {s_}")
        a("s_barrier")
        if GOPT['ststamp']:
            a("s_memtime s[90:91]"); a("s_waitcnt lgkmcnt(0)"); a(f"v_writelane_b32 v10, s90, {s_}")
        while issued < NS and issued <= s_ + NBR - 1:
            issue_w(a, issued); issue_x(a, issued)
            seq += [issued]*5
            issued += 1
    if GOPT['ststamp']:
        a(f"s_lshl_b32 s92, s2, 11")
        a(f"s_lshl_b32 s93, s{S_WAVE}, 9")
        a("s_add_u32 s92, s92, s93")
        a(f"s_lshl_b32 s93, s42, 20")
        a(f"s_add_u32 s92, s92, s93")
        a(f"s_add_u32 s92, s92, {0x1C00000}")
        a("v_lshlrev_b32 v13, 2, v0")
        a("s_mov_b64 exec, 0x3ffffff")
        a("buffer_store_dword v10, v13, s[64:67], s92 offen")
        a("buffer_store_dword v11, v13, s[64:67], s92 offen offset:128")
        a("buffer_store_dword v12, v13, s[64:67], s92 offen offset:256")
        a("s_mov_b64 exec, -1")
    a("s_endpgm")

ACC = 80
XF = [8, 12]
WF = [[16, 20, 24], [28, 32, 36]]
VXA, VXC, VWA, VWC = 1, 2, 3, 4
def compute(a, dbg=False):
    VT = 64
    t0, t1, t2 = VT, VT+1, VT+2
    a(f"v_and_b32 {v(t0)}, 31, v0")
    a(f"s_lshl_b32 s{S_T}, s{S_WAVE}, 5")
    a(f"v_add_u32 {v(t0)}, s{S_T}, {v(t0)}")
    a(f"v_mul_u32_u24 {v(t0)}, {OREC}, {v(t0)}")
    a(f"v_lshrrev_b32 {v(t1)}, 5, v0")
    a(f"v_lshl_add_u32 {v(VXA)}, {v(t1)}, 4, {v(t0)}")
    a(f"v_mul_u32_u24 {v(t2)}, {OBLK}, {v(t1)}")
    a(f"v_add3_u32 {v(VXC)}, {v(t0)}, {v(t2)}, 32")
    a(f"v_bfe_u32 {v(t0)}, v0, 2, 2")
    a(f"v_bfe_u32 {v(t2)}, v0, 4, 1")
    a(f"v_lshlrev_b32 {v(t2)}, 5, {v(t2)}")
    a(f"v_and_b32 {v(VWC)}, 3, v0")
    a(f"v_lshl_add_u32 {v(t2)}, {v(VWC)}, 3, {v(t2)}")
    a(f"v_add_u32 {v(t2)}, {WBASE}, {v(t2)}")
    a(f"s_and_b32 s{S_T}, s{S_CB}, 1")
    a(f"s_lshl_b32 s{S_T}, s{S_T}, 5")
    a(f"v_add_u32 {v(t2)}, s{S_T}, {v(t2)}")
    a(f"v_lshl_add_u32 {v(VWA)}, {v(t1)}, 3, {v(t0)}")
    a(f"v_mul_u32_u24 {v(VWA)}, 192, {v(VWA)}")
    a(f"v_add_u32 {v(VWA)}, {v(VWA)}, {v(t2)}")
    a(f"v_mul_u32_u24 {v(VWC)}, 20, {v(t1)}")
    a(f"v_add3_u32 {v(VWC)}, {v(VWC)}, {v(t0)}, 16")
    a(f"v_mul_u32_u24 {v(VWC)}, 192, {v(VWC)}")
    a(f"v_add_u32 {v(VWC)}, {v(VWC)}, {v(t2)}")
    for r in range(ACC, ACC+48):
        a(f"v_mov_b32 {v(r)}, 0")
    a("s_barrier")
    off_stamp(a, 7, back=0, cond_wave=S_WAVE, va=70)
    if dbg: a("s_memtime s[76:77]")
    if XPF:
        lsk = a.newlabel("xpf_skip")
        a(f"s_cmp_eq_u32 s{S_WAVE}, 3")
        a(f"s_cbranch_scc1 {lsk}")
        a(f"s_mul_i32 s{S_T}, s{S_CB}, 192")
        a(f"s_lshl_b32 s{S_T+1}, s{S_WAVE}, 6")
        a(f"s_add_u32 s{S_T}, s{S_T}, s{S_T+1}")
        a(f"v_add_u32 {v(VT)}, s{S_T}, v0")
        a(f"v_lshlrev_b32 {v(VT)}, 7, {v(VT)}")
        a(f"buffer_load_dword {v(VT+1)}, {v(VT)}, s[{S_X}:{S_X+3}], 0 offen")
        a.label(lsk)
    def reads(stage, kind, b):
        slot = stage % NBR
        xo = slot*XST; wo = slot*WST
        L = []
        if kind == 'C':
            L.append((f"ds_read_b64 {v(XF[b],2)}, {v(VXC)} offset:{xo}", 'x'))
            for i in range(3):
                L.append((f"ds_read_b64_tr_b16 {v(WF[b][i],2)}, {v(VWC)} offset:{wo + i*64}", i))
        else:
            hb = 0 if kind == 'A' else 1
            L.append((f"ds_read_b128 {v(XF[b],4)}, {v(VXA)} offset:{xo + hb*OBLK}", 'x'))
            for i in range(3):
                off = wo + i*64 + hb*20*192
                L.append((f"ds_read_b64_tr_b16 {v(WF[b][i],2)}, {v(VWA)} offset:{off}", i))
                L.append((f"ds_read_b64_tr_b16 {v(WF[b][i]+2,2)}, {v(VWA)} offset:{off + 4*192}", i))
        return L
    def mf(kind, b, i):
        d = ACC + 16*i
        if kind == 'C':
            return f"v_mfma_f32_32x32x8_bf16 {v(d,16)}, {v(WF[b][i],2)}, {v(XF[b],2)}, {v(d,16)}"
        return f"v_mfma_f32_32x32x16_bf16 {v(d,16)}, {v(WF[b][i],4)}, {v(XF[b],4)}, {v(d,16)}"
    steps = [(st, k) for st in range(NBR) for k in 'ABC']
    queue = []
    def wait_for(step, tag):
        need = [n for n, (s_, t_) in enumerate(queue) if s_ == step and (t_ == tag or t_ == 'x')]
        if not need: return
        last = max(need)
        a(f"s_waitcnt lgkmcnt({min(15, len(queue) - 1 - last)})")
        del queue[:last+1]
    a("s_barrier")
    for (txt, tag) in reads(0, 'A', 0):
        a(txt); queue.append((0, tag))
    a(f"s_mov_b32 s{S_T+10}, 0")
    loop = a.newlabel("oc_loop")
    if os.environ.get('ALIGN', '0') == '1': a.raw('.p2align 6')
    a.label(loop)
    for n, (st, k) in enumerate(steps):
        b = n & 1
        last_step = (n + 1 == len(steps))
        nxt = steps[0] if last_step else steps[n+1]
        nidx = 0 if last_step else n + 1
        if nxt[1] == 'A':
            a("s_waitcnt lgkmcnt(0)"); queue.clear()
            if last_step:
                sk = a.newlabel("oc_nobar")
                a(f"s_cmp_eq_u32 s{S_T+10}, {NS//NBR - 1}")
                a(f"s_cbranch_scc1 {sk}")
                a("s_barrier")
                a.label(sk)
            else:
                a("s_barrier")
        R = reads(nxt[0], nxt[1], b ^ 1)
        per = [3, 2, 2] if len(R) == 7 else [2, 1, 1]
        kk = 0
        for i in range(3):
            wait_for(n, i)
            a(mf(k, b, i))
            for j in range(per[i]):
                a(R[kk][0]); queue.append((nidx + (100 if last_step else 0), R[kk][1])); kk += 1
    assert [q[1] for q in queue] == ['x', 0, 0, 1, 1, 2, 2]
    a(f"s_add_u32 s{S_T+10}, s{S_T+10}, 1")
    a(f"s_cmp_lt_u32 s{S_T+10}, {NS//NBR}")
    a(f"s_cbranch_scc1 {loop}")
    a("s_waitcnt lgkmcnt(0)")
    a("s_waitcnt vmcnt(0)")
    if dbg: a("s_memtime s[78:79]")
    so = f"s[{S_O}:{S_O+3}]"
    VA = VT
    a(f"v_and_b32 {v(VA)}, 31, v0")
    a(f"s_lshl_b32 s{S_T}, s{S_RB}, 7")
    a(f"s_lshl_b32 s{S_T+1}, s{S_WAVE}, 5")
    a(f"s_add_u32 s{S_T}, s{S_T}, s{S_T+1}")
    a(f"v_add_u32 {v(VA)}, s{S_T}, {v(VA)}")
    a(f"v_mul_u32_u24 {v(VA)}, 2560, {v(VA)}")
    a(f"v_lshrrev_b32 {v(VA+1)}, 5, v0")
    a(f"v_lshlrev_b32 {v(VA+1)}, 4, {v(VA+1)}")
    a(f"v_add_u32 {v(VA)}, {v(VA)}, {v(VA+1)}")
    a(f"s_mul_i32 s{S_T+2}, s42, 1280")
    a(f"s_mul_i32 s{S_T+3}, s{S_CB}, 160")
    a(f"s_add_u32 s{S_T+2}, s{S_T+2}, s{S_T+3}")
    a("s_nop 7")
    a("s_nop 3")
    for pr in range(5):
        G0 = 2*pr
        R0 = ACC + 16*(G0//4) + 4*(G0 % 4)
        R1 = R0 + 4
        P_ = VT + 4 + 4*(pr % 2)
        a(f"v_cvt_pk_bf16_f32 {v(P_)}, {v(R0)}, {v(R0+1)}")
        a(f"v_cvt_pk_bf16_f32 {v(P_+1)}, {v(R0+2)}, {v(R0+3)}")
        a(f"v_cvt_pk_bf16_f32 {v(P_+2)}, {v(R1)}, {v(R1+1)}")
        a(f"v_cvt_pk_bf16_f32 {v(P_+3)}, {v(R1+2)}, {v(R1+3)}")
        a("s_nop 1")
        a(f"v_permlane32_swap_b32 {v(P_)}, {v(P_+2)}")
        a(f"v_permlane32_swap_b32 {v(P_+1)}, {v(P_+3)}")
        a("s_nop 1")
        a(f"buffer_store_dwordx4 {v(P_,4)}, {v(VA)}, {so}, s{S_T+2} offen offset:{32*pr}" + os.environ.get('OUTF', ''))
    if OFFDBG[0]:
        a("s_waitcnt vmcnt(0)")
        off_stamp(a, 8, back=0, cond_wave=S_WAVE, va=78)

def publish_block(a, PK, vt, lds_base_sgpr, ntok, srd_txt, soff_sgpr):
    pass


L_LOADER = "L_out_loader_shared"
L_COMPUTE = "L_out_compute_shared"
def emit_shared(a, dbg=False):
    a.label(L_LOADER)
    loader(a, None)
    a.label(L_COMPUTE)
    scalars(a)
    compute(a, False)
    a("s_endpgm")
```

```python
from asmlib import *
from layout import *
import roles, gemm, outp
FUSE = True
WOPF = True
import os
CODEPF = int(os.environ.get('CODEPF', '0'))

CH = 8
CH_BYTES = CH * TILE_REC
NCH = 64 // CH
OPT = dict(nodma=False, nobar=False, nolds=False, prio=True, vmask=False, forcefb=False, cl4=False, uni=True)

V_A16 = 1
V_A8  = 2
V_G16 = 3
SA, SB = 4, 20
OA, OB = 36, 52
PA, PB = 68, 76
Q1A, Q1B = 84, 88
Q2A, Q2B = 92, 94
K1 = [96, 100]
VV0 = [104, 112]
VV1 = [108, 116]
K2 = [120, 122]
ATTN_NVGPR = 124
V_T0 = SA

S_WS = 8
S_HEAD = 12
S_QB = 13
S_WAVE = 14
S_DMAOFF = 15
S_LDSW = 16
S_BUFD = 17
S_CNT = 18
S_DMABUF = 19
S_T = 20

def mfma32(a, d, A, B, C, k16=True):
    op = "v_mfma_f32_32x32x16_bf16" if k16 else "v_mfma_f32_32x32x8_bf16"
    n = 4 if k16 else 2
    c = "0" if C is None else v(C, 16)
    a(f"{op} {v(d,16)}, {v(A,n)}, {v(B,n)}, {c}")

PENDING = []
def cvts(a, Sr, P, q):
    a(f"v_cvt_pk_bf16_f32 {v(P+2*q)}, {v(Sr+4*q)}, {v(Sr+4*q+1)}")
    a(f"v_cvt_pk_bf16_f32 {v(P+2*q+1)}, {v(Sr+4*q+2)}, {v(Sr+4*q+3)}")
def flush_cvts(a):
    while PENDING:
        cvts(a, *PENDING.pop(0))
def exps(a, Sr, P, q):
    for i in range(4):
        a(f"v_exp_f32 {v(Sr+4*q+i)}, {v(Sr+4*q+i)}")
    flush_cvts(a)
    PENDING.append((Sr, P, q))

V_GV = 10
S_K2O = 48
def dma_chunk(a):
    srd = f"s[{S_WS}:{S_WS+3}]"
    for rr in range(2):
        if rr == 0:
            a(f"s_add_u32 m0, s{S_DMABUF}, s{S_LDSW}")
        else:
            a(f"s_add_u32 m0, m0, {TILE_REC}")
        a(f"s_sub_u32 s{S_T+1}, s{S_DMAOFF}, 384")
        a(f"buffer_load_dwordx4 {v(V_G16)}, {srd}, s{S_DMAOFF} offen lds")
        a("s_mov_b64 exec, s[50:51]")
        a(f"buffer_load_dwordx4 {v(V_GV)}, {srd}, s{S_DMAOFF} offen offset:1024 lds")
        a(f"buffer_load_dwordx4 {v(V_GV)}, {srd}, s{S_T+1} offen offset:2048 lds")
        a("s_mov_b32 exec_lo, -1")
        a("s_mov_b32 exec_hi, 0")
        a(f"buffer_load_dwordx4 {v(V_G16)}, {srd}, s{S_K2O} offen offset:3072 lds")
        a("s_mov_b64 exec, -1")
        a(f"s_add_u32 s{S_DMAOFF}, s{S_DMAOFF}, {GREC if rr == 0 else 7*GREC}")
        a(f"s_add_u32 s{S_K2O}, s{S_K2O}, {512 if rr == 0 else 7*512}")

def safety_check_and_fallback(a):
    srd = f"s[{S_WS}:{S_WS+3}]"
    T = SA
    lok = a.newlabel("att_ok")
    a("s_nop 7")
    a("s_nop 3")
    a(f"v_lshrrev_b32 {v(T)}, 5, v0")
    a(f"v_cmp_eq_u32 vcc, 0, {v(T)}")
    a(f"s_mov_b64 s[26:27], 0")
    a(f"s_mov_b32 s28, 0x1f800000")
    a(f"s_mov_b32 s29, 0x5f800000")
    for O in (OA, OB):
        a(f"v_cndmask_b32 {v(T+1)}, {v(O+8)}, {v(O+12)}, vcc")
        a(f"v_pk_mul_f32 {v(T+2,2)}, {v(O,2)}, 0 op_sel_hi:[1,0]")
        for i in (2, 4, 6):
            a(f"v_pk_fma_f32 {v(T+2,2)}, {v(O+i,2)}, 0, {v(T+2,2)} op_sel_hi:[1,0,1]")
        a(f"v_pk_mul_f32 {v(T+4,2)}, {v(O+8,2)}, 0 op_sel_hi:[1,0]")
        a(f"v_pk_fma_f32 {v(T+4,2)}, {v(O+10,2)}, 0, {v(T+4,2)} op_sel_hi:[1,0,1]")
        a(f"v_cmp_nle_f32 s[22:23], s28, {v(T+1)}")
        a(f"v_cmp_nge_f32 s[24:25], s29, {v(T+1)}")
        a(f"v_cmp_u_f32 s[30:31], {v(T+2)}, {v(T+3)}")
        a(f"v_cmp_u_f32 s[36:37], {v(T+4)}, {v(T+5)}")
        a("s_nop 1")
        a("s_or_b64 s[26:27], s[26:27], s[22:23]")
        a("s_or_b64 s[26:27], s[26:27], s[24:25]")
        a("s_or_b64 s[26:27], s[26:27], s[30:31]")
        a("s_and_b64 s[36:37], s[36:37], vcc")
        a("s_or_b64 s[26:27], s[26:27], s[36:37]")
    if OPT['forcefb']:
        a("s_mov_b64 s[26:27], -1")
    lslow = a.newlabel("att_slow")
    if os.environ.get('INLINE_SLOW', '1') == '1':
        a("s_cmp_eq_u64 s[26:27], 0")
        a(f"s_cbranch_scc1 {lok}")
        slow_path_body(a, lok)
        a.label(lok)
        return
    a("s_cmp_lg_u64 s[26:27], 0")
    a(f"s_cbranch_scc1 {lslow}")
    a.label(lok)
    SLOW.append((lslow, lok))

SLOW = []
def emit_slow_paths(a):
    for (lslow, lok) in SLOW:
        a.label(lslow)
        slow_path_body(a, lok)
    SLOW.clear()

def slow_path_body(a, lok):
    srd = f"s[{S_WS}:{S_WS+3}]"
    T = SA
    G16 = V_G16; G8 = T+1; MA, MB, TM = T+2, T+3, 120
    X = [SA + 0]
    SX, SY = 20, 100
    KA1, KA2, VA0, VA1 = 116, 122, 68, 72
    PX, PY = 76, 8
    MA, MB, TM = 4, 6, 7
    G8 = 5
    a(f"v_lshlrev_b32 {v(G8)}, 3, v0")
    a(f"s_mul_i32 s22, s{S_HEAD}, {GHEAD}")
    a(f"s_add_u32 s22, s22, {WS_KVC}")
    a(f"s_lshr_b32 s21, s{S_HEAD}, 1")
    a(f"s_lshl_b32 s21, s21, 15")
    a(f"s_add_u32 s21, s21, {WS_K2S}")
    a(f"v_lshrrev_b32 {v(121)}, 5, v0")
    a(f"v_mul_u32_u24 {v(121)}, 320, {v(121)}")
    a(f"v_and_b32 {v(120)}, 31, v0")
    a(f"v_lshl_add_u32 {v(120)}, {v(120)}, 4, {v(121)}")
    a(f"s_and_b32 s23, s{S_HEAD}, 1")
    a(f"s_cmp_eq_u32 s23, 0")
    a(f"s_cselect_b32 s36, -1, 0")
    a(f"s_cselect_b32 s37, 0, -1")
    a(f"v_mov_b32 {v(KA2)}, 0"); a(f"v_mov_b32 {v(KA2+1)}, 0")
    a(f"v_mov_b32 {v(MA)}, 0xff800000"); a(f"v_mov_b32 {v(MB)}, 0xff800000")
    def load_k():
        a(f"s_add_u32 s24, s{S_CNT}, 63")
        a(f"s_and_b32 s24, s24, 63")
        a(f"s_lshl_b32 s25, s24, 9")
        a(f"s_add_u32 s25, s25, s21")
        a(f"s_mul_i32 s24, s24, {GREC}")
        a(f"s_add_u32 s24, s24, s22")
        a(f"buffer_load_dwordx4 {v(KA1,4)}, {v(G16)}, {srd}, s24 offen")
        a(f"s_mov_b64 exec, s[36:37]")
        a(f"buffer_load_dwordx2 {v(KA2,2)}, {v(G8)}, {srd}, s25 offen")
        a(f"s_mov_b64 exec, -1")
    def qk():
        mfma32(a, SX, KA1, Q1A, None); mfma32(a, SX, KA2, Q2A, SX, k16=False)
        mfma32(a, SY, KA1, Q1B, None); mfma32(a, SY, KA2, Q2B, SY, k16=False)
        a("s_nop 7"); a("s_nop 7")
    a(f"s_mov_b32 s{S_CNT}, 0")
    l1 = a.newlabel("fb_max")
    a.label(l1)
    load_k()
    a("s_waitcnt vmcnt(0)")
    qk()
    for (Sx, M) in ((SX, MA), (SY, MB)):
        for i in range(0, 16, 2):
            a(f"v_max3_f32 {v(M)}, {v(M)}, {v(Sx+i)}, {v(Sx+i+1)}")
    a(f"s_add_u32 s{S_CNT}, s{S_CNT}, 1")
    a(f"s_cmp_lt_u32 s{S_CNT}, 64")
    a(f"s_cbranch_scc1 {l1}")
    for M in (MA, MB):
        a(f"v_mov_b32 {v(TM)}, {v(M)}")
        a("s_nop 1")
        a(f"v_permlane32_swap_b32 {v(M)}, {v(TM)}")
        a("s_nop 1")
        a(f"v_max_f32 {v(M)}, {v(M)}, {v(TM)}")
    for r in list(range(OA, OA+32)):
        a(f"v_mov_b32 {v(r)}, 0")
    a(f"v_and_b32 {v(TM)}, 31, v0")
    a(f"v_cmp_eq_u32 s[24:25], 20, {v(TM)}")
    a(f"v_cmp_eq_u32 vcc, 24, {v(TM)}")
    a(f"v_mov_b32 {v(TM)}, 0x3f803f80")
    a("s_nop 1")
    a("s_or_b64 vcc, vcc, s[24:25]")
    a("s_nop 1")
    for r in range(VA0, VA0+8):
        a(f"v_cndmask_b32 {v(r)}, 0, {v(TM)}, vcc")
    a("s_mov_b32 s38, 0x000fffff")
    a("s_mov_b32 s39, 0x000fffff")
    a(f"s_mov_b32 s{S_CNT}, 0")
    l2 = a.newlabel("fb_main")
    a.label(l2)
    load_k()
    a(f"s_mul_i32 s24, s{S_CNT}, {GREC}")
    a(f"s_add_u32 s24, s24, s22")
    a(f"s_mov_b64 exec, s[38:39]")
    a(f"buffer_load_dwordx4 {v(VA0,4)}, {v(120)}, {srd}, s24 offen offset:1024")
    a(f"buffer_load_dwordx4 {v(VA1,4)}, {v(120)}, {srd}, s24 offen offset:1664")
    a(f"s_mov_b64 exec, -1")
    a("s_waitcnt vmcnt(0)")
    qk()
    for (Sx, M, P, O) in ((SX, MA, PX, OA), (SY, MB, PY, OB)):
        for i in range(16):
            a(f"v_sub_f32 {v(Sx+i)}, {v(Sx+i)}, {v(M)}")
        for i in range(16):
            a(f"v_exp_f32 {v(Sx+i)}, {v(Sx+i)}")
        a("s_nop 0")
        for k in range(8):
            a(f"v_cvt_pk_bf16_f32 {v(P+k)}, {v(Sx+2*k)}, {v(Sx+2*k+1)}")
        a("s_nop 1")
        mfma32(a, O, VA0, P, O)
        mfma32(a, O, VA1, P+4, O)
    a(f"s_add_u32 s{S_CNT}, s{S_CNT}, 1")
    a(f"s_cmp_lt_u32 s{S_CNT}, 64")
    a(f"s_cbranch_scc1 {l2}")
    a("s_nop 7")
    a("s_nop 7")
    a(f"s_branch {lok}")


def gen_attn(a, dbg_time=False):
    srd = f"s[{S_WS}:{S_WS+3}]"
    if dbg_time and not MEGA[0]: stamp(a, 0)
    a(f"s_load_dwordx2 s[{S_WS}:{S_WS+1}], s[0:1], {KA_WS}")
    if FUSE and WOPF:
        a(f"s_load_dwordx2 s[40:41], s[0:1], {KA_AWO}")
        a(f"s_load_dwordx2 s[42:43], s[0:1], {KA_BWO}")
    a(f"s_and_b32 s{S_T}, s2, 7")
    a(f"s_lshr_b32 s{S_T+1}, s2, 3")
    a(f"s_and_b32 s{S_T+2}, s{S_T+1}, 3")
    a(f"s_lshl_b32 s{S_HEAD}, s{S_T}, 2")
    a(f"s_add_u32 s{S_HEAD}, s{S_HEAD}, s{S_T+2}")
    a(f"s_lshr_b32 s{S_QB}, s{S_T+1}, 2")
    if MEGA[0]:
        a(f"s_mov_b32 s{S_WAVE}, s61")
    else:
        a(f"v_lshrrev_b32 {v(SA)}, 6, v0")
        a(f"v_and_b32 v0, 63, v0")
        a(f"v_readfirstlane_b32 s{S_WAVE}, {v(SA)}")
        a("s_mov_b32 s98, 1")
    a(f"v_lshlrev_b32 {v(V_G16)}, 4, v0")
    a(f"s_mul_i32 s{S_T+6}, s{S_HEAD}, {GHEAD}")
    a(f"s_add_u32 s{S_T+6}, s{S_T+6}, {WS_KVC}")
    a(f"s_lshr_b32 s{S_T+7}, s{S_HEAD}, 1")
    a(f"s_lshl_b32 s{S_T+7}, s{S_T+7}, 15")
    a(f"s_add_u32 s{S_T+7}, s{S_T+7}, {WS_K2S}")
    a("s_waitcnt lgkmcnt(0)")
    a(f"s_mov_b32 s{S_WS+2}, {WS_SIZE_SRD}")
    a(f"s_mov_b32 s{S_WS+3}, 0x00020000")
    a(f"s_mov_b32 s61, s{S_WAVE}")
    off_stamp(a, 2, neg=True, back=0, cond_wave=S_WAVE)
    off_stamp(a, 3, back=0, cond_wave=S_WAVE)
    lcomp = a.newlabel("attn_compute")
    a(f"s_cmp_lt_u32 s{S_WAVE}, 4")
    a(f"s_cbranch_scc1 {lcomp}")
    if MEGA[0]:
        lnp = a.newlabel("q2_nopoll")
        a(f"s_cmp_lg_u32 s{S_WAVE}, 4")
        a(f"s_cbranch_scc1 {lnp}")
        a("v_mov_b32 v4, 0")
        a("ds_read_b32 v5, v4")
        a("s_waitcnt lgkmcnt(0)")
        a("v_readfirstlane_b32 s98, v5")
        a(f"s_lshr_b32 s{S_T}, s{S_HEAD}, 1")
        a(f"s_mul_i32 s{S_T}, s{S_T}, 40")
        a(f"s_add_u32 s{S_T+1}, s{S_T}, 39")
        a(f"s_lshr_b32 s{S_T}, s{S_T}, 7")
        a(f"s_lshr_b32 s{S_T+1}, s{S_T+1}, 7")
        a(f"v_lshrrev_b32 v4, 4, v0")
        a(f"v_and_b32 v5, 1, v4")
        a(f"s_sub_u32 s{S_T+2}, s{S_T+1}, s{S_T}")
        a(f"v_mul_u32_u24 v5, s{S_T+2}, v5")
        a(f"v_lshrrev_b32 v4, 1, v4")
        a(f"v_mul_u32_u24 v4, 5, v4")
        a(f"v_add3_u32 v4, v4, v5, s{S_T}")
        a(f"v_add_u32 v4, 5, v4")
        a(f"v_lshlrev_b32 v4, 7, v4")
        a(f"v_and_b32 v5, 15, v0")
        a(f"v_lshl_add_u32 v4, v5, 2, v4")
        a(f"v_and_b32 v6, 1, v0")
        a(f"v_mul_u32_u24 v6, s{S_T+2}, v6")
        a(f"v_add_u32 v6, s{S_T}, v6")
        a(f"v_lshlrev_b32 v6, 7, v6")
        a(f"v_bfe_u32 v7, v0, 1, 1")
        a(f"s_lshl_b32 s{S_T+3}, s{S_QB}, 1")
        a(f"v_add_u32 v7, s{S_T+3}, v7")
        a(f"v_lshl_add_u32 v6, v7, 2, v6")
        a(f"s_mov_b32 s{S_T+3}, {WS_FLAGQ}")
        a(f"s_mov_b32 s{S_T+4}, 0")
        lp = a.newlabel("q2_poll"); lpd = a.newlabel("q2_done")
        a.label(lp)
        a(f"buffer_load_dword v8, v4, {srd}, s{S_T+3} offen sc1")
        a(f"buffer_load_dword v9, v6, {srd}, s{S_T+3} offen sc1")
        a("s_waitcnt vmcnt(0)")
        a(f"v_cmp_eq_u32 vcc, s98, v8")
        a(f"v_cmp_eq_u32 s[28:29], s98, v9")
        a(f"s_add_u32 s{S_T+4}, s{S_T+4}, 1")
        a("s_nop 1")
        a("s_and_b64 vcc, vcc, s[28:29]")
        a("s_cmp_eq_u64 vcc, -1")
        a(f"s_cbranch_scc1 {lpd}")
        a("s_sleep 2")
        a(f"s_cmp_lt_u32 s{S_T+4}, 0x40000")
        a(f"s_cbranch_scc1 {lp}")
        a.label(lpd)
        a.label(lnp)
        a("s_barrier")
    a(f"s_sub_u32 s{S_T}, s{S_WAVE}, 4")
    a(f"s_mul_i32 s{S_LDSW}, s{S_T}, {2*TILE_REC}")
    a(f"s_mul_i32 s{S_T+1}, s{S_T}, {2*GREC}")
    a(f"s_add_u32 s{S_DMAOFF}, s{S_T+6}, s{S_T+1}")
    a(f"s_lshl_b32 s{S_T+1}, s{S_T}, 10")
    a(f"s_add_u32 s{S_K2O}, s{S_T+7}, s{S_T+1}")
    a(f"s_sub_u32 s{S_K2O}, s{S_K2O}, 3072")
    a("s_mov_b32 s50, 0x000fffff")
    a("s_mov_b32 s51, 0x000fffff")
    a(f"v_lshrrev_b32 v11, 5, v0")
    a(f"v_mul_u32_u24 v11, 320, v11")
    a(f"v_and_b32 {v(V_GV)}, 31, v0")
    a(f"v_lshl_add_u32 {v(V_GV)}, {v(V_GV)}, 4, v11")
    a(f"s_mov_b32 s{S_DMABUF}, 0")
    dma_chunk(a)
    if CODEPF:
        lcp = a.newlabel("codepf_skip"); lpc = a.newlabel("codepf_pc")
        a(f"s_lshr_b32 s{S_T}, s2, 3")
        a(f"s_cmp_ge_u32 s{S_T}, {CODEPF}")
        a(f"s_cbranch_scc1 {lcp}")
        a(f"s_cmp_lg_u32 s{S_WAVE}, 7")
        a(f"s_cbranch_scc1 {lcp}")
        a("s_getpc_b64 s[36:37]")
        a.label(lpc)
        a(f"s_lshl_b32 s{S_T}, s{S_T}, 13")
        a(f"v_lshlrev_b32 v6, 7, v0")
        a(f"v_add_u32 v6, s{S_T}, v6")
        a(f"v_mov_b32 v7, s37")
        a(f"v_subrev_u32 v8, ({lpc} - attn_kernel), v6") if False else None
        a(f"s_sub_u32 s36, s36, ({lpc} - attn_kernel)")
        a(f"s_subb_u32 s37, s37, 0")
        a(f"v_mov_b32 v7, s37")
        a(f"v_add_co_u32 v6, vcc, s36, v6")
        a("s_nop 1")
        a(f"v_addc_co_u32 v7, vcc, 0, v7, vcc")
        a(f"v_lshlrev_b32 v9, 7, v0")
        a(f"v_add_u32 v9, s{S_T}, v9")
        a(f"v_cmp_gt_u32 vcc, (L_k2_code_end - attn_kernel), v9")
        a("s_and_saveexec_b64 s[38:39], vcc")
        a(f"s_cbranch_execz {lcp}_r")
        a(f"global_load_dword v8, v[6:7], off")
        a.label(f"{lcp}_r")
        a("s_mov_b64 exec, -1")
        a.label(lcp)
    if FUSE and WOPF:
        a(f"s_lshr_b32 s{S_T}, s2, 3")
        a(f"s_mul_i32 s{S_T}, s{S_T}, 200")
        a(f"s_sub_u32 s{S_T+1}, s{S_WAVE}, 4")
        a(f"s_lshl_b32 s{S_T+1}, s{S_T+1}, 6")
        a(f"s_add_u32 s{S_T}, s{S_T}, s{S_T+1}")
        a(f"v_add_u32 v4, s{S_T}, v0")
        a(f"v_lshlrev_b32 v4, 7, v4")
        a(f"s_mov_b32 s46, {640*1280}")
        a(f"s_mov_b32 s47, 0x00020000")
    a(f"s_mov_b32 s{S_DMABUF}, {CH_BYTES}")
    a(f"s_mov_b32 s{S_CNT}, 0")
    a("s_waitcnt vmcnt(0)")
    a("s_barrier")
    lloop = a.newlabel("ld_loop"); lskip = a.newlabel("ld_skip")
    a.label(lloop)
    a(f"s_cmp_ge_u32 s{S_CNT}, {NCH-1}")
    a(f"s_cbranch_scc1 {lskip}")
    if not OPT['nodma']:
        dma_chunk(a)
    if FUSE and WOPF:
        lsk = a.newlabel("wopf_skip")
        a(f"s_sub_u32 s{S_T+1}, s{S_CNT}, 1")
        a(f"s_cmp_gt_u32 s{S_T+1}, 1")
        a(f"s_cbranch_scc1 {lsk}")
        a(f"s_cmp_eq_u32 s{S_CNT}, 1")
        a(f"s_cselect_b32 s44, s40, s42")
        a(f"s_cselect_b32 s45, s41, s43")
        a(f"buffer_load_dword v5, v4, s[44:47], 0 offen")
        a.label(lsk)
    a(f"s_sub_u32 s{S_DMABUF}, {CH_BYTES}, s{S_DMABUF}")
    a("s_waitcnt vmcnt(0)")
    a.label(lskip)
    if not OPT['nobar']:
        a("s_barrier")
    if gemm.GOPT['ststamp']:
        a("s_memtime s[90:91]"); a("s_waitcnt lgkmcnt(0)")
        a(f"s_mov_b32 m0, s{S_CNT}")
        a("s_sub_u32 s90, s90, s70")
        a("v_writelane_b32 v14, s90, m0")
    a(f"s_add_u32 s{S_CNT}, s{S_CNT}, 1")
    a(f"s_cmp_lt_u32 s{S_CNT}, {NCH}")
    a(f"s_cbranch_scc1 {lloop}")
    if gemm.GOPT['ststamp']:
        a(f"s_lshl_b32 s92, s2, 7")
        a(f"s_add_u32 s92, s92, {0x1E00000}")
        a("v_lshlrev_b32 v13, 2, v0")
        a(f"s_cmp_lg_u32 s{S_WAVE}, 4")
        lss = a.newlabel("ss_skip")
        a(f"s_cbranch_scc1 {lss}")
        a("s_mov_b64 exec, 0xff")
        a(f"buffer_store_dword v14, v13, {srd}, s92 offen")
        a("s_mov_b64 exec, -1")
        a.label(lss)
    if FUSE:
        lx = a.newlabel("ld_exit")
        a("s_bitcmp1_b32 s2, 3")
        a(f"s_cbranch_scc1 {lx}")
        a(f"s_and_b32 s{gemm.S_WAVE}, s{S_WAVE}, 3")
        a("s_mov_b32 s42, 1")
        if os.environ.get('FALL', '1') == '1': outp.emit_loader(a)
        else: a(f"s_branch {outp.L_LOADER}")
        a.label(lx)
    a("s_endpgm")
    a.label(lcomp)
    if MEGA[0]: a("s_barrier")
    if OPT['prio']: a("s_setprio 2")
    a(f"v_mov_b32 {v(V_A16)}, {v(V_G16)}")
    a(f"v_lshlrev_b32 {v(V_A8)}, 3, v0")
    a(f"s_lshl_b32 s{S_T}, s{S_QB}, 3")
    a(f"s_lshl_b32 s{S_T+1}, s{S_WAVE}, 1")
    a(f"s_add_u32 s{S_T}, s{S_T}, s{S_T+1}")
    a(f"s_lshl_b32 s{S_T+1}, s{S_HEAD}, 6")
    a(f"s_add_u32 s{S_T+1}, s{S_T+1}, s{S_T}")
    a(f"s_lshl_b32 s{S_T+1}, s{S_T+1}, 10")
    a(f"s_add_u32 s{S_T+1}, s{S_T+1}, {WS_Q1}")
    a(f"buffer_load_dwordx4 {v(Q1A,4)}, {v(V_G16)}, {srd}, s{S_T+1} offen")
    a(f"buffer_load_dwordx4 {v(Q1B,4)}, {v(V_G16)}, {srd}, s{S_T+1} offen offset:1024")
    a(f"s_lshr_b32 s{S_T+2}, s{S_HEAD}, 1")
    a(f"s_lshl_b32 s{S_T+2}, s{S_T+2}, 6")
    a(f"s_add_u32 s{S_T+2}, s{S_T+2}, s{S_T}")
    a(f"s_lshl_b32 s{S_T+2}, s{S_T+2}, 9")
    a(f"s_add_u32 s{S_T+2}, s{S_T+2}, {WS_Q2}")
    a(f"buffer_load_dwordx2 {v(Q2A,2)}, {v(V_A8)}, {srd}, s{S_T+2} offen")
    a(f"buffer_load_dwordx2 {v(Q2B,2)}, {v(V_A8)}, {srd}, s{S_T+2} offen offset:512")
    a(f"s_add_u32 s{S_T+3}, s{S_T+6}, {63*GREC}")
    a(f"buffer_load_dwordx4 {v(K1[1],4)}, {v(V_G16)}, {srd}, s{S_T+3} offen")
    a(f"s_add_u32 s{S_T+3}, s{S_T+7}, {63*512}")
    a(f"buffer_load_dwordx2 {v(K2[1],2)}, {v(V_A8)}, {srd}, s{S_T+3} offen")
    a(f"v_and_b32 {v(SA)}, 27, v0")
    a(f"v_cmp_eq_u32 vcc, 20, {v(SA)}") if False else None
    a(f"v_and_b32 {v(SA)}, 31, v0")
    a(f"v_and_b32 {v(SA+1)}, 27, {v(SA)}")
    a(f"v_cmp_eq_u32 s[22:23], 20, {v(SA)}")
    a(f"v_cmp_eq_u32 s[24:25], 24, {v(SA)}")
    a(f"v_mov_b32 {v(SA+2)}, 0x3f803f80")
    a("s_nop 0")
    a("s_or_b64 vcc, s[22:23], s[24:25]")
    a("s_nop 1")
    for i in range(4):
        a(f"v_cndmask_b32 {v(SA+4+i)}, 0, {v(SA+2)}, vcc")
    a(f"s_mul_i32 s{S_T+3}, s{S_WAVE}, {4*TILE_REC}")
    a(f"v_add_u32 {v(SA+3)}, s{S_T+3}, {v(V_G16)}")
    a("s_mov_b32 exec_lo, 0xfff00000")
    a("s_mov_b32 exec_hi, 0xfff00000")
    for rr in range(4):
        for mf in range(2):
            a(f"ds_write_b128 {v(SA+3)}, {v(SA+4,4)} offset:{rr*TILE_REC + 1024 + 1024*mf}")
    a("s_mov_b64 exec, -1")
    for r in list(range(OA, OA+32)) + list(range(PB, PB+8)) + list(range(SB+12, SB+16)) + list(range(VV0[1], VV0[1]+4)) + list(range(VV1[1], VV1[1]+4)) + list(range(VV0[0], VV0[0]+4)) + list(range(VV1[0], VV1[0]+4)):
        a(f"v_mov_b32 {v(r)}, 0")
    a(f"s_and_b32 s{S_T+3}, s{S_HEAD}, 1")
    a(f"s_cmp_eq_u32 s{S_T+3}, 0")
    a(f"s_cselect_b32 s{S_T+4}, 0, -1")
    a(f"s_cselect_b32 s{S_T+5}, -1, 0")
    a(f"s_mov_b32 s{S_BUFD}, {CH_BYTES}")
    a("s_mov_b32 s34, 0x011fffff")
    a("s_mov_b32 s35, 0x011fffff")
    a("s_waitcnt vmcnt(0)")
    a(f"s_mov_b64 exec, s[{S_T+4}:{S_T+5}]")
    for r in (Q2A, Q2A+1, Q2B, Q2B+1):
        a(f"v_mov_b32 {v(r)}, 0")
    a("s_mov_b64 exec, -1")
    a("s_nop 1")
    a("s_waitcnt lgkmcnt(0)")
    mfma32(a, SA, K1[1], Q1A, None)
    mfma32(a, SA, K2[1], Q2A, SA, k16=False)
    a(f"s_mov_b32 s{S_CNT}, 0")
    a("s_barrier")
    def rd(txt):
        if not OPT['nolds']: a(txt)
    def reads(st, off):
        rd(f"ds_read_b128 {v(K1[st],4)}, {v(V_A16)} offset:{off}")
        rd(f"ds_read_b64 {v(K2[st],2)}, {v(V_A8)} offset:{off+3072}")
        if OPT['vmask']: a("s_mov_b64 exec, s[34:35]")
        rd(f"ds_read_b128 {v(VV0[st],4)}, {v(V_A16)} offset:{off+1024}")
        rd(f"ds_read_b128 {v(VV1[st],4)}, {v(V_A16)} offset:{off+2048}")
        if OPT['vmask']: a("s_mov_b64 exec, -1")
    reads(0, 0)
    a("s_nop 7")
    if dbg_time:
        stamp(a, 1)
        a("s_waitcnt lgkmcnt(0)")
    off_stamp(a, 4, back=0, cond_wave=S_WAVE)
    loop = a.newlabel("attn_loop")
    a.raw(".p2align 6")
    a.label(loop)
    def E(Sr, i): a(f"v_exp_f32 {v(Sr+i)}, {v(Sr+i)}")
    def C(Sr, P, k): a(f"v_cvt_pk_bf16_f32 {v(P+k)}, {v(Sr+2*k)}, {v(Sr+2*k+1)}")
    PEND = []
    def phase(Sr, P, m, rds):
        if OPT['uni']:
            for q in range(4):
                m[q]()
                if q == 0:
                    for r_ in rds[0:2]: rd(r_)
                if q == 1 and rds:
                    if OPT['vmask']: a("s_mov_b64 exec, s[34:35]")
                    for r_ in rds[2:4]: rd(r_)
                    if OPT['vmask']: a("s_mov_b64 exec, -1")
                for i in range(4): E(Sr, 4*q+i)
                while PEND:
                    (s_, p_, k_) = PEND.pop(0); C(s_, p_, k_)
                PEND.append((Sr, P, 2*q)); PEND.append((Sr, P, 2*q+1))
            return
        if OPT['cl4']:
            m[0]()
            for r_ in rds[0:2]: rd(r_)
            for i in (0, 1, 2): E(Sr, i)
            m[1]()
            if rds and OPT['vmask']: a("s_mov_b64 exec, s[34:35]")
            for r_ in rds[2:4]: rd(r_)
            if rds and OPT['vmask']: a("s_mov_b64 exec, -1")
            for i in (3, 4, 5): E(Sr, i)
            m[2]()
            for i in (6, 7, 8): E(Sr, i)
            m[3]()
            for i in range(9, 16): E(Sr, i)
            for k in range(8): C(Sr, P, k)
            return
        m[0]()
        for r_ in rds[0:2]: rd(r_)
        for i in (0, 1, 2): E(Sr, i)
        m[1]()
        if rds and OPT['vmask']: a("s_mov_b64 exec, s[34:35]")
        for r_ in rds[2:4]: rd(r_)
        if rds and OPT['vmask']: a("s_mov_b64 exec, -1")
        for i in (3, 4, 5, 6, 7): E(Sr, i)
        for k in (0, 1, 2, 3): C(Sr, P, k)
        m[2]()
        for i in (8, 9, 10): E(Sr, i)
        m[3]()
        for i in (11, 12, 13, 14, 15): E(Sr, i)
        for k in (4, 5, 6, 7): C(Sr, P, k)
    if OPT['uni']:
        PEND.append((SB, PB, 6)); PEND.append((SB, PB, 7))
    for j in range(CH):
        p = j & 1; pn = p ^ 1
        phase(SA, PA, [lambda: mfma32(a, OB, VV0[pn], PB, OB), lambda: mfma32(a, SB, K1[pn], Q1B, None),
                       lambda: mfma32(a, SB, K2[pn], Q2B, SB, k16=False), lambda: mfma32(a, OB, VV1[pn], PB+4, OB)], [])
        if not OPT['nolds']: a("s_waitcnt lgkmcnt(0)")
        if j == CH-1:
            if not OPT['nobar']:
                a("s_barrier")
            a(f"v_add_u32 {v(V_A16)}, s{S_BUFD}, {v(V_A16)}")
            a(f"v_add_u32 {v(V_A8)}, s{S_BUFD}, {v(V_A8)}")
            a(f"s_sub_u32 s{S_BUFD}, 0, s{S_BUFD}")
            off = 0
        else:
            off = (j+1)*TILE_REC
        rds = [f"ds_read_b128 {v(K1[pn],4)}, {v(V_A16)} offset:{off}",
               f"ds_read_b64 {v(K2[pn],2)}, {v(V_A8)} offset:{off+3072}",
               f"ds_read_b128 {v(VV0[pn],4)}, {v(V_A16)} offset:{off+1024}",
               f"ds_read_b128 {v(VV1[pn],4)}, {v(V_A16)} offset:{off+2048}"]
        phase(SB, PB, [lambda: mfma32(a, OA, VV0[p], PA, OA), lambda: mfma32(a, SA, K1[p], Q1A, None),
                       lambda: mfma32(a, SA, K2[p], Q2A, SA, k16=False), lambda: mfma32(a, OA, VV1[p], PA+4, OA)], rds)
    a(f"s_add_u32 s{S_CNT}, s{S_CNT}, 1")
    a(f"s_cmp_lt_u32 s{S_CNT}, {NCH}")
    a(f"s_cbranch_scc1 {loop}")
    if dbg_time: stamp(a, 2)
    if OPT['uni']:
        while PEND:
            (s_, p_, k_) = PEND.pop(0); C(s_, p_, k_)
    a("s_nop 1")
    mfma32(a, OB, VV0[1], PB, OB)
    mfma32(a, OB, VV1[1], PB+4, OB)
    off_stamp(a, 5, back=0, cond_wave=S_WAVE)
    off_stamp(a, 6, neg=True, back=0, cond_wave=S_WAVE)
    safety_check_and_fallback(a)
    T = 84
    a(f"v_and_b32 {v(T)}, 31, v0")
    a(f"v_lshrrev_b32 {v(T+1)}, 5, v0")
    a(f"v_cmp_eq_u32 vcc, 0, {v(T+1)}")
    if FUSE:
        a(f"s_mul_i32 s{S_T}, s{S_WAVE}, {64*OREC}")
        a(f"s_add_u32 s{S_T}, s{S_T}, 61440")
        a(f"v_mul_u32_u24 {v(T)}, {OREC}, {v(T)}")
        a(f"v_lshl_add_u32 {v(T)}, {v(T+1)}, 3, {v(T)}")
        a(f"v_add_u32 {v(T)}, s{S_T}, {v(T)}")
        a(f"v_lshlrev_b32 {v(T+2)}, 4, v0")
        a(f"v_add_u32 {v(T+10)}, s{S_T}, {v(T+2)}")
        a(f"s_lshl_b32 s{S_T+1}, s{S_QB}, 1")
        a(f"s_lshr_b32 s{S_T+2}, s{S_WAVE}, 1")
        a(f"s_add_u32 s{S_T+1}, s{S_T+1}, s{S_T+2}")
        a(f"s_lshl_b32 s{S_T+1}, s{S_T+1}, 5")
        a(f"s_add_u32 s{S_T+1}, s{S_T+1}, s{S_HEAD}")
        a(f"s_mul_i32 s{S_T+1}, s{S_T+1}, {OBLK}")
        a(f"s_and_b32 s{S_T+2}, s{S_WAVE}, 1")
        a(f"s_mul_i32 s{S_T+2}, s{S_T+2}, {64*OREC}")
        a(f"s_add_u32 s{S_T+2}, s{S_T+2}, s{S_T+1}")
        a(f"s_add_u32 s{S_T+2}, s{S_T+2}, {WS_OBF}")
    else:
        a(f"s_lshl_b32 s{S_T}, s{S_QB}, 8")
        a(f"s_lshl_b32 s{S_T+1}, s{S_WAVE}, 6")
        a(f"s_add_u32 s{S_T}, s{S_T}, s{S_T+1}")
        a(f"v_add_u32 {v(T)}, s{S_T}, {v(T)}")
        a(f"v_mul_u32_u24 {v(T)}, 1280, {v(T)}")
        a(f"v_lshlrev_b32 {v(T+2)}, 3, {v(T+1)}")
        a(f"v_add_u32 {v(T)}, {v(T)}, {v(T+2)}")
        a(f"s_mul_i32 s{S_T+2}, s{S_HEAD}, 40")
        a(f"s_add_u32 s{S_T+2}, s{S_T+2}, {WS_OB}")
    a("s_nop 1")
    for n_, (O, extra) in enumerate(((OA, 0), (OB, 32*1280))):
        if n_ == 1:
            a("s_nop 7")
        a(f"v_cndmask_b32 {v(T+3)}, {v(O+8)}, {v(O+12)}, vcc")
        a(f"v_rcp_f32 {v(T+3)}, {v(T+3)}")
        a("s_nop 0")
        for i in range(12):
            a(f"v_mul_f32 {v(O+i)}, {v(O+i)}, {v(T+3)}")
        for i in range(6):
            a(f"v_cvt_pk_bf16_f32 {v(T+4+i)}, {v(O+2*i)}, {v(O+2*i+1)}")
        if FUSE:
            off = n_*32*OREC
            a(f"v_cndmask_b32 {v(T+8)}, 0, {v(T+8)}, vcc")
            a(f"v_cndmask_b32 {v(T+9)}, 0, {v(T+9)}, vcc")
            a(f"ds_write_b64 {v(T)}, {v(T+4,2)} offset:{off}")
            a(f"ds_write_b64 {v(T)}, {v(T+6,2)} offset:{off+16}")
            a(f"ds_write_b64 {v(T)}, {v(T+8,2)} offset:{off+32}")
        else:
            if extra:
                a(f"s_add_u32 s{S_T+2}, s{S_T+2}, {extra}")
            a(f"buffer_store_dwordx2 {v(T+4,2)}, {v(T)}, {srd}, s{S_T+2} offen")
            a(f"buffer_store_dwordx2 {v(T+6,2)}, {v(T)}, {srd}, s{S_T+2} offen offset:16")
            a("s_mov_b32 exec_hi, 0")
            a(f"buffer_store_dwordx2 {v(T+8,2)}, {v(T)}, {srd}, s{S_T+2} offen offset:32")
            a(f"s_mov_b64 exec, -1")
    if FUSE:
        a("s_waitcnt lgkmcnt(0)")
        a(f"ds_read_b128 {v(4,4)}, {v(T+10)}")
        a(f"ds_read_b128 {v(8,4)}, {v(T+10)} offset:1024")
        a(f"ds_read_b128 {v(12,4)}, {v(T+10)} offset:2048")
        a("s_waitcnt lgkmcnt(0)")
        a(f"buffer_store_dwordx4 {v(4,4)}, {v(T+2)}, {srd}, s{S_T+2} offen sc1")
        a(f"buffer_store_dwordx4 {v(8,4)}, {v(T+2)}, {srd}, s{S_T+2} offen offset:1024 sc1")
        a(f"buffer_store_dwordx4 {v(12,4)}, {v(T+2)}, {srd}, s{S_T+2} offen offset:2048 sc1")
    if FUSE:
        a("s_waitcnt vmcnt(0) lgkmcnt(0)")
        a("s_barrier")
        lnf = a.newlabel("att_noflag")
        a(f"s_cmp_lg_u32 s{S_WAVE}, 0")
        a(f"s_cbranch_scc1 {lnf}")
        a(f"s_lshl_b32 s{S_T}, s{S_QB}, 7")
        a(f"s_add_u32 s{S_T}, s{S_T}, {WS_FLAGB}")
        a(f"s_lshl_b32 s{S_T+1}, s{S_HEAD}, 2")
        a(f"v_mov_b32 {v(T)}, s{S_T+1}")
        a(f"v_mov_b32 {v(T+1)}, s98")
        a("s_mov_b64 exec, 1")
        a(f"buffer_store_dword {v(T+1)}, {v(T)}, {srd}, s{S_T} offen sc1")
        a("s_mov_b64 exec, -1")
        a.label(lnf)
        lx = a.newlabel("att_exit")
        a("s_bitcmp1_b32 s2, 3")
        a(f"s_cbranch_scc1 {lx}")
        a(f"s_mov_b32 s60, s{S_WAVE}")
        a(f"s_mov_b32 s{gemm.S_WAVE}, s60")
        a("s_setprio 0")
        a("s_mov_b32 s42, 1")
        if os.environ.get('FALL', '1') == '1': outp.emit_compute(a)
        else: a(f"s_branch {outp.L_COMPUTE}")
        a.label(lx)
        if dbg_time: a(f"s_mov_b32 s{S_WAVE}, s60") if False else None
    if dbg_time:
        a("s_waitcnt vmcnt(0)")
        stamp_end(a, WS_DBG, KA_WS, 61)
    a("s_endpgm")
```

```python
from asmlib import *
from layout import *
import gemm
from gemm import G, XBYTES, S_X, S_W, S_O, S_WAVE, S_T, S_RB, S_CB, GOPT, compute_addrs, rd_list, mf_list, interleave, mfmas
from roles import srd, srd_fin
import os

NB = 5
NS = 24
OF = G(NC=96, wstride=1280, acc0=80, vbase=1, NB=5, INIT=3)
RBB = 32 * OBLK
S_XO = 21; S_WO = 22; S_TT = 58

def scalars(a, branch=None):
    srd(a, S_X, KA_WS, 0); srd(a, S_O, KA_OUT, 0); srd(a, S_W, KA_AWO, 0)
    a(f"s_load_dwordx2 s[46:47], s[0:1], {KA_BWO}")
    a(f"s_load_dwordx2 s[62:63], s[0:1], {KA_WS}")
    a(f"s_and_b32 s{S_T}, s2, 7")
    a(f"s_lshr_b32 s{S_T+1}, s2, 4")
    a(f"s_lshl_b32 s{S_RB}, s{S_T}, 1")
    a(f"s_lshr_b32 s{S_T+2}, s{S_T+1}, 3")
    a(f"s_add_u32 s{S_RB}, s{S_RB}, s{S_T+2}")
    a(f"s_and_b32 s{S_CB}, s{S_T+1}, 7")
    a(f"s_mul_i32 s{S_T+3}, s{S_RB}, {RBB}")
    a(f"s_mul_i32 s{S_T+4}, s42, {WS_OBF - WS_OAF}")
    a(f"s_add_u32 s{S_T+3}, s{S_T+3}, s{S_T+4}")
    a(f"s_add_u32 s{S_T+3}, s{S_T+3}, {WS_OAF}")
    a("s_waitcnt lgkmcnt(0)")
    a(f"s_cmp_eq_u32 s42, 0")
    a(f"s_cselect_b32 s{S_W}, s{S_W}, s46")
    a(f"s_cselect_b32 s{S_W+1}, s{S_W+1}, s47")
    a(f"s_add_u32 s{S_X}, s{S_X}, s{S_T+3}")
    a(f"s_addc_u32 s{S_X+1}, s{S_X+1}, 0")
    srd_fin(a, S_X, RBB); srd_fin(a, S_W, 640*1280); srd_fin(a, S_O, 2048*2560)
    a("s_mov_b32 s64, s62"); a("s_mov_b32 s65, s63")
    a(f"s_mov_b32 s66, {WS_SIZE_SRD}"); a("s_mov_b32 s67, 0x00020000")

def poll(a, branch=None):
    lw = a.newlabel("op_nopoll")
    a(f"s_cmp_lg_u32 s{S_WAVE}, 0")
    a(f"s_cbranch_scc1 {lw}")
    a(f"s_lshr_b32 s{S_T}, s{S_RB}, s42")
    a(f"s_lshl_b32 s{S_T}, s{S_T}, 7")
    a(f"s_mov_b32 s{S_T+5}, {WS_FLAGA}")
    a(f"s_cmp_eq_u32 s42, 0")
    a(f"s_cselect_b32 s{S_T+5}, s{S_T+5}, {WS_FLAGB}")
    a(f"s_cselect_b32 s49, 0xffff, -1")
    a(f"s_add_u32 s{S_T}, s{S_T}, s{S_T+5}")
    a(f"s_mov_b32 exec_lo, s49")
    a(f"s_mov_b32 exec_hi, 0")
    a(f"v_lshlrev_b32 v3, 2, v0")
    a(f"s_mov_b32 s{S_T+1}, 0")
    lp = a.newlabel("op_poll"); lpd = a.newlabel("op_poll_done")
    a(f"buffer_load_dword v4, v3, s[64:67], s{S_T} offen sc1")
    a("s_sleep 6")
    a(f"buffer_load_dword v5, v3, s[64:67], s{S_T} offen sc1")
    a("s_sleep 6")
    a.label(lp)
    for (cur, nxt) in ((4, 6), (5, 4), (6, 5)):
        a(f"buffer_load_dword v{nxt}, v3, s[64:67], s{S_T} offen sc1")
        a("s_waitcnt vmcnt(2)")
        a(f"v_cmp_eq_u32 vcc, s98, v{cur}")
        a("s_nop 1")
        a(f"s_cmp_eq_u32 vcc_lo, s49")
        a(f"s_cbranch_scc1 {lpd}")
        a("s_sleep 4")
    a(f"s_add_u32 s{S_T+1}, s{S_T+1}, 1")
    a(f"s_cmp_lt_u32 s{S_T+1}, 0x20000")
    a(f"s_cbranch_scc1 {lp}")
    a.label(lpd)
    a("s_waitcnt vmcnt(0)")
    a("s_mov_b64 exec, -1")
    a.label(lw)
    a("s_barrier")
ACQ = False
XPF = False

NS = 16
NBR = 4
XST = 2*OBLK
WST = 8192
WBASE = NBR*XST
VW0, VW1, VL16 = 16, 17, 18
def loader_setup(a):
    t0, t1, t2, t3 = 3, 4, 5, 6
    a(f"v_lshlrev_b32 {v(VL16)}, 4, v0")
    for i, dst in enumerate((VW0, VW1)):
        a(f"s_lshl_b32 s{S_T}, s{S_WAVE}, 7")
        if i: a(f"s_add_u32 s{S_T}, s{S_T}, 64")
        a(f"v_add_u32 {v(t0)}, s{S_T}, v0")
        a(f"v_mul_u32_u24 {v(t1)}, 43691, {v(t0)}")
        a(f"v_lshrrev_b32 {v(t1)}, 19, {v(t1)}")
        a(f"v_mul_u32_u24 {v(t2)}, 12, {v(t1)}")
        a(f"v_sub_u32 {v(t2)}, {v(t0)}, {v(t2)}")
        a(f"v_lshlrev_b32 {v(t2)}, 4, {v(t2)}")
        a(f"v_mul_u32_u24 {v(t3)}, 1280, {v(t1)}")
        a(f"v_add_u32 {v(t3)}, {v(t3)}, {v(t2)}")
        a(f"v_cmp_le_u32 vcc, 40, {v(t1)}")
        a(f"v_mov_b32 {v(t2)}, 0x7ff00000")
        a("s_nop 0")
        a(f"v_cndmask_b32 {v(dst)}, {v(t3)}, {v(t2)}, vcc")
    a(f"s_lshl_b32 s{S_TT}, s{S_CB}, 1")
    a(f"s_mul_i32 s{S_XO}, s{S_TT}, {XST}")
    a(f"s_mul_i32 s{S_T}, s{S_WAVE}, 3072")
    a(f"s_add_u32 s{S_XO}, s{S_XO}, s{S_T}")
    a(f"s_mov_b32 s{S_T+2}, s{S_T}")
    a(f"s_lshl_b32 s{S_T+3}, s{S_WAVE}, 11")
    a(f"s_mov_b32 s60, s{S_TT}")
    a(f"s_mul_i32 s{S_WO}, s{S_TT}, {40*1280}")
    a(f"s_mul_i32 s{S_T}, s{S_CB}, 160")
    a(f"s_and_b32 s{S_T}, s{S_T}, -64")
    a(f"s_add_u32 s{S_WO}, s{S_WO}, s{S_T}")
    a(f"s_mov_b32 s68, {XST - 16*XST}")
    a(f"s_mov_b32 s69, {40*1280 - 16*40*1280}")
    a(f"s_mov_b32 s63, {40*1280}")

def issue_w(a, s_):
    slot = s_ % NBR
    sw = f"s[{S_W}:{S_W+3}]"
    a(f"s_add_u32 m0, s{S_T+3}, {WBASE + slot*WST}")
    a(f"s_add_u32 s60, s60, 1")
    a(f"buffer_load_dwordx4 {v(VW0)}, {sw}, s{S_WO} offen lds")
    a(f"s_add_u32 m0, s{S_T+3}, {WBASE + slot*WST + 1024}")
    a(f"s_cmp_eq_u32 s60, 16")
    a(f"buffer_load_dwordx4 {v(VW1)}, {sw}, s{S_WO} offen lds")
    a(f"s_cselect_b32 s{S_T+4}, s69, s63")
    a(f"s_add_u32 s{S_WO}, s{S_WO}, s{S_T+4}")
    return 2
def issue_x(a, s_):
    slot = s_ % NBR
    sx = f"s[{S_X}:{S_X+3}]"
    a(f"s_add_u32 m0, s{S_T+2}, {slot*XST}")
    a(f"s_add_u32 s{S_TT}, s{S_TT}, 1")
    for i in range(3):
        a(f"buffer_load_dwordx4 {v(VL16)}, {sx}, s{S_XO} offen offset:{1024*i}{os.environ.get('XSC', ' sc1')} lds")
    a(f"s_cmp_eq_u32 s{S_TT}, 16")
    a(f"s_cselect_b32 s{S_T+4}, s68, {XST}")
    a(f"s_add_u32 s{S_XO}, s{S_XO}, s{S_T+4}")
    return 3

def loader(a, branch):
    scalars(a, branch)
    loader_setup(a)
    a("s_barrier")
    INIT = NBR - 1
    seq = []
    for i in range(INIT):
        issue_w(a, i); seq += [i]*2
    poll(a, branch)
    for i in range(INIT):
        issue_x(a, i); seq += [i]*3
    issued = INIT
    for s_ in range(NS):
        last = max(i for i, st in enumerate(seq) if st == s_)
        if GOPT['ststamp']:
            a("s_memtime s[90:91]"); a("s_waitcnt lgkmcnt(0)"); a(f"v_writelane_b32 v11, s90, {s_}")
        a(f"s_waitcnt vmcnt({len(seq) - 1 - last})")
        if GOPT['ststamp']:
            a("s_memtime s[90:91]"); a("s_waitcnt lgkmcnt(0)"); a(f"v_writelane_b32 v12, s90, {s_}")
        a("s_barrier")
        if GOPT['ststamp']:
            a("s_memtime s[90:91]"); a("s_waitcnt lgkmcnt(0)"); a(f"v_writelane_b32 v10, s90, {s_}")
        while issued < NS and issued <= s_ + NBR - 1:
            issue_w(a, issued); issue_x(a, issued)
            seq += [issued]*5
            issued += 1
    if GOPT['ststamp']:
        a(f"s_lshl_b32 s92, s2, 11")
        a(f"s_lshl_b32 s93, s{S_WAVE}, 9")
        a("s_add_u32 s92, s92, s93")
        a(f"s_lshl_b32 s93, s42, 20")
        a(f"s_add_u32 s92, s92, s93")
        a(f"s_add_u32 s92, s92, {0x1C00000}")
        a("v_lshlrev_b32 v13, 2, v0")
        a("s_mov_b64 exec, 0x3ffffff")
        a("buffer_store_dword v10, v13, s[64:67], s92 offen")
        a("buffer_store_dword v11, v13, s[64:67], s92 offen offset:128")
        a("buffer_store_dword v12, v13, s[64:67], s92 offen offset:256")
        a("s_mov_b64 exec, -1")
    a("s_endpgm")

ACC = 80
XF = [8, 12]
WF = [[16, 20, 24], [28, 32, 36]]
VXA, VXC, VWA, VWC = 1, 2, 3, 4
def compute(a, dbg=False):
    VT = 64
    t0, t1, t2 = VT, VT+1, VT+2
    a(f"v_and_b32 {v(t0)}, 31, v0")
    a(f"s_lshl_b32 s{S_T}, s{S_WAVE}, 5")
    a(f"v_add_u32 {v(t0)}, s{S_T}, {v(t0)}")
    a(f"v_mul_u32_u24 {v(t0)}, {OREC}, {v(t0)}")
    a(f"v_lshrrev_b32 {v(t1)}, 5, v0")
    a(f"v_lshl_add_u32 {v(VXA)}, {v(t1)}, 4, {v(t0)}")
    a(f"v_mul_u32_u24 {v(t2)}, {OBLK}, {v(t1)}")
    a(f"v_add3_u32 {v(VXC)}, {v(t0)}, {v(t2)}, 32")
    a(f"v_bfe_u32 {v(t0)}, v0, 2, 2")
    a(f"v_bfe_u32 {v(t2)}, v0, 4, 1")
    a(f"v_lshlrev_b32 {v(t2)}, 5, {v(t2)}")
    a(f"v_and_b32 {v(VWC)}, 3, v0")
    a(f"v_lshl_add_u32 {v(t2)}, {v(VWC)}, 3, {v(t2)}")
    a(f"v_add_u32 {v(t2)}, {WBASE}, {v(t2)}")
    a(f"s_and_b32 s{S_T}, s{S_CB}, 1")
    a(f"s_lshl_b32 s{S_T}, s{S_T}, 5")
    a(f"v_add_u32 {v(t2)}, s{S_T}, {v(t2)}")
    a(f"v_lshl_add_u32 {v(VWA)}, {v(t1)}, 3, {v(t0)}")
    a(f"v_mul_u32_u24 {v(VWA)}, 192, {v(VWA)}")
    a(f"v_add_u32 {v(VWA)}, {v(VWA)}, {v(t2)}")
    a(f"v_mul_u32_u24 {v(VWC)}, 20, {v(t1)}")
    a(f"v_add3_u32 {v(VWC)}, {v(VWC)}, {v(t0)}, 16")
    a(f"v_mul_u32_u24 {v(VWC)}, 192, {v(VWC)}")
    a(f"v_add_u32 {v(VWC)}, {v(VWC)}, {v(t2)}")
    for r in range(ACC, ACC+48):
        a(f"v_mov_b32 {v(r)}, 0")
    a("s_barrier")
    off_stamp(a, 7, back=0, cond_wave=S_WAVE, va=70)
    if dbg: a("s_memtime s[76:77]")
    if XPF:
        lsk = a.newlabel("xpf_skip")
        a(f"s_cmp_eq_u32 s{S_WAVE}, 3")
        a(f"s_cbranch_scc1 {lsk}")
        a(f"s_mul_i32 s{S_T}, s{S_CB}, 192")
        a(f"s_lshl_b32 s{S_T+1}, s{S_WAVE}, 6")
        a(f"s_add_u32 s{S_T}, s{S_T}, s{S_T+1}")
        a(f"v_add_u32 {v(VT)}, s{S_T}, v0")
        a(f"v_lshlrev_b32 {v(VT)}, 7, {v(VT)}")
        a(f"buffer_load_dword {v(VT+1)}, {v(VT)}, s[{S_X}:{S_X+3}], 0 offen")
        a.label(lsk)
    def reads(stage, kind, b):
        slot = stage % NBR
        xo = slot*XST; wo = slot*WST
        L = []
        if kind == 'C':
            L.append((f"ds_read_b64 {v(XF[b],2)}, {v(VXC)} offset:{xo}", 'x'))
            for i in range(3):
                L.append((f"ds_read_b64_tr_b16 {v(WF[b][i],2)}, {v(VWC)} offset:{wo + i*64}", i))
        else:
            hb = 0 if kind == 'A' else 1
            L.append((f"ds_read_b128 {v(XF[b],4)}, {v(VXA)} offset:{xo + hb*OBLK}", 'x'))
            for i in range(3):
                off = wo + i*64 + hb*20*192
                L.append((f"ds_read_b64_tr_b16 {v(WF[b][i],2)}, {v(VWA)} offset:{off}", i))
                L.append((f"ds_read_b64_tr_b16 {v(WF[b][i]+2,2)}, {v(VWA)} offset:{off + 4*192}", i))
        return L
    def mf(kind, b, i):
        d = ACC + 16*i
        if kind == 'C':
            return f"v_mfma_f32_32x32x8_bf16 {v(d,16)}, {v(WF[b][i],2)}, {v(XF[b],2)}, {v(d,16)}"
        return f"v_mfma_f32_32x32x16_bf16 {v(d,16)}, {v(WF[b][i],4)}, {v(XF[b],4)}, {v(d,16)}"
    steps = [(st, k) for st in range(NBR) for k in 'ABC']
    queue = []
    def wait_for(step, tag):
        need = [n for n, (s_, t_) in enumerate(queue) if s_ == step and (t_ == tag or t_ == 'x')]
        if not need: return
        last = max(need)
        a(f"s_waitcnt lgkmcnt({min(15, len(queue) - 1 - last)})")
        del queue[:last+1]
    a("s_barrier")
    for (txt, tag) in reads(0, 'A', 0):
        a(txt); queue.append((0, tag))
    a(f"s_mov_b32 s{S_T+10}, 0")
    loop = a.newlabel("oc_loop")
    if os.environ.get('ALIGN', '0') == '1': a.raw('.p2align 6')
    a.label(loop)
    for n, (st, k) in enumerate(steps):
        b = n & 1
        last_step = (n + 1 == len(steps))
        nxt = steps[0] if last_step else steps[n+1]
        nidx = 0 if last_step else n + 1
        if nxt[1] == 'A':
            a("s_waitcnt lgkmcnt(0)"); queue.clear()
            if last_step:
                sk = a.newlabel("oc_nobar")
                a(f"s_cmp_eq_u32 s{S_T+10}, {NS//NBR - 1}")
                a(f"s_cbranch_scc1 {sk}")
                a("s_barrier")
                a.label(sk)
            else:
                a("s_barrier")
        R = reads(nxt[0], nxt[1], b ^ 1)
        per = [3, 2, 2] if len(R) == 7 else [2, 1, 1]
        kk = 0
        for i in range(3):
            wait_for(n, i)
            a(mf(k, b, i))
            for j in range(per[i]):
                a(R[kk][0]); queue.append((nidx + (100 if last_step else 0), R[kk][1])); kk += 1
    assert [q[1] for q in queue] == ['x', 0, 0, 1, 1, 2, 2]
    a(f"s_add_u32 s{S_T+10}, s{S_T+10}, 1")
    a(f"s_cmp_lt_u32 s{S_T+10}, {NS//NBR}")
    a(f"s_cbranch_scc1 {loop}")
    a("s_waitcnt lgkmcnt(0)")
    a("s_waitcnt vmcnt(0)")
    if dbg: a("s_memtime s[78:79]")
    so = f"s[{S_O}:{S_O+3}]"
    VA = VT
    a(f"v_and_b32 {v(VA)}, 31, v0")
    a(f"s_lshl_b32 s{S_T}, s{S_RB}, 7")
    a(f"s_lshl_b32 s{S_T+1}, s{S_WAVE}, 5")
    a(f"s_add_u32 s{S_T}, s{S_T}, s{S_T+1}")
    a(f"v_add_u32 {v(VA)}, s{S_T}, {v(VA)}")
    a(f"v_mul_u32_u24 {v(VA)}, 2560, {v(VA)}")
    a(f"v_lshrrev_b32 {v(VA+1)}, 5, v0")
    a(f"v_lshlrev_b32 {v(VA+1)}, 4, {v(VA+1)}")
    a(f"v_add_u32 {v(VA)}, {v(VA)}, {v(VA+1)}")
    a(f"s_mul_i32 s{S_T+2}, s42, 1280")
    a(f"s_mul_i32 s{S_T+3}, s{S_CB}, 160")
    a(f"s_add_u32 s{S_T+2}, s{S_T+2}, s{S_T+3}")
    a("s_nop 7")
    a("s_nop 3")
    for pr in range(5):
        G0 = 2*pr
        R0 = ACC + 16*(G0//4) + 4*(G0 % 4)
        R1 = R0 + 4
        P_ = VT + 4 + 4*(pr % 2)
        a(f"v_cvt_pk_bf16_f32 {v(P_)}, {v(R0)}, {v(R0+1)}")
        a(f"v_cvt_pk_bf16_f32 {v(P_+1)}, {v(R0+2)}, {v(R0+3)}")
        a(f"v_cvt_pk_bf16_f32 {v(P_+2)}, {v(R1)}, {v(R1+1)}")
        a(f"v_cvt_pk_bf16_f32 {v(P_+3)}, {v(R1+2)}, {v(R1+3)}")
        a("s_nop 1")
        a(f"v_permlane32_swap_b32 {v(P_)}, {v(P_+2)}")
        a(f"v_permlane32_swap_b32 {v(P_+1)}, {v(P_+3)}")
        a("s_nop 1")
        a(f"buffer_store_dwordx4 {v(P_,4)}, {v(VA)}, {so}, s{S_T+2} offen offset:{32*pr}" + os.environ.get('OUTF', ''))
    if OFFDBG[0]:
        a("s_waitcnt vmcnt(0)")
        off_stamp(a, 8, back=0, cond_wave=S_WAVE, va=78)

def publish_block(a, PK, vt, lds_base_sgpr, ntok, srd_txt, soff_sgpr):
    pass


L_LOADER = "L_out_loader_shared"
L_COMPUTE = "L_out_compute_shared"
def emit_loader(a):
    a.label(L_LOADER)
    loader(a, None)
def emit_compute(a):
    a.label(L_COMPUTE)
    scalars(a)
    compute(a, False)
    a("s_endpgm")
def emit_shared(a, dbg=False):
    if os.environ.get('FALL', '1') == '1': return
    emit_loader(a)
    emit_compute(a)
```
